```python
import torch

def _softmax(x, axis=-1):
    return torch.softmax(x, dim=axis)
def _gelu(x):
    return torch.nn.functional.gelu(x, approximate="tanh")
def _silu(x):
    return torch.nn.functional.silu(x)
def _sigmoid(x):
    return torch.sigmoid(x)
def _layernorm(x, axis=-1, eps=1e-5):
    m = x.mean(dim=axis, keepdim=True)
    v = x.var(dim=axis, keepdim=True, unbiased=False)
    return (x - m) / torch.sqrt(v + eps)
def _scatter_add(tgt, idx, src, axis=0):
    return tgt.clone().index_add_(axis, idx, src)
def _segment_sum(src, seg, n):
    out = torch.zeros((n,) + src.shape[1:], dtype=src.dtype)
    return out.index_add_(0, seg, src)
def _pad(x, pw):
    flat = tuple(v for pair in reversed(pw) for v in pair)
    return torch.nn.functional.pad(x, flat)

kernel_name = 'recurrent_scan__mha_block_cached__mixer_token_mlp__prompt'

def setup_inputs():

    _w = (lambda a: (lambda t: t.to(torch.bfloat16) if t.is_floating_point() else t)(torch.as_tensor(a)))
    def _A_setup():
        B, Sq, D = 1, 2048, 1024
        H, Sk, Dh = 32, 2048, 128
        return {
            "x": _w((lambda *s: torch.randn(*s, dtype=torch.bfloat16) * 0.05)(B, Sq, D)),
            "k_cache": _w((lambda *s: torch.randn(*s, dtype=torch.bfloat16) * 3.2)(B, H, Sk, Dh)),
            "v_cache": _w((lambda *s: torch.randn(*s, dtype=torch.bfloat16) * 3.2)(B, H, Sk, Dh)),
            "wq": _w((lambda *s: torch.randn(*s, dtype=torch.bfloat16) * 3.2)(D, H * Dh) * (D ** -0.5)),
            "wo": _w((lambda *s: torch.randn(*s, dtype=torch.bfloat16) * 3.2)(H * Dh, D) * ((H * Dh) ** -0.5)),
        }
    _A_in = _A_setup()

    def _B_setup():
        B, S, D, F = 1, 2048, 1024, 3584
        return {
            "x": _w((lambda *s: torch.randn(*s, dtype=torch.bfloat16) * 0.05)(B, S, D)),
            "w1": _w((lambda *s: torch.randn(*s, dtype=torch.bfloat16) * 3.2)(S, F) * (S ** -0.5)),
            "b1": _w((lambda *s: torch.randn(*s, dtype=torch.bfloat16) * 3.2)(F) * 0.02),
            "w2": _w((lambda *s: torch.randn(*s, dtype=torch.bfloat16) * 0.4)(F, S) * (F ** -0.5)),
            "b2": _w((lambda *s: torch.randn(*s, dtype=torch.bfloat16) * 0.4)(S) * 0.02),
        }
    _B_in = _B_setup()

    return {
        "A_x": _A_in["x"],
        "A_k_cache": _A_in["k_cache"],
        "A_v_cache": _A_in["v_cache"],
        "A_wq": _A_in["wq"],
        "A_wo": _A_in["wo"],
        "B_x": _B_in["x"],
        "B_w1": _B_in["w1"],
        "B_b1": _B_in["b1"],
        "B_w2": _B_in["w2"],
        "B_b2": _B_in["b2"],
    }

def reference(A_x, A_k_cache, A_v_cache, A_wq, A_wo, B_x, B_w1, B_b1, B_w2, B_b2):
    def _A_ref(x, k_cache, v_cache, wq, wo):
        B, Sq, D = x.shape
        H, Dh = 32, 128
        q = (lambda x, *d: x.permute(*d))((x @ wq).reshape(B, Sq, H, Dh), 0, 2, 1, 3)
        scores = torch.einsum("bhqd,bhkd->bhqk", q, k_cache) * (Dh ** -0.5)
        p = _softmax(scores, axis=-1)
        o = torch.einsum("bhqk,bhkd->bhqd", p, v_cache)
        return (lambda x, *d: x.permute(*d))(o, 0, 2, 1, 3).reshape(B, Sq, H * Dh) @ wo

    def _B_ref(x, w1, b1, w2, b2):
        B, S, D = x.shape
        h = _layernorm(x, axis=-1)
        u = torch.einsum("bsd,sf->bdf", h, w1) + b1
        u = _gelu(u)
        y = torch.einsum("bdf,fs->bds", u, w2) + b2
        return (lambda x, *d: x.permute(*d))(y, 0, 2, 1)

    x = A_x
    xn = _layernorm(x, axis=-1)
    s = _A_ref(xn, A_k_cache, A_v_cache, A_wq, A_wo)
    g = _silu(_B_ref(xn, B_w1, B_b1, B_w2, B_b2))
    return x + s * g
```

```python
import re

def R(kind, lo, n=1):
    return f'{kind}{lo}' if n == 1 else f'{kind}[{lo}:{lo+n-1}]'
def regs(kind, lo, n=1):
    return [(kind, lo + i) for i in range(n)]

class Reg:
    def __init__(self, kind, lo, n=1):
        self.kind, self.lo, self.n = kind, lo, n
    def __str__(self): return R(self.kind, self.lo, self.n)
    def sub(self, off, n=1):
        assert off + n <= self.n, (off, n, self.n)
        return Reg(self.kind, self.lo + off, n)
    def set(self): return regs(self.kind, self.lo, self.n)
def V(lo, n=1): return Reg('v', lo, n)
def A(lo, n=1): return Reg('a', lo, n)

class Wait:
    def __init__(self): self.lg = None; self.vm = None
    def need(self, cls, n):
        if cls == 'ds': self.lg = n if self.lg is None else min(self.lg, n)
        else: self.vm = n if self.vm is None else min(self.vm, n)
    def merge(self, o):
        if o.lg is not None: self.need('ds', o.lg)
        if o.vm is not None: self.need('vm', o.vm)
    def text(self):
        p = []
        if self.vm is not None: p.append(f'vmcnt({self.vm})')
        if self.lg is not None: p.append(f'lgkmcnt({self.lg})')
        return 's_waitcnt ' + ' '.join(p) if p else None

class Op:
    def __init__(self, text, kind, rd=(), wr=(), tag=None, waittags=()):
        self.text, self.kind, self.rd, self.wr, self.tag, self.waittags = text, kind, list(rd), list(wr), tag, list(waittags)

def mfma(d, a, b, c):
    rd = a.set() + b.set() + (c.set() if isinstance(c, Reg) else [])
    return Op(f'v_mfma_f32_16x16x32_bf16 {d}, {a}, {b}, {c}', 'mfma', rd=rd)
def valu(text, rd=()):
    r = []
    for x in rd: r += x.set()
    return Op(text, 'valu', rd=r)
def salu(text): return Op(text, 's')
def ds_tr(d, addr, off): return Op(f'ds_read_b64_tr_b16 {d}, {addr} offset:{off}', 'ds', wr=d.set())
def ds_128(d, addr, off): return Op(f'ds_read_b128 {d}, {addr} offset:{off}', 'ds', wr=d.set())
def vload(text, d=None, tag=None): return Op(text, 'vm', wr=d.set() if d is not None else (), tag=tag)
def vstore(text, rd=()):
    r = []
    for x in rd: r += x.set()
    return Op(text, 'vm', rd=r)
def barrier(tags=(), lg0=False):
    o = Op('s_barrier', 's', waittags=tags); o.lg0 = lg0
    return o

class Stream:
    MAXC = {'ds': 15, 'vm': 63}
    def __init__(self):
        self.items = []
        self.issued = {'ds': 0, 'vm': 0}
        self.done = {'ds': 0, 'vm': 0}
        self.pend = {}
        self.tags = {}
    def raw(self, text):
        for l in text.split('\n'):
            if l.strip(): self.items.append(l.strip())
    def _needs(self, op):
        n = {'ds': 0, 'vm': 0}
        for r in op.rd + op.wr:
            if r in self.pend:
                c, s = self.pend[r]; n[c] = max(n[c], s)
        for t in op.waittags:
            n['vm'] = max(n['vm'], self.tags[t])
        if getattr(op, 'lg0', False): n['ds'] = self.issued['ds']
        return n
    def _wait(self, w, n):
        for c in n:
            if n[c] > self.done[c]:
                w.need(c, min(self.issued[c] - n[c], self.MAXC[c])); self.done[c] = n[c]
    def _issue(self, op):
        self.items.append(op.text)
        if op.kind in ('ds', 'vm'):
            self.issued[op.kind] += 1
            for r in op.wr: self.pend[r] = (op.kind, self.issued[op.kind])
            if op.tag: self.tags[op.tag] = self.issued[op.kind]
    def op(self, op):
        w = Wait(); self._wait(w, self._needs(op)); self.items.append(w); self._issue(op)
    def ops(self, l):
        for o in l: self.op(o)
    def gaps(self, mf, fill, nxt=None):
        for i, m in enumerate(mf):
            w0 = Wait(); self._wait(w0, self._needs(m)); self.items.append(w0)
            self._issue(m)
            w = Wait(); self.items.append(w)
            follow = mf[i + 1] if i + 1 < len(mf) else nxt
            look = list(fill[i]) + ([follow] if follow is not None else [])
            for o in look: self._wait(w, self._needs(o))
            for o in fill[i]:
                w2 = Wait(); self._wait(w2, self._needs(o)); self.items.append(w2)
                self._issue(o)
    def wait_all(self, vm=True, ds=True):
        w = Wait()
        if vm: w.need('vm', 0); self.done['vm'] = self.issued['vm']
        if ds: w.need('ds', 0); self.done['ds'] = self.issued['ds']
        self.items.append(w)
    def mark(self): return len(self.items)
    def fold(self, marks, label, sreg):
        trips = [self.items[marks[i]:marks[i + 1]] for i in range(len(marks) - 1)]
        body = trips[0]
        for t in trips[1:]:
            assert len(t) == len(body), (label, len(t), len(body))
            for x, y in zip(body, t):
                if isinstance(x, Wait): x.merge(y)
                else: assert x == y, (label, x, y)
        new = [f's_mov_b32 {sreg}, {-len(trips)}', '.p2align 3', f'{label}:'] + body + [f's_add_u32 {sreg}, {sreg}, 1', f's_cbranch_scc0 {label}']
        self.items[marks[0]:marks[-1]] = new
    def lines(self):
        out = []
        for it in self.items:
            if isinstance(it, Wait):
                t = it.text()
                if t: out.append(t)
            else: out.append(it)
        return out

RE_REG = re.compile(r'\b([va])(?:(\d+)\b|\[(\d+):(\d+)\])')
def _operands(text):
    m = text.split(None, 1)
    if len(m) < 2: return m[0], []
    ops = [x.strip() for x in m[1].split(',')]
    res = []
    for o in ops:
        mm = RE_REG.search(o.split()[0]) if o else None
        if mm:
            k = mm.group(1)
            lo = int(mm.group(2) if mm.group(2) is not None else mm.group(3)); hi = int(mm.group(2) if mm.group(2) is not None else mm.group(4))
            res.append({(k, i) for i in range(lo, hi + 1)})
        else: res.append(set())
    return m[0], res
TRANS = ('v_exp_', 'v_log_', 'v_rcp_', 'v_rsq_', 'v_sqrt_', 'v_sin_', 'v_cos_')
def classify(text):
    op, o = _operands(text)
    U = lambda l: set().union(*l) if l else set()
    d = dict(op=op, rd=set(), wr=set(), kind='s', ab=set(), c=set(), states=1, sdata=set())
    if op == 's_nop': d['states'] = int(text.split()[1]) + 1
    elif op.startswith('v_mfma'):
        d.update(kind='mfma', wr=o[0], ab=o[1] | o[2], c=o[3], rd=o[1] | o[2] | o[3])
    elif op.startswith('v_permlane'):
        d.update(kind='valu', wr=o[0] | o[1], rd=o[0] | o[1], perm=True)
    elif op.startswith('v_cmp') or op.startswith('v_readfirstlane') or op.startswith('v_readlane'):
        d.update(kind='valu', rd=U(o[1:]), lane=op.startswith('v_read'))
    elif op.startswith('v_'):
        d.update(kind='valu', wr=o[0], rd=U(o[1:]) | (o[0] if 'fmac' in op else set()), trans=op.startswith(TRANS),
                 dpp=('quad_perm' in text or 'row_' in text))
    elif op.startswith('ds_read'): d.update(kind='mem', wr=o[0], rd=o[1])
    elif op.startswith('ds_write'): d.update(kind='mem', rd=U(o))
    elif op.startswith('buffer_load') or op.startswith('global_load'):
        if text.rstrip().endswith('lds') or ' lds ' in text: d.update(kind='mem', rd=o[0], dma=True)
        else: d.update(kind='mem', wr=o[0], rd=o[1])
    elif op.startswith('buffer_store') or op.startswith('buffer_atomic'):
        d.update(kind='mem', rd=U(o), sdata=o[0] if 'x4' in op or 'x3' in op else set())
    elif op.startswith('global_store') or op.startswith('global_atomic'):
        d.update(kind='mem', rd=U(o), sdata=o[1] if 'x4' in op or 'x3' in op else set())
    d['m0w'] = bool(re.match(r's_\w+\s+m0\s*,', text))
    mm = re.match(r'v_read(?:first)?lane_b32\s+(s\d+)', text) or re.match(r'v_cmp\w*\s+(vcc|s\[\d+:\d+\])', text)
    d['sw'] = mm.group(1) if mm else None
    d['text'] = text
    return d
def hazards(lines):
    ins = []; labels = {}
    for l in lines:
        l = l.split(';')[0].strip()
        if not l or l.startswith('.'): continue
        if l.endswith(':'): labels[l[:-1]] = len(ins); continue
        ins.append(classify(l))
    errs = []
    def scan(seq):
        for i, c in enumerate(seq):
            dist = 0
            for j in range(i - 1, max(-1, i - 14), -1):
                p = seq[j]
                need = 0
                if p['kind'] == 'valu' and c['kind'] == 'mfma' and p['wr'] & c['rd']: need = 2
                if p['kind'] == 'mfma':
                    if c['kind'] == 'mfma':
                        if p['wr'] & c['ab']: need = 8
                        elif p['wr'] & c['c'] and p['wr'] != c['c']: need = 6
                        elif p['wr'] & c['wr'] and p['wr'] != c['c']: need = 6
                    elif c['kind'] in ('valu', 'mem') and p['wr'] & (c['rd'] | c['wr']): need = 8
                    if c['kind'] == 'valu' and p['c'] & c['wr']: need = max(need, 3)
                if p['kind'] == 'valu' and c['kind'] == 'valu':
                    if p.get('trans') and not c.get('trans') and p['wr'] & c['rd']: need = max(need, 1)
                    if (c.get('perm') or c.get('dpp')) and p['wr'] & c['rd']: need = max(need, 2)
                    if c.get('lane') and p['wr'] & c['rd']: need = max(need, 1)
                if p['sw']:
                    names = [p['sw']]
                    if p['sw'].startswith('s['):
                        lo = int(p['sw'][2:].split(':')[0]); names += [f's{lo}', f's{lo+1}']
                    used = any(re.search(r'(?<![\w\[])' + re.escape(n) + r'(?![\w])', c['text'].split(None, 1)[1] if ' ' in c['text'] else '') for n in names)
                    if used and c['kind'] == 'valu' and not c['sw'] == p['sw']: need = max(need, 2)
                    if used and c['kind'] == 'mem': need = max(need, 5)
                if p['m0w'] and c.get('dma'): need = max(need, 1)
                if p['sdata'] and c['kind'] in ('valu', 'mem', 'mfma') and p['sdata'] & c['wr']: need = max(need, 2)
                if need > dist: errs.append((p['text'], c['text'], dist, need))
                dist += p['states']
    scan(ins)
    for i, c in enumerate(ins):
        if c['op'].startswith('s_cbranch') or c['op'] == 's_branch':
            t = c['text'].split()[1]
            if t in labels:
                scan(ins[max(0, i - 14):i + 1] + ins[labels[t]:labels[t] + 14])
    return sorted(set(errs))

def kd(name, nv, acc, ns=96):
    return f'''.amdhsa_kernel {name}
  .amdhsa_next_free_vgpr {nv}
  .amdhsa_next_free_sgpr {ns}
  .amdhsa_accum_offset {acc}
  .amdhsa_group_segment_fixed_size 0
  .amdhsa_kernarg_size 104
  .amdhsa_user_sgpr_count 2
  .amdhsa_user_sgpr_kernarg_segment_ptr 1
  .amdhsa_system_sgpr_workgroup_id_x 1
  .amdhsa_float_denorm_mode_32 3
.end_amdhsa_kernel'''
def srd(s, base, size):
    return f's_mov_b32 s{s}, s{base}\ns_mov_b32 s{s+1}, s{base+1}\ns_mov_b32 s{s+2}, {size}\ns_mov_b32 s{s+3}, 0x20000'
```

```python
from fw import *

class Gemm:
    def __init__(self, name, nst, NA, acc, act, wr, waddr, pi, wsrd, wvoff, sW, wstride, m0base, sLds, asrd, avoff, sA, swap=False, sA2=None):
        self.__dict__.update(locals())
    def wfrag(self, G, ks): return self.wr.sub((G % 4) * 8 + ks * 4, 4)
    def afrag(self, s, ks, b): return self.act.sub((s % 4) * 8 * self.NA + (ks * self.NA + b) * 4, 4)
    def reads(self, G):
        s, e = divmod(G, 8)
        if s >= self.nst: return []
        o = []
        for ks in range(2):
            for tt in range(2):
                off = (s % 4) * 16384 + ks * 8192 + tt * (1024 if self.pi == 'id' else 4096)
                o.append(ds_tr(self.wfrag(G, ks).sub(2 * tt, 2), self.waddr.sub(e), off))
        return o
    def window(self, s):
        w = []
        for i in range(4):
            pre = [salu(f's_add_u32 m0, {self.sLds}, {self.m0base + (s % 4) * 16384}')] if i == 0 else []
            post = [salu(f's_add_u32 {self.sW}, {self.sW}, {64 * self.wstride}')] if i == 3 else []
            w.append((pre, vload(f'buffer_load_dwordx4 {self.wvoff.sub(i)}, {self.wsrd}, {self.sW} offen offset:{i*1024} lds', tag=f'{self.name}{s}'), post))
        n = 2 * self.NA
        for i in range(n):
            ks, b = divmod(i, self.NA)
            so = self.sA if i < 4 else self.sA2
            post = []
            if i == 3: post.append(salu(f's_add_u32 {self.sA}, {self.sA}, {n * 1024}'))
            if i == 7: post.append(salu(f's_add_u32 {self.sA2}, {self.sA2}, {n * 1024}'))
            d = self.afrag(s, ks, b)
            w.append(([], vload(f'buffer_load_dwordx4 {d}, {self.avoff}, {self.asrd}, {so} offen offset:{(i % 4) * 1024}', d), post))
        return w
    def positions(self):
        if self.NA == 2:
            return [(0, 7, 1), (0, 7, 3), (1, 0, 1), (1, 1, 1), (1, 2, 1), (1, 3, 1), (1, 4, 1), (1, 5, 1)]
        return [(0, 7, 1), (0, 7, 5), (1, 0, 1), (1, 0, 5), (1, 1, 1), (1, 1, 5), (1, 2, 1), (1, 2, 5), (1, 3, 1), (1, 3, 5), (1, 4, 1), (1, 4, 5)]
    def issue(self, st, elems):
        for pre, v, post in elems:
            st.ops(pre)
            if pre: st.raw('s_nop 0')
            st.op(v); st.ops(post)
    def start(self, st):
        st.op(barrier([f'{self.name}0'], lg0=True))
        for G in range(3): st.ops(self.reads(G))
    def mf(self, s, e, first_c=None):
        m = []
        for b in range(self.NA):
            for ks in range(2):
                w, x = self.wfrag(8 * s + e, ks), self.afrag(s, ks, b)
                c = first_c if (first_c is not None and s == 0 and ks == 0) else self.acc(e, b)
                m.append(mfma(self.acc(e, b), x, w, c) if self.swap else mfma(self.acc(e, b), w, x, c))
        return m
    def run(self, st, label, sreg, tail=None, extra=None, peel_first=False, first_c=None):
        ng = 2 * self.NA
        pos = self.positions()
        wins = {}
        def win(s):
            if s not in wins:
                wins[s] = self.window(s) if s < self.nst else (tail(s) if tail else [])
            return wins[s]
        marks = []
        carry = []
        for s in range(self.nst):
            if s % 4 == 0: marks.append(st.mark())
            for e in range(8):
                G = 8 * s + e
                fill = [[] for _ in range(ng)]
                sc = [[] for _ in range(ng + 1)]
                sc[0] += carry; carry = []
                rd = self.reads(G + 3) if e < 5 or e == 7 else (self.reads(G + 2) + self.reads(G + 3) if e == 6 else [])
                if self.NA == 2: gp = [0, 0, 2, 2] if len(rd) <= 4 else [0, 0, 1, 1, 2, 2, 3, 3]
                else: gp = [0, 2, 4, 6] if len(rd) <= 4 else list(range(8))
                for o, g in zip(rd, gp): fill[g].append(o)
                for (so, pe, pg), idx in zip(pos, range(len(pos))):
                    if pe != e: continue
                    w = win(s + 4 - so)
                    if idx >= len(w): continue
                    pre, v, post = w[idx]
                    sc[pg - 1] += pre; fill[pg].append(v); sc[pg + 1] += post
                if e == 5 and s + 1 < self.nst:
                    fill[ng - 1].append(barrier([f'{self.name}{s+1}'], lg0=True))
                if extra:
                    for g, l in extra(s, e).items(): fill[g] += l
                carry = sc[ng]
                if e == 7 and s % 4 == 3:
                    sc[ng - 1] = sc[ng - 1]; fill[ng - 1] += carry; carry = []
                for g in range(ng): fill[g] = sc[g] + fill[g]
                nxt = self.mf(s, e + 1, first_c)[0] if e < 7 else (self.mf(s + 1, 0, first_c)[0] if s + 1 < self.nst else None)
                st.gaps(self.mf(s, e, first_c), fill, nxt)
        marks.append(st.mark())
        lo = 1 if peel_first else 0
        if len(marks) - 1 - lo >= 3:
            st.fold(marks[lo:-1], label, sreg)

def waddr_setup(a, dst, base, pi, t):
    a(f'v_bfe_u32 v{t}, v0, 4, 2\nv_bfe_u32 v{t+1}, v0, 2, 2')
    a(f'v_and_b32 v{t+2}, 1, v{t}\nv_lshl_or_b32 v{t+2}, v{t+2}, 2, v{t+1}')
    a(f'v_lshl_add_u32 v{t}, v{t}, {3 if pi == "id" else 2}, v{t+1}\nv_lshlrev_b32 v{t}, 8, v{t}')
    a(f'v_and_b32 v{t+1}, 3, v0\nv_lshl_add_u32 v{t}, v{t+1}, 3, v{t}\nv_add_u32 v{t}, {base}, v{t}')
    for e in range(8):
        a(f'v_xor_b32 v{t+1}, {e}, v{t+2}\nv_lshl_add_u32 {dst.sub(e)}, v{t+1}, 5, v{t}')

def wvoff_setup(a, dst, stride, pi, t, st_):
    a(f'v_bfe_u32 v{t}, v0, 4, 2\nv_lshrrev_b32 v{t+1}, 6, v0\nv_lshl_add_u32 v{t+1}, v{t+1}, 4, v{t}')
    a(f's_mov_b32 {st_}, {stride}\nv_mul_lo_u32 v{t+1}, v{t+1}, {st_}')
    for i in range(4):
        hi = ((i >> 1) & 1) if pi == 'id' else (i & 1)
        a(f'v_or_b32 v{t+2}, {hi << 2}, v{t}\nv_lshlrev_b32 v{t+2}, 1, v{t+2}\nv_and_b32 {dst.sub(i)}, 15, v0\nv_xor_b32 v{t+2}, v{t+2}, {dst.sub(i)}')
        a(f'v_lshl_add_u32 {dst.sub(i)}, v{t+2}, 4, v{t+1}')
        if i: a(f'v_add_u32 {dst.sub(i)}, {4 * i * stride - i * 1024}, {dst.sub(i)}')
```

```python
from fw import *
XNF, HF, UF, OF, GB = 0, 4 << 20, 8 << 20, 16 << 20, 32 << 20
WS_SIZE = 64 << 20
LSTR = 2112

def allreduce(a, v, t):
    for m in ('quad_perm:[1,0,3,2]', 'quad_perm:[2,3,0,1]', 'row_half_mirror', 'row_mirror'):
        a('s_nop 1')
        a(f'v_add_f32_dpp v{v}, v{v}, v{v} {m} row_mask:0xf bank_mask:0xf')
    for p in ('16', '32'):
        a(f'v_mov_b32 v{t}, v{v}')
        a('s_nop 1')
        a(f'v_permlane{p}_swap_b32 v{t}, v{v}')
        a(f'v_add_f32 v{v}, v{v}, v{t}')

def rbf(a, v):
    a(f'v_cvt_pk_bf16_f32 v{v}, v{v}, v{v}')
    a(f'v_lshlrev_b32 v{v}, 16, v{v}')

def layernorm(a, X, Y, T, unpack_out):
    S, Q, Q2, U = T, T + 1, T + 2, T + 3
    D = T + 4
    for i in range(8): a(f'v_add_f32 v{D+i}, v{X+2*i}, v{X+2*i+1}')
    for w in (4, 2, 1):
        for i in range(w): a(f'v_add_f32 v{D+i}, v{D+i}, v{D+i+w}')
    a(f'v_mov_b32 v{S}, v{D}')
    allreduce(a, S, U)
    a(f'v_mul_f32 v{S}, 0x3a800000, v{S}')
    for i in range(16): a(f'v_sub_f32 v{D+i}, v{X+i}, v{S}')
    a(f'v_mul_f32 v{Q}, v{D}, v{D}')
    a(f'v_mul_f32 v{Q2}, v{D+1}, v{D+1}')
    for i in range(2, 16): a(f'v_fmac_f32 v{Q + (i & 1)}, v{D+i}, v{D+i}')
    a(f'v_add_f32 v{Q}, v{Q}, v{Q2}')
    allreduce(a, Q, U)
    a(f'v_mul_f32 v{Q}, 0x3a800000, v{Q}')
    rbf(a, S); rbf(a, Q)
    a(f'v_add_f32 v{Q}, 0x3727c5ac, v{Q}')
    rbf(a, Q)
    a(f'v_sqrt_f32 v{Q}, v{Q}')
    for i in range(16): a(f'v_sub_f32 v{D+i}, v{X+i}, v{S}')
    rbf(a, Q)
    a(f'v_rcp_f32 v{Q}, v{Q}')
    for i in range(8): a(f'v_cvt_pk_bf16_f32 v{Y+i}, v{D+2*i}, v{D+2*i+1}')
    for i in range(8):
        a(f'v_lshlrev_b32 v{D+2*i}, 16, v{Y+i}')
        a(f'v_and_b32 v{D+2*i+1}, 0xffff0000, v{Y+i}')
    for i in range(16): a(f'v_mul_f32 v{D+i}, v{D+i}, v{Q}')
    for i in range(8): a(f'v_cvt_pk_bf16_f32 v{Y+i}, v{D+2*i}, v{D+2*i+1}')
    if unpack_out:
        for i in range(8):
            a(f'v_lshlrev_b32 v{X+2*i}, 16, v{Y+i}')
            a(f'v_and_b32 v{X+2*i+1}, 0xffff0000, v{Y+i}')

def gen_k1(opt):
    L = []
    def a(s):
        for l in s.split('\n'): L.append(l)
    a('ln_kernel:')
    a('s_cmp_ge_u32 s2, 256\ns_cbranch_scc1 L1_end')
    a('s_load_dwordx2 s[4:5], s[0:1], 0\ns_load_dwordx2 s[6:7], s[0:1], 96\ns_load_dwordx2 s[20:21], s[0:1], 24')
    a('v_and_b32 v1, 63, v0\nv_lshrrev_b32 v2, 6, v0')
    a('v_lshlrev_b32 v3, 11, v2\nv_lshl_add_u32 v3, v1, 4, v3')
    a('s_lshl_b32 s3, s2, 14')
    a('s_waitcnt lgkmcnt(0)')
    a(srd(8, 4, 4194304)); a(srd(12, 6, WS_SIZE)); a(srd(16, 20, 8388608))
    a('buffer_load_dwordx4 v[4:7], v3, s[8:11], s3 offen')
    a('buffer_load_dwordx4 v[8:11], v3, s[8:11], s3 offen offset:1024')
    if opt.get('pf_wq', 1):
        a('v_lshlrev_b32 v12, 6, v0\ns_lshl_b32 s22, s2, 15')
        a('buffer_load_dword v13, v12, s[16:19], s22 offen')
    a(f'v_mul_u32_u24 v14, {LSTR}, v2\nv_lshl_add_u32 v14, v1, 4, v14')
    a(f'v_and_b32 v60, 7, v0\nv_lshrrev_b32 v61, 3, v0\nv_mul_u32_u24 v62, {LSTR}, v60\nv_lshl_add_u32 v62, v61, 4, v62')
    a('v_lshrrev_b32 v63, 2, v61\nv_lshlrev_b32 v63, 12, v63\nv_and_b32 v61, 3, v61\nv_lshl_add_u32 v63, v61, 8, v63\nv_lshl_add_u32 v63, v60, 4, v63')
    a('s_lshr_b32 s23, s2, 3\ns_lshl_b32 s23, s23, 17\ns_lshr_b32 s24, s2, 1\ns_and_b32 s24, s24, 3\ns_lshl_b32 s24, s24, 10\ns_add_u32 s23, s23, s24')
    a(f's_and_b32 s24, s2, 1\ns_lshl_b32 s24, s24, 7\ns_add_u32 s23, s23, s24\ns_add_u32 s23, s23, {XNF}\ns_add_u32 s24, s23, 65536')
    a(f'v_lshrrev_b32 v56, 2, v0\nv_and_b32 v56, 3, v56\nv_mul_u32_u24 v56, {LSTR}, v56\nv_lshrrev_b32 v57, 4, v0\nv_lshl_add_u32 v56, v57, 5, v56')
    a(f'v_and_b32 v58, 3, v0\nv_lshl_add_u32 v56, v58, 3, v56\nv_add_u32 v56, {8*LSTR}, v56')
    a('v_lshrrev_b32 v58, 1, v57\nv_lshlrev_b32 v58, 17, v58\nv_and_b32 v57, 1, v57\nv_lshl_add_u32 v58, v57, 10, v58\nv_and_b32 v57, 15, v0\nv_lshl_add_u32 v58, v57, 4, v58')
    a(f's_lshr_b32 s25, s2, 2\ns_lshl_b32 s25, s25, 11\ns_and_b32 s26, s2, 3\ns_lshl_b32 s26, s26, 8\ns_add_u32 s25, s25, s26\ns_add_u32 s25, s25, {HF}\ns_add_u32 s26, s25, {16 << 17}')
    a('s_waitcnt vmcnt(1)' if opt.get('pf_wq', 1) else 's_waitcnt vmcnt(0)')
    X, Y, T = 16, 4, 32
    for i in range(8):
        a(f'v_lshlrev_b32 v{X+2*i}, 16, v{Y+i}')
        a(f'v_and_b32 v{X+2*i+1}, 0xffff0000, v{Y+i}')
    layernorm(a, X, Y, T, True)
    a('ds_write_b128 v14, v[4:7]\nds_write_b128 v14, v[8:11] offset:1024')
    a('s_waitcnt lgkmcnt(0)\ns_barrier')
    a('ds_read_b128 v[64:67], v62\nds_read_b128 v[68:71], v62 offset:1024')
    a('s_waitcnt lgkmcnt(1)\nbuffer_store_dwordx4 v[64:67], v63, s[12:15], s23 offen')
    a('s_waitcnt lgkmcnt(0)\nbuffer_store_dwordx4 v[68:71], v63, s[12:15], s24 offen')
    layernorm(a, X, Y, T, False)
    a(f'ds_write_b128 v14, v[4:7] offset:{8*LSTR}\nds_write_b128 v14, v[8:11] offset:{8*LSTR+1024}')
    a('s_waitcnt lgkmcnt(0)\ns_barrier')
    a(f'ds_read_b64_tr_b16 v[72:73], v56\nds_read_b64_tr_b16 v[74:75], v56 offset:{4*LSTR}')
    a(f'ds_read_b64_tr_b16 v[76:77], v56 offset:1024\nds_read_b64_tr_b16 v[78:79], v56 offset:{4*LSTR+1024}')
    a('s_waitcnt lgkmcnt(2)\nbuffer_store_dwordx4 v[72:75], v58, s[12:15], s25 offen')
    a('s_waitcnt lgkmcnt(0)\nbuffer_store_dwordx4 v[76:79], v58, s[12:15], s26 offen')
    a('L1_end:\ns_endpgm')
    return L, kd('ln_kernel', 80, 80, 32), f'; @launch kernel=ln_kernel grid=(256,1,1) block=(512,1,1) lds={16*LSTR}'
```

```python
from fw import *
from gemm import *
from k1 import XNF, HF, UF, OF, GB, WS_SIZE
import math, struct
def f2h(x): return '0x%08x' % struct.unpack('<I', struct.pack('<f', x))[0]

KBASE, VBASE, QRING, FLAG = 0, 65536, 98304, 131072
MARGIN = 80.0
sWS, sWQ, sKC, sVC, sW1, sW2, sWO, sB1 = ['s[%d:%d]' % (i, i + 3) for i in range(4, 36, 4)]
sWAVE, sLDS, sCNT, sQW, sQA, sQA2, sK, sV, sGW, sGA, sO, sU, sPF, sMODE = ['s%d' % i for i in range(36, 50)]
sKV0, sGW0, sGA0, sPF0, sT, sT2, sG2, sB = ['s%d' % i for i in range(50, 58)]
sC = 's[58:59]'

vL16 = V(1)
vWq, vWg, vKd, vVd = V(2, 4), V(6, 4), V(10, 4), V(14, 2)
vKa, vVa, vWa = V(16, 4), V(20, 8), V(28, 8)
vPF, vDUM, vTMP = V(36), V(37), 38
Q = V(44, 64)
QACC = V(108, 128)
S, T, P, NEGM, LS, ONES = V(108, 8), V(116, 4), V(120, 64), V(184, 16), V(200, 16), V(216, 4)
BIAS = V(236, 16)
O, KF, VF, GACT = A(0, 128), A(128, 32), A(160, 32), A(192, 64)

def Pf(tile, u, b): return P.sub((tile & 1) * 32 + (u * 4 + b) * 4, 4)
def Qf(b, t): return Q.sub((b * 4 + t) * 4, 4)
def Kf(c, t): return KF.sub((c & 1) * 16 + t * 4, 4)
def Vf(e, u): return VF.sub((e & 3) * 8 + u * 4, 4)
def kread(tile, c, t): return ds_128(Kf(c, t), vKa.sub(t), (tile & 3) * 16384 + c * 4096)
def vread(tile, e, u, tt): return ds_tr(Vf(e, u).sub(2 * tt, 2), vVa.sub(e), (tile & 3) * 16384 + u * 8192 + tt * 4096)
def kdma(n):
    return [([salu(f's_add_u32 m0, {sLDS}, {KBASE + (n & 3) * 16384}')] if i == 0 else [],
             vload(f'buffer_load_dwordx4 {vKd.sub(i)}, {sKC}, {sK} offen offset:{i*1024} lds', tag=f'K{n}'),
             [salu(f's_add_u32 {sK}, {sK}, 16384')] if i == 3 else []) for i in range(4)]
def vdma(n):
    return [([salu(f's_add_u32 m0, {sLDS}, {VBASE + (n & 3) * 16384}')] if i == 0 else [],
             vload(f'buffer_load_dwordx4 {vVd.sub(i & 1)}, {sVC}, {sV} offen offset:{i*1024} lds', tag=f'V{n}'),
             [salu(f's_add_u32 {sV}, {sV}, 16384')] if i == 3 else []) for i in range(4)]

def att_iter(st, j, g2, opt, carry):
    a = j + 1
    qk, pv = a <= 31, j >= 0
    def window(w):
        k = kdma(w + 4) if w + 4 <= 31 else (g2.window(w - 28)[:4] if w - 28 <= 2 else [])
        v = vdma(w + 3) if w + 3 <= 31 else g2.window(w - 29)[4:]
        return k, v
    kcur, vcur = window(j)
    kprev, vprev = window(j - 1) if j >= 0 else ([], [])
    if j == 31: vcur = []
    dma = {11: kcur[0:1], 13: kcur[1:2], 15: kcur[2:3], 1: kprev[3:4], 3: vprev[0:1], 5: vprev[1:2], 7: vprev[2:3], 9: vprev[3:4]}
    Z = P.sub(32, 4)
    mf_all, fill_all = [], []
    pend = carry
    for n in range(16):
        c, b, e = n >> 2, n & 3, n >> 1
        m = [None] * 9
        f = [[] for _ in range(9)]
        sc = [[] for _ in range(9)]
        sc[0] += pend; pend = []
        Sn, Sp = S.sub((n & 1) * 4, 4), S.sub(((n + 1) & 1) * 4, 4)
        if qk:
            for t in range(4): m[t] = mfma(Sn, Kf(c, t), Qf(b, t), NEGM.sub(4 * b, 4) if t == 0 else Sn)
        for jj in range(2):
            bb = 2 * (n & 1) + jj
            Ob = O.sub((e * 4 + bb) * 4, 4)
            if pv:
                for u in range(2): m[4 + 2 * jj + u] = mfma(Ob, Vf(e, u), Pf(j, u, bb), Ob)
            else: m[5 + 2 * jj] = mfma(Ob, Z, Z, 0)
        if n & 1:
            bb, u = e >> 1, e & 1
            if pv: m[8] = mfma(LS.sub(4 * bb, 4), ONES, Pf(j, u, bb), LS.sub(4 * bb, 4))
            elif u == 0: m[8] = mfma(LS.sub(4 * bb, 4), Z, Z, 0)
        pt, pn = (a, n - 1) if n > 0 else (j, 15)
        if 0 <= pt <= 31:
            pc, pb = pn >> 2, pn & 3
            Pd = Pf(pt, pc >> 1, pb).sub(2 * (pc & 1), 2)
            for i in range(4): f[2 * i].append(valu(f'v_exp_f32 {T.sub(i)}, {Sp.sub(i)}'))
            f[3].append(valu(f'v_cvt_pk_bf16_f32 {Pd.sub(0)}, {T.sub(0)}, {T.sub(1)}'))
            f[7].append(valu(f'v_cvt_pk_bf16_f32 {Pd.sub(1)}, {T.sub(2)}, {T.sub(3)}'))
        elif pt < 0: f[7].append(salu('s_nop 3'))
        kq = 16 * a + n + 5
        kt, kc, kk = kq >> 4, (kq >> 2) & 3, kq & 3
        if kt <= 31: f[5].insert(0, kread(kt, kc, kk))
        vq = 16 * j + n + 3
        vt, ve, vu = vq >> 4, (vq >> 1) & 7, vq & 1
        if 0 <= vt <= 31:
            f[1].insert(0, vread(vt, ve, vu, 0)); f[3].insert(0, vread(vt, ve, vu, 1))
        for pre, v, post in dma.get(n, []):
            sc[6] += pre; f[8].append(v); pend += post
        if n == 11 and j <= 30:
            tags = [f'V{j+1}'] + ([f'K{j+2}'] if j + 2 <= 31 else [])
            f[1].append(barrier(tags))
        if opt.get('pf_w', 1) and 0 <= j < 28 and n == 2 and (j & 3) < 3:
            srd_ = [sW1, sW2, sWO][j & 3]
            f[7].insert(0, vload(f'buffer_load_dword {vDUM}, {vPF}, {srd_}, {sPF} offen'))
            if (j & 3) == 2: pend.append(salu(f's_add_u32 {sPF}, {sPF}, 2048'))
        for g in range(9):
            ops = sc[g] + f[g]
            if m[g] is not None: mf_all.append(m[g]); fill_all.append(ops)
            elif fill_all: fill_all[-1] += ops
            else: st.ops(ops)
    assert not pend
    nxt = mfma(S.sub(0, 4), Kf(0, 0), Qf(0, 0), NEGM.sub(0, 4)) if a + 1 <= 31 else None
    st.gaps(mf_all, fill_all, nxt)
    return pend

def negm_finish(a, M, margin):
    for b in range(4):
        for p in ('16', '32'):
            a(f'v_mov_b32 v{vTMP}, {M.sub(b)}\ns_nop 1\nv_permlane{p}_swap_b32 v{vTMP}, {M.sub(b)}\nv_max_f32 {M.sub(b)}, {M.sub(b)}, v{vTMP}')
        for i in range(4): a(f'v_sub_f32 {NEGM.sub(4*b+i)}, {f2h(-margin)}, {M.sub(b)}')

def gen_k2(opt):
    st = Stream(); a = st.raw
    a('att_kernel:')
    a('s_cmp_ge_u32 s2, 256\ns_cbranch_scc1 L2_end')
    for s, off in ((4, 96), (8, 24), (12, 8), (16, 16), (20, 48), (24, 64), (28, 32), (32, 56)):
        a(f's_load_dwordx2 s[{s}:{s+1}], s[0:1], {off}')
    for s, size in ((4, WS_SIZE), (8, 8388608), (12, 16777216), (16, 16777216), (20, 14680064), (24, 14680064), (28, 8388608), (32, 7168)):
        a(f's_mov_b32 s{s+2}, {size}\ns_mov_b32 s{s+3}, 0x20000')
    t = vTMP
    a(f'v_lshrrev_b32 v{t}, 6, v0\nv_and_b32 {vL16}, 63, v0\nv_readfirstlane_b32 {sWAVE}, v{t}\nv_lshlrev_b32 {vPF}, 5, {vL16}\nv_lshlrev_b32 {vL16}, 4, {vL16}')
    wvoff_setup(a, vWq, 8192, 'id', t, sT)
    a('s_and_b32 s60, s2, 7\ns_lshr_b32 s61, s2, 3\ns_lshr_b32 s62, s61, 3\ns_lshl_b32 s63, s60, 2\ns_add_u32 s62, s62, s63')
    a(f's_and_b32 s63, s61, 7\ns_lshl_b32 s63, s63, 2\ns_add_u32 s63, s63, {sWAVE}')
    a(f's_lshl_b32 {sLDS}, {sWAVE}, 12\ns_lshl_b32 {sQW}, s62, 8\ns_lshl_b32 {sQA}, s63, 17\ns_add_u32 {sQA}, {sQA}, {XNF}\ns_add_u32 {sQA2}, {sQA}, 4096')
    gq = Gemm('Q', 16, 4, lambda e, b: QACC.sub((e * 4 + b) * 4, 4), A(128, 128), Q.sub(0, 32), vWa, 'id', sWQ, vWq, sQW, 8192, QRING, sLDS, sWS, vL16, sQA, sA2=sQA2)
    g2 = Gemm('G', 32, 2, lambda e, b: Q.sub((e * 2 + b) * 4, 4), GACT, KF, vWa, 'id', sW1, vWg, sGW, 7168, KBASE, sLDS, sWS, vL16, sGA)
    a('s_waitcnt lgkmcnt(0)')
    for s in range(3): gq.issue(st, gq.window(s))
    gq.issue(st, gq.window(3)[:2])
    waddr_setup(a, vWa, QRING, 'id', t)
    waddr_setup(a, vVa, VBASE, 'blk', t)
    wvoff_setup(a, vWg, 7168, 'id', t, sT)
    a(f'v_bfe_u32 v{t}, v0, 4, 2\nv_lshrrev_b32 v{t+1}, 6, v0\nv_lshl_add_u32 v{t+1}, v{t+1}, 4, v{t}\nv_lshlrev_b32 v{t+1}, 8, v{t+1}\nv_and_b32 v{t+2}, 15, v0')
    for i in range(4):
        a(f'v_or_b32 v{t+3}, {4*i}, v{t}\nv_xor_b32 v{t+3}, v{t+3}, v{t+2}\nv_lshl_add_u32 {vKd.sub(i)}, v{t+3}, 4, v{t+1}')
    for i in range(2):
        a(f'v_or_b32 v{t+3}, {4*i}, v{t}\nv_lshlrev_b32 v{t+3}, 1, v{t+3}\nv_xor_b32 v{t+3}, v{t+3}, v{t+2}\nv_lshl_add_u32 {vVd.sub(i)}, v{t+3}, 4, v{t+1}')
    a(f'v_and_b32 v{t+1}, 1, v{t}\nv_lshlrev_b32 v{t+1}, 1, v{t+1}\nv_lshrrev_b32 v{t+3}, 1, v{t}\nv_or_b32 v{t+1}, v{t+1}, v{t+3}\nv_xor_b32 v{t+1}, v{t+1}, v{t+2}\nv_lshlrev_b32 v{t+2}, 8, v{t+2}')
    for i in range(4):
        a(f'v_xor_b32 v{t+3}, {4*i}, v{t+1}\nv_lshl_add_u32 {vKa.sub(i)}, v{t+3}, 4, v{t+2}')
    a(f's_lshl_b32 {sKV0}, s62, 19\ns_mov_b32 {sK}, {sKV0}\ns_mov_b32 {sV}, {sKV0}')
    a(f's_lshl_b32 {sO}, s63, 19\ns_lshl_b32 {sT}, s62, 13\ns_add_u32 {sO}, {sO}, {sT}\ns_add_u32 {sO}, {sO}, {OF}')
    a(f's_cmp_lt_u32 s61, 28\ns_cselect_b32 {sG2}, 1, 0')
    a(f's_and_b32 s64, s60, 1\ns_lshl_b32 s64, s64, 2\ns_and_b32 {sT}, s61, 3\ns_add_u32 s64, s64, {sT}\ns_lshl_b32 s64, s64, 2\ns_add_u32 s64, s64, {sWAVE}')
    a(f's_lshr_b32 s65, s60, 1\ns_mul_i32 s65, s65, 7\ns_lshr_b32 {sT}, s61, 2\ns_min_u32 {sT}, {sT}, 6\ns_add_u32 s65, s65, {sT}')
    a(f's_lshl_b32 {sGW0}, s65, 8\ns_mov_b32 {sB}, {sGW0}\ns_lshl_b32 {sGA0}, s64, 17\ns_add_u32 {sGA0}, {sGA0}, {HF}')
    a(f's_mul_i32 {sU}, s64, {112*2048}\ns_lshl_b32 {sT}, s65, 13\ns_add_u32 {sU}, {sU}, {sT}\ns_add_u32 {sU}, {sU}, {UF}')
    a(f's_lshl_b32 {sPF0}, s2, 2\ns_add_u32 {sPF0}, {sPF0}, {sWAVE}\ns_mul_i32 {sPF0}, {sPF0}, 14336')
    a(f's_mov_b32 {sMODE}, 0')
    cs = math.log2(math.e) / math.sqrt(128.0)
    a(f's_mov_b32 s58, {f2h(cs)}\ns_mov_b32 s59, {f2h(cs)}')
    for i in range(128): a(f'v_mov_b32 {QACC.sub(i)}, 0')
    gq.start(st)
    pre_kv = kdma(0) + kdma(1) + vdma(0) + kdma(2) + vdma(1)
    gq.run(st, 'L2_q', sCNT, tail=lambda s: pre_kv[(s - 16) * 12:(s - 15) * 12])
    a('s_nop 7')
    for tt in range(4):
        for b in range(4):
            d = Qf(b, tt)
            for jj in range(2):
                s_ = QACC.sub(((2 * tt + jj) * 4 + b) * 4, 4)
                a(f'v_pk_mul_f32 {s_.sub(0,2)}, {s_.sub(0,2)}, {sC}\nv_pk_mul_f32 {s_.sub(2,2)}, {s_.sub(2,2)}, {sC}')
            for jj in range(2):
                s_ = QACC.sub(((2 * tt + jj) * 4 + b) * 4, 4)
                a(f'v_cvt_pk_bf16_f32 {d.sub(2*jj)}, {s_.sub(0)}, {s_.sub(1)}\nv_cvt_pk_bf16_f32 {d.sub(2*jj+1)}, {s_.sub(2)}, {s_.sub(3)}')
            pb, pt = (b - 1, tt) if b else (3, tt - 1)
            if pt >= 0:
                d = Qf(pb, pt)
                a(f'v_permlane16_swap_b32 {d.sub(0)}, {d.sub(2)}\nv_permlane16_swap_b32 {d.sub(1)}, {d.sub(3)}')
    st.op(barrier(['K0'], lg0=True))
    for tt in range(4): st.op(kread(0, 0, tt))
    d = Qf(3, 3)
    a(f'v_permlane16_swap_b32 {d.sub(0)}, {d.sub(2)}\nv_permlane16_swap_b32 {d.sub(1)}, {d.sub(3)}')
    a(f'v_mov_b32 v{t}, 0\nv_mov_b32 v{t+1}, {FLAG}')
    st.op(Op(f'ds_write_b32 v{t+1}, v{t}', 'ds'))
    for e in range(8): a(f'v_subrev_u32 {vWa.sub(e)}, {QRING - KBASE}, {vWa.sub(e)}')
    for i in range(4): a(f'v_mov_b32 {ONES.sub(i)}, 0x3f803f80')
    for b in range(4):
        for tt in range(4): st.op(mfma(P.sub(4 * b, 4), Kf(0, tt), Qf(b, tt), P.sub(4 * b, 4) if tt else 0))
    a('s_nop 7')
    M = P.sub(16, 4)
    for b in range(4):
        x = P.sub(4 * b, 4)
        a(f'v_max3_f32 {M.sub(b)}, {x.sub(0)}, {x.sub(1)}, {x.sub(2)}\nv_max_f32 {M.sub(b)}, {M.sub(b)}, {x.sub(3)}')
    negm_finish(a, M, MARGIN)
    a('L2_att:')
    st.op(kread(0, 1, 0))
    for i in range(4): a(f'v_mov_b32 {P.sub(32+i)}, 0')
    a(f's_mov_b32 {sGW}, {sGW0}\ns_mov_b32 {sGA}, {sGA0}\ns_mov_b32 {sPF}, {sPF0}')
    marks = []
    for j in range(-1, 32):
        if 0 <= j <= 28 and j % 4 == 0: marks.append(st.mark())
        att_iter(st, j, g2, opt, [])
    st.fold(marks, 'L2_loop', sCNT)
    g2.issue(st, g2.window(2)[4:])
    a(f'v_bfe_u32 v{t}, v0, 4, 2\nv_lshlrev_b32 v{t}, 3, v{t}')
    for e in range(8): st.op(vload(f'buffer_load_dwordx2 {BIAS.sub(2*e,2)}, v{t}, {sB1}, {sB} offen offset:{32*e}', BIAS.sub(2 * e, 2)))
    a(f'v_add_f32 v{t+2}, {LS.sub(0)}, {LS.sub(4)}\nv_add_f32 v{t+3}, {LS.sub(8)}, {LS.sub(12)}\nv_add_f32 v{t+2}, v{t+2}, v{t+3}')
    for b in range(4): a(f'v_rcp_f32 {LS.sub(4*b)}, {LS.sub(4*b)}')
    a(f'v_cmp_nge_f32 vcc, 0x47800000, v{t+2}\nv_mov_b32 v{t+1}, {FLAG}\nv_mov_b32 v{t+3}, 1')
    for b in range(4): a(f'v_mov_b32 {LS.sub(4*b+1)}, {LS.sub(4*b)}')
    a(f's_cbranch_vccz L2_ok\nds_write_b32 v{t+1}, v{t+3}\nL2_ok:')
    st.issued['ds'] += 1
    a(f's_add_u32 {sT}, {sO}, 4096\ns_add_u32 {sT2}, {sO}, {128*2048}\ns_add_u32 s66, {sT2}, 4096')
    k = 0
    sc1 = ' sc1' if opt.get('o_sc1', 0) else ''
    for b in range(4):
        for tt in range(4):
            x = P.sub((k & 3) * 12, 8); d = P.sub((k & 3) * 12 + 8, 4); k += 1
            for jj in range(2):
                for i in range(4): a(f'v_accvgpr_read_b32 {x.sub(4*jj+i)}, {O.sub(((2*tt+jj)*4+b)*4+i)}')
            for i in range(4): a(f'v_pk_mul_f32 {x.sub(2*i,2)}, {x.sub(2*i,2)}, {LS.sub(4*b,2)}')
            for i in range(4): a(f'v_cvt_pk_bf16_f32 {d.sub(i)}, {x.sub(2*i)}, {x.sub(2*i+1)}')
            so = [[sO, sT], [sT2, 's66']][b >> 1][tt >> 1]
            st.op(vstore(f'buffer_store_dwordx4 {d}, {vL16}, {sWS}, {so} offen offset:{(tt & 1) * 2048 + (b & 1) * 1024}{sc1}'))
    st.op(barrier(['G0'], lg0=True))
    st.op(Op(f'ds_read_b32 v{t}, v{t+1}', 'ds', wr=V(t).set()))
    for G in range(3): st.ops(g2.reads(G))
    g2.issue(st, g2.window(3)[:2])
    st.op(valu(f'v_readfirstlane_b32 {sT}, v{t}', rd=[V(t)]))
    a(f's_nop 0\ns_cmp_gt_u32 {sT}, {sMODE}\ns_cbranch_scc1 L2_redo')
    a(f's_cmp_eq_u32 {sG2}, 0\ns_cbranch_scc1 L2_done')
    for e in range(8):
        for b in range(2):
            x = g2.acc(e, b)
            for h in range(2):
                st.op(valu(f'v_lshlrev_b32 {x.sub(2*h)}, 16, {BIAS.sub(2*e+h)}', rd=[BIAS.sub(2 * e + h)]))
                a(f'v_and_b32 {x.sub(2*h+1)}, 0xffff0000, {BIAS.sub(2*e+h)}')
    a('s_nop 1')
    g2.run(st, 'L2_g', sCNT)
    k0 = 2.0 * math.sqrt(2.0 / math.pi) * math.log2(math.e)
    a(f's_mov_b32 s60, {f2h(-k0)}\ns_mov_b32 s61, {f2h(-k0)}\ns_mov_b32 s62, {f2h(-k0*0.044715)}\ns_mov_b32 s63, {f2h(-k0*0.044715)}')
    a(f'v_mov_b32 {S.sub(0)}, s60\nv_mov_b32 {S.sub(1)}, s60\ns_add_u32 {sT}, {sU}, 4096\ns_nop 3')
    k = 0
    for tt in range(4):
        for b in range(2):
            x = P.sub((k & 3) * 12, 8); d = P.sub((k & 3) * 12 + 8, 4); k += 1
            u = [g2.acc(2 * tt + (i >> 1), b).sub(2 * (i & 1), 2) for i in range(4)]
            for i in range(4): a(f'v_pk_mul_f32 {x.sub(2*i,2)}, {u[i]}, {u[i]}')
            for i in range(4): a(f'v_pk_fma_f32 {x.sub(2*i,2)}, {x.sub(2*i,2)}, s[62:63], {S.sub(0,2)}')
            for i in range(4): a(f'v_pk_mul_f32 {x.sub(2*i,2)}, {x.sub(2*i,2)}, {u[i]}')
            for i in range(8): a(f'v_exp_f32 {x.sub(i)}, {x.sub(i)}')
            for i in range(4): a(f'v_pk_add_f32 {x.sub(2*i,2)}, {x.sub(2*i,2)}, 1.0 op_sel_hi:[1,0]')
            for i in range(8): a(f'v_rcp_f32 {x.sub(i)}, {x.sub(i)}')
            for i in range(4): a(f'v_pk_mul_f32 {x.sub(2*i,2)}, {x.sub(2*i,2)}, {u[i]}')
            for i in range(4): a(f'v_cvt_pk_bf16_f32 {d.sub(i)}, {x.sub(2*i)}, {x.sub(2*i+1)}')
            st.op(vstore(f'buffer_store_dwordx4 {d}, {vL16}, {sWS}, {[sU, sT][tt >> 1]} offen offset:{(tt & 1) * 2048 + b * 1024}'))
    a('L2_done:\ns_waitcnt vmcnt(0)\nL2_end:\ns_endpgm')
    a('L2_redo:')
    a(f's_mov_b32 {sMODE}, 1\ns_mov_b32 {sK}, {sKV0}\ns_mov_b32 {sCNT}, -32')
    for b in range(4): a(f'v_mov_b32 {M.sub(b)}, 0xff800000')
    a('L2_mx:\ns_waitcnt vmcnt(0) lgkmcnt(0)\ns_barrier')
    for pre, v, post in kdma(0):
        for o in pre: a(o.text + '\ns_nop 0')
        a(v.text)
        for o in post: a(o.text)
    a('s_waitcnt vmcnt(0)\ns_barrier')
    for c in range(4):
        for tt in range(4): a(kread(0, c, tt).text)
        a('s_waitcnt lgkmcnt(0)')
        for b in range(4):
            for tt in range(4): a(mfma(P.sub(4 * b, 4), Kf(c, tt), Qf(b, tt), P.sub(4 * b, 4) if tt else 0).text)
        a('s_nop 7')
        for b in range(4):
            x = P.sub(4 * b, 4)
            a(f'v_max3_f32 {M.sub(b)}, {M.sub(b)}, {x.sub(0)}, {x.sub(1)}\nv_max3_f32 {M.sub(b)}, {M.sub(b)}, {x.sub(2)}, {x.sub(3)}')
    a(f's_add_u32 {sCNT}, {sCNT}, 1\ns_cbranch_scc0 L2_mx')
    negm_finish(a, M, 0.0)
    a(f's_mov_b32 {sK}, {sKV0}\ns_mov_b32 {sV}, {sKV0}\ns_barrier')
    for pre, v, post in pre_kv:
        for o in pre: a(o.text + '\ns_nop 0')
        a(v.text)
        for o in post: a(o.text)
    a('s_waitcnt vmcnt(0)\ns_barrier')
    for tt in range(4): a(kread(0, 0, tt).text)
    a('s_waitcnt lgkmcnt(0)\ns_branch L2_att')
    return st.lines(), kd('att_kernel', 512, 256, 96), '; @launch kernel=att_kernel grid=(256,1,1) block=(256,1,1) lds=163840'
```

```python
from fw import *
from gemm import *
from k1 import XNF, HF, UF, OF, GB, WS_SIZE
from k2 import f2h
import math

sWS, sW, sX, sOUT, sDBG = ['s[%d:%d]' % (i, i + 3) for i in range(4, 24, 4)]
sWAVE, sLDS, sCNT, sGW, sGA, sT, sT2, sG, sF, sBIT, sR0, sR1 = ['s%d' % i for i in range(24, 36)]
vL16, vWo, vWa, vX = V(1), V(2, 4), V(8, 8), V(6)
ACC, XF, ACT, WR = V(16, 64), V(80, 64), V(144, 64), V(208, 32)
t = 240

def common(a, woff, wsize, stride):
    a(f's_load_dwordx2 s[8:9], s[0:1], {woff}\ns_mov_b32 s10, {wsize}\ns_mov_b32 s11, 0x20000')
    wvoff_setup(a, vWo, stride, 'blk', t, sT)

def gen_k3(opt):
    st = Stream(); a = st.raw
    a('out_kernel:')
    a('s_cmp_ge_u32 s2, 256\ns_cbranch_scc1 L3_end')
    a('s_load_dwordx2 s[4:5], s[0:1], 96\ns_load_dwordx2 s[20:21], s[0:1], 88')
    a(f's_mov_b32 s6, {WS_SIZE}\ns_mov_b32 s7, 0x20000\ns_mov_b32 s22, 256\ns_mov_b32 s23, 0x20000')
    a(f'v_lshrrev_b32 v{t}, 6, v0\nv_and_b32 {vL16}, 63, v0\nv_readfirstlane_b32 {sWAVE}, v{t}\nv_lshlrev_b32 {vL16}, 4, {vL16}')
    a(f's_and_b32 s40, s2, 3\ns_lshl_b32 s40, s40, 2\ns_lshr_b32 s41, s2, 3\ns_and_b32 {sT}, s41, 3\ns_add_u32 s40, s40, {sT}\ns_lshr_b32 s41, s41, 2')
    a(f's_lshl_b32 s42, s40, 3\ns_add_u32 s42, s42, s41\ns_lshl_b32 {sG}, s42, 15\ns_add_u32 {sG}, {sG}, {GB}')
    a(f's_lshr_b32 {sF}, s42, 1\ns_lshl_b32 {sF}, {sF}, 2\ns_and_b32 {sBIT}, s42, 1\ns_lshl_b32 {sBIT}, 1, {sBIT}\ns_lshl_b32 {sLDS}, {sWAVE}, 12')
    a('s_bitcmp1_b32 s2, 2\ns_cbranch_scc1 L3_gate')
    acc = lambda e, b: ACC.sub((e * 2 + b) * 4, 4)
    common(a, 32, 8388608, 2048)
    a('s_load_dwordx2 s[12:13], s[0:1], 0\ns_load_dwordx2 s[16:17], s[0:1], 80')
    a('s_mov_b32 s14, 4194304\ns_mov_b32 s15, 0x20000\ns_mov_b32 s18, 4194304\ns_mov_b32 s19, 0x20000')
    a(f's_lshl_b32 {sGW}, s41, 8\ns_lshl_b32 {sT}, s40, 2\ns_add_u32 {sT}, {sT}, {sWAVE}\ns_lshl_b32 {sGA}, {sT}, 18\ns_add_u32 {sGA}, {sGA}, {OF}')
    a(f's_lshl_b32 {sR0}, {sT}, 16\ns_add_u32 {sR0}, {sR0}, {sGW}\ns_add_u32 {sR1}, {sR0}, 32768')
    a(f'v_bfe_u32 v{t}, v0, 4, 1\nv_bfe_u32 v{t+1}, v0, 5, 1\nv_lshlrev_b32 v{t}, 5, v{t}\nv_lshl_or_b32 v{t}, v{t+1}, 4, v{t}\nv_and_b32 v{t+1}, 15, v0\nv_lshl_add_u32 {vX}, v{t+1}, 11, v{t}')
    g3 = Gemm('S', 64, 2, acc, ACT, WR, vWa, 'blk', sW, vWo, sGW, 2048, 0, sLDS, sWS, vL16, sGA)
    a('s_waitcnt lgkmcnt(0)')
    g3.issue(st, g3.window(0))
    XR = ACC.sub(0, 32)
    for b in range(2):
        for p in range(4):
            d = XR.sub((b * 4 + p) * 4, 4)
            st.op(vload(f'buffer_load_dwordx4 {d}, {vX}, {sX}, {[sR0, sR1][b]} offen offset:{64*p}', d))
    for s in (1, 2): g3.issue(st, g3.window(s))
    g3.issue(st, g3.window(3)[:2])
    waddr_setup(a, vWa, 0, 'blk', t)
    for b in range(2):
        for p in range(4):
            d = XR.sub((b * 4 + p) * 4, 4)
            st.op(valu(f'v_permlane16_swap_b32 {d.sub(0)}, {d.sub(2)}', rd=[d]))
            a(f'v_permlane16_swap_b32 {d.sub(1)}, {d.sub(3)}')
            for h in range(4):
                x = XF.sub(((2 * p + (h >> 1)) * 2 + b) * 4 + 2 * (h & 1), 2)
                a(f'v_lshlrev_b32 {x.sub(0)}, 16, {d.sub(h)}\nv_and_b32 {x.sub(1)}, 0xffff0000, {d.sub(h)}')
    for i in range(64): a(f'v_mov_b32 {ACC.sub(i)}, 0')
    g3.start(st)
    g3.run(st, 'L3_s', sCNT)
    a(f'v_mov_b32 v{t}, 0\ns_lshl_b32 {sT}, {sWAVE}, 13\ns_add_u32 {sT}, {sT}, {sG}\ns_add_u32 {sT2}, {sT}, 4096')
    a(f's_mov_b32 {sCNT}, {-(1 << 20)}')
    a(f'L3_poll:\nbuffer_load_dword v{t+1}, v{t}, {sDBG}, {sF} offen sc1\ns_add_u32 {sCNT}, {sCNT}, 1\ns_cbranch_scc1 L3_got')
    a(f's_waitcnt vmcnt(0)\nv_readfirstlane_b32 s43, v{t+1}\ns_nop 0\ns_and_b32 s43, s43, {sBIT}\ns_cbranch_scc0 L3_poll\nL3_got:\ns_waitcnt vmcnt(0)')
    st.done['vm'] = st.issued['vm']
    for b in range(2):
        for p in range(4):
            d = ACT.sub((b * 4 + p) * 4, 4)
            st.op(vload(f'buffer_load_dwordx4 {d}, {vL16}, {sWS}, {[sT, sT2][b]} offen offset:{1024*p} sc1', d))
    k = 0
    prev = None
    for b in range(2):
        for p in range(4):
            gsrc = ACT.sub((b * 4 + p) * 4, 4)
            x = WR.sub((k & 1) * 8, 8); d = ACT.sub(32 + k * 4, 4); k += 1
            for h in range(4):
                st.op(valu(f'v_lshlrev_b32 {x.sub(2*h)}, 16, {gsrc.sub(h)}', rd=[gsrc]))
                a(f'v_and_b32 {x.sub(2*h+1)}, 0xffff0000, {gsrc.sub(h)}')
            if prev: prev()
            for h in range(4):
                o = ((2 * p + (h >> 1)) * 2 + b) * 4 + 2 * (h & 1)
                a(f'v_pk_fma_f32 {x.sub(2*h,2)}, {x.sub(2*h,2)}, {ACC.sub(o,2)}, {XF.sub(o,2)}')
            for h in range(4): a(f'v_cvt_pk_bf16_f32 {d.sub(h)}, {x.sub(2*h)}, {x.sub(2*h+1)}')
            def fin(d=d, b=b, p=p):
                a(f'v_permlane16_swap_b32 {d.sub(0)}, {d.sub(2)}\nv_permlane16_swap_b32 {d.sub(1)}, {d.sub(3)}')
                st.op(vstore(f'buffer_store_dwordx4 {d}, {vX}, {sOUT}, {[sR0, sR1][b]} offen offset:{64*p}'))
            prev = fin
    a('s_nop 1')
    prev()
    a('L3_end:\ns_endpgm')
    st2 = Stream(); a = st2.raw
    a('L3_gate:')
    common(a, 64, 14680064, 4096)
    a('s_load_dwordx2 s[12:13], s[0:1], 72\ns_mov_b32 s14, 4096\ns_mov_b32 s15, 0x20000')
    a(f's_lshl_b32 {sGW}, s40, 8\ns_mov_b32 {sR0}, {sGW}\ns_lshl_b32 {sT}, s41, 2\ns_add_u32 {sT}, {sT}, {sWAVE}\ns_mul_i32 {sGA}, {sT}, {112*2048}\ns_add_u32 {sGA}, {sGA}, {UF}')
    a(f'v_and_b32 {vX}, 15, v0\nv_lshlrev_b32 {vX}, 1, {vX}')
    g4 = Gemm('Y', 56, 2, acc, ACT, WR, vWa, 'blk', sW, vWo, sGW, 4096, 0, sLDS, sWS, vL16, sGA, swap=True)
    a('s_waitcnt lgkmcnt(0)')
    g4.issue(st2, g4.window(0))
    for e in range(8): st2.op(vload(f'buffer_load_ushort {XF.sub(e)}, {vX}, {sX}, {sR0} offen offset:{32*e}', XF.sub(e)))
    for s in (1, 2): g4.issue(st2, g4.window(s))
    g4.issue(st2, g4.window(3)[:2])
    waddr_setup(a, vWa, 0, 'blk', t)
    for e in range(8):
        for i in range(8): st2.op(valu(f'v_lshlrev_b32 {ACC.sub(8*e+i)}, 16, {XF.sub(e)}', rd=[XF.sub(e)]))
    g4.start(st2)
    g4.run(st2, 'L3_y', sCNT)
    l2e = f2h(-math.log2(math.e))
    a(f's_mov_b32 s44, {l2e}\ns_mov_b32 s45, {l2e}\ns_lshl_b32 {sT}, {sWAVE}, 10\ns_add_u32 {sT}, {sT}, {sG}\nv_mov_b32 v{t}, 0\nv_mov_b32 v{t+1}, {sBIT}\ns_nop 1')
    for e in range(8):
        x = WR.sub((e & 1) * 8, 8); d = ACT.sub(e * 4, 4); y = ACC.sub(8 * e, 8)
        for i in range(4): a(f'v_pk_mul_f32 {x.sub(2*i,2)}, {y.sub(2*i,2)}, s[44:45]')
        for i in range(8): a(f'v_exp_f32 {x.sub(i)}, {x.sub(i)}')
        for i in range(4): a(f'v_pk_add_f32 {x.sub(2*i,2)}, {x.sub(2*i,2)}, 1.0 op_sel_hi:[1,0]')
        for i in range(8): a(f'v_rcp_f32 {x.sub(i)}, {x.sub(i)}')
        for i in range(4): a(f'v_pk_mul_f32 {x.sub(2*i,2)}, {x.sub(2*i,2)}, {y.sub(2*i,2)}')
        for i in range(4): a(f'v_cvt_pk_bf16_f32 {d.sub(i)}, {x.sub(2*i)}, {x.sub(2*i+1)}')
        a(f'buffer_store_dwordx4 {d}, {vL16}, {sWS}, {sT} offen sc1\ns_add_u32 {sT}, {sT}, 4096')
    a('s_waitcnt vmcnt(0)\ns_barrier')
    a(f's_cmp_lg_u32 {sWAVE}, 0\ns_cbranch_scc1 L3_end2\ns_mov_b64 exec, 1\nbuffer_atomic_or v{t+1}, v{t}, {sDBG}, {sF} offen sc1\ns_waitcnt vmcnt(0)')
    a('L3_end2:\ns_endpgm')
    return st.lines() + st2.lines(), kd('out_kernel', 256, 256, 64), f'; @launch kernel=out_kernel grid=(256,1,1) block=(256,1,1) lds={opt.get("k3lds", 98304)}'
```

```python
import sys, json
from fw import *
import k1
def build(opt):
    parts = [k1.gen_k1(opt)]
    try:
        import k2; parts.append(k2.gen_k2(opt))
        import k3; parts.append(k3.gen_k3(opt))
    except ImportError as e:
        print('partial build:', e, file=sys.stderr)
    out = [p[2] for p in parts]
    out.append('.amdgcn_target "amdgcn-amd-amdhsa--gfx950"\n.text')
    for p in parts:
        name = p[0][0][:-1]
        errs = hazards(p[0])
        for e in errs: print('HAZARD', name, e, file=sys.stderr)
        out.append(f'.globl {name}\n.p2align 8\n.type {name},@function')
        out += p[0]
    out.append('.section .rodata,"a"')
    for p in parts: out.append('.p2align 6\n' + p[1])
    return '\n'.join(out) + '\n'
if __name__ == '__main__':
    opt = json.loads(sys.argv[2]) if len(sys.argv) > 2 else {}
    open(sys.argv[1], 'w').write(build(opt))
```

```python
import re

def R(kind, lo, n=1):
    return f'{kind}{lo}' if n == 1 else f'{kind}[{lo}:{lo+n-1}]'
def regs(kind, lo, n=1):
    return [(kind, lo + i) for i in range(n)]

class Reg:
    def __init__(self, kind, lo, n=1):
        self.kind, self.lo, self.n = kind, lo, n
    def __str__(self): return R(self.kind, self.lo, self.n)
    def sub(self, off, n=1):
        assert off + n <= self.n, (off, n, self.n)
        return Reg(self.kind, self.lo + off, n)
    def set(self): return regs(self.kind, self.lo, self.n)
def V(lo, n=1): return Reg('v', lo, n)
def A(lo, n=1): return Reg('a', lo, n)

class Wait:
    def __init__(self): self.lg = None; self.vm = None
    def need(self, cls, n):
        if cls == 'ds': self.lg = n if self.lg is None else min(self.lg, n)
        else: self.vm = n if self.vm is None else min(self.vm, n)
    def merge(self, o):
        if o.lg is not None: self.need('ds', o.lg)
        if o.vm is not None: self.need('vm', o.vm)
    def text(self):
        p = []
        if self.vm is not None: p.append(f'vmcnt({self.vm})')
        if self.lg is not None: p.append(f'lgkmcnt({self.lg})')
        return 's_waitcnt ' + ' '.join(p) if p else None

class Op:
    def __init__(self, text, kind, rd=(), wr=(), tag=None, waittags=()):
        self.text, self.kind, self.rd, self.wr, self.tag, self.waittags = text, kind, list(rd), list(wr), tag, list(waittags)

def mfma(d, a, b, c):
    rd = a.set() + b.set() + (c.set() if isinstance(c, Reg) else [])
    return Op(f'v_mfma_f32_16x16x32_bf16 {d}, {a}, {b}, {c}', 'mfma', rd=rd)
def valu(text, rd=()):
    r = []
    for x in rd: r += x.set()
    return Op(text, 'valu', rd=r)
def salu(text): return Op(text, 's')
def ds_tr(d, addr, off): return Op(f'ds_read_b64_tr_b16 {d}, {addr} offset:{off}', 'ds', wr=d.set())
def ds_128(d, addr, off): return Op(f'ds_read_b128 {d}, {addr} offset:{off}', 'ds', wr=d.set())
def vload(text, d=None, tag=None): return Op(text, 'vm', wr=d.set() if d is not None else (), tag=tag)
def vstore(text, rd=()):
    r = []
    for x in rd: r += x.set()
    return Op(text, 'vm', rd=r)
def barrier(tags=(), lg0=False):
    o = Op('s_barrier', 's', waittags=tags); o.lg0 = lg0
    return o

class Stream:
    MAXC = {'ds': 15, 'vm': 63}
    def __init__(self):
        self.items = []
        self.issued = {'ds': 0, 'vm': 0}
        self.done = {'ds': 0, 'vm': 0}
        self.pend = {}
        self.tags = {}
    def raw(self, text):
        for l in text.split('\n'):
            if l.strip(): self.items.append(l.strip())
    def _needs(self, op):
        n = {'ds': 0, 'vm': 0}
        for r in op.rd + op.wr:
            if r in self.pend:
                c, s = self.pend[r]; n[c] = max(n[c], s)
        for t in op.waittags:
            n['vm'] = max(n['vm'], self.tags[t])
        if getattr(op, 'lg0', False): n['ds'] = self.issued['ds']
        return n
    def _wait(self, w, n):
        for c in n:
            if n[c] > self.done[c]:
                w.need(c, min(self.issued[c] - n[c], self.MAXC[c])); self.done[c] = n[c]
    def _issue(self, op):
        self.items.append(op.text)
        if op.kind in ('ds', 'vm'):
            self.issued[op.kind] += 1
            for r in op.wr: self.pend[r] = (op.kind, self.issued[op.kind])
            if op.tag: self.tags[op.tag] = self.issued[op.kind]
    def op(self, op):
        w = Wait(); self._wait(w, self._needs(op)); self.items.append(w); self._issue(op)
    def ops(self, l):
        for o in l: self.op(o)
    def gaps(self, mf, fill, nxt=None):
        for i, m in enumerate(mf):
            w0 = Wait(); self._wait(w0, self._needs(m)); self.items.append(w0)
            self._issue(m)
            w = Wait(); self.items.append(w)
            follow = mf[i + 1] if i + 1 < len(mf) else nxt
            look = list(fill[i]) + ([follow] if follow is not None else [])
            for o in look: self._wait(w, self._needs(o))
            for o in fill[i]:
                w2 = Wait(); self._wait(w2, self._needs(o)); self.items.append(w2)
                self._issue(o)
    def wait_all(self, vm=True, ds=True):
        w = Wait()
        if vm: w.need('vm', 0); self.done['vm'] = self.issued['vm']
        if ds: w.need('ds', 0); self.done['ds'] = self.issued['ds']
        self.items.append(w)
    def mark(self): return len(self.items)
    def fold(self, marks, label, sreg):
        trips = [self.items[marks[i]:marks[i + 1]] for i in range(len(marks) - 1)]
        body = trips[0]
        for t in trips[1:]:
            assert len(t) == len(body), (label, len(t), len(body))
            for x, y in zip(body, t):
                if isinstance(x, Wait): x.merge(y)
                else: assert x == y, (label, x, y)
        new = [f's_mov_b32 {sreg}, {-len(trips)}', '.p2align 3', f'{label}:'] + body + [f's_add_u32 {sreg}, {sreg}, 1', f's_cbranch_scc0 {label}']
        self.items[marks[0]:marks[-1]] = new
    def lines(self):
        out = []
        for it in self.items:
            if isinstance(it, Wait):
                t = it.text()
                if t: out.append(t)
            else: out.append(it)
        return out

RE_REG = re.compile(r'\b([va])(?:(\d+)\b|\[(\d+):(\d+)\])')
def _operands(text):
    m = text.split(None, 1)
    if len(m) < 2: return m[0], []
    ops = [x.strip() for x in m[1].split(',')]
    res = []
    for o in ops:
        mm = RE_REG.search(o.split()[0]) if o else None
        if mm:
            k = mm.group(1)
            lo = int(mm.group(2) if mm.group(2) is not None else mm.group(3)); hi = int(mm.group(2) if mm.group(2) is not None else mm.group(4))
            res.append({(k, i) for i in range(lo, hi + 1)})
        else: res.append(set())
    return m[0], res
TRANS = ('v_exp_', 'v_log_', 'v_rcp_', 'v_rsq_', 'v_sqrt_', 'v_sin_', 'v_cos_')
def classify(text):
    op, o = _operands(text)
    U = lambda l: set().union(*l) if l else set()
    d = dict(op=op, rd=set(), wr=set(), kind='s', ab=set(), c=set(), states=1, sdata=set())
    if op == 's_nop': d['states'] = int(text.split()[1]) + 1
    elif op.startswith('v_mfma'):
        d.update(kind='mfma', wr=o[0], ab=o[1] | o[2], c=o[3], rd=o[1] | o[2] | o[3])
    elif op.startswith('v_permlane'):
        d.update(kind='valu', wr=o[0] | o[1], rd=o[0] | o[1], perm=True)
    elif op.startswith('v_cmp') or op.startswith('v_readfirstlane') or op.startswith('v_readlane'):
        d.update(kind='valu', rd=U(o[1:]), lane=op.startswith('v_read'))
    elif op.startswith('v_'):
        d.update(kind='valu', wr=o[0], rd=U(o[1:]) | (o[0] if 'fmac' in op else set()), trans=op.startswith(TRANS),
                 dpp=('quad_perm' in text or 'row_' in text))
    elif op.startswith('ds_read'): d.update(kind='mem', wr=o[0], rd=o[1])
    elif op.startswith('ds_write'): d.update(kind='mem', rd=U(o))
    elif op.startswith('buffer_load') or op.startswith('global_load'):
        if text.rstrip().endswith('lds') or ' lds ' in text: d.update(kind='mem', rd=o[0], dma=True)
        else: d.update(kind='mem', wr=o[0], rd=o[1])
    elif op.startswith('buffer_store') or op.startswith('buffer_atomic'):
        d.update(kind='mem', rd=U(o), sdata=o[0] if 'x4' in op or 'x3' in op else set())
    elif op.startswith('global_store') or op.startswith('global_atomic'):
        d.update(kind='mem', rd=U(o), sdata=o[1] if 'x4' in op or 'x3' in op else set())
    d['m0w'] = bool(re.match(r's_\w+\s+m0\s*,', text))
    mm = re.match(r'v_read(?:first)?lane_b32\s+(s\d+)', text) or re.match(r'v_cmp\w*\s+(vcc|s\[\d+:\d+\])', text)
    d['sw'] = mm.group(1) if mm else None
    d['text'] = text
    return d
def hazards(lines):
    ins = []; labels = {}
    for l in lines:
        l = l.split(';')[0].strip()
        if not l or l.startswith('.'): continue
        if l.endswith(':'): labels[l[:-1]] = len(ins); continue
        ins.append(classify(l))
    errs = []
    def scan(seq):
        for i, c in enumerate(seq):
            dist = 0
            for j in range(i - 1, max(-1, i - 14), -1):
                p = seq[j]
                need = 0
                if p['kind'] == 'valu' and c['kind'] == 'mfma' and p['wr'] & c['rd']: need = 2
                if p['kind'] == 'mfma':
                    if c['kind'] == 'mfma':
                        if p['wr'] & c['ab']: need = 8
                        elif p['wr'] & c['c'] and p['wr'] != c['c']: need = 6
                        elif p['wr'] & c['wr'] and p['wr'] != c['c']: need = 6
                    elif c['kind'] in ('valu', 'mem') and p['wr'] & (c['rd'] | c['wr']): need = 8
                    if c['kind'] == 'valu' and p['c'] & c['wr']: need = max(need, 3)
                if p['kind'] == 'valu' and c['kind'] == 'valu':
                    if p.get('trans') and not c.get('trans') and p['wr'] & c['rd']: need = max(need, 1)
                    if (c.get('perm') or c.get('dpp')) and p['wr'] & c['rd']: need = max(need, 2)
                    if c.get('lane') and p['wr'] & c['rd']: need = max(need, 1)
                if p['sw']:
                    names = [p['sw']]
                    if p['sw'].startswith('s['):
                        lo = int(p['sw'][2:].split(':')[0]); names += [f's{lo}', f's{lo+1}']
                    used = any(re.search(r'(?<![\w\[])' + re.escape(n) + r'(?![\w])', c['text'].split(None, 1)[1] if ' ' in c['text'] else '') for n in names)
                    if used and c['kind'] == 'valu' and not c['sw'] == p['sw']: need = max(need, 2)
                    if used and c['kind'] == 'mem': need = max(need, 5)
                if p['m0w'] and c.get('dma'): need = max(need, 1)
                if p['sdata'] and c['kind'] in ('valu', 'mem', 'mfma') and p['sdata'] & c['wr']: need = max(need, 2)
                if need > dist: errs.append((p['text'], c['text'], dist, need))
                dist += p['states']
    scan(ins)
    for i, c in enumerate(ins):
        if c['op'].startswith('s_cbranch') or c['op'] == 's_branch':
            t = c['text'].split()[1]
            if t in labels:
                scan(ins[max(0, i - 14):i + 1] + ins[labels[t]:labels[t] + 14])
    return sorted(set(errs))

def kd(name, nv, acc, ns=96):
    return f'''.amdhsa_kernel {name}
  .amdhsa_next_free_vgpr {nv}
  .amdhsa_next_free_sgpr {ns}
  .amdhsa_accum_offset {acc}
  .amdhsa_group_segment_fixed_size 0
  .amdhsa_kernarg_size 104
  .amdhsa_user_sgpr_count 2
  .amdhsa_user_sgpr_kernarg_segment_ptr 1
  .amdhsa_system_sgpr_workgroup_id_x 1
  .amdhsa_float_denorm_mode_32 3
.end_amdhsa_kernel'''
def srd(s, base, size):
    return f's_mov_b32 s{s}, s{base}\ns_mov_b32 s{s+1}, s{base+1}\ns_mov_b32 s{s+2}, {size}\ns_mov_b32 s{s+3}, 0x20000'

STAMP_OFF = 48 << 20
class Stamps:
    def __init__(self, on, kidx, base=68): self.on, self.k, self.base, self.n = on, kidx, base, 0
    def stamp(self, st):
        if not self.on: return
        b = self.base + 4 * self.n; self.n += 1
        st.raw(f's_memrealtime s[{b}:{b+1}]\ns_memtime s[{b+2}:{b+3}]')
        st.wait_all(vm=False)
    def flush(self, st, ws, v, n=None):
        if not self.on: return
        st.raw(f's_lshl_b32 s3, s2, 7\ns_add_u32 s3, s3, {STAMP_OFF + self.k * 65536}\nv_cmp_eq_u32 vcc, 0, v0\ns_and_saveexec_b64 s[66:67], vcc\ns_cbranch_execz L_ns{self.k}_{id(st)%9973}\nv_mov_b32 v{v+2}, 0')
        for i in range(n or self.n):
            b = self.base + 4 * i
            st.raw(f'v_mov_b32 v{v}, s{b}\nv_mov_b32 v{v+1}, s{b+2}\nbuffer_store_dwordx2 v[{v}:{v+1}], v{v+2}, {ws}, s3 offen offset:{8*i}\ns_waitcnt vmcnt(0)')
        st.raw(f'L_ns{self.k}_{id(st)%9973}:\ns_mov_b64 exec, s[66:67]')
```

```python
from fw import *
XNF, HF, UF, OF, GB = 0, 4 << 20, 8 << 20, 16 << 20, 32 << 20
WS_SIZE = 64 << 20
LSTR = 2112

def allreduce(a, v, t):
    for m in ('quad_perm:[1,0,3,2]', 'quad_perm:[2,3,0,1]', 'row_half_mirror', 'row_mirror'):
        a('s_nop 1')
        a(f'v_add_f32_dpp v{v}, v{v}, v{v} {m} row_mask:0xf bank_mask:0xf')
    for p in ('16', '32'):
        a(f'v_mov_b32 v{t}, v{v}')
        a('s_nop 1')
        a(f'v_permlane{p}_swap_b32 v{t}, v{v}')
        a(f'v_add_f32 v{v}, v{v}, v{t}')

def rbf(a, v):
    a(f'v_cvt_pk_bf16_f32 v{v}, v{v}, v{v}')
    a(f'v_lshlrev_b32 v{v}, 16, v{v}')

def layernorm(a, X, Y, T, unpack_out):
    S, Q, Q2, U = T, T + 1, T + 2, T + 3
    D = T + 4
    for i in range(8): a(f'v_add_f32 v{D+i}, v{X+2*i}, v{X+2*i+1}')
    for w in (4, 2, 1):
        for i in range(w): a(f'v_add_f32 v{D+i}, v{D+i}, v{D+i+w}')
    a(f'v_mov_b32 v{S}, v{D}')
    allreduce(a, S, U)
    a(f'v_mul_f32 v{S}, 0x3a800000, v{S}')
    for i in range(16): a(f'v_sub_f32 v{D+i}, v{X+i}, v{S}')
    a(f'v_mul_f32 v{Q}, v{D}, v{D}')
    a(f'v_mul_f32 v{Q2}, v{D+1}, v{D+1}')
    for i in range(2, 16): a(f'v_fmac_f32 v{Q + (i & 1)}, v{D+i}, v{D+i}')
    a(f'v_add_f32 v{Q}, v{Q}, v{Q2}')
    allreduce(a, Q, U)
    a(f'v_mul_f32 v{Q}, 0x3a800000, v{Q}')
    rbf(a, S); rbf(a, Q)
    a(f'v_add_f32 v{Q}, 0x3727c5ac, v{Q}')
    rbf(a, Q)
    a(f'v_sqrt_f32 v{Q}, v{Q}')
    for i in range(16): a(f'v_sub_f32 v{D+i}, v{X+i}, v{S}')
    rbf(a, Q)
    a(f'v_rcp_f32 v{Q}, v{Q}')
    for i in range(8): a(f'v_cvt_pk_bf16_f32 v{Y+i}, v{D+2*i}, v{D+2*i+1}')
    for i in range(8):
        a(f'v_lshlrev_b32 v{D+2*i}, 16, v{Y+i}')
        a(f'v_and_b32 v{D+2*i+1}, 0xffff0000, v{Y+i}')
    for i in range(16): a(f'v_mul_f32 v{D+i}, v{D+i}, v{Q}')
    for i in range(8): a(f'v_cvt_pk_bf16_f32 v{Y+i}, v{D+2*i}, v{D+2*i+1}')
    if unpack_out:
        for i in range(8):
            a(f'v_lshlrev_b32 v{X+2*i}, 16, v{Y+i}')
            a(f'v_and_b32 v{X+2*i+1}, 0xffff0000, v{Y+i}')

def gen_k1(opt):
    st = Stream(); a = st.raw
    sp = Stamps(opt.get('stamp'), 0)
    a('ln_kernel:')
    a('s_cmp_ge_u32 s2, 256\ns_cbranch_scc1 L1_end')
    sp.stamp(st)
    a('s_load_dwordx2 s[4:5], s[0:1], 0\ns_load_dwordx2 s[6:7], s[0:1], 96\ns_load_dwordx2 s[20:21], s[0:1], 24')
    a('v_and_b32 v1, 63, v0\nv_lshrrev_b32 v2, 6, v0')
    a('v_lshlrev_b32 v3, 11, v2\nv_lshl_add_u32 v3, v1, 4, v3')
    a('s_lshl_b32 s3, s2, 14')
    a('s_waitcnt lgkmcnt(0)')
    a(srd(8, 4, 4194304)); a(srd(12, 6, WS_SIZE)); a(srd(16, 20, 8388608))
    a('buffer_load_dwordx4 v[4:7], v3, s[8:11], s3 offen')
    a('buffer_load_dwordx4 v[8:11], v3, s[8:11], s3 offen offset:1024')
    if opt.get('pf_wq', 1):
        a('v_lshlrev_b32 v12, 6, v0\ns_lshl_b32 s22, s2, 15')
        a('buffer_load_dword v13, v12, s[16:19], s22 offen')
    a(f'v_mul_u32_u24 v14, {LSTR}, v2\nv_lshl_add_u32 v14, v1, 4, v14')
    a(f'v_and_b32 v60, 7, v0\nv_lshrrev_b32 v61, 3, v0\nv_mul_u32_u24 v62, {LSTR}, v60\nv_lshl_add_u32 v62, v61, 4, v62')
    a('v_lshrrev_b32 v63, 2, v61\nv_lshlrev_b32 v63, 12, v63\nv_and_b32 v61, 3, v61\nv_lshl_add_u32 v63, v61, 8, v63\nv_lshl_add_u32 v63, v60, 4, v63')
    a('s_lshr_b32 s23, s2, 3\ns_lshl_b32 s23, s23, 17\ns_lshr_b32 s24, s2, 1\ns_and_b32 s24, s24, 3\ns_lshl_b32 s24, s24, 10\ns_add_u32 s23, s23, s24')
    a(f's_and_b32 s24, s2, 1\ns_lshl_b32 s24, s24, 7\ns_add_u32 s23, s23, s24\ns_add_u32 s23, s23, {XNF}\ns_add_u32 s24, s23, 65536')
    a(f'v_lshrrev_b32 v56, 2, v0\nv_and_b32 v56, 3, v56\nv_mul_u32_u24 v56, {LSTR}, v56\nv_lshrrev_b32 v57, 4, v0\nv_lshl_add_u32 v56, v57, 5, v56')
    a(f'v_and_b32 v58, 3, v0\nv_lshl_add_u32 v56, v58, 3, v56\nv_add_u32 v56, {8*LSTR}, v56')
    a('v_lshrrev_b32 v58, 1, v57\nv_lshlrev_b32 v58, 17, v58\nv_and_b32 v57, 1, v57\nv_lshl_add_u32 v58, v57, 10, v58\nv_and_b32 v57, 15, v0\nv_lshl_add_u32 v58, v57, 4, v58')
    a(f's_lshr_b32 s25, s2, 2\ns_lshl_b32 s25, s25, 11\ns_and_b32 s26, s2, 3\ns_lshl_b32 s26, s26, 8\ns_add_u32 s25, s25, s26\ns_add_u32 s25, s25, {HF}\ns_add_u32 s26, s25, {16 << 17}')
    a('s_waitcnt vmcnt(1)' if opt.get('pf_wq', 1) else 's_waitcnt vmcnt(0)')
    sp.stamp(st)
    X, Y, T = 16, 4, 32
    for i in range(8):
        a(f'v_lshlrev_b32 v{X+2*i}, 16, v{Y+i}')
        a(f'v_and_b32 v{X+2*i+1}, 0xffff0000, v{Y+i}')
    layernorm(a, X, Y, T, True)
    a('ds_write_b128 v14, v[4:7]\nds_write_b128 v14, v[8:11] offset:1024')
    a('s_waitcnt lgkmcnt(0)\ns_barrier')
    a('ds_read_b128 v[64:67], v62\nds_read_b128 v[68:71], v62 offset:1024')
    a('s_waitcnt lgkmcnt(1)\nbuffer_store_dwordx4 v[64:67], v63, s[12:15], s23 offen')
    a('s_waitcnt lgkmcnt(0)\nbuffer_store_dwordx4 v[68:71], v63, s[12:15], s24 offen')
    layernorm(a, X, Y, T, False)
    a(f'ds_write_b128 v14, v[4:7] offset:{8*LSTR}\nds_write_b128 v14, v[8:11] offset:{8*LSTR+1024}')
    a('s_waitcnt lgkmcnt(0)\ns_barrier')
    a(f'ds_read_b64_tr_b16 v[72:73], v56\nds_read_b64_tr_b16 v[74:75], v56 offset:{4*LSTR}')
    a(f'ds_read_b64_tr_b16 v[76:77], v56 offset:1024\nds_read_b64_tr_b16 v[78:79], v56 offset:{4*LSTR+1024}')
    a('s_waitcnt lgkmcnt(2)\nbuffer_store_dwordx4 v[72:75], v58, s[12:15], s25 offen')
    a('s_waitcnt lgkmcnt(0)\nbuffer_store_dwordx4 v[76:79], v58, s[12:15], s26 offen')
    sp.stamp(st)
    if sp.on: a('s_waitcnt vmcnt(0)')
    sp.stamp(st)
    sp.flush(st, 's[12:15]', 4)
    a('L1_end:\ns_endpgm')
    return st.lines(), kd('ln_kernel', 80, 80, 100 if sp.on else 32), f'; @launch kernel=ln_kernel grid=(256,1,1) block=(512,1,1) lds={16*LSTR}'
```

```python
from fw import *
from gemm import *
from k1 import XNF, HF, UF, OF, GB, WS_SIZE
import math, struct
def f2h(x): return '0x%08x' % struct.unpack('<I', struct.pack('<f', x))[0]

KBASE, VBASE, QRING, FLAG = 0, 65536, 98304, 131072
MARGIN = 80.0
sWS, sWQ, sKC, sVC, sW1, sW2, sWO, sB1 = ['s[%d:%d]' % (i, i + 3) for i in range(4, 36, 4)]
sWAVE, sLDS, sCNT, sQW, sQA, sQA2, sK, sV, sGW, sGA, sO, sU, sPF, sMODE = ['s%d' % i for i in range(36, 50)]
sKV0, sGW0, sGA0, sPF0, sT, sT2, sG2, sB = ['s%d' % i for i in range(50, 58)]
sC = 's[58:59]'

vL16 = V(1)
vWq, vWg, vKd, vVd = V(2, 4), V(6, 4), V(10, 4), V(14, 2)
vKa, vVa, vWa = V(16, 4), V(20, 8), V(28, 8)
vPF, vDUM, vTMP = V(36), V(37), 38
Q = V(44, 64)
QACC = V(108, 128)
S, T, P, NEGM, LS, ONES = V(108, 8), V(116, 4), V(120, 64), V(184, 16), V(200, 16), V(216, 4)
BIAS = V(236, 16)
O, KF, VF, GACT = A(0, 128), A(128, 32), A(160, 32), A(192, 64)

def Pf(tile, u, b): return P.sub((tile & 1) * 32 + (u * 4 + b) * 4, 4)
def Qf(b, t): return Q.sub((b * 4 + t) * 4, 4)
def Kf(c, t): return KF.sub((c & 1) * 16 + t * 4, 4)
def Vf(e, u): return VF.sub((e & 3) * 8 + u * 4, 4)
def kread(tile, c, t): return ds_128(Kf(c, t), vKa.sub(t), (tile & 3) * 16384 + c * 4096)
def vread(tile, e, u, tt): return ds_tr(Vf(e, u).sub(2 * tt, 2), vVa.sub(e), (tile & 3) * 16384 + u * 8192 + tt * 4096)
def kdma(n):
    return [([salu(f's_add_u32 m0, {sLDS}, {KBASE + (n & 3) * 16384}')] if i == 0 else [],
             vload(f'buffer_load_dwordx4 {vKd.sub(i)}, {sKC}, {sK} offen offset:{i*1024} lds', tag=f'K{n}'),
             [salu(f's_add_u32 {sK}, {sK}, 16384')] if i == 3 else []) for i in range(4)]
def vdma(n):
    return [([salu(f's_add_u32 m0, {sLDS}, {VBASE + (n & 3) * 16384}')] if i == 0 else [],
             vload(f'buffer_load_dwordx4 {vVd.sub(i & 1)}, {sVC}, {sV} offen offset:{i*1024} lds', tag=f'V{n}'),
             [salu(f's_add_u32 {sV}, {sV}, 16384')] if i == 3 else []) for i in range(4)]

def att_iter(st, j, g2, opt, carry):
    a = j + 1
    qk, pv = a <= 31, j >= 0
    def window(w):
        k = kdma(w + 4) if w + 4 <= 31 else (g2.window(w - 28)[:4] if w - 28 <= 2 else [])
        v = vdma(w + 3) if w + 3 <= 31 else g2.window(w - 29)[4:]
        return k, v
    kcur, vcur = window(j)
    kprev, vprev = window(j - 1) if j >= 0 else ([], [])
    if j == 31: vcur = []
    dma = {11: kcur[0:1], 13: kcur[1:2], 15: kcur[2:3], 1: kprev[3:4], 3: vprev[0:1], 5: vprev[1:2], 7: vprev[2:3], 9: vprev[3:4]}
    Z = P.sub(32, 4)
    mf_all, fill_all = [], []
    pend = carry
    for n in range(16):
        c, b, e = n >> 2, n & 3, n >> 1
        m = [None] * 9
        f = [[] for _ in range(9)]
        sc = [[] for _ in range(9)]
        sc[0] += pend; pend = []
        Sn, Sp = S.sub((n & 1) * 4, 4), S.sub(((n + 1) & 1) * 4, 4)
        if qk:
            for t in range(4): m[t] = mfma(Sn, Kf(c, t), Qf(b, t), NEGM.sub(4 * b, 4) if t == 0 else Sn)
        for jj in range(2):
            bb = 2 * (n & 1) + jj
            Ob = O.sub((e * 4 + bb) * 4, 4)
            if pv:
                for u in range(2): m[4 + 2 * jj + u] = mfma(Ob, Vf(e, u), Pf(j, u, bb), Ob)
            else: m[5 + 2 * jj] = mfma(Ob, Z, Z, 0)
        if n & 1:
            bb, u = e >> 1, e & 1
            if pv: m[8] = mfma(LS.sub(4 * bb, 4), ONES, Pf(j, u, bb), LS.sub(4 * bb, 4))
            elif u == 0: m[8] = mfma(LS.sub(4 * bb, 4), Z, Z, 0)
        pt, pn = (a, n - 1) if n > 0 else (j, 15)
        if 0 <= pt <= 31:
            pc, pb = pn >> 2, pn & 3
            Pd = Pf(pt, pc >> 1, pb).sub(2 * (pc & 1), 2)
            for i in range(4): f[2 * i].append(valu(f'v_exp_f32 {T.sub(i)}, {Sp.sub(i)}'))
            f[3].append(valu(f'v_cvt_pk_bf16_f32 {Pd.sub(0)}, {T.sub(0)}, {T.sub(1)}'))
            f[7].append(valu(f'v_cvt_pk_bf16_f32 {Pd.sub(1)}, {T.sub(2)}, {T.sub(3)}'))
        elif pt < 0: f[7].append(salu('s_nop 3'))
        kq = 16 * a + n + 5
        kt, kc, kk = kq >> 4, (kq >> 2) & 3, kq & 3
        if kt <= 31: f[5].insert(0, kread(kt, kc, kk))
        vq = 16 * j + n + 3
        vt, ve, vu = vq >> 4, (vq >> 1) & 7, vq & 1
        if 0 <= vt <= 31:
            f[1].insert(0, vread(vt, ve, vu, 0)); f[3].insert(0, vread(vt, ve, vu, 1))
        for pre, v, post in dma.get(n, []):
            sc[6] += pre; f[8].append(v); pend += post
        if n == 11 and j <= 30:
            tags = [f'V{j+1}'] + ([f'K{j+2}'] if j + 2 <= 31 else [])
            f[1].append(barrier(tags))
        if opt.get('pf_w', 1) and 0 <= j < 28 and n == 2 and (j & 3) < 3:
            srd_ = [sW1, sW2, sWO][j & 3]
            f[7].insert(0, vload(f'buffer_load_dword {vDUM}, {vPF}, {srd_}, {sPF} offen'))
            if (j & 3) == 2: pend.append(salu(f's_add_u32 {sPF}, {sPF}, 2048'))
        for g in range(9):
            ops = sc[g] + f[g]
            if m[g] is not None: mf_all.append(m[g]); fill_all.append(ops)
            elif fill_all: fill_all[-1] += ops
            else: st.ops(ops)
    assert not pend
    nxt = mfma(S.sub(0, 4), Kf(0, 0), Qf(0, 0), NEGM.sub(0, 4)) if a + 1 <= 31 else None
    st.gaps(mf_all, fill_all, nxt)
    return pend

def negm_finish(a, M, margin):
    for b in range(4):
        for p in ('16', '32'):
            a(f'v_mov_b32 v{vTMP}, {M.sub(b)}\ns_nop 1\nv_permlane{p}_swap_b32 v{vTMP}, {M.sub(b)}\nv_max_f32 {M.sub(b)}, {M.sub(b)}, v{vTMP}')
        for i in range(4): a(f'v_sub_f32 {NEGM.sub(4*b+i)}, {f2h(-margin)}, {M.sub(b)}')

def gen_k2(opt):
    st = Stream(); a = st.raw
    a('att_kernel:')
    a('s_cmp_ge_u32 s2, 256\ns_cbranch_scc1 L2_end')
    sp = Stamps(opt.get('stamp'), 1)
    sp.stamp(st)
    for s, off in ((4, 96), (8, 24), (12, 8), (16, 16), (20, 48), (24, 64), (28, 32), (32, 56)):
        a(f's_load_dwordx2 s[{s}:{s+1}], s[0:1], {off}')
    for s, size in ((4, WS_SIZE), (8, 8388608), (12, 16777216), (16, 16777216), (20, 14680064), (24, 14680064), (28, 8388608), (32, 7168)):
        a(f's_mov_b32 s{s+2}, {size}\ns_mov_b32 s{s+3}, 0x20000')
    t = vTMP
    a(f'v_lshrrev_b32 v{t}, 6, v0\nv_and_b32 {vL16}, 63, v0\nv_readfirstlane_b32 {sWAVE}, v{t}\nv_lshlrev_b32 {vPF}, 5, {vL16}\nv_lshlrev_b32 {vL16}, 4, {vL16}')
    wvoff_setup(a, vWq, 8192, 'id', t, sT)
    a('s_and_b32 s60, s2, 7\ns_lshr_b32 s61, s2, 3\ns_lshr_b32 s62, s61, 3\ns_lshl_b32 s63, s60, 2\ns_add_u32 s62, s62, s63')
    a(f's_and_b32 s63, s61, 7\ns_lshl_b32 s63, s63, 2\ns_add_u32 s63, s63, {sWAVE}')
    a(f's_lshl_b32 {sLDS}, {sWAVE}, 12\ns_lshl_b32 {sQW}, s62, 8\ns_lshl_b32 {sQA}, s63, 17\ns_add_u32 {sQA}, {sQA}, {XNF}\ns_add_u32 {sQA2}, {sQA}, 4096')
    gq = Gemm('Q', 16, 4, lambda e, b: QACC.sub((e * 4 + b) * 4, 4), A(128, 128), Q.sub(0, 32), vWa, 'id', sWQ, vWq, sQW, 8192, QRING, sLDS, sWS, vL16, sQA, sA2=sQA2)
    g2 = Gemm('G', 32, 2, lambda e, b: Q.sub((e * 2 + b) * 4, 4), GACT, KF, vWa, 'id', sW1, vWg, sGW, 7168, KBASE, sLDS, sWS, vL16, sGA)
    a('s_waitcnt lgkmcnt(0)')
    for s in range(3): gq.issue(st, gq.window(s))
    gq.issue(st, gq.window(3)[:2])
    waddr_setup(a, vWa, QRING, 'id', t)
    waddr_setup(a, vVa, VBASE, 'blk', t)
    wvoff_setup(a, vWg, 7168, 'id', t, sT)
    a(f'v_bfe_u32 v{t}, v0, 4, 2\nv_lshrrev_b32 v{t+1}, 6, v0\nv_lshl_add_u32 v{t+1}, v{t+1}, 4, v{t}\nv_lshlrev_b32 v{t+1}, 8, v{t+1}\nv_and_b32 v{t+2}, 15, v0')
    for i in range(4):
        a(f'v_or_b32 v{t+3}, {4*i}, v{t}\nv_xor_b32 v{t+3}, v{t+3}, v{t+2}\nv_lshl_add_u32 {vKd.sub(i)}, v{t+3}, 4, v{t+1}')
    for i in range(2):
        a(f'v_or_b32 v{t+3}, {4*i}, v{t}\nv_lshlrev_b32 v{t+3}, 1, v{t+3}\nv_xor_b32 v{t+3}, v{t+3}, v{t+2}\nv_lshl_add_u32 {vVd.sub(i)}, v{t+3}, 4, v{t+1}')
    a(f'v_and_b32 v{t+1}, 1, v{t}\nv_lshlrev_b32 v{t+1}, 1, v{t+1}\nv_lshrrev_b32 v{t+3}, 1, v{t}\nv_or_b32 v{t+1}, v{t+1}, v{t+3}\nv_xor_b32 v{t+1}, v{t+1}, v{t+2}\nv_lshlrev_b32 v{t+2}, 8, v{t+2}')
    for i in range(4):
        a(f'v_xor_b32 v{t+3}, {4*i}, v{t+1}\nv_lshl_add_u32 {vKa.sub(i)}, v{t+3}, 4, v{t+2}')
    a(f's_lshl_b32 {sKV0}, s62, 19\ns_mov_b32 {sK}, {sKV0}\ns_mov_b32 {sV}, {sKV0}')
    a(f's_lshl_b32 {sO}, s63, 19\ns_lshl_b32 {sT}, s62, 13\ns_add_u32 {sO}, {sO}, {sT}\ns_add_u32 {sO}, {sO}, {OF}')
    a(f's_cmp_lt_u32 s61, 28\ns_cselect_b32 {sG2}, 1, 0')
    a(f's_and_b32 s64, s60, 1\ns_lshl_b32 s64, s64, 2\ns_and_b32 {sT}, s61, 3\ns_add_u32 s64, s64, {sT}\ns_lshl_b32 s64, s64, 2\ns_add_u32 s64, s64, {sWAVE}')
    a(f's_lshr_b32 s65, s60, 1\ns_mul_i32 s65, s65, 7\ns_lshr_b32 {sT}, s61, 2\ns_min_u32 {sT}, {sT}, 6\ns_add_u32 s65, s65, {sT}')
    a(f's_lshl_b32 {sGW0}, s65, 8\ns_mov_b32 {sB}, {sGW0}\ns_lshl_b32 {sGA0}, s64, 17\ns_add_u32 {sGA0}, {sGA0}, {HF}')
    a(f's_mul_i32 {sU}, s64, {112*2048}\ns_lshl_b32 {sT}, s65, 13\ns_add_u32 {sU}, {sU}, {sT}\ns_add_u32 {sU}, {sU}, {UF}')
    a(f's_lshl_b32 {sPF0}, s2, 2\ns_add_u32 {sPF0}, {sPF0}, {sWAVE}\ns_mul_i32 {sPF0}, {sPF0}, 14336')
    a(f's_mov_b32 {sMODE}, 0')
    cs = math.log2(math.e) / math.sqrt(128.0)
    a(f's_mov_b32 s58, {f2h(cs)}\ns_mov_b32 s59, {f2h(cs)}')
    for i in range(128): a(f'v_mov_b32 {QACC.sub(i)}, 0')
    gq.start(st)
    sp.stamp(st)
    pre_kv = kdma(0) + kdma(1) + vdma(0) + kdma(2) + vdma(1)
    gq.run(st, 'L2_q', sCNT, tail=lambda s: pre_kv[(s - 16) * 12:(s - 15) * 12])
    sp.stamp(st)
    a('s_nop 7')
    for tt in range(4):
        for b in range(4):
            d = Qf(b, tt)
            for jj in range(2):
                s_ = QACC.sub(((2 * tt + jj) * 4 + b) * 4, 4)
                a(f'v_pk_mul_f32 {s_.sub(0,2)}, {s_.sub(0,2)}, {sC}\nv_pk_mul_f32 {s_.sub(2,2)}, {s_.sub(2,2)}, {sC}')
            for jj in range(2):
                s_ = QACC.sub(((2 * tt + jj) * 4 + b) * 4, 4)
                a(f'v_cvt_pk_bf16_f32 {d.sub(2*jj)}, {s_.sub(0)}, {s_.sub(1)}\nv_cvt_pk_bf16_f32 {d.sub(2*jj+1)}, {s_.sub(2)}, {s_.sub(3)}')
            pb, pt = (b - 1, tt) if b else (3, tt - 1)
            if pt >= 0:
                d = Qf(pb, pt)
                a(f'v_permlane16_swap_b32 {d.sub(0)}, {d.sub(2)}\nv_permlane16_swap_b32 {d.sub(1)}, {d.sub(3)}')
    st.op(barrier(['K0'], lg0=True))
    for tt in range(4): st.op(kread(0, 0, tt))
    d = Qf(3, 3)
    a(f'v_permlane16_swap_b32 {d.sub(0)}, {d.sub(2)}\nv_permlane16_swap_b32 {d.sub(1)}, {d.sub(3)}')
    a(f'v_mov_b32 v{t}, 0\nv_mov_b32 v{t+1}, {FLAG}')
    st.op(Op(f'ds_write_b32 v{t+1}, v{t}', 'ds'))
    for e in range(8): a(f'v_subrev_u32 {vWa.sub(e)}, {QRING - KBASE}, {vWa.sub(e)}')
    for i in range(4): a(f'v_mov_b32 {ONES.sub(i)}, 0x3f803f80')
    for b in range(4):
        for tt in range(4): st.op(mfma(P.sub(4 * b, 4), Kf(0, tt), Qf(b, tt), P.sub(4 * b, 4) if tt else 0))
    a('s_nop 7')
    M = P.sub(16, 4)
    for b in range(4):
        x = P.sub(4 * b, 4)
        a(f'v_max3_f32 {M.sub(b)}, {x.sub(0)}, {x.sub(1)}, {x.sub(2)}\nv_max_f32 {M.sub(b)}, {M.sub(b)}, {x.sub(3)}')
    negm_finish(a, M, MARGIN)
    sp.stamp(st)
    a('L2_att:')
    st.op(kread(0, 1, 0))
    for i in range(4): a(f'v_mov_b32 {P.sub(32+i)}, 0')
    a(f's_mov_b32 {sGW}, {sGW0}\ns_mov_b32 {sGA}, {sGA0}\ns_mov_b32 {sPF}, {sPF0}')
    marks = []
    for j in range(-1, 32):
        if 0 <= j <= 28 and j % 4 == 0: marks.append(st.mark())
        att_iter(st, j, g2, opt, [])
    st.fold(marks, 'L2_loop', sCNT)
    sp.stamp(st)
    g2.issue(st, g2.window(2)[4:])
    a(f'v_bfe_u32 v{t}, v0, 4, 2\nv_lshlrev_b32 v{t}, 3, v{t}')
    for e in range(8): st.op(vload(f'buffer_load_dwordx2 {BIAS.sub(2*e,2)}, v{t}, {sB1}, {sB} offen offset:{32*e}', BIAS.sub(2 * e, 2)))
    a(f'v_add_f32 v{t+2}, {LS.sub(0)}, {LS.sub(4)}\nv_add_f32 v{t+3}, {LS.sub(8)}, {LS.sub(12)}\nv_add_f32 v{t+2}, v{t+2}, v{t+3}')
    for b in range(4): a(f'v_rcp_f32 {LS.sub(4*b)}, {LS.sub(4*b)}')
    a(f'v_cmp_nge_f32 vcc, 0x47800000, v{t+2}\nv_mov_b32 v{t+1}, {FLAG}\nv_mov_b32 v{t+3}, 1')
    for b in range(4): a(f'v_mov_b32 {LS.sub(4*b+1)}, {LS.sub(4*b)}')
    a(f's_cbranch_vccz L2_ok\nds_write_b32 v{t+1}, v{t+3}\nL2_ok:')
    st.issued['ds'] += 1
    a(f's_add_u32 {sT}, {sO}, 4096\ns_add_u32 {sT2}, {sO}, {128*2048}\ns_add_u32 s66, {sT2}, 4096')
    k = 0
    sc1 = ' sc1' if opt.get('o_sc1', 0) else ''
    for b in range(4):
        for tt in range(4):
            x = P.sub((k & 3) * 12, 8); d = P.sub((k & 3) * 12 + 8, 4); k += 1
            for jj in range(2):
                for i in range(4): a(f'v_accvgpr_read_b32 {x.sub(4*jj+i)}, {O.sub(((2*tt+jj)*4+b)*4+i)}')
            for i in range(4): a(f'v_pk_mul_f32 {x.sub(2*i,2)}, {x.sub(2*i,2)}, {LS.sub(4*b,2)}')
            for i in range(4): a(f'v_cvt_pk_bf16_f32 {d.sub(i)}, {x.sub(2*i)}, {x.sub(2*i+1)}')
            so = [[sO, sT], [sT2, 's66']][b >> 1][tt >> 1]
            st.op(vstore(f'buffer_store_dwordx4 {d}, {vL16}, {sWS}, {so} offen offset:{(tt & 1) * 2048 + (b & 1) * 1024}{sc1}'))
    st.op(barrier(['G0'], lg0=True))
    st.op(Op(f'ds_read_b32 v{t}, v{t+1}', 'ds', wr=V(t).set()))
    for G in range(3): st.ops(g2.reads(G))
    g2.issue(st, g2.window(3)[:2])
    st.op(valu(f'v_readfirstlane_b32 {sT}, v{t}', rd=[V(t)]))
    a(f's_nop 0\ns_cmp_gt_u32 {sT}, {sMODE}\ns_cbranch_scc1 L2_redo')
    sp.stamp(st)
    a(f's_cmp_eq_u32 {sG2}, 0\ns_cbranch_scc1 L2_done')
    for e in range(8):
        for b in range(2):
            x = g2.acc(e, b)
            for h in range(2):
                st.op(valu(f'v_lshlrev_b32 {x.sub(2*h)}, 16, {BIAS.sub(2*e+h)}', rd=[BIAS.sub(2 * e + h)]))
                a(f'v_and_b32 {x.sub(2*h+1)}, 0xffff0000, {BIAS.sub(2*e+h)}')
    a('s_nop 1')
    g2.run(st, 'L2_g', sCNT)
    sp.stamp(st)
    k0 = 2.0 * math.sqrt(2.0 / math.pi) * math.log2(math.e)
    a(f's_mov_b32 s60, {f2h(-k0)}\ns_mov_b32 s61, {f2h(-k0)}\ns_mov_b32 s62, {f2h(-k0*0.044715)}\ns_mov_b32 s63, {f2h(-k0*0.044715)}')
    a(f'v_mov_b32 {S.sub(0)}, s60\nv_mov_b32 {S.sub(1)}, s60\ns_add_u32 {sT}, {sU}, 4096\ns_nop 3')
    k = 0
    for tt in range(4):
        for b in range(2):
            x = P.sub((k & 3) * 12, 8); d = P.sub((k & 3) * 12 + 8, 4); k += 1
            u = [g2.acc(2 * tt + (i >> 1), b).sub(2 * (i & 1), 2) for i in range(4)]
            for i in range(4): a(f'v_pk_mul_f32 {x.sub(2*i,2)}, {u[i]}, {u[i]}')
            for i in range(4): a(f'v_pk_fma_f32 {x.sub(2*i,2)}, {x.sub(2*i,2)}, s[62:63], {S.sub(0,2)}')
            for i in range(4): a(f'v_pk_mul_f32 {x.sub(2*i,2)}, {x.sub(2*i,2)}, {u[i]}')
            for i in range(8): a(f'v_exp_f32 {x.sub(i)}, {x.sub(i)}')
            for i in range(4): a(f'v_pk_add_f32 {x.sub(2*i,2)}, {x.sub(2*i,2)}, 1.0 op_sel_hi:[1,0]')
            for i in range(8): a(f'v_rcp_f32 {x.sub(i)}, {x.sub(i)}')
            for i in range(4): a(f'v_pk_mul_f32 {x.sub(2*i,2)}, {x.sub(2*i,2)}, {u[i]}')
            for i in range(4): a(f'v_cvt_pk_bf16_f32 {d.sub(i)}, {x.sub(2*i)}, {x.sub(2*i+1)}')
            st.op(vstore(f'buffer_store_dwordx4 {d}, {vL16}, {sWS}, {[sU, sT][tt >> 1]} offen offset:{(tt & 1) * 2048 + b * 1024}'))
    a('L2_done:\ns_waitcnt vmcnt(0)')
    sp.stamp(st)
    sp.flush(st, sWS, 38)
    a('L2_end:\ns_endpgm')
    a('L2_redo:')
    a(f's_mov_b32 {sMODE}, 1\ns_mov_b32 {sK}, {sKV0}\ns_mov_b32 {sCNT}, -32')
    for b in range(4): a(f'v_mov_b32 {M.sub(b)}, 0xff800000')
    a('L2_mx:\ns_waitcnt vmcnt(0) lgkmcnt(0)\ns_barrier')
    for pre, v, post in kdma(0):
        for o in pre: a(o.text + '\ns_nop 0')
        a(v.text)
        for o in post: a(o.text)
    a('s_waitcnt vmcnt(0)\ns_barrier')
    for c in range(4):
        for tt in range(4): a(kread(0, c, tt).text)
        a('s_waitcnt lgkmcnt(0)')
        for b in range(4):
            for tt in range(4): a(mfma(P.sub(4 * b, 4), Kf(c, tt), Qf(b, tt), P.sub(4 * b, 4) if tt else 0).text)
        a('s_nop 7')
        for b in range(4):
            x = P.sub(4 * b, 4)
            a(f'v_max3_f32 {M.sub(b)}, {M.sub(b)}, {x.sub(0)}, {x.sub(1)}\nv_max3_f32 {M.sub(b)}, {M.sub(b)}, {x.sub(2)}, {x.sub(3)}')
    a(f's_add_u32 {sCNT}, {sCNT}, 1\ns_cbranch_scc0 L2_mx')
    negm_finish(a, M, 0.0)
    a(f's_mov_b32 {sK}, {sKV0}\ns_mov_b32 {sV}, {sKV0}\ns_barrier')
    for pre, v, post in pre_kv:
        for o in pre: a(o.text + '\ns_nop 0')
        a(v.text)
        for o in post: a(o.text)
    a('s_waitcnt vmcnt(0)\ns_barrier')
    for tt in range(4): a(kread(0, 0, tt).text)
    a('s_waitcnt lgkmcnt(0)\ns_branch L2_att')
    return st.lines(), kd('att_kernel', 512, 256, 100), '; @launch kernel=att_kernel grid=(256,1,1) block=(256,1,1) lds=163840'
```

```python
from fw import *
from gemm import *
from k1 import XNF, HF, UF, OF, GB, WS_SIZE
from k2 import f2h
import math

sWS, sW, sX, sOUT, sDBG = ['s[%d:%d]' % (i, i + 3) for i in range(4, 24, 4)]
sWAVE, sLDS, sCNT, sGW, sGA, sT, sT2, sG, sF, sBIT, sR0, sR1 = ['s%d' % i for i in range(24, 36)]
vL16, vWo, vWa, vX = V(1), V(2, 4), V(8, 8), V(6)
ACC, XF, ACT, WR = V(16, 64), V(80, 64), V(144, 64), V(208, 32)
t = 240

def common(a, woff, wsize, stride):
    a(f's_load_dwordx2 s[8:9], s[0:1], {woff}\ns_mov_b32 s10, {wsize}\ns_mov_b32 s11, 0x20000')
    wvoff_setup(a, vWo, stride, 'blk', t, sT)

def gen_k3(opt):
    st = Stream(); a = st.raw
    a('out_kernel:')
    a('s_cmp_ge_u32 s2, 256\ns_cbranch_scc1 L3_end')
    sp = Stamps(opt.get('stamp'), 2)
    sp.stamp(st)
    a('s_load_dwordx2 s[4:5], s[0:1], 96\ns_load_dwordx2 s[20:21], s[0:1], 88')
    a(f's_mov_b32 s6, {WS_SIZE}\ns_mov_b32 s7, 0x20000\ns_mov_b32 s22, 256\ns_mov_b32 s23, 0x20000')
    a(f'v_lshrrev_b32 v{t}, 6, v0\nv_and_b32 {vL16}, 63, v0\nv_readfirstlane_b32 {sWAVE}, v{t}\nv_lshlrev_b32 {vL16}, 4, {vL16}')
    a(f's_and_b32 s40, s2, 3\ns_lshl_b32 s40, s40, 2\ns_lshr_b32 s41, s2, 3\ns_and_b32 {sT}, s41, 3\ns_add_u32 s40, s40, {sT}\ns_lshr_b32 s41, s41, 2')
    a(f's_lshl_b32 s42, s40, 3\ns_add_u32 s42, s42, s41\ns_lshl_b32 {sG}, s42, 15\ns_add_u32 {sG}, {sG}, {GB}')
    a(f's_lshr_b32 {sF}, s42, 1\ns_lshl_b32 {sF}, {sF}, 2\ns_and_b32 {sBIT}, s42, 1\ns_lshl_b32 {sBIT}, 1, {sBIT}\ns_lshl_b32 {sLDS}, {sWAVE}, 12')
    a('s_bitcmp1_b32 s2, 2\ns_cbranch_scc1 L3_gate')
    acc = lambda e, b: ACC.sub((e * 2 + b) * 4, 4)
    common(a, 32, 8388608, 2048)
    a('s_load_dwordx2 s[12:13], s[0:1], 0\ns_load_dwordx2 s[16:17], s[0:1], 80')
    a('s_mov_b32 s14, 4194304\ns_mov_b32 s15, 0x20000\ns_mov_b32 s18, 4194304\ns_mov_b32 s19, 0x20000')
    a(f's_lshl_b32 {sGW}, s41, 8\ns_lshl_b32 {sT}, s40, 2\ns_add_u32 {sT}, {sT}, {sWAVE}\ns_lshl_b32 {sGA}, {sT}, 18\ns_add_u32 {sGA}, {sGA}, {OF}')
    a(f's_lshl_b32 {sR0}, {sT}, 16\ns_add_u32 {sR0}, {sR0}, {sGW}\ns_add_u32 {sR1}, {sR0}, 32768')
    a(f'v_bfe_u32 v{t}, v0, 4, 1\nv_bfe_u32 v{t+1}, v0, 5, 1\nv_lshlrev_b32 v{t}, 5, v{t}\nv_lshl_or_b32 v{t}, v{t+1}, 4, v{t}\nv_and_b32 v{t+1}, 15, v0\nv_lshl_add_u32 {vX}, v{t+1}, 11, v{t}')
    g3 = Gemm('S', 64, 2, acc, ACT, WR, vWa, 'blk', sW, vWo, sGW, 2048, 0, sLDS, sWS, vL16, sGA)
    a('s_waitcnt lgkmcnt(0)')
    g3.issue(st, g3.window(0))
    XR = ACC.sub(0, 32)
    for b in range(2):
        for p in range(4):
            d = XR.sub((b * 4 + p) * 4, 4)
            st.op(vload(f'buffer_load_dwordx4 {d}, {vX}, {sX}, {[sR0, sR1][b]} offen offset:{64*p}', d))
    for s in (1, 2): g3.issue(st, g3.window(s))
    g3.issue(st, g3.window(3)[:2])
    waddr_setup(a, vWa, 0, 'blk', t)
    for b in range(2):
        for p in range(4):
            d = XR.sub((b * 4 + p) * 4, 4)
            st.op(valu(f'v_permlane16_swap_b32 {d.sub(0)}, {d.sub(2)}', rd=[d]))
            a(f'v_permlane16_swap_b32 {d.sub(1)}, {d.sub(3)}')
            for h in range(4):
                x = XF.sub(((2 * p + (h >> 1)) * 2 + b) * 4 + 2 * (h & 1), 2)
                a(f'v_lshlrev_b32 {x.sub(0)}, 16, {d.sub(h)}\nv_and_b32 {x.sub(1)}, 0xffff0000, {d.sub(h)}')
    for i in range(64): a(f'v_mov_b32 {ACC.sub(i)}, 0')
    g3.start(st)
    sp.stamp(st)
    g3.run(st, 'L3_s', sCNT)
    sp.stamp(st)
    a(f'v_mov_b32 v{t}, 0\ns_lshl_b32 {sT}, {sWAVE}, 13\ns_add_u32 {sT}, {sT}, {sG}\ns_add_u32 {sT2}, {sT}, 4096')
    a(f's_mov_b32 {sCNT}, {-(1 << 20)}')
    a(f'L3_poll:\nbuffer_load_dword v{t+1}, v{t}, {sDBG}, {sF} offen sc1\ns_add_u32 {sCNT}, {sCNT}, 1\ns_cbranch_scc1 L3_got')
    a(f's_waitcnt vmcnt(0)\nv_readfirstlane_b32 s43, v{t+1}\ns_nop 0\ns_and_b32 s43, s43, {sBIT}\ns_cbranch_scc0 L3_poll\nL3_got:\ns_waitcnt vmcnt(0)')
    st.done['vm'] = st.issued['vm']
    sp.stamp(st)
    for b in range(2):
        for p in range(4):
            d = ACT.sub((b * 4 + p) * 4, 4)
            st.op(vload(f'buffer_load_dwordx4 {d}, {vL16}, {sWS}, {[sT, sT2][b]} offen offset:{1024*p} sc1', d))
    k = 0
    prev = None
    for b in range(2):
        for p in range(4):
            gsrc = ACT.sub((b * 4 + p) * 4, 4)
            x = WR.sub((k & 1) * 8, 8); d = ACT.sub(32 + k * 4, 4); k += 1
            for h in range(4):
                st.op(valu(f'v_lshlrev_b32 {x.sub(2*h)}, 16, {gsrc.sub(h)}', rd=[gsrc]))
                a(f'v_and_b32 {x.sub(2*h+1)}, 0xffff0000, {gsrc.sub(h)}')
            if prev: prev()
            for h in range(4):
                o = ((2 * p + (h >> 1)) * 2 + b) * 4 + 2 * (h & 1)
                a(f'v_pk_fma_f32 {x.sub(2*h,2)}, {x.sub(2*h,2)}, {ACC.sub(o,2)}, {XF.sub(o,2)}')
            for h in range(4): a(f'v_cvt_pk_bf16_f32 {d.sub(h)}, {x.sub(2*h)}, {x.sub(2*h+1)}')
            def fin(d=d, b=b, p=p):
                a(f'v_permlane16_swap_b32 {d.sub(0)}, {d.sub(2)}\nv_permlane16_swap_b32 {d.sub(1)}, {d.sub(3)}')
                st.op(vstore(f'buffer_store_dwordx4 {d}, {vX}, {sOUT}, {[sR0, sR1][b]} offen offset:{64*p}'))
            prev = fin
    a('s_nop 1')
    prev()
    sp.stamp(st)
    if sp.on: a('s_waitcnt vmcnt(0)')
    sp.stamp(st)
    sp.flush(st, sWS, 244)
    a('L3_end:\ns_endpgm')
    sp.n = 1
    st2 = Stream(); a = st2.raw
    a('L3_gate:')
    common(a, 64, 14680064, 4096)
    a('s_load_dwordx2 s[12:13], s[0:1], 72\ns_mov_b32 s14, 4096\ns_mov_b32 s15, 0x20000')
    a(f's_lshl_b32 {sGW}, s40, 8\ns_mov_b32 {sR0}, {sGW}\ns_lshl_b32 {sT}, s41, 2\ns_add_u32 {sT}, {sT}, {sWAVE}\ns_mul_i32 {sGA}, {sT}, {112*2048}\ns_add_u32 {sGA}, {sGA}, {UF}')
    a(f'v_and_b32 {vX}, 15, v0\nv_lshlrev_b32 {vX}, 1, {vX}')
    g4 = Gemm('Y', 56, 2, acc, ACT, WR, vWa, 'blk', sW, vWo, sGW, 4096, 0, sLDS, sWS, vL16, sGA, swap=True)
    a('s_waitcnt lgkmcnt(0)')
    g4.issue(st2, g4.window(0))
    for e in range(8): st2.op(vload(f'buffer_load_ushort {XF.sub(e)}, {vX}, {sX}, {sR0} offen offset:{32*e}', XF.sub(e)))
    for s in (1, 2): g4.issue(st2, g4.window(s))
    g4.issue(st2, g4.window(3)[:2])
    waddr_setup(a, vWa, 0, 'blk', t)
    for e in range(8):
        for i in range(8): st2.op(valu(f'v_lshlrev_b32 {ACC.sub(8*e+i)}, 16, {XF.sub(e)}', rd=[XF.sub(e)]))
    g4.start(st2)
    sp.stamp(st2)
    g4.run(st2, 'L3_y', sCNT)
    sp.stamp(st2)
    l2e = f2h(-math.log2(math.e))
    a(f's_mov_b32 s44, {l2e}\ns_mov_b32 s45, {l2e}\ns_lshl_b32 {sT}, {sWAVE}, 10\ns_add_u32 {sT}, {sT}, {sG}\nv_mov_b32 v{t}, 0\nv_mov_b32 v{t+1}, {sBIT}\ns_nop 1')
    for e in range(8):
        x = WR.sub((e & 1) * 8, 8); d = ACT.sub(e * 4, 4); y = ACC.sub(8 * e, 8)
        for i in range(4): a(f'v_pk_mul_f32 {x.sub(2*i,2)}, {y.sub(2*i,2)}, s[44:45]')
        for i in range(8): a(f'v_exp_f32 {x.sub(i)}, {x.sub(i)}')
        for i in range(4): a(f'v_pk_add_f32 {x.sub(2*i,2)}, {x.sub(2*i,2)}, 1.0 op_sel_hi:[1,0]')
        for i in range(8): a(f'v_rcp_f32 {x.sub(i)}, {x.sub(i)}')
        for i in range(4): a(f'v_pk_mul_f32 {x.sub(2*i,2)}, {x.sub(2*i,2)}, {y.sub(2*i,2)}')
        for i in range(4): a(f'v_cvt_pk_bf16_f32 {d.sub(i)}, {x.sub(2*i)}, {x.sub(2*i+1)}')
        a(f'buffer_store_dwordx4 {d}, {vL16}, {sWS}, {sT} offen sc1\ns_add_u32 {sT}, {sT}, 4096')
    sp.stamp(st2)
    a('s_waitcnt vmcnt(0)\ns_barrier')
    sp.stamp(st2)
    a(f's_cmp_lg_u32 {sWAVE}, 0\ns_cbranch_scc1 L3_end2\ns_mov_b64 exec, 1\nbuffer_atomic_or v{t+1}, v{t}, {sDBG}, {sF} offen sc1\ns_waitcnt vmcnt(0)')
    sp.stamp(st2)
    sp.flush(st2, sWS, 244)
    a('L3_end2:\ns_endpgm')
    return st.lines() + st2.lines(), kd('out_kernel', 256, 256, 100 if sp.on else 64), f'; @launch kernel=out_kernel grid=(256,1,1) block=(256,1,1) lds={opt.get("k3lds", 98304)}'
```

```python
import re

def R(kind, lo, n=1):
    return f'{kind}{lo}' if n == 1 else f'{kind}[{lo}:{lo+n-1}]'
def regs(kind, lo, n=1):
    return [(kind, lo + i) for i in range(n)]

class Reg:
    def __init__(self, kind, lo, n=1):
        self.kind, self.lo, self.n = kind, lo, n
    def __str__(self): return R(self.kind, self.lo, self.n)
    def sub(self, off, n=1):
        assert off + n <= self.n, (off, n, self.n)
        return Reg(self.kind, self.lo + off, n)
    def set(self): return regs(self.kind, self.lo, self.n)
def V(lo, n=1): return Reg('v', lo, n)
def A(lo, n=1): return Reg('a', lo, n)

class Wait:
    def __init__(self): self.lg = None; self.vm = None
    def need(self, cls, n):
        if cls == 'ds': self.lg = n if self.lg is None else min(self.lg, n)
        else: self.vm = n if self.vm is None else min(self.vm, n)
    def merge(self, o):
        if o.lg is not None: self.need('ds', o.lg)
        if o.vm is not None: self.need('vm', o.vm)
    def text(self):
        p = []
        if self.vm is not None: p.append(f'vmcnt({self.vm})')
        if self.lg is not None: p.append(f'lgkmcnt({self.lg})')
        return 's_waitcnt ' + ' '.join(p) if p else None

class Op:
    def __init__(self, text, kind, rd=(), wr=(), tag=None, waittags=()):
        self.text, self.kind, self.rd, self.wr, self.tag, self.waittags = text, kind, list(rd), list(wr), tag, list(waittags)

def mfma(d, a, b, c):
    rd = a.set() + b.set() + (c.set() if isinstance(c, Reg) else [])
    return Op(f'v_mfma_f32_16x16x32_bf16 {d}, {a}, {b}, {c}', 'mfma', rd=rd)
def valu(text, rd=()):
    r = []
    for x in rd: r += x.set()
    return Op(text, 'valu', rd=r)
def salu(text): return Op(text, 's')
def ds_tr(d, addr, off): return Op(f'ds_read_b64_tr_b16 {d}, {addr} offset:{off}', 'ds', wr=d.set())
def ds_128(d, addr, off): return Op(f'ds_read_b128 {d}, {addr} offset:{off}', 'ds', wr=d.set())
def vload(text, d=None, tag=None): return Op(text, 'vm', wr=d.set() if d is not None else (), tag=tag)
def vstore(text, rd=()):
    r = []
    for x in rd: r += x.set()
    return Op(text, 'vm', rd=r)
def barrier(tags=(), lg0=False):
    o = Op('s_barrier', 's', waittags=tags); o.lg0 = lg0
    return o

class Stream:
    MAXC = {'ds': 15, 'vm': 63}
    def __init__(self):
        self.items = []
        self.issued = {'ds': 0, 'vm': 0}
        self.done = {'ds': 0, 'vm': 0}
        self.pend = {}
        self.tags = {}
    def raw(self, text):
        for l in text.split('\n'):
            if l.strip(): self.items.append(l.strip())
    def _needs(self, op):
        n = {'ds': 0, 'vm': 0}
        for r in op.rd + op.wr:
            if r in self.pend:
                c, s = self.pend[r]; n[c] = max(n[c], s)
        for t in op.waittags:
            n['vm'] = max(n['vm'], self.tags[t])
        if getattr(op, 'lg0', False): n['ds'] = self.issued['ds']
        return n
    def _wait(self, w, n):
        for c in n:
            if n[c] > self.done[c]:
                w.need(c, min(self.issued[c] - n[c], self.MAXC[c])); self.done[c] = n[c]
    def _issue(self, op):
        self.items.append(op.text)
        if op.kind in ('ds', 'vm'):
            self.issued[op.kind] += 1
            for r in op.wr: self.pend[r] = (op.kind, self.issued[op.kind])
            if op.tag: self.tags[op.tag] = self.issued[op.kind]
    def op(self, op):
        w = Wait(); self._wait(w, self._needs(op)); self.items.append(w); self._issue(op)
    def ops(self, l):
        for o in l: self.op(o)
    def gaps(self, mf, fill, nxt=None):
        for i, m in enumerate(mf):
            w0 = Wait(); self._wait(w0, self._needs(m)); self.items.append(w0)
            self._issue(m)
            w = Wait(); self.items.append(w)
            follow = mf[i + 1] if i + 1 < len(mf) else nxt
            look = list(fill[i]) + ([follow] if follow is not None else [])
            for o in look: self._wait(w, self._needs(o))
            for o in fill[i]:
                w2 = Wait(); self._wait(w2, self._needs(o)); self.items.append(w2)
                self._issue(o)
    def wait_all(self, vm=True, ds=True):
        w = Wait()
        if vm: w.need('vm', 0); self.done['vm'] = self.issued['vm']
        if ds: w.need('ds', 0); self.done['ds'] = self.issued['ds']
        self.items.append(w)
    def mark(self): return len(self.items)
    def fork(self):
        o = Stream()
        o.issued, o.done, o.pend, o.tags = dict(self.issued), dict(self.done), dict(self.pend), dict(self.tags)
        return o
    def fold(self, marks, label, sreg):
        trips = [self.items[marks[i]:marks[i + 1]] for i in range(len(marks) - 1)]
        body = trips[0]
        for t in trips[1:]:
            assert len(t) == len(body), (label, len(t), len(body))
            for x, y in zip(body, t):
                if isinstance(x, Wait): x.merge(y)
                else: assert x == y, (label, x, y)
        new = [f's_mov_b32 {sreg}, {-len(trips)}', '.p2align 3', f'{label}:'] + body + [f's_add_u32 {sreg}, {sreg}, 1', f's_cbranch_scc0 {label}']
        self.items[marks[0]:marks[-1]] = new
    def lines(self):
        out = []
        for it in self.items:
            if isinstance(it, Wait):
                t = it.text()
                if t: out.append(t)
            else: out.append(it)
        return out

RE_REG = re.compile(r'\b([va])(?:(\d+)\b|\[(\d+):(\d+)\])')
def _operands(text):
    m = text.split(None, 1)
    if len(m) < 2: return m[0], []
    ops = [x.strip() for x in m[1].split(',')]
    res = []
    for o in ops:
        mm = RE_REG.search(o.split()[0]) if o else None
        if mm:
            k = mm.group(1)
            lo = int(mm.group(2) if mm.group(2) is not None else mm.group(3)); hi = int(mm.group(2) if mm.group(2) is not None else mm.group(4))
            res.append({(k, i) for i in range(lo, hi + 1)})
        else: res.append(set())
    return m[0], res
TRANS = ('v_exp_', 'v_log_', 'v_rcp_', 'v_rsq_', 'v_sqrt_', 'v_sin_', 'v_cos_')
def classify(text):
    op, o = _operands(text)
    U = lambda l: set().union(*l) if l else set()
    d = dict(op=op, rd=set(), wr=set(), kind='s', ab=set(), c=set(), states=1, sdata=set())
    if op == 's_nop': d['states'] = int(text.split()[1]) + 1
    elif op.startswith('v_mfma'):
        d.update(kind='mfma', wr=o[0], ab=o[1] | o[2], c=o[3], rd=o[1] | o[2] | o[3])
    elif op.startswith('v_permlane'):
        d.update(kind='valu', wr=o[0] | o[1], rd=o[0] | o[1], perm=True)
    elif op.startswith('v_cmp') or op.startswith('v_readfirstlane') or op.startswith('v_readlane'):
        d.update(kind='valu', rd=U(o[1:]), lane=op.startswith('v_read'))
    elif op.startswith('v_'):
        d.update(kind='valu', wr=o[0], rd=U(o[1:]) | (o[0] if 'fmac' in op else set()), trans=op.startswith(TRANS),
                 dpp=('quad_perm' in text or 'row_' in text))
    elif op.startswith('ds_read'): d.update(kind='mem', wr=o[0], rd=o[1])
    elif op.startswith('ds_write'): d.update(kind='mem', rd=U(o))
    elif op.startswith('buffer_load') or op.startswith('global_load'):
        if text.rstrip().endswith('lds') or ' lds ' in text: d.update(kind='mem', rd=o[0], dma=True)
        else: d.update(kind='mem', wr=o[0], rd=o[1])
    elif op.startswith('buffer_store') or op.startswith('buffer_atomic'):
        d.update(kind='mem', rd=U(o), sdata=o[0] if 'x4' in op or 'x3' in op else set())
    elif op.startswith('global_store') or op.startswith('global_atomic'):
        d.update(kind='mem', rd=U(o), sdata=o[1] if 'x4' in op or 'x3' in op else set())
    d['m0w'] = bool(re.match(r's_\w+\s+m0\s*,', text))
    mm = re.match(r'v_read(?:first)?lane_b32\s+(s\d+)', text) or re.match(r'v_cmp\w*\s+(vcc|s\[\d+:\d+\])', text)
    d['sw'] = mm.group(1) if mm else None
    d['text'] = text
    return d
def hazards(lines):
    ins = []; labels = {}
    for l in lines:
        l = l.split(';')[0].strip()
        if not l or l.startswith('.'): continue
        if l.endswith(':'): labels[l[:-1]] = len(ins); continue
        ins.append(classify(l))
    errs = []
    def scan(seq):
        for i, c in enumerate(seq):
            dist = 0
            for j in range(i - 1, max(-1, i - 14), -1):
                p = seq[j]
                need = 0
                if p['kind'] == 'valu' and c['kind'] == 'mfma' and p['wr'] & c['rd']: need = 2
                if p['kind'] == 'mfma':
                    if c['kind'] == 'mfma':
                        if p['wr'] & c['ab']: need = 8
                        elif p['wr'] & c['c'] and p['wr'] != c['c']: need = 6
                        elif p['wr'] & c['wr'] and p['wr'] != c['c']: need = 6
                    elif c['kind'] in ('valu', 'mem') and p['wr'] & (c['rd'] | c['wr']): need = 8
                    if c['kind'] == 'valu' and p['c'] & c['wr']: need = max(need, 3)
                if p['kind'] == 'valu' and c['kind'] == 'valu':
                    if p.get('trans') and not c.get('trans') and p['wr'] & c['rd']: need = max(need, 1)
                    if (c.get('perm') or c.get('dpp')) and p['wr'] & c['rd']: need = max(need, 2)
                    if c.get('lane') and p['wr'] & c['rd']: need = max(need, 1)
                if p['sw']:
                    names = [p['sw']]
                    if p['sw'].startswith('s['):
                        lo = int(p['sw'][2:].split(':')[0]); names += [f's{lo}', f's{lo+1}']
                    used = any(re.search(r'(?<![\w\[])' + re.escape(n) + r'(?![\w])', c['text'].split(None, 1)[1] if ' ' in c['text'] else '') for n in names)
                    if used and c['kind'] == 'valu' and not c['sw'] == p['sw']: need = max(need, 2)
                    if used and c['kind'] == 'mem': need = max(need, 5)
                if p['m0w'] and c.get('dma'): need = max(need, 1)
                if p['sdata'] and c['kind'] in ('valu', 'mem', 'mfma') and p['sdata'] & c['wr']: need = max(need, 2)
                if need > dist: errs.append((p['text'], c['text'], dist, need))
                dist += p['states']
    scan(ins)
    for i, c in enumerate(ins):
        if c['op'].startswith('s_cbranch') or c['op'] == 's_branch':
            t = c['text'].split()[1]
            if t in labels:
                scan(ins[max(0, i - 14):i + 1] + ins[labels[t]:labels[t] + 14])
    return sorted(set(errs))

def kd(name, nv, acc, ns=96):
    return f'''.amdhsa_kernel {name}
  .amdhsa_next_free_vgpr {nv}
  .amdhsa_next_free_sgpr {ns}
  .amdhsa_accum_offset {acc}
  .amdhsa_group_segment_fixed_size 0
  .amdhsa_kernarg_size 104
  .amdhsa_user_sgpr_count 2
  .amdhsa_user_sgpr_kernarg_segment_ptr 1
  .amdhsa_system_sgpr_workgroup_id_x 1
  .amdhsa_float_denorm_mode_32 3
.end_amdhsa_kernel'''
def srd(s, base, size):
    return f's_mov_b32 s{s}, s{base}\ns_mov_b32 s{s+1}, s{base+1}\ns_mov_b32 s{s+2}, {size}\ns_mov_b32 s{s+3}, 0x20000'

STAMP_OFF = 48 << 20
class Stamps:
    def __init__(self, on, kidx, v): self.on, self.k, self.v, self.n = on, kidx, v, 0
    def stamp(self, st):
        if not self.on: return
        st.raw('s_memrealtime s[96:97]\ns_memtime s[98:99]')
        st.wait_all(vm=False)
        st.raw(f'v_writelane_b32 v{self.v}, s96, {self.n}\nv_writelane_b32 v{self.v+1}, s98, {self.n}')
        self.n += 1
    def flush(self, st, ws, t):
        if not self.on: return
        st.raw(f's_lshl_b32 s3, s2, 7\ns_add_u32 s3, s3, {STAMP_OFF + self.k * 65536}\nv_lshlrev_b32 v{t}, 3, v0\nv_mov_b32 v{t+1}, 0x40000000\nv_cmp_gt_u32 vcc, 16, v0\ns_nop 1\nv_cndmask_b32 v{t}, v{t+1}, v{t}, vcc')
        st.raw(f'buffer_store_dwordx2 v[{self.v}:{self.v+1}], v{t}, {ws}, s3 offen\ns_waitcnt vmcnt(0)')
```

```python
from fw import *

class Gemm:
    def __init__(self, name, nst, NA, acc, act, wr, waddr, pi, wsrd, wvoff, sW, wstride, m0base, sLds, asrd, avoff, sA,
                 swap=False, sA2=None, NW=8, lead=4, asuf=''):
        self.__dict__.update(locals())
    def wfrag(self, G, ks): return self.wr.sub((G % 4) * 8 + ks * 4, 4)
    def afrag(self, s, ks, b): return self.act.sub((s % 4) * 8 * self.NA + (ks * self.NA + b) * 4, 4)
    def reads(self, G):
        s, e = divmod(G, self.NW)
        if s >= self.nst: return []
        o = []
        for ks in range(2):
            for tt in range(2):
                off = (s % 4) * 16384 + ks * 8192 + tt * (1024 if self.pi == 'id' else 4096)
                o.append(ds_tr(self.wfrag(G, ks).sub(2 * tt, 2), self.waddr.sub(e), off))
        return o
    def window(self, s):
        w = []
        for i in range(4):
            pre = [salu(f's_add_u32 m0, {self.sLds}, {self.m0base + (s % 4) * 16384}')] if i == 0 else []
            post = [salu(f's_add_u32 {self.sW}, {self.sW}, {64 * self.wstride}')] if i == 3 else []
            w.append((pre, vload(f'buffer_load_dwordx4 {self.wvoff.sub(i)}, {self.wsrd}, {self.sW} offen offset:{i*1024} lds', tag=f'{self.name}{s}'), post))
        n = 2 * self.NA
        for i in range(n):
            ks, b = divmod(i, self.NA)
            so = self.sA if i < 4 else self.sA2
            post = []
            if i == 3: post.append(salu(f's_add_u32 {self.sA}, {self.sA}, {n * 1024}'))
            if i == 7: post.append(salu(f's_add_u32 {self.sA2}, {self.sA2}, {n * 1024}'))
            d = self.afrag(s, ks, b)
            w.append(([], vload(f'buffer_load_dwordx4 {d}, {self.avoff}, {self.asrd}, {so} offen offset:{(i % 4) * 1024}{self.asuf}', d), post))
        return w
    def positions(self):
        if self.NA == 4:
            return [(0, 7, 1), (0, 7, 5), (1, 0, 1), (1, 0, 5), (1, 1, 1), (1, 1, 5), (1, 2, 1), (1, 2, 5), (1, 3, 1), (1, 3, 5), (1, 4, 1), (1, 4, 5)]
        if self.NW == 8:
            return [(0, 7, 1), (0, 7, 3), (1, 0, 1), (1, 1, 1), (1, 2, 1), (1, 3, 1), (1, 4, 1), (1, 5, 1)]
        assert self.NW == 6
        return [(0, 5, 1), (0, 5, 3), (1, 0, 1), (1, 0, 3), (1, 1, 1), (1, 2, 1), (1, 3, 0), (1, 3, 2)]
    def issue(self, st, elems, between=None):
        for pre, v, post in elems:
            st.ops(pre)
            if pre: st.raw('s_nop 0')
            st.op(v); st.ops(post)
            if between: between()
    def start(self, st):
        st.op(barrier([f'{self.name}0'], lg0=True))
        for G in range(3): st.ops(self.reads(G))
    def mf(self, s, e):
        m = []
        for b in range(self.NA):
            for ks in range(2):
                w, x = self.wfrag(self.NW * s + e, ks), self.afrag(s, ks, b)
                c = self.acc(e, b)
                m.append(mfma(c, x, w, c) if self.swap else mfma(c, w, x, c))
        return m
    def run(self, st, label, sreg, tail=None, extra=None, trip_end=None):
        ng, NW = 2 * self.NA, self.NW
        pos = self.positions()
        wins = {}
        def win(s):
            if s not in wins:
                wins[s] = self.window(s) if s < self.nst else (tail(s - self.nst) if tail else [])
            return wins[s]
        marks = []
        carry = []
        for s in range(self.nst):
            if s % 4 == 0: marks.append(st.mark())
            for e in range(NW):
                G = NW * s + e
                fill = [[] for _ in range(ng)]
                sc = [[] for _ in range(ng + 1)]
                sc[0] += carry; carry = []
                rd = self.reads(G + 3) if e < NW - 3 or e == NW - 1 else (self.reads(G + 2) + self.reads(G + 3) if e == NW - 2 else [])
                if self.NA == 2: gp = [0, 0, 2, 2] if len(rd) <= 4 else [0, 0, 1, 1, 2, 2, 3, 3]
                else: gp = [0, 2, 4, 6] if len(rd) <= 4 else list(range(8))
                for o, g in zip(rd, gp): fill[g].append(o)
                for idx, (so, pe, pg) in enumerate(pos):
                    if pe != e: continue
                    w = win(s + self.lead - so)
                    if idx >= len(w) or w[idx] is None: continue
                    pre, v, post = w[idx]
                    assert pg > 0 or not pre
                    sc[pg - 1] += pre; fill[pg].append(v); sc[pg + 1] += post
                if e == NW - 3 and s + 1 < self.nst:
                    fill[ng - 1].append(barrier([f'{self.name}{s+1}'], lg0=True))
                if extra:
                    for g, l in extra(s, e).items(): fill[g] += l
                carry = sc[ng]
                if e == NW - 1 and s % 4 == 3:
                    fill[ng - 1] += carry; carry = []
                for g in range(ng): fill[g] = sc[g] + fill[g]
                nxt = self.mf(s, e + 1)[0] if e < NW - 1 else (self.mf(s + 1, 0)[0] if s + 1 < self.nst else None)
                st.gaps(self.mf(s, e), fill, nxt)
            if s % 4 == 3 and s + 4 < self.nst and trip_end: trip_end(st)
        marks.append(st.mark())
        st.fold(marks[:-1], label, sreg)

def waddr_setup(dst, base, pi, t):
    L = [f'v_bfe_u32 v{t}, v0, 4, 2', f'v_bfe_u32 v{t+1}, v0, 2, 2',
         f'v_and_b32 v{t+2}, 1, v{t}', f'v_lshl_or_b32 v{t+2}, v{t+2}, 2, v{t+1}',
         f'v_lshl_add_u32 v{t}, v{t}, {3 if pi == "id" else 2}, v{t+1}', f'v_lshlrev_b32 v{t}, 8, v{t}',
         f'v_and_b32 v{t+1}, 3, v0', f'v_lshl_add_u32 v{t}, v{t+1}, 3, v{t}', f'v_add_u32 v{t}, {base}, v{t}']
    for e in range(8):
        L += [f'v_xor_b32 v{t+1}, {e}, v{t+2}', f'v_lshl_add_u32 {dst.sub(e)}, v{t+1}, 5, v{t}']
    return L

def wvoff_setup(dst, sstride, pi, t, slimit=None):
    L = [f'v_bfe_u32 v{t}, v0, 4, 2', f'v_lshrrev_b32 v{t+1}, 6, v0', f'v_lshl_add_u32 v{t+1}, v{t+1}, 4, v{t}', f'v_and_b32 v{t+3}, 15, v0']
    for i in range(4):
        hi = ((i >> 1) & 1) if pi == 'id' else (i & 1)
        d = dst.sub(i)
        L += [f'v_add_u32 {d}, {4*i}, v{t+1}', f'v_mul_u32_u24 {d}, {sstride}, {d}',
              f'v_or_b32 v{t+2}, {hi << 2}, v{t}', f'v_lshlrev_b32 v{t+2}, 1, v{t+2}', f'v_xor_b32 v{t+2}, v{t+2}, v{t+3}']
        if slimit: L += [f'v_cmp_gt_u32 vcc, {slimit}, v{t+2}']
        L += [f'v_lshl_add_u32 {d}, v{t+2}, 4, {d}']
        if i: L += [f'v_subrev_u32 {d}, {i * 1024}, {d}']
        if slimit: L += [f'v_mov_b32 v{t+2}, 0x40000000', f'v_cndmask_b32 {d}, v{t+2}, {d}, vcc']
    return L
```

```python
from fw import *
XNF, HF, UF, OF, GB, FL = 0, 4 << 20, 8 << 20, 16 << 20, 32 << 20, 40 << 20
WS_SIZE = 64 << 20
LSTR = 2112

def allreduce(a, v, t):
    for m in ('quad_perm:[1,0,3,2]', 'quad_perm:[2,3,0,1]', 'row_half_mirror', 'row_mirror'):
        a('s_nop 1')
        a(f'v_add_f32_dpp v{v}, v{v}, v{v} {m} row_mask:0xf bank_mask:0xf')
    for p in ('16', '32'):
        a(f'v_mov_b32 v{t}, v{v}')
        a('s_nop 1')
        a(f'v_permlane{p}_swap_b32 v{t}, v{v}')
        a(f'v_add_f32 v{v}, v{v}, v{t}')

def rbf(a, v):
    a(f'v_cvt_pk_bf16_f32 v{v}, v{v}, v{v}')
    a(f'v_lshlrev_b32 v{v}, 16, v{v}')

def layernorm(a, X, Y, T, unpack_out):
    S, Q, Q2, U = T, T + 1, T + 2, T + 3
    D = T + 4
    for i in range(8): a(f'v_add_f32 v{D+i}, v{X+2*i}, v{X+2*i+1}')
    for w in (4, 2, 1):
        for i in range(w): a(f'v_add_f32 v{D+i}, v{D+i}, v{D+i+w}')
    a(f'v_mov_b32 v{S}, v{D}')
    allreduce(a, S, U)
    a(f'v_mul_f32 v{S}, 0x3a800000, v{S}')
    for i in range(16): a(f'v_sub_f32 v{D+i}, v{X+i}, v{S}')
    a(f'v_mul_f32 v{Q}, v{D}, v{D}')
    a(f'v_mul_f32 v{Q2}, v{D+1}, v{D+1}')
    for i in range(2, 16): a(f'v_fmac_f32 v{Q + (i & 1)}, v{D+i}, v{D+i}')
    a(f'v_add_f32 v{Q}, v{Q}, v{Q2}')
    allreduce(a, Q, U)
    a(f'v_mul_f32 v{Q}, 0x3a800000, v{Q}')
    rbf(a, S); rbf(a, Q)
    a(f'v_add_f32 v{Q}, 0x3727c5ac, v{Q}')
    rbf(a, Q)
    a(f'v_sqrt_f32 v{Q}, v{Q}')
    for i in range(16): a(f'v_sub_f32 v{D+i}, v{X+i}, v{S}')
    rbf(a, Q)
    a(f'v_rcp_f32 v{Q}, v{Q}')
    for i in range(8): a(f'v_cvt_pk_bf16_f32 v{Y+i}, v{D+2*i}, v{D+2*i+1}')
    for i in range(8):
        a(f'v_lshlrev_b32 v{D+2*i}, 16, v{Y+i}')
        a(f'v_and_b32 v{D+2*i+1}, 0xffff0000, v{Y+i}')
    for i in range(16): a(f'v_mul_f32 v{D+i}, v{D+i}, v{Q}')
    for i in range(8): a(f'v_cvt_pk_bf16_f32 v{Y+i}, v{D+2*i}, v{D+2*i+1}')
    if unpack_out:
        for i in range(8):
            a(f'v_lshlrev_b32 v{X+2*i}, 16, v{Y+i}')
            a(f'v_and_b32 v{X+2*i+1}, 0xffff0000, v{Y+i}')

def gen_k1(opt):
    st = Stream(); a = st.raw
    sp = Stamps(opt.get('stamp'), 0, 80)
    a('ln_kernel:')
    a('s_cmp_ge_u32 s2, 256\ns_cbranch_scc1 L1_end')
    sp.stamp(st)
    a('s_load_dwordx2 s[4:5], s[0:1], 0\ns_load_dwordx2 s[6:7], s[0:1], 96\ns_load_dwordx2 s[20:21], s[0:1], 24')
    a('v_and_b32 v1, 63, v0\nv_lshrrev_b32 v2, 6, v0')
    a('v_lshlrev_b32 v3, 11, v2\nv_lshl_add_u32 v3, v1, 4, v3')
    a('s_lshl_b32 s3, s2, 14')
    a('s_waitcnt lgkmcnt(0)')
    a(srd(8, 4, 4194304)); a(srd(12, 6, WS_SIZE)); a(srd(16, 20, 8388608))
    a('buffer_load_dwordx4 v[4:7], v3, s[8:11], s3 offen')
    a('buffer_load_dwordx4 v[8:11], v3, s[8:11], s3 offen offset:1024')
    if opt.get('pf_wq', 1):
        a('v_lshlrev_b32 v12, 6, v0\ns_lshl_b32 s22, s2, 15')
        a('buffer_load_dword v13, v12, s[16:19], s22 offen')
    a(f'v_lshlrev_b32 v52, 2, v0\nv_mov_b32 v53, 0x40000000\nv_cmp_gt_u32 vcc, 64, v0\nv_mov_b32 v54, 0\ns_lshl_b32 s27, s2, 8\nv_cndmask_b32 v52, v53, v52, vcc\ns_add_u32 s27, s27, {FL}')
    a('buffer_store_dword v54, v52, s[12:15], s27 offen')
    a(f'v_mul_u32_u24 v14, {LSTR}, v2\nv_lshl_add_u32 v14, v1, 4, v14')
    a(f'v_and_b32 v60, 7, v0\nv_lshrrev_b32 v61, 3, v0\nv_mul_u32_u24 v62, {LSTR}, v60\nv_lshl_add_u32 v62, v61, 4, v62')
    a('v_lshrrev_b32 v63, 2, v61\nv_lshlrev_b32 v63, 12, v63\nv_and_b32 v61, 3, v61\nv_lshl_add_u32 v63, v61, 8, v63\nv_lshl_add_u32 v63, v60, 4, v63')
    a('s_lshr_b32 s23, s2, 3\ns_lshl_b32 s23, s23, 17\ns_lshr_b32 s24, s2, 1\ns_and_b32 s24, s24, 3\ns_lshl_b32 s24, s24, 10\ns_add_u32 s23, s23, s24')
    a(f's_and_b32 s24, s2, 1\ns_lshl_b32 s24, s24, 7\ns_add_u32 s23, s23, s24\ns_add_u32 s23, s23, {XNF}\ns_add_u32 s24, s23, 65536')
    a(f'v_lshrrev_b32 v56, 2, v0\nv_and_b32 v56, 3, v56\nv_mul_u32_u24 v56, {LSTR}, v56\nv_lshrrev_b32 v57, 4, v0\nv_lshl_add_u32 v56, v57, 5, v56')
    a(f'v_and_b32 v58, 3, v0\nv_lshl_add_u32 v56, v58, 3, v56\nv_add_u32 v56, {8*LSTR}, v56')
    a('v_lshrrev_b32 v58, 1, v57\nv_lshlrev_b32 v58, 17, v58\nv_and_b32 v57, 1, v57\nv_lshl_add_u32 v58, v57, 10, v58\nv_and_b32 v57, 15, v0\nv_lshl_add_u32 v58, v57, 4, v58')
    a(f's_lshr_b32 s25, s2, 2\ns_lshl_b32 s25, s25, 11\ns_and_b32 s26, s2, 3\ns_lshl_b32 s26, s26, 8\ns_add_u32 s25, s25, s26\ns_add_u32 s25, s25, {HF}\ns_add_u32 s26, s25, {16 << 17}')
    a('s_waitcnt vmcnt(2)' if opt.get('pf_wq', 1) else 's_waitcnt vmcnt(1)')
    sp.stamp(st)
    X, Y, T = 16, 4, 32
    for i in range(8):
        a(f'v_lshlrev_b32 v{X+2*i}, 16, v{Y+i}')
        a(f'v_and_b32 v{X+2*i+1}, 0xffff0000, v{Y+i}')
    layernorm(a, X, Y, T, True)
    a('ds_write_b128 v14, v[4:7]\nds_write_b128 v14, v[8:11] offset:1024')
    a('s_waitcnt lgkmcnt(0)\ns_barrier')
    a('ds_read_b128 v[64:67], v62\nds_read_b128 v[68:71], v62 offset:1024')
    a('s_waitcnt lgkmcnt(1)\nbuffer_store_dwordx4 v[64:67], v63, s[12:15], s23 offen' + (' sc1' if opt.get('ln_sc1', 0) else ''))
    a('s_waitcnt lgkmcnt(0)\nbuffer_store_dwordx4 v[68:71], v63, s[12:15], s24 offen' + (' sc1' if opt.get('ln_sc1', 0) else ''))
    layernorm(a, X, Y, T, False)
    a(f'ds_write_b128 v14, v[4:7] offset:{8*LSTR}\nds_write_b128 v14, v[8:11] offset:{8*LSTR+1024}')
    a('s_waitcnt lgkmcnt(0)\ns_barrier')
    a(f'ds_read_b64_tr_b16 v[72:73], v56\nds_read_b64_tr_b16 v[74:75], v56 offset:{4*LSTR}')
    a(f'ds_read_b64_tr_b16 v[76:77], v56 offset:1024\nds_read_b64_tr_b16 v[78:79], v56 offset:{4*LSTR+1024}')
    a('s_waitcnt lgkmcnt(2)\nbuffer_store_dwordx4 v[72:75], v58, s[12:15], s25 offen' + (' sc1' if opt.get('ln_sc1', 0) else ''))
    a('s_waitcnt lgkmcnt(0)\nbuffer_store_dwordx4 v[76:79], v58, s[12:15], s26 offen' + (' sc1' if opt.get('ln_sc1', 0) else ''))
    sp.stamp(st)
    if sp.on: a('s_waitcnt vmcnt(0)')
    sp.stamp(st)
    sp.flush(st, 's[12:15]', 4)
    a('L1_end:\ns_endpgm')
    return st.lines(), kd('ln_kernel', 84, 84, 100 if sp.on else 32), f'; @launch kernel=ln_kernel grid=(256,1,1) block=(512,1,1) lds={16*LSTR}'
```

```python
from fw import *
from gemm import *
from k1 import XNF, HF, UF, OF, GB, FL, WS_SIZE
import math, struct
def f2h(x): return '0x%08x' % struct.unpack('<I', struct.pack('<f', x))[0]

KBASE, VBASE, QRING, FLAG = 0, 65536, 98304, 131072
MARGIN = 80.0
sWS, sWQ, sKC, sVC, sW1, sW2, sWO, sB1 = ['s[%d:%d]' % (i, i + 3) for i in range(4, 36, 4)]
sWAVE, sLDS, sCNT, sQW, sQA, sQA2, sK, sV, sGW, sGA, sO, sU, sPF, sMODE = ['s%d' % i for i in range(36, 50)]
sKV0, sGW0, sGA0, sPF0, sT, sT2, sG2, sB = ['s%d' % i for i in range(50, 58)]
sC = 's[58:59]'
sX, sOUT, sB2 = 's[68:71]', 's[72:75]', 's[76:79]'
sW3, sA3, sSIG, sFO, sFU, sFW, sFG, sG, sR0, sR1, sSTR, sLIM = ['s%d' % i for i in range(80, 92)]

vL16 = V(1)
vWq, vWg, vKd, vVd = V(2, 4), V(6, 4), V(10, 4), V(14, 2)
vKa, vVa, vWa = V(16, 4), V(20, 8), V(28, 8)
vPF, vDUM, vTMP = V(36), V(37), 38
Q = V(44, 64)
QACC = V(108, 128)
S, T, P, NEGM, LS, ONES = V(108, 8), V(116, 4), V(120, 64), V(184, 16), V(200, 16), V(216, 4)
BIAS = V(236, 16)
vZERO, vONE, vFL, vX = V(42), V(43), V(252), V(253)
ACC3, TMP, XF, XR, GR = V(108, 64), V(172, 48), V(44, 64), V(172, 32), V(204, 32)
O, KF, VF, GACT = A(0, 128), A(128, 32), A(160, 32), A(192, 64)

def Pf(tile, u, b): return P.sub((tile & 1) * 32 + (u * 4 + b) * 4, 4)
def Qf(b, t): return Q.sub((b * 4 + t) * 4, 4)
def Kf(c, t): return KF.sub((c & 1) * 16 + t * 4, 4)
def Vf(e, u): return VF.sub((e & 3) * 8 + u * 4, 4)
def kread(tile, c, t): return ds_128(Kf(c, t), vKa.sub(t), (tile & 3) * 16384 + c * 4096)
def vread(tile, e, u, tt): return ds_tr(Vf(e, u).sub(2 * tt, 2), vVa.sub(e), (tile & 3) * 16384 + u * 8192 + tt * 4096)
def kdma(n):
    return [([salu(f's_add_u32 m0, {sLDS}, {KBASE + (n & 3) * 16384}')] if i == 0 else [],
             vload(f'buffer_load_dwordx4 {vKd.sub(i)}, {sKC}, {sK} offen offset:{i*1024} lds', tag=f'K{n}'),
             [salu(f's_add_u32 {sK}, {sK}, 16384')] if i == 3 else []) for i in range(4)]
def vdma(n):
    return [([salu(f's_add_u32 m0, {sLDS}, {VBASE + (n & 3) * 16384}')] if i == 0 else [],
             vload(f'buffer_load_dwordx4 {vVd.sub(i & 1)}, {sVC}, {sV} offen offset:{i*1024} lds', tag=f'V{n}'),
             [salu(f's_add_u32 {sV}, {sV}, 16384')] if i == 3 else []) for i in range(4)]

def att_iter(st, j, g2, opt, carry):
    a = j + 1
    qk, pv = a <= 31, j >= 0
    def window(w):
        k = kdma(w + 4) if w + 4 <= 31 else (g2.window(w - 28)[:4] if w - 28 <= 2 else [])
        v = vdma(w + 3) if w + 3 <= 31 else g2.window(w - 29)[4:]
        return k, v
    kcur, vcur = window(j)
    kprev, vprev = window(j - 1) if j >= 0 else ([], [])
    if j == 31: vcur = []
    dma = {11: kcur[0:1], 13: kcur[1:2], 15: kcur[2:3], 1: kprev[3:4], 3: vprev[0:1], 5: vprev[1:2], 7: vprev[2:3], 9: vprev[3:4]}
    Z = P.sub(32, 4)
    mf_all, fill_all = [], []
    pend = carry
    for n in range(16):
        c, b, e = n >> 2, n & 3, n >> 1
        m = [None] * 9
        f = [[] for _ in range(9)]
        sc = [[] for _ in range(9)]
        sc[0] += pend; pend = []
        Sn, Sp = S.sub((n & 1) * 4, 4), S.sub(((n + 1) & 1) * 4, 4)
        if qk:
            for t in range(4): m[t] = mfma(Sn, Kf(c, t), Qf(b, t), NEGM.sub(4 * b, 4) if t == 0 else Sn)
        for jj in range(2):
            bb = 2 * (n & 1) + jj
            Ob = O.sub((e * 4 + bb) * 4, 4)
            if pv:
                for u in range(2): m[4 + 2 * jj + u] = mfma(Ob, Vf(e, u), Pf(j, u, bb), Ob)
            else: m[5 + 2 * jj] = mfma(Ob, Z, Z, 0)
        if n & 1:
            bb, u = e >> 1, e & 1
            if pv: m[8] = mfma(LS.sub(4 * bb, 4), ONES, Pf(j, u, bb), LS.sub(4 * bb, 4))
            elif u == 0: m[8] = mfma(LS.sub(4 * bb, 4), Z, Z, 0)
        pt, pn = (a, n - 1) if n > 0 else (j, 15)
        if 0 <= pt <= 31:
            pc, pb = pn >> 2, pn & 3
            Pd = Pf(pt, pc >> 1, pb).sub(2 * (pc & 1), 2)
            for i in range(4): f[2 * i].append(valu(f'v_exp_f32 {T.sub(i)}, {Sp.sub(i)}'))
            f[3].append(valu(f'v_cvt_pk_bf16_f32 {Pd.sub(0)}, {T.sub(0)}, {T.sub(1)}'))
            f[7].append(valu(f'v_cvt_pk_bf16_f32 {Pd.sub(1)}, {T.sub(2)}, {T.sub(3)}'))
        elif pt < 0: f[7].append(salu('s_nop 3'))
        kq = 16 * a + n + 5
        kt, kc, kk = kq >> 4, (kq >> 2) & 3, kq & 3
        if kt <= 31: f[5].insert(0, kread(kt, kc, kk))
        vq = 16 * j + n + 3
        vt, ve, vu = vq >> 4, (vq >> 1) & 7, vq & 1
        if 0 <= vt <= 31:
            f[1].insert(0, vread(vt, ve, vu, 0)); f[3].insert(0, vread(vt, ve, vu, 1))
        for pre, v, post in dma.get(n, []):
            sc[6] += pre; f[8].append(v); pend += post
        if n == 11 and j <= 30:
            tags = [f'V{j+1}'] + ([f'K{j+2}'] if j + 2 <= 31 else [])
            f[1].append(barrier(tags))
        if opt.get('pf_w', 1) and 0 <= j < 28 and n == 2 and (j & 3) < 3:
            srd_ = [sW1, sW2, sWO][j & 3]
            f[7].insert(0, vload(f'buffer_load_dword {vDUM}, {vPF}, {srd_}, {sPF} offen'))
            if (j & 3) == 2: pend.append(salu(f's_add_u32 {sPF}, {sPF}, 2048'))
        for g in range(9):
            ops = sc[g] + f[g]
            if m[g] is not None: mf_all.append(m[g]); fill_all.append(ops)
            elif fill_all: fill_all[-1] += ops
            else: st.ops(ops)
    assert not pend
    nxt = mfma(S.sub(0, 4), Kf(0, 0), Qf(0, 0), NEGM.sub(0, 4)) if a + 1 <= 31 else None
    st.gaps(mf_all, fill_all, nxt)
    return pend

def negm_finish(a, M, margin):
    for b in range(4):
        for p in ('16', '32'):
            a(f'v_mov_b32 v{vTMP}, {M.sub(b)}\ns_nop 1\nv_permlane{p}_swap_b32 v{vTMP}, {M.sub(b)}\nv_max_f32 {M.sub(b)}, {M.sub(b)}, v{vTMP}')
        for i in range(4): a(f'v_sub_f32 {NEGM.sub(4*b+i)}, {f2h(-margin)}, {M.sub(b)}')

def gelu_store(st, g2, nt):
    a = st.raw
    k0 = 2.0 * math.sqrt(2.0 / math.pi) * math.log2(math.e)
    C1 = V(220, 2)
    a(f's_mov_b32 s62, {f2h(-k0*0.044715)}\ns_mov_b32 s63, {f2h(-k0*0.044715)}')
    a(f'v_mov_b32 {C1.sub(0)}, {f2h(-k0)}\nv_mov_b32 {C1.sub(1)}, {f2h(-k0)}\ns_add_u32 {sT}, {sU}, 4096\ns_nop 2')
    k = 0
    for tt in range(nt):
        for b in range(2):
            x = TMP.sub((k & 3) * 12, 8); d = TMP.sub((k & 3) * 12 + 8, 4); k += 1
            u = [g2.acc(2 * tt + (i >> 1), b).sub(2 * (i & 1), 2) for i in range(4)]
            for i in range(4): a(f'v_pk_mul_f32 {x.sub(2*i,2)}, {u[i]}, {u[i]}')
            for i in range(4): a(f'v_pk_fma_f32 {x.sub(2*i,2)}, {x.sub(2*i,2)}, s[62:63], {C1}')
            for i in range(4): a(f'v_pk_mul_f32 {x.sub(2*i,2)}, {x.sub(2*i,2)}, {u[i]}')
            for i in range(8): a(f'v_exp_f32 {x.sub(i)}, {x.sub(i)}')
            for i in range(4): a(f'v_pk_add_f32 {x.sub(2*i,2)}, {x.sub(2*i,2)}, 1.0 op_sel_hi:[1,0]')
            for i in range(8): a(f'v_rcp_f32 {x.sub(i)}, {x.sub(i)}')
            for i in range(4): a(f'v_pk_mul_f32 {x.sub(2*i,2)}, {x.sub(2*i,2)}, {u[i]}')
            for i in range(4): a(f'v_cvt_pk_bf16_f32 {d.sub(i)}, {x.sub(2*i)}, {x.sub(2*i+1)}')
            st.op(vstore(f'buffer_store_dwordx4 {d}, {vL16}, {sWS}, {[sU, sT][tt >> 1]} offen offset:{(tt & 1) * 2048 + b * 1024} sc1'))

def signal(soff):
    return f's_mov_b64 exec, 1\nbuffer_atomic_add {vONE}, {vZERO}, {sWS}, {soff} offen sc1\ns_mov_b64 exec, -1'
def flag_load(soff):
    return vload(f'buffer_load_dword {vFL}, {vZERO}, {sWS}, {soff} offen sc1', vFL)
def spin(label, soff, target):
    return (f's_mov_b32 {sT2}, {-(1 << 20)}\n{label}:\nbuffer_load_dword {vFL}, {vZERO}, {sWS}, {soff} offen sc1\ns_add_u32 {sT2}, {sT2}, 1\ns_cbranch_scc1 {label}_x\n'
            f's_waitcnt vmcnt(0)\nv_readfirstlane_b32 {sT}, {vFL}\ns_nop 0\ns_cmp_lt_u32 {sT}, {target}\ns_cbranch_scc1 {label}\n{label}_x:\ns_waitcnt vmcnt(0)')

def gen_k2(opt):
    st = Stream(); a = st.raw
    far = []
    a('att_kernel:')
    a('s_cmp_ge_u32 s2, 256\ns_cbranch_scc1 L2_end')
    sp = Stamps(opt.get('stamp'), 1, 254)
    sp.stamp(st)
    SR = ((4, 96, WS_SIZE), (8, 24, 8388608), (12, 8, 16777216), (16, 16, 16777216), (20, 48, 14680064), (24, 64, 14680064), (28, 32, 8388608),
          (32, 56, 7168), (68, 0, 4194304), (72, 80, 4194304), (76, 72, 4096))
    for s, off, size in SR: a(f's_load_dwordx2 s[{s}:{s+1}], s[0:1], {off}')
    for s, off, size in SR: a(f's_mov_b32 s{s+2}, {size}\ns_mov_b32 s{s+3}, 0x20000')
    t = vTMP
    a(f'v_lshrrev_b32 v{t}, 6, v0\nv_and_b32 {vL16}, 63, v0\nv_readfirstlane_b32 {sWAVE}, v{t}\nv_lshlrev_b32 {vPF}, 5, {vL16}\nv_lshlrev_b32 {vL16}, 4, {vL16}')
    a(f's_mov_b32 {sSTR}, 8192')
    a('\n'.join(wvoff_setup(vWq, sSTR, 'id', t)))
    a('s_and_b32 s60, s2, 7\ns_lshr_b32 s61, s2, 3\ns_lshr_b32 s62, s61, 3\ns_lshl_b32 s63, s60, 2\ns_add_u32 s62, s62, s63')
    a(f's_and_b32 s63, s61, 7\ns_lshl_b32 s63, s63, 2\ns_add_u32 s63, s63, {sWAVE}')
    a(f's_lshl_b32 {sLDS}, {sWAVE}, 12\ns_lshl_b32 {sQW}, s62, 8\ns_lshl_b32 {sQA}, s63, 17\ns_add_u32 {sQA}, {sQA}, {XNF}\ns_add_u32 {sQA2}, {sQA}, 4096')
    gq = Gemm('Q', 16, 4, lambda e, b: QACC.sub((e * 4 + b) * 4, 4), A(128, 128), Q.sub(0, 32), vWa, 'id', sWQ, vWq, sQW, 8192, QRING, sLDS, sWS, vL16, sQA, sA2=sQA2, lead=3)
    acc2 = lambda e, b: Q.sub((e * 2 + b) * 4, 4)
    acc3 = lambda e, b: ACC3.sub((e * 2 + b) * 4, 4)
    g2s = Gemm('G', 32, 2, acc2, GACT, KF, vWa, 'id', sW1, vWg, sGW, 7168, KBASE, sLDS, sWS, vL16, sGA)
    g2y = Gemm('G', 32, 2, acc2, GACT, KF, vWa, 'id', sW1, vWg, sGW, 7168, KBASE, sLDS, sWS, vL16, sGA, NW=6)
    g3 = Gemm('S', 64, 2, acc3, GACT, KF, vVa, 'blk', sWO, vWq, sW3, 2048, VBASE, sLDS, sWS, vL16, sA3, asuf=' sc1')
    g4 = Gemm('Y', 56, 2, acc3, GACT, KF, vVa, 'blk', sW2, vWq, sW3, 4096, VBASE, sLDS, sWS, vL16, sA3, swap=True, asuf=' sc1')
    su = waddr_setup(vWa, QRING, 'id', t)
    su += [f'v_mov_b32 {QACC.sub(i)}, 0' for i in range(128)]
    su += waddr_setup(vVa, VBASE, 'blk', t)
    su += f"""s_lshr_b32 {sG2}, s60, 2
s_cmp_eq_u32 {sG2}, 0
s_cselect_b32 {sLIM}, 16, 12
s_mov_b32 {sSTR}, 7168""".split('\n')
    su += wvoff_setup(vWg, sSTR, 'id', t, sLIM)
    su += f'v_bfe_u32 v{t}, v0, 4, 2\nv_lshrrev_b32 v{t+1}, 6, v0\nv_lshl_add_u32 v{t+1}, v{t+1}, 4, v{t}\nv_lshlrev_b32 v{t+1}, 8, v{t+1}\nv_and_b32 v{t+2}, 15, v0'.split('\n')
    for i in range(4):
        su += f'v_or_b32 v{t+3}, {4*i}, v{t}\nv_xor_b32 v{t+3}, v{t+3}, v{t+2}\nv_lshl_add_u32 {vKd.sub(i)}, v{t+3}, 4, v{t+1}'.split('\n')
    for i in range(2):
        su += f'v_or_b32 v{t+3}, {4*i}, v{t}\nv_lshlrev_b32 v{t+3}, 1, v{t+3}\nv_xor_b32 v{t+3}, v{t+3}, v{t+2}\nv_lshl_add_u32 {vVd.sub(i)}, v{t+3}, 4, v{t+1}'.split('\n')
    su += f'v_and_b32 v{t+1}, 1, v{t}\nv_lshlrev_b32 v{t+1}, 1, v{t+1}\nv_lshrrev_b32 v{t+3}, 1, v{t}\nv_or_b32 v{t+1}, v{t+1}, v{t+3}'.split('\n')
    su += f'v_lshlrev_b32 {vX}, 4, v{t+1}\nv_lshl_add_u32 {vX}, v{t+2}, 11, {vX}\nv_xor_b32 v{t+1}, v{t+1}, v{t+2}\nv_lshlrev_b32 v{t+2}, 8, v{t+2}'.split('\n')
    for i in range(4):
        su += f'v_xor_b32 v{t+3}, {4*i}, v{t+1}\nv_lshl_add_u32 {vKa.sub(i)}, v{t+3}, 4, v{t+2}'.split('\n')
    su += [f'v_mov_b32 {vZERO}, 0', f'v_mov_b32 {vONE}, 1']
    cs = math.log2(math.e) / math.sqrt(128.0)
    sc_setup = f"""s_lshl_b32 {sKV0}, s62, 19
s_mov_b32 {sK}, {sKV0}
s_mov_b32 {sV}, {sKV0}
s_lshl_b32 {sO}, s63, 19
s_lshl_b32 {sT}, s62, 13
s_add_u32 {sO}, {sO}, {sT}
s_add_u32 {sO}, {sO}, {OF}
s_and_b32 {sT}, s61, 7
s_lshl_b32 {sT}, {sT}, 8
s_add_u32 {sFO}, {sT}, {FL}
s_and_b32 s64, s60, 1
s_lshl_b32 s64, s64, 2
s_and_b32 {sT}, s61, 3
s_add_u32 s64, s64, {sT}
s_lshl_b32 {sT}, {sG2}, 3
s_add_u32 {sT}, {sT}, s64
s_lshl_b32 {sT}, {sT}, 8
s_add_u32 {sFU}, {sT}, {FL + 2048}
s_lshl_b32 s64, s64, 2
s_add_u32 s64, s64, {sWAVE}
s_bfe_u32 s65, s60, 0x10001
s_lshl_b32 s65, s65, 3
s_lshr_b32 {sT}, s61, 2
s_add_u32 s65, s65, {sT}
s_lshl_b32 {sT}, s65, 2
s_add_u32 {sT}, {sT}, 48
s_mul_i32 s65, s65, 3
s_cmp_eq_u32 {sG2}, 0
s_cselect_b32 s65, {sT}, s65
s_lshl_b32 {sGW0}, s65, 6
s_mov_b32 {sB}, {sGW0}
s_lshl_b32 {sGA0}, s64, 17
s_add_u32 {sGA0}, {sGA0}, {HF}
s_mul_i32 {sU}, s64, {112*2048}
s_lshl_b32 {sT}, s65, 11
s_add_u32 {sU}, {sU}, {sT}
s_add_u32 {sU}, {sU}, {UF}
s_lshl_b32 {sPF0}, s2, 2
s_add_u32 {sPF0}, {sPF0}, {sWAVE}
s_mul_i32 {sPF0}, {sPF0}, 14336
s_mov_b32 {sMODE}, 0
s_mov_b32 s58, {f2h(cs)}
s_mov_b32 s59, {f2h(cs)}
s_and_b32 s64, s60, 3
s_lshl_b32 s64, s64, 2
s_and_b32 {sT}, s61, 3
s_add_u32 s64, s64, {sT}
s_lshr_b32 s65, s61, 2
s_lshl_b32 {sT}, s64, 3
s_add_u32 {sT}, {sT}, s65
s_lshl_b32 {sG}, {sT}, 15
s_add_u32 {sG}, {sG}, {GB}
s_lshl_b32 {sT}, {sT}, 8
s_add_u32 {sFG}, {sT}, {FL + 8192}
s_lshl_b32 {sSTR}, 2048, {sG2}"""
    a('s_waitcnt lgkmcnt(0)')
    first = gq.window(0) + gq.window(1) + gq.window(2)[:2]
    per = -(-len(su) // (len(first) - 6))
    cnt = [0]
    def between():
        cnt[0] += 1
        if cnt[0] == 12 and opt.get('pf_code', 1):
            a(f's_getpc_b64 s[66:67]\nL2_pc:\ns_lshl_b32 {sT}, s61, 2\ns_add_u32 {sT}, {sT}, {sWAVE}\ns_lshl_b32 {sT}, {sT}, 9\ns_min_u32 {sT}, {sT}, L2_redo-L2_pc\ns_add_u32 s66, s66, {sT}\ns_addc_u32 s67, s67, 0\nv_lshrrev_b32 {vDUM}, 1, {vL16}')
            st.op(vload(f'global_load_dword {vDUM}, {vDUM}, s[66:67]'))
        if cnt[0] > 6:
            blk = su[:per]; del su[:per]
            while su and (blk[-1].startswith('s_') or su[0].startswith('s_')): blk.append(su.pop(0))
            a('\n'.join(blk))
    gq.issue(st, first, between)
    assert not su
    a(sc_setup)
    gq.start(st)
    sp.stamp(st)
    pre_kv = kdma(0) + kdma(1) + vdma(0) + kdma(2) + vdma(1)
    w3 = wvoff_setup(vWq, sSTR, 'blk', t)
    def qextra(s, e):
        if s != 15: return {}
        r = {3: [valu(x) for x in w3[:2]], 7: [valu(x) for x in w3[2:4]]}
        del w3[:4]
        return r
    gq.run(st, 'L2_q', sCNT, tail=lambda i: pre_kv[i * 12:(i + 1) * 12], extra=qextra)
    assert not w3
    sp.stamp(st)
    a('s_nop 7')
    for tt in range(4):
        for b in range(4):
            d = Qf(b, tt)
            for jj in range(2):
                s_ = QACC.sub(((2 * tt + jj) * 4 + b) * 4, 4)
                a(f'v_pk_mul_f32 {s_.sub(0,2)}, {s_.sub(0,2)}, {sC}\nv_pk_mul_f32 {s_.sub(2,2)}, {s_.sub(2,2)}, {sC}')
            for jj in range(2):
                s_ = QACC.sub(((2 * tt + jj) * 4 + b) * 4, 4)
                a(f'v_cvt_pk_bf16_f32 {d.sub(2*jj)}, {s_.sub(0)}, {s_.sub(1)}\nv_cvt_pk_bf16_f32 {d.sub(2*jj+1)}, {s_.sub(2)}, {s_.sub(3)}')
            pb, pt = (b - 1, tt) if b else (3, tt - 1)
            if pt >= 0:
                d = Qf(pb, pt)
                a(f'v_permlane16_swap_b32 {d.sub(0)}, {d.sub(2)}\nv_permlane16_swap_b32 {d.sub(1)}, {d.sub(3)}')
    st.op(barrier(['K0'], lg0=True))
    for tt in range(4): st.op(kread(0, 0, tt))
    d = Qf(3, 3)
    a(f'v_permlane16_swap_b32 {d.sub(0)}, {d.sub(2)}\nv_permlane16_swap_b32 {d.sub(1)}, {d.sub(3)}')
    a(f'v_mov_b32 v{t+1}, {FLAG}')
    st.op(Op(f'ds_write_b32 v{t+1}, {vZERO}', 'ds'))
    for e in range(8): a(f'v_subrev_u32 {vWa.sub(e)}, {QRING - KBASE}, {vWa.sub(e)}')
    for i in range(4): a(f'v_mov_b32 {ONES.sub(i)}, 0x3f803f80')
    for b in range(4):
        for tt in range(4): st.op(mfma(P.sub(4 * b, 4), Kf(0, tt), Qf(b, tt), P.sub(4 * b, 4) if tt else 0))
    a('s_nop 7')
    M = P.sub(16, 4)
    for b in range(4):
        x = P.sub(4 * b, 4)
        a(f'v_max3_f32 {M.sub(b)}, {x.sub(0)}, {x.sub(1)}, {x.sub(2)}\nv_max_f32 {M.sub(b)}, {M.sub(b)}, {x.sub(3)}')
    negm_finish(a, M, opt.get('margin', MARGIN))
    sp.stamp(st)
    a('L2_att:')
    st.op(kread(0, 1, 0))
    for i in range(4): a(f'v_mov_b32 {P.sub(32+i)}, 0')
    a(f's_mov_b32 {sGW}, {sGW0}\ns_mov_b32 {sGA}, {sGA0}\ns_mov_b32 {sPF}, {sPF0}')
    marks = []
    for j in range(-1, 32):
        if 0 <= j <= 28 and j % 4 == 0: marks.append(st.mark())
        att_iter(st, j, g2s, opt, [])
    st.fold(marks, 'L2_loop', sCNT)
    sp.stamp(st)
    g2s.issue(st, g2s.window(2)[4:])
    a(f'v_bfe_u32 v{t}, v0, 4, 2\nv_lshlrev_b32 v{t}, 3, v{t}')
    for e in range(8): st.op(vload(f'buffer_load_dwordx2 {BIAS.sub(2*e,2)}, v{t}, {sB1}, {sB} offen offset:{32*e}', BIAS.sub(2 * e, 2)))
    a(f'v_add_f32 v{t+2}, {LS.sub(0)}, {LS.sub(4)}\nv_add_f32 v{t+3}, {LS.sub(8)}, {LS.sub(12)}\nv_add_f32 v{t+2}, v{t+2}, v{t+3}')
    for b in range(4): a(f'v_rcp_f32 {LS.sub(4*b)}, {LS.sub(4*b)}')
    a(f'v_cmp_nge_f32 vcc, 0x47800000, v{t+2}\nv_mov_b32 v{t+1}, {FLAG}')
    for b in range(4): a(f'v_mov_b32 {LS.sub(4*b+1)}, {LS.sub(4*b)}')
    a(f's_cbranch_vccz L2_ok\nds_write_b32 v{t+1}, {vONE}\nL2_ok:')
    st.issued['ds'] += 1
    a(f's_add_u32 {sT}, {sO}, 4096\ns_add_u32 {sT2}, {sO}, {128*2048}\ns_add_u32 s66, {sT2}, 4096')
    k = 0
    for b in range(4):
        for tt in range(4):
            x = P.sub((k & 3) * 12, 8); d = P.sub((k & 3) * 12 + 8, 4); k += 1
            for jj in range(2):
                for i in range(4): a(f'v_accvgpr_read_b32 {x.sub(4*jj+i)}, {O.sub(((2*tt+jj)*4+b)*4+i)}')
            for i in range(4): a(f'v_pk_mul_f32 {x.sub(2*i,2)}, {x.sub(2*i,2)}, {LS.sub(4*b,2)}')
            for i in range(4): a(f'v_cvt_pk_bf16_f32 {d.sub(i)}, {x.sub(2*i)}, {x.sub(2*i+1)}')
            so = [[sO, sT], [sT2, 's66']][b >> 1][tt >> 1]
            st.op(vstore(f'buffer_store_dwordx4 {d}, {vL16}, {sWS}, {so} offen offset:{(tt & 1) * 2048 + (b & 1) * 1024} sc1'))
    st.op(barrier(['G0'], lg0=True))
    st.op(Op(f'ds_read_b32 v{t}, v{t+1}', 'ds', wr=V(t).set()))
    for G in range(3): st.ops(g2s.reads(G))
    g2s.issue(st, g2s.window(3)[:2])
    st.op(valu(f'v_readfirstlane_b32 {sT}, v{t}', rd=[V(t)]))
    a(f's_cmp_eq_u32 {sWAVE}, 0\ns_cselect_b32 {sSIG}, -7, 1\ns_cmp_gt_u32 {sT}, {sMODE}\ns_cbranch_scc1 L2_redo')
    for e in range(8):
        for b in range(2):
            x = acc2(e, b)
            for h in range(2):
                st.op(valu(f'v_lshlrev_b32 {x.sub(2*h)}, 16, {BIAS.sub(2*e+h)}', rd=[BIAS.sub(2 * e + h)]))
                a(f'v_and_b32 {x.sub(2*h+1)}, 0xffff0000, {BIAS.sub(2*e+h)}')
    sp.stamp(st)
    a(f's_cmp_lg_u32 {sG2}, 0\ns_cbranch_scc1 L2_Y')
    sy = st.fork(); spn = sp.n
    def sig_end(name, soff):
        far.append(f'{name}:\n{signal(soff)}\ns_branch {name}_r')
        return lambda s_: s_.raw(f's_cmp_eq_u32 {sCNT}, {sSIG}\ns_cbranch_scc1 {name}\n{name}_r:')

    a(f's_lshr_b32 {sFW}, s64, 1\ns_lshl_b32 {sFW}, {sFW}, 8\ns_add_u32 {sFW}, {sFW}, {FL}')
    a(f's_lshl_b32 {sW3}, s65, 8\ns_lshl_b32 {sT}, s64, 2\ns_add_u32 {sT}, {sT}, {sWAVE}\ns_lshl_b32 {sA3}, {sT}, 18\ns_add_u32 {sA3}, {sA3}, {OF}')
    a(f's_lshl_b32 {sR0}, {sT}, 16\ns_add_u32 {sR0}, {sR0}, {sW3}\ns_add_u32 {sR1}, {sR0}, 32768')
    zr = [valu(f'v_mov_b32 {ACC3.sub(i)}, 0') for i in range(64)]
    far.append(f'L2_wo:\n{spin("L2_wo1", sFW, 32)}\ns_branch L2_wo_r')
    def sextra(s, e):
        if s < 28: return {3: [flag_load(sFW)]} if (s % 4 == 0 and e == 2) else {}
        if s == 28 and e == 0: return {3: [valu(f'v_readfirstlane_b32 {sT}, {vFL}', rd=[vFL])]}
        if s == 28 and e == 1: return {3: [salu(f's_cmp_lt_u32 {sT}, 32'), salu('s_cbranch_scc1 L2_wo'), salu('L2_wo_r:')]}
        r = {}
        for g in ([3] if e < 5 else [0, 2] if (e == 5 or s == 31) else []):
            r[g] = zr[:2]; del zr[:2]
        return r
    g2s.run(st, 'L2_gs', sCNT, tail=g3.window, extra=sextra, trip_end=sig_end('L2_so', sFO))
    sp.stamp(st)
    st.ops(zr)
    gelu_store(st, g2s, 4)
    a(f's_cmp_eq_u32 {sWAVE}, 0\ns_cselect_b32 {sSIG}, -15, 1')
    g3.start(st)
    sp.stamp(st)
    def xwin(i):
        if i: return []
        return [([], vload(f'buffer_load_dwordx4 {XR.sub(4*n,4)}, {vX}, {sX}, {[sR0, sR1][n >> 2]} offen offset:{64*(n & 3)}', XR.sub(4 * n, 4)), []) for n in range(8)]
    g3.run(st, 'L2_s', sCNT, tail=xwin, trip_end=sig_end('L2_su', sFU))
    sp.stamp(st)
    st.op(flag_load(sFG))
    for b in range(2):
        for p in range(4):
            d = XR.sub((b * 4 + p) * 4, 4)
            st.op(valu(f'v_permlane16_swap_b32 {d.sub(0)}, {d.sub(2)}', rd=[d]))
            a(f'v_permlane16_swap_b32 {d.sub(1)}, {d.sub(3)}')
            for h in range(4):
                x = XF.sub(((2 * p + (h >> 1)) * 2 + b) * 4 + 2 * (h & 1), 2)
                a(f'v_lshlrev_b32 {x.sub(0)}, 16, {d.sub(h)}\nv_and_b32 {x.sub(1)}, 0xffff0000, {d.sub(h)}')
    st.op(valu(f'v_readfirstlane_b32 {sT}, {vFL}', rd=[vFL]))
    far.append(f'L2_wg:\n{spin("L2_wg1", sFG, 1)}\ns_branch L2_wg_r')
    a(f's_nop 0\ns_cmp_lt_u32 {sT}, 1\ns_cbranch_scc1 L2_wg\nL2_wg_r:')
    sp.stamp(st)
    a(f's_lshl_b32 {sT}, {sWAVE}, 13\ns_add_u32 {sT}, {sT}, {sG}\ns_add_u32 {sT2}, {sT}, 4096')
    for n in range(8):
        d = GR.sub(n * 4, 4)
        st.op(vload(f'buffer_load_dwordx4 {d}, {vL16}, {sWS}, {[sT, sT2][n >> 2]} offen offset:{1024*(n & 3)} sc1', d))
    prev = None
    for n in range(8):
        b, p = n >> 2, n & 3
        gsrc = GR.sub(n * 4, 4)
        x = BIAS.sub((n & 1) * 8, 8); d = XR.sub(n * 4, 4)
        for h in range(4):
            st.op(valu(f'v_lshlrev_b32 {x.sub(2*h)}, 16, {gsrc.sub(h)}', rd=[gsrc]))
            a(f'v_and_b32 {x.sub(2*h+1)}, 0xffff0000, {gsrc.sub(h)}')
        if prev: prev()
        for h in range(4):
            o = ((2 * p + (h >> 1)) * 2 + b) * 4 + 2 * (h & 1)
            a(f'v_pk_fma_f32 {x.sub(2*h,2)}, {x.sub(2*h,2)}, {ACC3.sub(o,2)}, {XF.sub(o,2)}')
        for h in range(4): a(f'v_cvt_pk_bf16_f32 {d.sub(h)}, {x.sub(2*h)}, {x.sub(2*h+1)}')
        def fin(d=d, b=b, p=p):
            a(f'v_permlane16_swap_b32 {d.sub(0)}, {d.sub(2)}\nv_permlane16_swap_b32 {d.sub(1)}, {d.sub(3)}')
            st.op(vstore(f'buffer_store_dwordx4 {d}, {vX}, {sOUT}, {[sR0, sR1][b]} offen offset:{64*p}'))
        prev = fin
    a('s_nop 1')
    prev()
    if sp.on: a('s_waitcnt vmcnt(0)')
    sp.stamp(st)
    sp.flush(st, sWS, t)
    a('L2_end:\ns_endpgm')

    a = sy.raw; sp.n = spn
    a('L2_Y:')
    a(f's_lshl_b32 {sW3}, s64, 8\ns_mov_b32 {sR0}, {sW3}\ns_lshl_b32 {sT}, s65, 2\ns_add_u32 {sT}, {sT}, {sWAVE}\ns_mul_i32 {sA3}, {sT}, {112*2048}\ns_add_u32 {sA3}, {sA3}, {UF}')
    a(f's_lshl_b32 {sT}, s65, 8\ns_add_u32 {sR1}, {sT}, {FL + 2048}\ns_add_u32 {sFW}, {sR1}, 2048')
    a(f'v_and_b32 {vX}, 15, v0\nv_lshlrev_b32 {vX}, 1, {vX}')
    def ytail(i):
        w = g4.window(i)[:4]
        if i < 2:
            w += [([], vload(f'buffer_load_ushort {BIAS.sub(e)}, {vX}, {sB2}, {sR0} offen offset:{32*e}', BIAS.sub(e)), []) for e in range(4 * i, 4 * i + 4)]
        return w
    g2y.run(sy, 'L2_gy', sCNT, tail=ytail, trip_end=sig_end('L2_yo', sFO))
    sp.stamp(sy)
    gelu_store(sy, g2y, 3)
    for e in range(8):
        for i in range(8): sy.op(valu(f'v_lshlrev_b32 {ACC3.sub(8*e+i)}, 16, {BIAS.sub(e)}', rd=[BIAS.sub(e)]))
    sy.wait_all()
    a(f's_barrier\ns_cmp_lg_u32 {sWAVE}, 0\ns_cbranch_scc1 L2_yu\n{signal(sFU)}\nL2_yu:')
    for G in range(3): sy.ops(g4.reads(G))
    a(spin('L2_wu', sFW, 16))
    for s in range(3): g4.issue(sy, g4.window(s)[4:])
    sp.stamp(sy)
    far.append(f'L2_w2:\ns_cmp_ge_u32 {sT}, 16\ns_cbranch_scc1 L2_w2_r\n{spin("L2_w21", sR1, 16)}\ns_branch L2_w2_r')
    def yextra(s, e):
        if s >= 52: return {}
        if s % 4 == 0 and e == 2: return {3: [flag_load(sR1)]}
        if s % 4 == 3 and e == 4: return {3: [valu(f'v_readfirstlane_b32 {sT}, {vFL}', rd=[vFL])]}
        return {}
    g4.run(sy, 'L2_y', sCNT, extra=yextra, trip_end=lambda s_: s_.raw(f's_cmp_eq_u32 {sCNT}, -9\ns_cbranch_scc1 L2_w2\nL2_w2_r:'))
    sp.stamp(sy)
    l2e = f2h(-math.log2(math.e))
    a(f's_mov_b32 s62, {l2e}\ns_mov_b32 s63, {l2e}\ns_lshl_b32 {sT}, {sWAVE}, 10\ns_add_u32 {sT}, {sT}, {sG}\ns_nop 3')
    for e in range(8):
        x = BIAS.sub((e & 1) * 8, 8); d = GR.sub(e * 4, 4); y = ACC3.sub(8 * e, 8)
        for i in range(4): a(f'v_pk_mul_f32 {x.sub(2*i,2)}, {y.sub(2*i,2)}, s[62:63]')
        for i in range(8): a(f'v_exp_f32 {x.sub(i)}, {x.sub(i)}')
        for i in range(4): a(f'v_pk_add_f32 {x.sub(2*i,2)}, {x.sub(2*i,2)}, 1.0 op_sel_hi:[1,0]')
        for i in range(8): a(f'v_rcp_f32 {x.sub(i)}, {x.sub(i)}')
        for i in range(4): a(f'v_pk_mul_f32 {x.sub(2*i,2)}, {x.sub(2*i,2)}, {y.sub(2*i,2)}')
        for i in range(4): a(f'v_cvt_pk_bf16_f32 {d.sub(i)}, {x.sub(2*i)}, {x.sub(2*i+1)}')
        a(f'buffer_store_dwordx4 {d}, {vL16}, {sWS}, {sT} offen sc1\ns_add_u32 {sT}, {sT}, 4096')
    sp.stamp(sy)
    a(f's_waitcnt vmcnt(0)\ns_barrier\ns_cmp_lg_u32 {sWAVE}, 0\ns_cbranch_scc1 L2_end2\n{signal(sFG)}\ns_waitcnt vmcnt(0)')
    sp.stamp(sy)
    sp.flush(sy, sWS, t)
    a('L2_end2:\ns_endpgm')
    for x in far: a(x)

    a('L2_redo:')
    a(f's_mov_b32 {sMODE}, 1\ns_mov_b32 {sK}, {sKV0}\ns_mov_b32 {sCNT}, -32')
    for b in range(4): a(f'v_mov_b32 {M.sub(b)}, 0xff800000')
    a('L2_mx:\ns_waitcnt vmcnt(0) lgkmcnt(0)\ns_barrier')
    for pre, v, post in kdma(0):
        for o in pre: a(o.text + '\ns_nop 0')
        a(v.text)
        for o in post: a(o.text)
    a('s_waitcnt vmcnt(0)\ns_barrier')
    for c in range(4):
        for tt in range(4): a(kread(0, c, tt).text)
        a('s_waitcnt lgkmcnt(0)')
        for b in range(4):
            for tt in range(4): a(mfma(P.sub(4 * b, 4), Kf(c, tt), Qf(b, tt), P.sub(4 * b, 4) if tt else 0).text)
        a('s_nop 7')
        for b in range(4):
            x = P.sub(4 * b, 4)
            a(f'v_max3_f32 {M.sub(b)}, {M.sub(b)}, {x.sub(0)}, {x.sub(1)}\nv_max3_f32 {M.sub(b)}, {M.sub(b)}, {x.sub(2)}, {x.sub(3)}')
    a(f's_add_u32 {sCNT}, {sCNT}, 1\ns_cbranch_scc0 L2_mx')
    negm_finish(a, M, 0.0)
    a(f's_mov_b32 {sK}, {sKV0}\ns_mov_b32 {sV}, {sKV0}\ns_barrier')
    for pre, v, post in pre_kv:
        for o in pre: a(o.text + '\ns_nop 0')
        a(v.text)
        for o in post: a(o.text)
    a('s_waitcnt vmcnt(0)\ns_barrier')
    for tt in range(4): a(kread(0, 0, tt).text)
    a('s_waitcnt lgkmcnt(0)\ns_branch L2_att')
    return st.lines() + sy.lines(), kd('att_kernel', 512, 256, 100), '; @launch kernel=att_kernel grid=(256,1,1) block=(256,1,1) lds=163840'
```

```python
from fw import *
from k2 import WS_SIZE
def gen_probe(opt):
    k, j, mask = opt['probe']
    L = f'''probe_kernel:
s_cmp_ge_u32 s2, 1
s_cbranch_scc1 LP_end
s_load_dwordx2 s[4:5], s[0:1], 96
s_mov_b32 s6, {WS_SIZE}
s_mov_b32 s7, 0x20000
v_and_b32 v1, {mask}, v0
v_lshlrev_b32 v1, 7, v1
s_mov_b32 s3, {STAMP_OFF + k * 65536 + 8 * j}
s_waitcnt lgkmcnt(0)
buffer_load_dword v2, v1, s[4:7], s3 offen
s_waitcnt vmcnt(0)
s_mov_b32 s12, -2000000
LP_spin:
s_memrealtime s[8:9]
s_waitcnt lgkmcnt(0)
v_sub_u32 v3, s8, v2
v_cmp_gt_u32 vcc, 20000, v3
s_add_u32 s12, s12, 1
s_cbranch_scc1 LP_end
s_nop 4
s_cbranch_vccnz LP_spin
LP_end:
s_endpgm'''.split('\n')
    return L, kd('probe_kernel', 8, 8, 32), '; @launch kernel=probe_kernel grid=(1,1,1) block=(256,1,1) lds=0'
```

```python
import sys, json
from fw import *
def build(opt):
    parts = []
    import k2; parts.append(k2.gen_k2(opt))
    if 'probe' in opt:
        import probe; parts.append(probe.gen_probe(opt))
    out = [p[2] for p in parts]
    out.append('.amdgcn_target "amdgcn-amd-amdhsa--gfx950"\n.text')
    for p in parts:
        name = p[0][0][:-1]
        errs = hazards(p[0])
        for e in errs: print('HAZARD', name, e, file=sys.stderr)
        out.append(f'.globl {name}\n.p2align 8\n.type {name},@function')
        out += p[0]
    out.append('.section .rodata,"a"')
    for p in parts: out.append('.p2align 6\n' + p[1])
    return '\n'.join(out) + '\n'
if __name__ == '__main__':
    opt = json.loads(sys.argv[2]) if len(sys.argv) > 2 else {}
    open(sys.argv[1], 'w').write(build(opt))
```

```python
import re

def R(kind, lo, n=1):
    return f'{kind}{lo}' if n == 1 else f'{kind}[{lo}:{lo+n-1}]'
def regs(kind, lo, n=1):
    return [(kind, lo + i) for i in range(n)]

class Reg:
    def __init__(self, kind, lo, n=1):
        self.kind, self.lo, self.n = kind, lo, n
    def __str__(self): return R(self.kind, self.lo, self.n)
    def sub(self, off, n=1):
        assert off + n <= self.n, (off, n, self.n)
        return Reg(self.kind, self.lo + off, n)
    def set(self): return regs(self.kind, self.lo, self.n)
def V(lo, n=1): return Reg('v', lo, n)
def A(lo, n=1): return Reg('a', lo, n)

class Wait:
    def __init__(self): self.lg = None; self.vm = None
    def need(self, cls, n):
        if cls == 'ds': self.lg = n if self.lg is None else min(self.lg, n)
        else: self.vm = n if self.vm is None else min(self.vm, n)
    def merge(self, o):
        if o.lg is not None: self.need('ds', o.lg)
        if o.vm is not None: self.need('vm', o.vm)
    def text(self):
        p = []
        if self.vm is not None: p.append(f'vmcnt({self.vm})')
        if self.lg is not None: p.append(f'lgkmcnt({self.lg})')
        return 's_waitcnt ' + ' '.join(p) if p else None

class Op:
    def __init__(self, text, kind, rd=(), wr=(), tag=None, waittags=()):
        self.text, self.kind, self.rd, self.wr, self.tag, self.waittags = text, kind, list(rd), list(wr), tag, list(waittags)

def mfma(d, a, b, c):
    rd = a.set() + b.set() + (c.set() if isinstance(c, Reg) else [])
    return Op(f'v_mfma_f32_16x16x32_bf16 {d}, {a}, {b}, {c}', 'mfma', rd=rd)
def valu(text, rd=()):
    r = []
    for x in rd: r += x.set()
    return Op(text, 'valu', rd=r)
def salu(text): return Op(text, 's')
def ds_tr(d, addr, off): return Op(f'ds_read_b64_tr_b16 {d}, {addr} offset:{off}', 'ds', wr=d.set())
def ds_128(d, addr, off): return Op(f'ds_read_b128 {d}, {addr} offset:{off}', 'ds', wr=d.set())
def vload(text, d=None, tag=None): return Op(text, 'vm', wr=d.set() if d is not None else (), tag=tag)
def vstore(text, rd=()):
    r = []
    for x in rd: r += x.set()
    return Op(text, 'vm', rd=r)
def barrier(tags=(), lg0=False):
    o = Op('s_barrier', 's', waittags=tags); o.lg0 = lg0
    return o

class Stream:
    MAXC = {'ds': 15, 'vm': 63}
    def __init__(self):
        self.items = []
        self.issued = {'ds': 0, 'vm': 0}
        self.done = {'ds': 0, 'vm': 0}
        self.pend = {}
        self.tags = {}
    def raw(self, text):
        for l in text.split('\n'):
            if l.strip(): self.items.append(l.strip())
    def _needs(self, op):
        n = {'ds': 0, 'vm': 0}
        for r in op.rd + op.wr:
            if r in self.pend:
                c, s = self.pend[r]; n[c] = max(n[c], s)
        for t in op.waittags:
            n['vm'] = max(n['vm'], self.tags[t])
        if getattr(op, 'lg0', False): n['ds'] = self.issued['ds']
        return n
    def _wait(self, w, n):
        for c in n:
            if n[c] > self.done[c]:
                w.need(c, min(self.issued[c] - n[c], self.MAXC[c])); self.done[c] = n[c]
    def _issue(self, op):
        self.items.append(op.text)
        if op.kind in ('ds', 'vm'):
            self.issued[op.kind] += 1
            assert self.issued[op.kind] - self.done[op.kind] <= self.MAXC[op.kind], (op.text, self.issued, self.done)
            for r in op.wr: self.pend[r] = (op.kind, self.issued[op.kind])
            if op.tag: self.tags[op.tag] = self.issued[op.kind]
    def op(self, op):
        w = Wait(); self._wait(w, self._needs(op)); self.items.append(w); self._issue(op)
    def ops(self, l):
        for o in l: self.op(o)
    def gaps(self, mf, fill, nxt=None):
        for i, m in enumerate(mf):
            w0 = Wait(); self._wait(w0, self._needs(m)); self.items.append(w0)
            self._issue(m)
            w = Wait(); self.items.append(w)
            follow = mf[i + 1] if i + 1 < len(mf) else nxt
            look = list(fill[i]) + ([follow] if follow is not None else [])
            for o in look: self._wait(w, self._needs(o))
            for o in fill[i]:
                w2 = Wait(); self._wait(w2, self._needs(o)); self.items.append(w2)
                self._issue(o)
    def wait_all(self, vm=True, ds=True):
        w = Wait()
        if vm: w.need('vm', 0); self.done['vm'] = self.issued['vm']
        if ds: w.need('ds', 0); self.done['ds'] = self.issued['ds']
        self.items.append(w)
    def mark(self): return len(self.items)
    def fork(self):
        o = Stream()
        o.issued, o.done, o.pend, o.tags = dict(self.issued), dict(self.done), dict(self.pend), dict(self.tags)
        return o
    def fold(self, marks, label, sreg):
        trips = [self.items[marks[i]:marks[i + 1]] for i in range(len(marks) - 1)]
        body = trips[0]
        for t in trips[1:]:
            assert len(t) == len(body), (label, len(t), len(body))
            for x, y in zip(body, t):
                if isinstance(x, Wait): x.merge(y)
                else: assert x == y, (label, x, y)
        new = [f's_mov_b32 {sreg}, {-len(trips)}', '.p2align 3', f'{label}:'] + body + [f's_add_u32 {sreg}, {sreg}, 1', f's_cbranch_scc0 {label}']
        self.items[marks[0]:marks[-1]] = new
    def lines(self):
        out = []
        for it in self.items:
            if isinstance(it, Wait):
                t = it.text()
                if t: out.append(t)
            else: out.append(it)
        return out

RE_REG = re.compile(r'\b([va])(?:(\d+)\b|\[(\d+):(\d+)\])')
def _operands(text):
    m = text.split(None, 1)
    if len(m) < 2: return m[0], []
    ops = [x.strip() for x in m[1].split(',')]
    res = []
    for o in ops:
        mm = RE_REG.search(o.split()[0]) if o else None
        if mm:
            k = mm.group(1)
            lo = int(mm.group(2) if mm.group(2) is not None else mm.group(3)); hi = int(mm.group(2) if mm.group(2) is not None else mm.group(4))
            res.append({(k, i) for i in range(lo, hi + 1)})
        else: res.append(set())
    return m[0], res
TRANS = ('v_exp_', 'v_log_', 'v_rcp_', 'v_rsq_', 'v_sqrt_', 'v_sin_', 'v_cos_')
def classify(text):
    op, o = _operands(text)
    U = lambda l: set().union(*l) if l else set()
    d = dict(op=op, rd=set(), wr=set(), kind='s', ab=set(), c=set(), states=1, sdata=set())
    if op == 's_nop': d['states'] = int(text.split()[1]) + 1
    elif op.startswith('v_mfma'):
        d.update(kind='mfma', wr=o[0], ab=o[1] | o[2], c=o[3], rd=o[1] | o[2] | o[3])
    elif op.startswith('v_smfmac'):
        d.update(kind='mfma', wr=o[0], ab=o[1] | o[2] | o[3], c=o[0], rd=o[0] | o[1] | o[2] | o[3])
    elif op.startswith('v_permlane'):
        d.update(kind='valu', wr=o[0] | o[1], rd=o[0] | o[1], perm=True)
    elif op.startswith('v_cmp') or op.startswith('v_readfirstlane') or op.startswith('v_readlane'):
        d.update(kind='valu', rd=U(o[1:]), lane=op.startswith('v_read'))
    elif op.startswith('v_'):
        d.update(kind='valu', wr=o[0], rd=U(o[1:]) | (o[0] if 'fmac' in op else set()), trans=op.startswith(TRANS),
                 dpp=('quad_perm' in text or 'row_' in text))
    elif op.startswith('ds_read'): d.update(kind='mem', wr=o[0], rd=o[1])
    elif op.startswith('ds_write'): d.update(kind='mem', rd=U(o))
    elif op.startswith('buffer_load') or op.startswith('global_load'):
        if text.rstrip().endswith('lds') or ' lds ' in text: d.update(kind='mem', rd=o[0], dma=True)
        else: d.update(kind='mem', wr=o[0], rd=o[1])
    elif op.startswith('buffer_store') or op.startswith('buffer_atomic'):
        d.update(kind='mem', rd=U(o), sdata=o[0] if 'x4' in op or 'x3' in op else set())
    elif op.startswith('global_store') or op.startswith('global_atomic'):
        d.update(kind='mem', rd=U(o), sdata=o[1] if 'x4' in op or 'x3' in op else set())
    d['m0w'] = bool(re.match(r's_\w+\s+m0\s*,', text))
    mm = re.match(r'v_read(?:first)?lane_b32\s+(s\d+)', text) or re.match(r'v_cmp\w*\s+(vcc|s\[\d+:\d+\])', text)
    d['sw'] = mm.group(1) if mm else None
    d['text'] = text
    return d
def hazards(lines):
    ins = []; labels = {}
    for l in lines:
        l = l.split(';')[0].strip()
        if not l or l.startswith('.'): continue
        if l.endswith(':'): labels[l[:-1]] = len(ins); continue
        ins.append(classify(l))
    errs = []
    def scan(seq):
        for i, c in enumerate(seq):
            dist = 0
            for j in range(i - 1, max(-1, i - 14), -1):
                p = seq[j]
                need = 0
                if p['kind'] == 'valu' and c['kind'] == 'mfma' and p['wr'] & c['rd']: need = 2
                if p['kind'] == 'mfma':
                    if c['kind'] == 'mfma':
                        if p['wr'] & c['ab']: need = 8
                        elif p['wr'] & c['c'] and p['wr'] != c['c']: need = 6
                        elif p['wr'] & c['wr'] and p['wr'] != c['c']: need = 6
                    elif c['kind'] in ('valu', 'mem') and p['wr'] & (c['rd'] | c['wr']): need = 8
                    if c['kind'] == 'valu' and p['c'] & c['wr']: need = max(need, 3)
                if p['kind'] == 'valu' and c['kind'] == 'valu':
                    if p.get('trans') and not c.get('trans') and p['wr'] & c['rd']: need = max(need, 1)
                    if (c.get('perm') or c.get('dpp')) and p['wr'] & c['rd']: need = max(need, 2)
                    if c.get('lane') and p['wr'] & c['rd']: need = max(need, 1)
                if p['sw']:
                    names = [p['sw']]
                    if p['sw'].startswith('s['):
                        lo = int(p['sw'][2:].split(':')[0]); names += [f's{lo}', f's{lo+1}']
                    used = any(re.search(r'(?<![\w\[])' + re.escape(n) + r'(?![\w])', c['text'].split(None, 1)[1] if ' ' in c['text'] else '') for n in names)
                    if used and c['kind'] == 'valu' and not c['sw'] == p['sw']: need = max(need, 2)
                    if used and c['kind'] == 'mem': need = max(need, 5)
                if p['m0w'] and c.get('dma'): need = max(need, 1)
                if p['sdata'] and c['kind'] in ('valu', 'mem', 'mfma') and p['sdata'] & c['wr']: need = max(need, 2)
                if need > dist: errs.append((p['text'], c['text'], dist, need))
                dist += p['states']
    scan(ins)
    for i, c in enumerate(ins):
        if c['op'].startswith('s_cbranch') or c['op'] == 's_branch':
            t = c['text'].split()[1]
            if t in labels:
                scan(ins[max(0, i - 14):i + 1] + ins[labels[t]:labels[t] + 14])
    return sorted(set(errs))

def kd(name, nv, acc, ns=96):
    return f'''.amdhsa_kernel {name}
  .amdhsa_next_free_vgpr {nv}
  .amdhsa_next_free_sgpr {ns}
  .amdhsa_accum_offset {acc}
  .amdhsa_group_segment_fixed_size 0
  .amdhsa_kernarg_size 104
  .amdhsa_user_sgpr_count 2
  .amdhsa_user_sgpr_kernarg_segment_ptr 1
  .amdhsa_system_sgpr_workgroup_id_x 1
  .amdhsa_float_denorm_mode_32 3
.end_amdhsa_kernel'''
def srd(s, base, size):
    return f's_mov_b32 s{s}, s{base}\ns_mov_b32 s{s+1}, s{base+1}\ns_mov_b32 s{s+2}, {size}\ns_mov_b32 s{s+3}, 0x20000'

STAMP_OFF = 48 << 20
class Stamps:
    def __init__(self, on, kidx, v): self.on, self.k, self.v, self.n = on, kidx, v, 0
    def stamp(self, st):
        if not self.on: return
        st.raw('s_memrealtime s[96:97]\ns_memtime s[98:99]')
        st.wait_all(vm=False)
        st.raw(f'v_writelane_b32 v{self.v}, s96, {self.n}\nv_writelane_b32 v{self.v+1}, s98, {self.n}')
        self.n += 1
    def flush(self, st, ws, t):
        if not self.on: return
        st.raw(f's_lshl_b32 s96, s2, 7\ns_add_u32 s96, s96, {STAMP_OFF + self.k * 65536}\nv_lshlrev_b32 v{t}, 3, v0\nv_mov_b32 v{t+1}, 0x40000000\nv_cmp_gt_u32 vcc, 16, v0\ns_nop 1\nv_cndmask_b32 v{t}, v{t+1}, v{t}, vcc')
        st.raw(f'buffer_store_dwordx2 v[{self.v}:{self.v+1}], v{t}, {ws}, s96 offen\ns_waitcnt vmcnt(0)')
```

```python
from fw import *

class Gemm:
    def __init__(self, name, nst, NA, acc, act, wr, waddr, pi, wsrd, wvoff, sW, wstride, m0base, sLds, asrd, avoff, sA,
                 swap=False, sA2=None, NW=8, lead=4, asuf='', uni=False, winc=None, ainc=None):
        self.__dict__.update(locals())
    def wfrag(self, G, ks): return self.wr.sub((G % 4) * 8 + ks * 4, 4)
    def afrag(self, s, ks, b): return self.act.sub((s % 4) * 8 * self.NA + (ks * self.NA + b) * 4, 4)
    def reads(self, G):
        s, e = divmod(G, self.NW)
        if s >= self.nst: return []
        o = []
        for ks in range(2):
            for tt in range(2):
                off = (s % 4) * 16384 + ks * 8192 + tt * (1024 if self.pi == 'id' else 4096)
                o.append(ds_tr(self.wfrag(G, ks).sub(2 * tt, 2), self.waddr.sub(e), off))
        return o
    def window(self, s):
        w = []
        for i in range(4):
            pre = [salu(f's_add_u32 m0, {self.sLds}, {self.m0base + (s % 4) * 16384}')] if i == 0 else []
            post = [salu(f's_add_u32 {self.sW}, {self.sW}, {self.winc[s & 1] if self.winc else 64 * self.wstride}')] if i == 3 else []
            w.append((pre, vload(f'buffer_load_dwordx4 {self.wvoff.sub(i)}, {self.wsrd}, {self.sW} offen offset:{i*1024} lds', tag=f'{self.name}{s}'), post))
        n = 2 * self.NA
        for i in range(n):
            ks, b = divmod(i, self.NA)
            so = self.sA if i < 4 else self.sA2
            post = []
            if i == 3: post.append(salu(f's_add_u32 {self.sA}, {self.sA}, {self.ainc[s & 1] if self.ainc else n * 1024}'))
            if i == 7: post.append(salu(f's_add_u32 {self.sA2}, {self.sA2}, {n * 1024}'))
            d = self.afrag(s, ks, b)
            w.append(([], vload(f'buffer_load_dwordx4 {d}, {self.avoff}, {self.asrd}, {so} offen offset:{(i % 4) * 1024}{self.asuf}', d), post))
        return w
    def positions(self):
        if self.uni and self.NA == 2:
            assert self.NW == 8 and self.lead == 4
            return [(1, 5, 1), (1, 6, 1), (1, 7, 1), (2, 0, 1), (1, 1, 1), (1, 2, 1), (1, 3, 1), (1, 4, 1)]
        if self.NA == 4:
            return [(0, 7, 1), (0, 7, 5), (1, 0, 1), (1, 0, 5), (1, 1, 1), (1, 1, 5), (1, 2, 1), (1, 2, 5), (1, 3, 1), (1, 3, 5), (1, 4, 1), (1, 4, 5)]
        if self.NW == 8:
            return [(0, 7, 1), (0, 7, 3), (1, 0, 1), (1, 1, 1), (1, 2, 1), (1, 3, 1), (1, 4, 1), (1, 5, 1)]
        assert self.NW == 6
        return [(0, 5, 1), (0, 5, 3), (1, 0, 1), (1, 0, 3), (1, 1, 1), (1, 2, 1), (1, 3, 0), (1, 3, 2)]
    def issue(self, st, elems, between=None):
        for pre, v, post in elems:
            st.ops(pre)
            if pre: st.raw('s_nop 0')
            st.op(v); st.ops(post)
            if between: between()
    def start(self, st):
        st.op(barrier([f'{self.name}0'], lg0=True))
        for G in range(3): st.ops(self.reads(G))
    def mf(self, s, e):
        m = []
        for b in range(self.NA):
            for ks in range(2):
                w, x = self.wfrag(self.NW * s + e, ks), self.afrag(s, ks, b)
                c = self.acc(e, b)
                m.append(mfma(c, x, w, c) if self.swap else mfma(c, w, x, c))
        return m
    def run(self, st, label, sreg, tail=None, extra=None, trip_end=None):
        self.loop(st, label, sreg, extra, trip_end)
        self.last(st, tail, extra)
    def loop(self, st, label, sreg, extra=None, trip_end=None):
        marks = self.stages(st, 0, self.nst - 4, None, extra, trip_end)
        st.fold(marks, label, sreg)
    def last(self, st, tail=None, extra=None, last_bar=False):
        self.stages(st, self.nst - 4, self.nst, tail, extra, None, last_bar)
    def stages(self, st, s0, s1, tail, extra, trip_end, last_bar=False):
        ng, NW = 2 * self.NA, self.NW
        pos = self.positions()
        wins = {}
        def win(s):
            if s not in wins:
                wins[s] = self.window(s) if s < self.nst else (tail(s - self.nst) if tail else [])
            return wins[s]
        marks = []
        carry = []
        for s in range(s0, s1):
            if s % 4 == 0: marks.append(st.mark())
            for e in range(NW):
                G = NW * s + e
                fill = [[] for _ in range(ng)]
                sc = [[] for _ in range(ng + 1)]
                sc[0] += carry; carry = []
                rd = self.reads(G + 3) if self.uni or e < NW - 3 or e == NW - 1 else (self.reads(G + 2) + self.reads(G + 3) if e == NW - 2 else [])
                if self.NA == 2: gp = [0, 0, 2, 2] if len(rd) <= 4 else [0, 0, 1, 1, 2, 2, 3, 3]
                else: gp = [0, 2, 4, 6] if len(rd) <= 4 else list(range(8))
                for o, g in zip(rd, gp): fill[g].append(o)
                for idx, (so, pe, pg) in enumerate(pos):
                    if pe != e: continue
                    w = win(s + self.lead - so)
                    if idx >= len(w) or w[idx] is None: continue
                    pre, v, post = w[idx]
                    assert pg > 0 or not pre
                    sc[pg - 1] += pre; fill[pg].append(v); sc[pg + 1] += post
                if e == NW - (4 if self.uni else 3) and s + 1 < self.nst:
                    fill[ng - 1].append(barrier([f'{self.name}{s+1}'], lg0=not self.uni))
                if e == NW - 4 and s + 1 == self.nst and last_bar: fill[ng - 1].append(barrier())
                if extra:
                    for g, l in extra(s, e).items(): fill[g] += l
                carry = sc[ng]
                if e == NW - 1 and s % 4 == 3:
                    fill[ng - 1] += carry; carry = []
                for g in range(ng): fill[g] = sc[g] + fill[g]
                nxt = self.mf(s, e + 1)[0] if e < NW - 1 else (self.mf(s + 1, 0)[0] if s + 1 < self.nst else None)
                st.gaps(self.mf(s, e), fill, nxt)
            if s % 4 == 3 and trip_end: trip_end(st)
        marks.append(st.mark())
        return marks

def waddr_setup(dst, base, pi, t):
    L = [f'v_bfe_u32 v{t}, v0, 4, 2', f'v_bfe_u32 v{t+1}, v0, 2, 2',
         f'v_and_b32 v{t+2}, 1, v{t}', f'v_lshl_or_b32 v{t+2}, v{t+2}, 2, v{t+1}',
         f'v_lshl_add_u32 v{t}, v{t}, {3 if pi == "id" else 2}, v{t+1}', f'v_lshlrev_b32 v{t}, 8, v{t}',
         f'v_and_b32 v{t+1}, 3, v0', f'v_lshl_add_u32 v{t}, v{t+1}, 3, v{t}', f'v_add_u32 v{t}, {base}, v{t}']
    for e in range(8):
        L += [f'v_xor_b32 v{t+1}, {e}, v{t+2}', f'v_lshl_add_u32 {dst.sub(e)}, v{t+1}, 5, v{t}']
    return L

def wvoff_setup(dst, sstride, pi, t, slimit=None):
    L = [f'v_bfe_u32 v{t}, v0, 4, 2', f'v_lshrrev_b32 v{t+1}, 6, v0', f'v_lshl_add_u32 v{t+1}, v{t+1}, 4, v{t}', f'v_and_b32 v{t+3}, 15, v0']
    for i in range(4):
        hi = pi[i] if isinstance(pi, list) else 4 * (((i >> 1) & 1) if pi == 'id' else (i & 1))
        d = dst.sub(i)
        L += [f'v_add_u32 {d}, {4*i}, v{t+1}', f'v_mul_u32_u24 {d}, {sstride}, {d}',
              f'v_or_b32 v{t+2}, {hi}, v{t}', f'v_lshlrev_b32 v{t+2}, 1, v{t+2}', f'v_xor_b32 v{t+2}, v{t+2}, v{t+3}']
        if slimit: L += [f'v_cmp_gt_u32 vcc, {slimit}, v{t+2}']
        L += [f'v_lshl_add_u32 {d}, v{t+2}, 4, {d}']
        if i: L += [f'v_subrev_u32 {d}, {i * 1024}, {d}']
        if slimit: L += [f'v_mov_b32 v{t+2}, 0x40000000', f'v_cndmask_b32 {d}, v{t+2}, {d}, vcc']
    return L
```

```python
from fw import *
XNF, HF, UF, OF, GB, FL = 0, 4 << 20, 8 << 20, 16 << 20, 32 << 20, 40 << 20
WS_SIZE = 128 << 20
SHADOW = (64 << 20) + 128
LSTR = 2112

def allreduce(a, v, t):
    for m in ('quad_perm:[1,0,3,2]', 'quad_perm:[2,3,0,1]', 'row_half_mirror', 'row_mirror'):
        a('s_nop 1')
        a(f'v_add_f32_dpp v{v}, v{v}, v{v} {m} row_mask:0xf bank_mask:0xf')
    for p in ('16', '32'):
        a(f'v_mov_b32 v{t}, v{v}')
        a('s_nop 1')
        a(f'v_permlane{p}_swap_b32 v{t}, v{v}')
        a(f'v_add_f32 v{v}, v{v}, v{t}')

def rbf(a, v):
    a(f'v_cvt_pk_bf16_f32 v{v}, v{v}, v{v}')
    a(f'v_lshlrev_b32 v{v}, 16, v{v}')

def layernorm(a, X, Y, T, unpack_out):
    S, Q, Q2, U = T, T + 1, T + 2, T + 3
    D = T + 4
    for i in range(8): a(f'v_add_f32 v{D+i}, v{X+2*i}, v{X+2*i+1}')
    for w in (4, 2, 1):
        for i in range(w): a(f'v_add_f32 v{D+i}, v{D+i}, v{D+i+w}')
    a(f'v_mov_b32 v{S}, v{D}')
    allreduce(a, S, U)
    a(f'v_mul_f32 v{S}, 0x3a800000, v{S}')
    for i in range(16): a(f'v_sub_f32 v{D+i}, v{X+i}, v{S}')
    a(f'v_mul_f32 v{Q}, v{D}, v{D}')
    a(f'v_mul_f32 v{Q2}, v{D+1}, v{D+1}')
    for i in range(2, 16): a(f'v_fmac_f32 v{Q + (i & 1)}, v{D+i}, v{D+i}')
    a(f'v_add_f32 v{Q}, v{Q}, v{Q2}')
    allreduce(a, Q, U)
    a(f'v_mul_f32 v{Q}, 0x3a800000, v{Q}')
    rbf(a, S); rbf(a, Q)
    a(f'v_add_f32 v{Q}, 0x3727c5ac, v{Q}')
    rbf(a, Q)
    a(f'v_sqrt_f32 v{Q}, v{Q}')
    for i in range(16): a(f'v_sub_f32 v{D+i}, v{X+i}, v{S}')
    rbf(a, Q)
    a(f'v_rcp_f32 v{Q}, v{Q}')
    for i in range(8): a(f'v_cvt_pk_bf16_f32 v{Y+i}, v{D+2*i}, v{D+2*i+1}')
    for i in range(8):
        a(f'v_lshlrev_b32 v{D+2*i}, 16, v{Y+i}')
        a(f'v_and_b32 v{D+2*i+1}, 0xffff0000, v{Y+i}')
    for i in range(16): a(f'v_mul_f32 v{D+i}, v{D+i}, v{Q}')
    for i in range(8): a(f'v_cvt_pk_bf16_f32 v{Y+i}, v{D+2*i}, v{D+2*i+1}')
    if unpack_out:
        for i in range(8):
            a(f'v_lshlrev_b32 v{X+2*i}, 16, v{Y+i}')
            a(f'v_and_b32 v{X+2*i+1}, 0xffff0000, v{Y+i}')

def gen_k1(opt):
    st = Stream(); a = st.raw
    sp = Stamps(opt.get('stamp'), 0, 80)
    a('ln_kernel:')
    a('s_cmp_ge_u32 s2, 256\ns_cbranch_scc1 L1_end')
    sp.stamp(st)
    a('s_load_dwordx2 s[4:5], s[0:1], 0\ns_load_dwordx2 s[6:7], s[0:1], 96\ns_load_dwordx2 s[20:21], s[0:1], 24')
    a('v_and_b32 v1, 63, v0\nv_lshrrev_b32 v2, 6, v0')
    a('v_lshlrev_b32 v3, 11, v2\nv_lshl_add_u32 v3, v1, 4, v3')
    a('s_lshl_b32 s3, s2, 14')
    a('s_waitcnt lgkmcnt(0)')
    a(srd(8, 4, 4194304)); a(srd(12, 6, WS_SIZE)); a(srd(16, 20, 8388608))
    a('buffer_load_dwordx4 v[4:7], v3, s[8:11], s3 offen')
    a('buffer_load_dwordx4 v[8:11], v3, s[8:11], s3 offen offset:1024')
    if opt.get('pf_wq', 1):
        a('v_lshlrev_b32 v12, 6, v0\ns_lshl_b32 s22, s2, 15')
        a('buffer_load_dword v13, v12, s[16:19], s22 offen')
    a(f'v_lshlrev_b32 v52, 2, v0\nv_mov_b32 v53, 0x40000000\nv_cmp_gt_u32 vcc, 0x80, v0\nv_mov_b32 v54, 0\ns_lshl_b32 s27, s2, 9\nv_cndmask_b32 v52, v53, v52, vcc\ns_add_u32 s27, s27, {FL}')
    a('buffer_store_dword v54, v52, s[12:15], s27 offen')
    a(f'v_mul_u32_u24 v14, {LSTR}, v2\nv_lshl_add_u32 v14, v1, 4, v14')
    a(f'v_and_b32 v60, 7, v0\nv_lshrrev_b32 v61, 3, v0\nv_mul_u32_u24 v62, {LSTR}, v60\nv_lshl_add_u32 v62, v61, 4, v62')
    a('v_lshrrev_b32 v63, 2, v61\nv_lshlrev_b32 v63, 12, v63\nv_and_b32 v61, 3, v61\nv_lshl_add_u32 v63, v61, 8, v63\nv_lshl_add_u32 v63, v60, 4, v63')
    a('s_lshr_b32 s23, s2, 3\ns_lshl_b32 s23, s23, 17\ns_lshr_b32 s24, s2, 1\ns_and_b32 s24, s24, 3\ns_lshl_b32 s24, s24, 10\ns_add_u32 s23, s23, s24')
    a(f's_and_b32 s24, s2, 1\ns_lshl_b32 s24, s24, 7\ns_add_u32 s23, s23, s24\ns_add_u32 s23, s23, {XNF}\ns_add_u32 s24, s23, 65536')
    a(f'v_lshrrev_b32 v56, 2, v0\nv_and_b32 v56, 3, v56\nv_mul_u32_u24 v56, {LSTR}, v56\nv_lshrrev_b32 v57, 4, v0\nv_lshl_add_u32 v56, v57, 5, v56')
    a(f'v_and_b32 v58, 3, v0\nv_lshl_add_u32 v56, v58, 3, v56\nv_add_u32 v56, {8*LSTR}, v56')
    a('v_lshrrev_b32 v58, 2, v57\nv_lshlrev_b32 v58, 18, v58\nv_and_b32 v57, 3, v57\nv_lshl_add_u32 v58, v57, 10, v58\nv_and_b32 v57, 15, v0\nv_lshl_add_u32 v58, v57, 4, v58')
    a(f's_lshr_b32 s25, s2, 2\ns_lshl_b32 s25, s25, 12\ns_and_b32 s26, s2, 3\ns_lshl_b32 s26, s26, 8\ns_add_u32 s25, s25, s26\ns_add_u32 s25, s25, {HF}\ns_add_u32 s26, s25, {16 << 17}')
    if opt.get('shadow', 1):
        for v, so in ((63, 's23'), (58, 's25')):
            a(f'v_add_u32 v52, {so}, v{v}\nv_bfe_u32 v52, v52, 7, 3\nv_cmp_eq_u32 vcc, 3, v52\nv_add_u32 v53, {SHADOW}, v{v}\ns_nop 0\nv_cndmask_b32 v{v}, v{v}, v53, vcc')
    a('s_waitcnt vmcnt(2)' if opt.get('pf_wq', 1) else 's_waitcnt vmcnt(1)')
    sp.stamp(st)
    X, Y, T = 16, 4, 32
    for i in range(8):
        a(f'v_lshlrev_b32 v{X+2*i}, 16, v{Y+i}')
        a(f'v_and_b32 v{X+2*i+1}, 0xffff0000, v{Y+i}')
    layernorm(a, X, Y, T, True)
    a('ds_write_b128 v14, v[4:7]\nds_write_b128 v14, v[8:11] offset:1024')
    a('s_waitcnt lgkmcnt(0)\ns_barrier')
    a('ds_read_b128 v[64:67], v62\nds_read_b128 v[68:71], v62 offset:1024')
    a('s_waitcnt lgkmcnt(1)\nbuffer_store_dwordx4 v[64:67], v63, s[12:15], s23 offen' + (' sc1' if opt.get('ln_sc1', 0) else ''))
    a('s_waitcnt lgkmcnt(0)\nbuffer_store_dwordx4 v[68:71], v63, s[12:15], s24 offen' + (' sc1' if opt.get('ln_sc1', 0) else ''))
    layernorm(a, X, Y, T, False)
    a(f'ds_write_b128 v14, v[4:7] offset:{8*LSTR}\nds_write_b128 v14, v[8:11] offset:{8*LSTR+1024}')
    a('s_waitcnt lgkmcnt(0)\ns_barrier')
    a(f'ds_read_b64_tr_b16 v[72:73], v56\nds_read_b64_tr_b16 v[74:75], v56 offset:{4*LSTR}')
    a(f'ds_read_b64_tr_b16 v[76:77], v56 offset:1024\nds_read_b64_tr_b16 v[78:79], v56 offset:{4*LSTR+1024}')
    a('s_waitcnt lgkmcnt(2)\nbuffer_store_dwordx4 v[72:75], v58, s[12:15], s25 offen' + (' sc1' if opt.get('ln_sc1', 0) else ''))
    a('s_waitcnt lgkmcnt(0)\nbuffer_store_dwordx4 v[76:79], v58, s[12:15], s26 offen' + (' sc1' if opt.get('ln_sc1', 0) else ''))
    sp.stamp(st)
    if sp.on: a('s_waitcnt vmcnt(0)')
    sp.stamp(st)
    sp.flush(st, 's[12:15]', 4)
    a('L1_end:\ns_endpgm')
    return st.lines(), kd('ln_kernel', 84, 84, 100 if sp.on else 32), f'; @launch kernel=ln_kernel grid=(256,1,1) block=(512,1,1) lds={16*LSTR}'
```

```python
from fw import *
from gemm import *
from k1 import XNF, HF, UF, OF, GB, FL, WS_SIZE, SHADOW
import math, struct
def f2h(x): return '0x%08x' % struct.unpack('<I', struct.pack('<f', x))[0]

KBASE, VBASE, QRING, FLAG = 0, 65536, 98304, 131072
MARGIN = 80.0
sWS, sWQ, sKC, sVC, sW1, sWN, sWO, sB1 = ['s[%d:%d]' % (i, i + 3) for i in range(4, 36, 4)]
sWAVE, sLDS, sCNT, sQW, sQA, sQA2, sK, sV, sGW, sGA, sO, sU, sPF, sMODE = ['s%d' % i for i in range(36, 50)]
sKV0, sGW0, sGA0, sPF0, sT, sT2, sG2, sB = ['s%d' % i for i in range(50, 58)]
sC = 's[58:59]'
sX, sOUT, sB2 = 's[68:71]', 's[72:75]', 's[76:79]'
sW3, sA3, sSIG, sFO, sFU, sFW, sFG, sG, sR0, sR1, sSTR, sTG, sINC, sA32, sROLE, sBN = ['s%d' % i for i in range(80, 96)]
sI1, sJ0, sJ1, sK0, sK1, sROT = 's100', sQW, sQA, sQA2, 's101', 's3'
A0 = 8

vL16 = V(1)
vWq, vWg, vKd, vVd = V(2, 4), V(6, 4), V(10, 4), V(14, 2)
vKa, vVa, vWa = V(16, 4), V(20, 8), V(28, 8)
vPF, vDUM, vTMP = V(36), V(37), 38
Q = V(44, 64)
QACC = V(108, 128)
S, T, P, NEGM, LS, ONES = V(108, 8), V(116, 4), V(120, 64), V(184, 16), V(200, 16), V(216, 4)
BIAS = V(236, 16)
vZERO, vONE, vFL, vX = V(42), V(43), V(252), V(253)
ACC3, XF, XR, GR = V(108, 64), V(44, 64), V(172, 32), V(204, 32)
XBASE = 131072
O, KF, VF, GACT = A(0, 128), A(128, 32), A(160, 32), A(192, 64)

def Pf(tile, u, b, n=4): return P.sub((tile & 1) * 32 + b * 8 + u * 4, n)
vIDX = V(220)
def Qf(b, t): return Q.sub((b * 4 + t) * 4, 4)
def Kf(c, t): return KF.sub((c & 1) * 16 + t * 4, 4)
def Vf(e, u): return VF.sub((e & 3) * 8 + u * 4, 4)
def kread(tile, c, t): return ds_128(Kf(c, t), vKa.sub(t), (tile & 3) * 16384 + c * 4096)
def vread(tile, e, u, tt): return ds_tr(Vf(e, u).sub(2 * tt, 2), vVa.sub(e), (tile & 3) * 16384 + u * 8192 + tt * 4096)
def kdma(n):
    return [([salu(f's_add_u32 m0, {sLDS}, {KBASE + (n & 3) * 16384}')] if i == 0 else [],
             vload(f'buffer_load_dwordx4 {vKd.sub(i)}, {sKC}, {sK} offen offset:{i*1024} lds', tag=f'K{n}'),
             [salu(f's_add_u32 {sK}, {sK}, 16384')] if i == 3 else []) for i in range(4)]
def vdma(n):
    return [([salu(f's_add_u32 m0, {sLDS}, {VBASE + (n & 3) * 16384}')] if i == 0 else [],
             vload(f'buffer_load_dwordx4 {vVd.sub(i & 1)}, {sVC}, {sV} offen offset:{i*1024} lds', tag=f'V{n}'),
             [salu(f's_add_u32 {sV}, {sV}, 16384')] if i == 3 else []) for i in range(4)]

def att_iter(st, j, g2, opt, carry):
    a = j + 1
    qk, pv = a <= 31, j >= 0
    def window(w):
        k = kdma(w + 4) if w + 4 <= 31 else (g2.window(w - 28)[:4] if w - 28 <= 2 else [])
        v = vdma(w + 3) if w + 3 <= 31 else g2.window(w - 29)[4:]
        return k, v
    kcur, vcur = window(j)
    kprev, vprev = window(j - 1) if j >= 0 else ([], [])
    if j == 31: vcur = []
    dma = {11: kcur[0:1], 13: kcur[1:2], 15: kcur[2:3], 1: kprev[3:4], 3: vprev[0:1], 5: vprev[1:2], 7: vprev[2:3], 9: vprev[3:4]}
    Z = P.sub(32, 4)
    mf_all, fill_all = [], []
    pend = carry
    for n in range(16):
        c, b, e = n >> 2, n & 3, n >> 1
        m = [None] * 9
        f = [[] for _ in range(9)]
        sc = [[] for _ in range(9)]
        sc[0] += pend; pend = []
        Sn, Sp = S.sub((n & 1) * 4, 4), S.sub(((n + 1) & 1) * 4, 4)
        if qk:
            for t in range(4): m[t] = mfma(Sn, Kf(c, t), Qf(b, t), NEGM.sub(4 * b, 4) if t == 0 else Sn)
        for jj in range(2):
            bb = 2 * (n & 1) + jj
            Ob = O.sub((e * 4 + bb) * 4, 4)
            if pv:
                for u in range(2): m[4 + 2 * jj + u] = mfma(Ob, Vf(e, u), Pf(j, u, bb), Ob)
            else: m[5 + 2 * jj] = mfma(Ob, Z, Z, 0)
        sm = opt.get('smf', 1)
        if sm and (n & 3) == 3:
            Lb = LS.sub(4 * c, 4)
            if pv: m[8] = Op(f'v_smfmac_f32_16x16x64_bf16 {Lb}, {ONES}, {Pf(j, 0, c, 8)}, {vIDX}', 'mfma')
            else: m[8] = mfma(Lb, Z, Z, 0)
        if not sm and n & 1:
            bb, u = e >> 1, e & 1
            if pv: m[8] = mfma(LS.sub(4 * bb, 4), ONES, Pf(j, u, bb), LS.sub(4 * bb, 4))
            elif u == 0: m[8] = mfma(LS.sub(4 * bb, 4), Z, Z, 0)
        pt, pn = (a, n - 1) if n > 0 else (j, 15)
        if 0 <= pt <= 31:
            pc, pb = pn >> 2, pn & 3
            Pd = Pf(pt, pc >> 1, pb).sub(2 * (pc & 1), 2)
            for i in range(4): f[2 * i].append(valu(f'v_exp_f32 {T.sub(i)}, {Sp.sub(i)}'))
            f[3].append(valu(f'v_cvt_pk_bf16_f32 {Pd.sub(0)}, {T.sub(0)}, {T.sub(1)}'))
            if not sm: f[7].append(valu(f'v_cvt_pk_bf16_f32 {Pd.sub(1)}, {T.sub(2)}, {T.sub(3)}'))
            elif not pv: f[7].append(salu('s_nop 0'))
        elif pt < 0: f[7].append(salu('s_nop 3'))
        pt, pn = (a, n - 2) if n > 1 else (j, 14 + n)
        if sm and 0 <= pt <= 31:
            pc, pb = pn >> 2, pn & 3
            f[1].append(valu(f'v_cvt_pk_bf16_f32 {Pf(pt, pc >> 1, pb).sub(2 * (pc & 1) + 1)}, {T.sub(2)}, {T.sub(3)}'))
        kq = 16 * a + n + 5
        kt, kc, kk = kq >> 4, (kq >> 2) & 3, kq & 3
        if kt <= 31: f[5].insert(0, kread(kt, kc, kk))
        vq = 16 * j + n + 3
        vt, ve, vu = vq >> 4, (vq >> 1) & 7, vq & 1
        if 0 <= vt <= 31:
            f[1].insert(0, vread(vt, ve, vu, 0)); f[3].insert(0, vread(vt, ve, vu, 1))
        for pre, v, post in dma.get(n, []):
            sc[6] += pre; f[7 if sm else 8].append(v); pend += post
        if n == (10 if sm else 11) and j <= 30:
            tags = [f'V{j+1}'] + ([f'K{j+2}'] if j + 2 <= 31 else [])
            f[7 if sm else 1].append(barrier(tags))
        if opt.get('pf_w', 1) and 0 <= j < 28 and n == 2 and (j & 3) == 0:
            f[7].insert(0, vload(f'buffer_load_dword {vDUM}, {vPF}, {sWN}, {sPF} offen'))
            pend.append(salu(f's_add_u32 {sPF}, {sPF}, 4096'))
        if j == 28 and n == 2: f[7].insert(0, flag_load(sFW))
        if j == 29 and n == 12: f[7].append(valu(f'v_readfirstlane_b32 {sT}, {vFL}', rd=[vFL]))
        if j == 29 and n == 14: f[7] += [salu(f's_cmp_lt_u32 {sT}, {sTG}'), salu('s_cbranch_scc1 L2_wn'), salu('L2_wn_r:')]
        for g in range(9):
            ops = sc[g] + f[g]
            if m[g] is not None: mf_all.append(m[g]); fill_all.append(ops)
            elif fill_all: fill_all[-1] += ops
            else: st.ops(ops)
    assert not pend
    nxt = mfma(S.sub(0, 4), Kf(0, 0), Qf(0, 0), NEGM.sub(0, 4)) if a + 1 <= 31 else None
    st.gaps(mf_all, fill_all, nxt)
    return pend

def negm_finish(a, M, margin):
    for b in range(4):
        for p in ('16', '32'):
            a(f'v_mov_b32 v{vTMP}, {M.sub(b)}\ns_nop 1\nv_permlane{p}_swap_b32 v{vTMP}, {M.sub(b)}\nv_max_f32 {M.sub(b)}, {M.sub(b)}, v{vTMP}')
        for i in range(4): a(f'v_sub_f32 {NEGM.sub(4*b+i)}, {f2h(-margin)}, {M.sub(b)}')

def act_store(st, acc, NB, nt, fn, soffs, T0):
    a = st.raw
    k = 0
    for b in range(NB):
        for tt in range(nt):
            x = T0.sub((k & 1) * 8, 8); k += 1
            d = fn(x, tt, b)
            for i in range(4): a(f'v_cvt_pk_bf16_f32 {d.sub(i)}, {x.sub(2*i)}, {x.sub(2*i+1)}')
            st.op(vstore(f'buffer_store_dwordx4 {d}, {vL16}, {sWS}, {soffs[b >> 1][tt >> 1]} offen offset:{(tt & 1) * 2048 + (b & 1) * 1024} sc1'))

def signal(soff):
    return f's_mov_b64 exec, 1\nbuffer_atomic_add {vONE}, {vZERO}, {sWS}, {soff} offen sc1\ns_mov_b64 exec, -1'
def flag_load(soff):
    return vload(f'buffer_load_dword {vFL}, {vZERO}, {sWS}, {soff} offen sc1', vFL)
def spin(label, soff, target):
    return (f's_mov_b32 {sT2}, {-(1 << 20)}\n{label}:\nbuffer_load_dword {vFL}, {vZERO}, {sWS}, {soff} offen sc1\ns_add_u32 {sT2}, {sT2}, 1\ns_cbranch_scc1 {label}_x\n'
            f's_waitcnt vmcnt(0)\nv_readfirstlane_b32 {sT}, {vFL}\ns_nop 0\ns_cmp_lt_u32 {sT}, {target}\ns_cbranch_scc1 {label}\n{label}_x:\ns_waitcnt vmcnt(0)')

def q_epilogue(a):
    a('s_nop 7')
    for n in range(17):
        tt, b = n >> 2, n & 3
        if n < 16:
            d = Qf(b, tt)
            for jj in range(2):
                s_ = QACC.sub(((2 * tt + jj) * 4 + b) * 4, 4)
                a(f'v_pk_mul_f32 {s_.sub(0,2)}, {s_.sub(0,2)}, {sC}\nv_pk_mul_f32 {s_.sub(2,2)}, {s_.sub(2,2)}, {sC}')
            for jj in range(2):
                s_ = QACC.sub(((2 * tt + jj) * 4 + b) * 4, 4)
                a(f'v_cvt_pk_bf16_f32 {d.sub(2*jj)}, {s_.sub(0)}, {s_.sub(1)}\nv_cvt_pk_bf16_f32 {d.sub(2*jj+1)}, {s_.sub(2)}, {s_.sub(3)}')
        else: a('s_nop 0')
        if n:
            d = Qf((n - 1) & 3, (n - 1) >> 2)
            a(f'v_permlane16_swap_b32 {d.sub(0)}, {d.sub(2)}\nv_permlane16_swap_b32 {d.sub(1)}, {d.sub(3)}')

def gen_k2(opt):
    st = Stream(); a = st.raw
    far = []
    NYY = opt.get('nyy', 6)
    NSY = 2 * (A0 + NYY)
    a('att_kernel:')
    a('s_cmp_ge_u32 s2, 256\ns_cbranch_scc1 L2_end')
    sp = Stamps(opt.get('stamp'), 1, 254)
    sp.stamp(st)
    SR = ((4, 96, WS_SIZE), (8, 24, 8388608), (12, 8, 16777216), (16, 16, 16777216), (20, 48, 14680064), (24, 64, 14680064), (28, 32, 8388608),
          (32, 56, 7168), (68, 0, 4194304), (72, 80, 4194304), (76, 72, 4096))
    for s, off, size in SR: a(f's_load_dwordx2 s[{s}:{s+1}], s[0:1], {off}')
    t = vTMP
    a(f'v_lshrrev_b32 v{t}, 6, v0\nv_and_b32 {vL16}, 63, v0\nv_readfirstlane_b32 {sWAVE}, v{t}\nv_lshlrev_b32 {vPF}, 6, {vL16}\nv_lshlrev_b32 {vL16}, 4, {vL16}')
    a(f'v_bfe_u32 v{t}, v0, 3, 3\nv_cmp_eq_u32 vcc, 3, v{t}\nv_add_u32 v{t+1}, {SHADOW}, {vL16}\ns_mov_b32 {sSTR}, 8192\nv_cndmask_b32 {vL16}, {vL16}, v{t+1}, vcc')
    a('\n'.join(wvoff_setup(vWq, sSTR, 'id', t)))
    for s, off, size in SR: a(f's_mov_b32 s{s+2}, {size}\ns_mov_b32 s{s+3}, 0x20000')
    if opt.get('rolebit', 7) == 7: ROLEBITS = f's_lshr_b32 {sROLE}, s2, 7\ns_bfe_u32 s61, s2, 0x40003'
    else: ROLEBITS = f's_bfe_u32 {sROLE}, s2, 0x10003\ns_lshr_b32 s61, s2, 4'
    a(f"""{ROLEBITS}
s_and_b32 s60, s2, 7
s_lshr_b32 s62, s61, 3
s_lshl_b32 s63, s60, 1
s_add_u32 s62, s62, s63
s_cmp_lt_u32 s62, {A0}
s_cselect_b32 {sT}, 0, {NYY}
s_cmp_lt_u32 s62, {NYY}
s_cselect_b32 {sT2}, {A0}, 16
s_cselect_b32 s64, 1, 2
s_cmp_eq_u32 {sROLE}, 0
s_cselect_b32 {sT}, {sT}, {sT2}
s_cselect_b32 s64, 0, s64
s_add_u32 s62, s62, {sT}
s_and_b32 s63, s61, 7
s_lshl_b32 s63, s63, 2
s_add_u32 s63, s63, {sWAVE}
s_lshl_b32 {sLDS}, {sWAVE}, 12
s_lshl_b32 {sQW}, s62, 8
s_lshl_b32 {sQA}, s63, 17
s_add_u32 {sQA}, {sQA}, {XNF}
s_add_u32 {sQA2}, {sQA}, 4096""")
    accq = lambda e, b: QACC.sub((e * 4 + b) * 4, 4)
    acc2 = lambda e, b: Q.sub((e * 2 + b) * 4, 4)
    acc3 = lambda e, b: ACC3.sub((e * 2 + b) * 4, 4)
    gq = Gemm('Q', 16, 4, accq, A(128, 128), A(0, 32), vWa, 'id', sWQ, vWq, sQW, 8192, QRING, sLDS, sWS, vL16, sQA, sA2=sQA2, lead=3, uni=True)
    g2 = Gemm('G', 32, 4, accq, A(128, 128), A(0, 32), vWa, 'id', sW1, vWg, sW3, 7168, QRING, sLDS, sWS, vL16, sA3, sA2=sA32, lead=3, uni=True)
    g4 = Gemm('N', 56, 2, acc2, GACT, KF, vWa, 'blk', sWN, vWq, sGW, 0, KBASE, sLDS, sWS, vL16, sGA, swap=True, asuf=' sc1', winc=[sINC, sI1], ainc=[sJ0, sJ1])
    g3y = Gemm('N', NSY, 2, acc2, GACT, KF, vWa, 'blk', sWN, vWq, sGW, 0, KBASE, sLDS, sWS, vL16, sGA, asuf=' sc1', winc=[sINC, sI1], ainc=[sJ0, sJ1])
    g3s = Gemm('S', 64 - NSY, 2, acc3, GACT, KF, vVa, 'blk', sWO, vWg, sW3, 2048, VBASE, sLDS, sWS, vL16, sA3, asuf=' sc1', winc=[sK0, sK1], ainc=[sJ0, sJ1])
    su = waddr_setup(vWa, QRING, 'id', t)
    su += [f'v_mov_b32 {QACC.sub(i)}, 0' for i in range(128)]
    su += waddr_setup(vVa, VBASE, 'blk', t)
    su += f"""s_cmp_eq_u32 {sROLE}, 0
s_cselect_b32 {sR0}, 4, 0
s_cselect_b32 {sR1}, 0, 4
s_movk_i32 {sSTR}, 7168
s_cselect_b32 {sSTR}, 2048, {sSTR}""".split('\n')
    su += wvoff_setup(vWg, sSTR, [0, sR0, sR1, 4], t)
    su += f'v_bfe_u32 v{t}, v0, 4, 2\nv_lshrrev_b32 v{t+1}, 6, v0\nv_lshl_add_u32 v{t+1}, v{t+1}, 4, v{t}\nv_lshlrev_b32 v{t+1}, 8, v{t+1}\nv_and_b32 v{t+2}, 15, v0'.split('\n')
    for i in range(4):
        su += f'v_or_b32 v{t+3}, {4*i}, v{t}\nv_xor_b32 v{t+3}, v{t+3}, v{t+2}\nv_lshl_add_u32 {vKd.sub(i)}, v{t+3}, 4, v{t+1}'.split('\n')
    for i in range(2):
        su += f'v_or_b32 v{t+3}, {4*i}, v{t}\nv_lshlrev_b32 v{t+3}, 1, v{t+3}\nv_xor_b32 v{t+3}, v{t+3}, v{t+2}\nv_lshl_add_u32 {vVd.sub(i)}, v{t+3}, 4, v{t+1}'.split('\n')
    su += f'v_and_b32 v{t+1}, 1, v{t}\nv_lshlrev_b32 v{t+1}, 1, v{t+1}\nv_lshrrev_b32 v{t+3}, 1, v{t}\nv_or_b32 v{t+1}, v{t+1}, v{t+3}'.split('\n')
    su += f'v_lshlrev_b32 {vX}, 4, v{t+1}\nv_lshl_add_u32 {vX}, v{t+2}, 11, {vX}\nv_xor_b32 v{t+1}, v{t+1}, v{t+2}\nv_lshlrev_b32 v{t+2}, 8, v{t+2}'.split('\n')
    for i in range(4):
        su += f'v_xor_b32 v{t+3}, {4*i}, v{t+1}\nv_lshl_add_u32 {vKa.sub(i)}, v{t+3}, 4, v{t+2}'.split('\n')
    su += [f'v_mov_b32 {vZERO}, 0', f'v_mov_b32 {vONE}, 1']
    cs = math.log2(math.e) / math.sqrt(128.0)
    sc_setup = f"""s_lshl_b32 {sKV0}, s62, 19
s_mov_b32 {sK}, {sKV0}
s_mov_b32 {sV}, {sKV0}
s_lshl_b32 {sO}, s63, 19
s_lshl_b32 {sT}, s62, 13
s_add_u32 {sO}, {sO}, {sT}
s_add_u32 {sO}, {sO}, {OF}
s_lshl_b32 s64, s64, 3
s_and_b32 {sT}, s61, 7
s_add_u32 {sT}, {sT}, s64
s_lshl_b32 {sT}, {sT}, 8
s_add_u32 {sFO}, {sT}, {FL}
s_cmp_lt_u32 s61, 14
s_cselect_b32 {sG2}, {sROLE}, 0
s_and_b32 s66, s60, 1
s_lshl_b32 s66, s66, 1
s_and_b32 {sT}, s61, 1
s_add_u32 s66, s66, {sT}
s_lshl_b32 {sT}, s66, 8
s_add_u32 {sFU}, {sT}, {FL + 6144}
s_lshr_b32 {sT}, s60, 1
s_mul_i32 {sT}, {sT}, 7
s_lshr_b32 s65, s61, 1
s_add_u32 {sT}, {sT}, s65
s_lshl_b32 {sW3}, {sT}, 8
s_mov_b32 {sB}, {sW3}
s_lshl_b32 {sU}, {sT}, 13
s_lshl_b32 {sT}, s66, 2
s_add_u32 {sT}, {sT}, {sWAVE}
s_lshl_b32 {sA3}, {sT}, 18
s_add_u32 {sA3}, {sA3}, {HF}
s_add_u32 {sA32}, {sA3}, 4096
s_mul_i32 {sT}, {sT}, {2*112*2048}
s_add_u32 {sU}, {sU}, {sT}
s_add_u32 {sU}, {sU}, {UF}
s_and_b32 s64, s60, 3
s_lshl_b32 s64, s64, 2
s_and_b32 s66, s61, 3
s_add_u32 s64, s64, s66
s_and_b32 s65, s60, 4
s_lshr_b32 s66, s61, 2
s_add_u32 s65, s65, s66
s_lshl_b32 {sT}, s64, 3
s_add_u32 {sT}, {sT}, s65
s_lshl_b32 {sT}, {sT}, 2
s_add_u32 {sT}, {sT}, {sWAVE}
s_lshl_b32 {sG}, {sT}, 13
s_add_u32 {sG}, {sG}, {GB}
s_lshl_b32 {sT}, {sT}, 7
s_add_u32 {sFG}, {sT}, {FL + 8192}
s_lshl_b32 {sT}, s61, 3
s_add_u32 {sT}, {sT}, s60
s_lshl_b32 {sT}, {sT}, 2
s_add_u32 {sT}, {sT}, {sWAVE}
s_mul_i32 {sPF0}, {sT}, 28672
s_lshl_b32 {sT}, s2, 2
s_add_u32 {sT}, {sT}, {sWAVE}
s_mul_i32 {sPF}, {sT}, 3584
s_mov_b32 {sMODE}, 0
s_mov_b32 s58, {f2h(cs)}
s_mov_b32 s59, {f2h(cs)}
s_lshl_b32 {sT}, s65, 2
s_add_u32 {sT}, {sT}, {sWAVE}
s_mul_i32 {sT}, {sT}, {112*2048}
s_add_u32 {sT}, {sT}, {UF}
s_lshl_b32 {sT2}, s64, 2
s_add_u32 {sT2}, {sT2}, {sWAVE}
s_lshl_b32 {sR0}, {sT2}, 16
s_lshl_b32 {sT2}, {sT2}, 18
s_add_u32 {sT2}, {sT2}, {OF}
s_lshl_b32 s66, s65, 8
s_add_u32 {sR0}, {sR0}, s66
s_add_u32 {sR1}, {sR0}, 32768
s_lshl_b32 s67, s64, 8
s_lshr_b32 {sFW}, s65, 1
s_add_u32 {sFW}, {sFW}, 24
s_lshr_b32 {sTG}, s64, 1
s_cmp_eq_u32 {sROLE}, 0
s_cselect_b32 {sGA0}, {sT}, {sT2}
s_cselect_b32 {sGW0}, s67, s66
s_cselect_b32 {sBN}, s67, 0x10000
s_cselect_b32 {sFW}, {sFW}, {sTG}
s_cselect_b32 {sTG}, 28, 16
s_cselect_b32 s24, s24, s28
s_cselect_b32 s25, s25, s29
s_cselect_b32 s26, s26, s30
s_lshl_b32 {sFW}, {sFW}, 8
s_add_u32 {sFW}, {sFW}, {FL}
s_lshr_b32 {sSTR}, 4096, {sROLE}
s_lshl_b32 {sINC}, {sSTR}, 6
s_cmp_eq_u32 {sWAVE}, 0
s_cselect_b32 {sSIG}, {sG2}, 0
s_mul_i32 {sSIG}, {sSIG}, -7"""
    a('s_waitcnt lgkmcnt(0)')
    if opt.get('pf_w1', 1) == 1:
        a(f's_cmp_ge_u32 s61, 14\ns_cselect_b32 {sT}, {sROLE}, 0\ns_cmp_lg_u32 {sT}, 0\ns_cbranch_scc1 L2_pf\nL2_pf_r:')
        pfl = '\n'.join(f'buffer_load_dword {vDUM}, {vFL}, {sW1}, {sT} offen\ns_add_u32 {sT}, {sT}, 524288' for _ in range(4))
        far.append(f"""L2_pf:
s_sub_u32 {sT}, s61, 14
s_lshl_b32 {sT}, {sT}, 3
s_add_u32 {sT}, {sT}, s60
s_lshl_b32 {sT}, {sT}, 2
s_add_u32 {sT}, {sT}, {sWAVE}
s_lshl_b32 {sT}, {sT}, 13
v_lshlrev_b32 {vFL}, 1, {vPF}
s_mov_b32 {sCNT}, -7
L2_pf1:
{pfl}
s_add_u32 {sCNT}, {sCNT}, 1
s_cbranch_scc0 L2_pf1
s_waitcnt vmcnt(0)
s_branch L2_pf_r""")
    first = gq.window(0) + gq.window(1) + gq.window(2)[:2]
    per = -(-len(su) // (len(first) - 6))
    cnt = [0]
    def between():
        cnt[0] += 1
        if cnt[0] == 12 and opt.get('pf_code', 1):
            a(f's_getpc_b64 s[66:67]\nL2_pc:\ns_lshr_b32 {sT}, s2, 3\ns_lshl_b32 {sT}, {sT}, 2\ns_add_u32 {sT}, {sT}, {sWAVE}\ns_mul_i32 {sT}, {sT}, 640\ns_min_u32 {sT}, {sT}, L2_redo-L2_pc\ns_add_u32 s66, s66, {sT}\ns_addc_u32 s67, s67, 0\nv_lshrrev_b32 {vDUM}, 2, {vPF}')
            st.op(vload(f'global_load_dword {vDUM}, {vDUM}, s[66:67]'))
        if cnt[0] > 6:
            blk = su[:per]; del su[:per]
            while su and (blk[-1].startswith('s_') or su[0].startswith('s_')): blk.append(su.pop(0))
            a('\n'.join(blk))
    gq.issue(st, first, between)
    assert not su
    a(sc_setup)
    gq.start(st)
    sp.stamp(st)
    pre_kv = kdma(0) + kdma(1) + vdma(0) + kdma(2) + vdma(1)
    kvtail = lambda i: pre_kv[i * 12:(i + 1) * 12]
    def mk_qextra(bias):
        w3 = wvoff_setup(vWq, sSTR, 'blk', t)
        def qextra(s, e):
            r = {}
            if s % 4 == 0 and e == 5 and opt.get('pf_w1', 1) == 2:
                r = {1: [vload(f'buffer_load_dword {vDUM}, {vPF}, {sW1}, {sPF} offen')], 3: [salu(f's_add_u32 {sPF}, {sPF}, {3584*1024}')]}
            if bias and s == 13 and e == 0: r = {3: [valu(f'v_bfe_u32 {vFL}, v0, 4, 2'), valu(f'v_lshlrev_b32 {vFL}, 3, {vFL}')]}
            if bias and s in (13, 14) and e in (5, 6):
                for g in (1, 5):
                    n = (s - 13) * 4 + (e - 5) * 2 + (g >> 2)
                    r[g] = [vload(f'buffer_load_dwordx2 {BIAS.sub(2*n,2)}, {vFL}, {sB1}, {sB} offen offset:{32*n}', BIAS.sub(2 * n, 2))]
            if s == 15:
                r = {3: [valu(x) for x in w3[:2]], 7: [valu(x) for x in w3[2:4]]}
                del w3[:4]
            return r
        return qextra
    gq.loop(st, 'L2_q', sCNT, extra=mk_qextra(False))
    a(f's_cmp_lg_u32 {sG2}, 0\ns_cbranch_scc1 L2_G')
    sg = st.fork(); spg = sp.n
    gq.last(st, kvtail, mk_qextra(False))
    sp.stamp(st)
    q_epilogue(a)
    sp.stamp(st); sp.stamp(st)
    a('L2_join:')
    a(f"""s_add_u32 {sROT}, s64, s65
s_and_b32 {sROT}, {sROT}, {opt.get('rot', 1)}
s_cselect_b32 {sT}, -1, 1
s_cselect_b32 {sT2}, 3, 1
s_mul_i32 s66, {sINC}, {sROT}
s_add_u32 {sGW0}, {sGW0}, s66
s_lshl_b32 s66, {sROT}, 12
s_add_u32 {sGA0}, {sGA0}, s66
s_mul_i32 {sI1}, {sINC}, {sT2}
s_mul_i32 {sINC}, {sINC}, {sT}
s_lshl_b32 {sJ0}, {sT}, 12
s_lshl_b32 {sJ1}, {sT2}, 12
s_lshl_b32 {sK0}, {sT}, 17
s_lshl_b32 {sK1}, {sT2}, 17""")
    st.op(barrier(['K0'], lg0=True))
    for tt in range(4): st.op(kread(0, 0, tt))
    a(f'v_mov_b32 v{t+1}, {FLAG}')
    st.op(Op(f'ds_write_b32 v{t+1}, {vZERO}', 'ds'))
    for e in range(8): a(f'v_subrev_u32 {vWa.sub(e)}, {VBASE - KBASE}, {vVa.sub(e)}')
    for i in range(4): a(f'v_mov_b32 {ONES.sub(i)}, 0x3f803f80')
    a(f'v_and_b32 {vIDX}, 1, v0\nv_sub_u32 {vIDX}, 0, {vIDX}\nv_and_b32 {vIDX}, 0xaaaaaaaa, {vIDX}\nv_or_b32 {vIDX}, 0x44444444, {vIDX}')
    for b in range(4):
        for tt in range(4): st.op(mfma(P.sub(4 * b, 4), Kf(0, tt), Qf(b, tt), P.sub(4 * b, 4) if tt else 0))
    a('s_nop 7')
    M = P.sub(16, 4)
    for b in range(4):
        x = P.sub(4 * b, 4)
        a(f'v_max3_f32 {M.sub(b)}, {x.sub(0)}, {x.sub(1)}, {x.sub(2)}\nv_max_f32 {M.sub(b)}, {M.sub(b)}, {x.sub(3)}')
    negm_finish(a, M, opt.get('margin', MARGIN))
    sp.stamp(st)
    a('L2_att:')
    st.op(kread(0, 1, 0))
    for i in range(4): a(f'v_mov_b32 {P.sub(32+i)}, 0')
    a(f's_mov_b32 {sGW}, {sGW0}\ns_mov_b32 {sGA}, {sGA0}\ns_mov_b32 {sPF}, {sPF0}')
    def sig_end(name, soff):
        far.append(f'{name}:\n{signal(soff)}\ns_mov_b32 {sSIG}, 0\ns_branch {name}_r')
        return f's_cmp_eq_u32 {sCNT}, {sSIG}\ns_cbranch_scc1 {name}\n{name}_r:'
    usig = sig_end('L2_su', sFU)
    far.append(f'L2_wn:\n{spin("L2_wn1", sFW, sTG)}\ns_branch L2_wn_r')
    marks = []
    for j in range(-1, 32):
        if 0 <= j <= 28 and j % 4 == 0: marks.append(st.mark())
        att_iter(st, j, g4, opt, [])
        if 0 <= j < 28 and j % 4 == 3: a(usig)
    st.fold(marks, 'L2_loop', sCNT)
    sp.stamp(st)
    g4.issue(st, g4.window(2)[4:])
    a(f'v_and_b32 v{t}, 15, v0\nv_lshlrev_b32 v{t}, 1, v{t}')
    for e in range(8): st.op(vload(f'buffer_load_ushort {BIAS.sub(e)}, v{t}, {sB2}, {sBN} offen offset:{32*e}', BIAS.sub(e)))
    if opt.get('smf', 1):
        for b in range(4): a(f'v_add_f32 {LS.sub(4*b)}, {LS.sub(4*b)}, {LS.sub(4*b+1)}')
    a(f'v_add_f32 v{t+2}, {LS.sub(0)}, {LS.sub(4)}\nv_add_f32 v{t+3}, {LS.sub(8)}, {LS.sub(12)}\nv_add_f32 v{t+2}, v{t+2}, v{t+3}')
    for b in range(4): a(f'v_rcp_f32 {LS.sub(4*b)}, {LS.sub(4*b)}')
    a(f'v_cmp_nge_f32 vcc, 0x47800000, v{t+2}\nv_mov_b32 v{t+1}, {FLAG}')
    for b in range(4): a(f'v_mov_b32 {LS.sub(4*b+1)}, {LS.sub(4*b)}')
    a(f's_cbranch_vccz L2_ok\nds_write_b32 v{t+1}, {vONE}\nL2_ok:')
    st.issued['ds'] += 1
    a(f's_add_u32 {sT}, {sO}, 4096\ns_add_u32 {sT2}, {sO}, {128*2048}\ns_add_u32 s66, {sT2}, 4096')
    kk = [0]
    def onorm(x, tt, b):
        for jj in range(2):
            for i in range(4): a(f'v_accvgpr_read_b32 {x.sub(4*jj+i)}, {O.sub(((2*tt+jj)*4+b)*4+i)}')
        for i in range(4): a(f'v_pk_mul_f32 {x.sub(2*i,2)}, {x.sub(2*i,2)}, {LS.sub(4*b,2)}')
        kk[0] += 1
        return P.sub(4 * (kk[0] - 1), 4)
    act_store(st, None, 4, 4, onorm, [[sO, sT], [sT2, 's66']], NEGM)
    st.op(barrier(['N0'], lg0=True))
    st.op(Op(f'ds_read_b32 v{t}, v{t+1}', 'ds', wr=V(t).set()))
    for G in range(3): st.ops(g4.reads(G))
    g4.issue(st, g4.window(3)[:2])
    st.op(valu(f'v_readfirstlane_b32 {sT}, v{t}', rd=[V(t)]))
    a(f's_nop 0\ns_cmp_gt_u32 {sT}, {sMODE}\ns_cbranch_scc1 L2_redo')
    for e in range(8):
        for i in range(8): st.op(valu(f'v_lshlrev_b32 {Q.sub(8*e+i)}, 16, {BIAS.sub(e)}', rd=[BIAS.sub(e)]))
    sp.stamp(st)
    a(f's_lshr_b32 {sFW}, s64, 1\ns_lshl_b32 {sFW}, {sFW}, 8\ns_add_u32 {sFW}, {sFW}, {FL}')
    a(f's_cmp_lg_u32 {sROLE}, 0\ns_cbranch_scc1 L2_Y')
    sy = st.fork(); spn = sp.n
    def chk_extra(lim):
        def f(s, e):
            if s >= lim: return {}
            if s % 4 == 0 and e == 2: return {3: [flag_load(sFW)]}
            if s % 4 == 3 and e == 4: return {3: [valu(f'v_readfirstlane_b32 {sT}, {vFL}', rd=[vFL])]}
            return {}
        return f
    def chk_end(name, cntval, target):
        far.append(f'{name}:\ns_cmp_ge_u32 {sT}, {target}\ns_cbranch_scc1 {name}_r\n{spin(name + "1", sFW, target)}\ns_branch {name}_r')
        return f's_cmp_eq_u32 {sCNT}, {cntval}\ns_cbranch_scc1 {name}\n{name}_r:'

    a(f's_cmp_eq_u32 {sWAVE}, 0\ns_cselect_b32 {sSIG}, -13, 0')
    a(f's_lshl_b32 {sW3}, s65, 8\ns_add_u32 {sW3}, {sW3}, {NSY*64*2048}\ns_lshl_b32 {sT}, s64, 2\ns_add_u32 {sT}, {sT}, {sWAVE}\ns_lshl_b32 {sA3}, {sT}, 18\ns_add_u32 {sA3}, {sA3}, {OF + NSY*4096}')
    a(f's_lshl_b32 {sT}, {sROT}, 17\ns_add_u32 {sW3}, {sW3}, {sT}\ns_lshl_b32 {sT}, {sROT}, 12\ns_add_u32 {sA3}, {sA3}, {sT}')
    zr = [valu(f'v_mov_b32 {ACC3.sub(i)}, 0') for i in range(64)]
    xl = [vload(f'buffer_load_dwordx4 {XR.sub(4*n,4)}, {vX}, {sX}, {[sR0, sR1][n >> 2]} offen offset:{64*(n & 3)}', XR.sub(4 * n, 4)) for n in range(8)]
    e0 = chk_extra(52)
    def sextra(s, e):
        if s < 52: return e0(s, e)
        r = {}
        for g in ([3] if e < 5 else [0, 2] if (e == 5 or s == 55) else []):
            if xl and e < 5 and (e & 1) == 0: r[g] = [xl.pop(0)]
            else: r[g] = zr[:2]; del zr[:2]
        return r
    te = sig_end('L2_so', sFO) + '\n' + chk_end('L2_c0', -1, 16)
    g4.run(st, 'L2_y', sCNT, tail=g3s.window, extra=sextra, trip_end=lambda s_: s_.raw(te))
    assert not xl
    sp.stamp(st)
    st.ops(zr)
    l2e = f2h(-math.log2(math.e))
    a(f's_mov_b32 s62, {l2e}\ns_mov_b32 s63, {l2e}\ns_add_u32 {sFW}, {sFW}, 4096')
    a(f'v_lshlrev_b32 v{t}, 4, v0\nv_add_u32 v{t}, {XBASE}, v{t}\nv_and_b32 v{t+1}, 63, v0\nv_lshlrev_b32 v{t+1}, 4, v{t+1}\ns_lshl_b32 {sT}, {sWAVE}, 13\ns_add_u32 {sT}, {sT}, {XBASE}\nv_add_u32 v{t+1}, {sT}, v{t+1}')
    for e in range(8):
        x = BIAS.sub((e & 1) * 8, 8); d = GR.sub(e * 4, 4); y = Q.sub(8 * e, 8)
        for i in range(4): a(f'v_pk_mul_f32 {x.sub(2*i,2)}, {y.sub(2*i,2)}, s[62:63]')
        for i in range(8): a(f'v_exp_f32 {x.sub(i)}, {x.sub(i)}')
        for i in range(4): a(f'v_pk_add_f32 {x.sub(2*i,2)}, {x.sub(2*i,2)}, 1.0 op_sel_hi:[1,0]')
        for i in range(8): a(f'v_rcp_f32 {x.sub(i)}, {x.sub(i)}')
        for i in range(4): a(f'v_pk_mul_f32 {x.sub(2*i,2)}, {x.sub(2*i,2)}, {y.sub(2*i,2)}')
        for i in range(4): a(f'v_cvt_pk_bf16_f32 {d.sub(i)}, {x.sub(2*i)}, {x.sub(2*i+1)}')
        st.op(Op(f'ds_write_b128 v{t}, {d} offset:{4096*e}', 'ds'))
    for b in range(2):
        for p in range(4):
            d = XR.sub((b * 4 + p) * 4, 4)
            st.op(valu(f'v_permlane16_swap_b32 {d.sub(0)}, {d.sub(2)}', rd=[d]))
            a(f'v_permlane16_swap_b32 {d.sub(1)}, {d.sub(3)}')
            for h in range(4):
                x = XF.sub(((2 * p + (h >> 1)) * 2 + b) * 4 + 2 * (h & 1), 2)
                a(f'v_lshlrev_b32 {x.sub(0)}, 16, {d.sub(h)}\nv_and_b32 {x.sub(1)}, 0xffff0000, {d.sub(h)}')
    g3s.start(st)
    sp.stamp(st)
    nf = g3s.nst // 4 - 1
    te3 = chk_end('L2_c2', -nf + (16 - A0) // 2 - 2, 16 - NYY)
    e3 = chk_extra(g3s.nst - 4)
    gl = [ds_128(GR.sub(4 * n, 4), V(t + 1), 1024 * n) for n in range(8)]
    def s3extra(s, e):
        if s < g3s.nst - 4: return e3(s, e)
        if s >= g3s.nst - 2 and e < 4: return {3: [gl.pop(0)]}
        return {}
    g3s.run(st, 'L2_s', sCNT, extra=s3extra, trip_end=lambda s_: s_.raw(te3))
    sp.stamp(st)
    a(spin('L2_wg', sFG, 1))
    st.done['vm'] = st.issued['vm']
    sp.stamp(st)
    a(f's_add_u32 {sT2}, {sG}, 4096')
    for n in range(8):
        d = XR.sub(n * 4, 4)
        st.op(vload(f'buffer_load_dwordx4 {d}, {vL16}, {sWS}, {[sG, sT2][n >> 2]} offen offset:{1024*(n & 3)} sc1', d))
    prev = None
    for n in range(8):
        b, p = n >> 2, n & 3
        gsrc = GR.sub(n * 4, 4); d = XR.sub(n * 4, 4)
        x = BIAS.sub(0, 8); y = BIAS.sub(8, 8)
        for h in range(4):
            st.op(valu(f'v_lshlrev_b32 {x.sub(2*h)}, 16, {gsrc.sub(h)}', rd=[gsrc]))
            a(f'v_and_b32 {x.sub(2*h+1)}, 0xffff0000, {gsrc.sub(h)}')
        if prev: prev()
        for h in range(4):
            st.op(valu(f'v_lshlrev_b32 {y.sub(2*h)}, 16, {d.sub(h)}', rd=[d]))
            a(f'v_and_b32 {y.sub(2*h+1)}, 0xffff0000, {d.sub(h)}')
        os_ = [((2 * p + (h >> 1)) * 2 + b) * 4 + 2 * (h & 1) for h in range(4)]
        for h in range(4): a(f'v_pk_add_f32 {y.sub(2*h,2)}, {y.sub(2*h,2)}, {ACC3.sub(os_[h],2)}')
        for h in range(4): a(f'v_pk_fma_f32 {x.sub(2*h,2)}, {x.sub(2*h,2)}, {y.sub(2*h,2)}, {XF.sub(os_[h],2)}')
        for h in range(4): a(f'v_cvt_pk_bf16_f32 {d.sub(h)}, {x.sub(2*h)}, {x.sub(2*h+1)}')
        def fin(d=d, b=b, p=p):
            a(f'v_permlane16_swap_b32 {d.sub(0)}, {d.sub(2)}\nv_permlane16_swap_b32 {d.sub(1)}, {d.sub(3)}')
            st.op(vstore(f'buffer_store_dwordx4 {d}, {vX}, {sOUT}, {[sR0, sR1][b]} offen offset:{64*p}'))
        prev = fin
    a('s_nop 1')
    prev()
    if sp.on: a('s_waitcnt vmcnt(0)')
    sp.stamp(st)
    sp.flush(st, sWS, t)
    a('L2_end:\ns_endpgm')

    a = sy.raw; sp.n = spn
    a('L2_Y:')
    nf = NSY // 4 - 1
    a(f's_cmp_eq_u32 {sWAVE}, 0\ns_cselect_b32 {sSIG}, {-nf}, 0\ns_add_u32 {sFW}, {sFW}, 2048')
    tey = sig_end('L2_yo', sFO) + '\n' + chk_end('L2_c1', -nf + A0 // 2 - 2, NYY)
    g3y.run(sy, 'L2_sy', sCNT, extra=chk_extra(NSY - 4), trip_end=lambda s_: s_.raw(tey))
    sp.stamp(sy); sp.stamp(sy); sp.stamp(sy)
    a(f's_add_u32 {sT2}, {sG}, 4096\ns_nop 6')
    for n in range(8):
        b, p = n >> 2, n & 3
        d = XR.sub(n * 4, 4)
        for h in range(4):
            o = ((2 * p + (h >> 1)) * 2 + b) * 4 + 2 * (h & 1)
            a(f'v_cvt_pk_bf16_f32 {d.sub(h)}, {Q.sub(o)}, {Q.sub(o+1)}')
        a(f'buffer_store_dwordx4 {d}, {vL16}, {sWS}, {[sG, sT2][b]} offen offset:{1024*p} sc1')
    a('s_waitcnt vmcnt(0)')
    sp.stamp(sy)
    a(f'{signal(sFG)}\ns_waitcnt vmcnt(0)')
    sp.stamp(sy)
    sp.flush(sy, sWS, t)
    a('s_endpgm')

    a = sg.raw; sp.n = spg
    a('L2_G:')
    gq.last(sg, g2.window, mk_qextra(True), last_bar=True)
    sp.stamp(sg)
    q_epilogue(a)
    g2.start(sg)
    for e in range(8):
        for b in range(4):
            x = accq(e, b)
            for h in range(2):
                sg.op(valu(f'v_lshlrev_b32 {x.sub(2*h)}, 16, {BIAS.sub(2*e+h)}', rd=[BIAS.sub(2 * e + h)]))
                a(f'v_and_b32 {x.sub(2*h+1)}, 0xffff0000, {BIAS.sub(2*e+h)}')
    sp.stamp(sg)
    g2.run(sg, 'L2_g', sCNT, tail=kvtail)
    sp.stamp(sg)
    k0 = 2.0 * math.sqrt(2.0 / math.pi) * math.log2(math.e)
    C1 = V(t + 2, 2)
    a(f's_mov_b32 s62, {f2h(-k0*0.044715)}\ns_mov_b32 s63, {f2h(-k0*0.044715)}')
    a(f'v_mov_b32 {C1.sub(0)}, {f2h(-k0)}\nv_mov_b32 {C1.sub(1)}, {f2h(-k0)}')
    a(f's_add_u32 {sT}, {sU}, 4096\ns_add_u32 {sT2}, {sU}, {112*2048}\ns_add_u32 s66, {sT2}, 4096\ns_nop 0')
    def gelu(x, tt, b):
        u = [accq(2 * tt + (i >> 1), b).sub(2 * (i & 1), 2) for i in range(4)]
        for i in range(4): a(f'v_pk_mul_f32 {x.sub(2*i,2)}, {u[i]}, {u[i]}')
        for i in range(4): a(f'v_pk_fma_f32 {x.sub(2*i,2)}, {x.sub(2*i,2)}, s[62:63], {C1}')
        for i in range(4): a(f'v_pk_mul_f32 {x.sub(2*i,2)}, {x.sub(2*i,2)}, {u[i]}')
        for i in range(8): a(f'v_exp_f32 {x.sub(i)}, {x.sub(i)}')
        for i in range(4): a(f'v_pk_add_f32 {x.sub(2*i,2)}, {x.sub(2*i,2)}, 1.0 op_sel_hi:[1,0]')
        for i in range(8): a(f'v_rcp_f32 {x.sub(i)}, {x.sub(i)}')
        for i in range(4): a(f'v_pk_mul_f32 {x.sub(2*i,2)}, {x.sub(2*i,2)}, {u[i]}')
        return accq(2 * tt, b)
    act_store(sg, None, 4, 4, gelu, [[sU, sT], [sT2, 's66']], BIAS)
    a('s_branch L2_join')
    for x in far: a(x)

    a('L2_redo:')
    a(f's_mov_b32 {sMODE}, 1\ns_mov_b32 {sK}, {sKV0}\ns_mov_b32 {sCNT}, -32')
    for b in range(4): a(f'v_mov_b32 {M.sub(b)}, 0xff800000')
    a('L2_mx:\ns_waitcnt vmcnt(0) lgkmcnt(0)\ns_barrier')
    for pre, v, post in kdma(0):
        for o in pre: a(o.text + '\ns_nop 0')
        a(v.text)
        for o in post: a(o.text)
    a('s_waitcnt vmcnt(0)\ns_barrier')
    for c in range(4):
        for tt in range(4): a(kread(0, c, tt).text)
        a('s_waitcnt lgkmcnt(0)')
        for b in range(4):
            for tt in range(4): a(mfma(P.sub(4 * b, 4), Kf(c, tt), Qf(b, tt), P.sub(4 * b, 4) if tt else 0).text)
        a('s_nop 7')
        for b in range(4):
            x = P.sub(4 * b, 4)
            a(f'v_max3_f32 {M.sub(b)}, {M.sub(b)}, {x.sub(0)}, {x.sub(1)}\nv_max3_f32 {M.sub(b)}, {M.sub(b)}, {x.sub(2)}, {x.sub(3)}')
    a(f's_add_u32 {sCNT}, {sCNT}, 1\ns_cbranch_scc0 L2_mx')
    negm_finish(a, M, 0.0)
    a(f's_mov_b32 {sK}, {sKV0}\ns_mov_b32 {sV}, {sKV0}\ns_barrier')
    for pre, v, post in pre_kv:
        for o in pre: a(o.text + '\ns_nop 0')
        a(v.text)
        for o in post: a(o.text)
    a('s_waitcnt vmcnt(0)\ns_barrier')
    for tt in range(4): a(kread(0, 0, tt).text)
    a('s_waitcnt lgkmcnt(0)\ns_branch L2_att')
    return st.lines() + sy.lines() + sg.lines(), kd('att_kernel', 512, 256, 102), '; @launch kernel=att_kernel grid=(256,1,1) block=(256,1,1) lds=163840'
```

```python
import re
TRANS = ('v_exp_', 'v_log_', 'v_rcp_', 'v_rsq_', 'v_sqrt_', 'v_sin_', 'v_cos_')

def R(kind, lo, n=1):
    return f'{kind}{lo}' if n == 1 else f'{kind}[{lo}:{lo+n-1}]'
def regs(kind, lo, n=1):
    return [(kind, lo + i) for i in range(n)]

class Reg:
    def __init__(self, kind, lo, n=1):
        self.kind, self.lo, self.n = kind, lo, n
    def __str__(self): return R(self.kind, self.lo, self.n)
    def sub(self, off, n=1):
        assert off + n <= self.n, (off, n, self.n)
        return Reg(self.kind, self.lo + off, n)
    def set(self): return regs(self.kind, self.lo, self.n)
def V(lo, n=1): return Reg('v', lo, n)
def A(lo, n=1): return Reg('a', lo, n)

class Wait:
    def __init__(self): self.lg = None; self.vm = None
    def need(self, cls, n):
        if cls == 'ds': self.lg = n if self.lg is None else min(self.lg, n)
        else: self.vm = n if self.vm is None else min(self.vm, n)
    def merge(self, o):
        if o.lg is not None: self.need('ds', o.lg)
        if o.vm is not None: self.need('vm', o.vm)
    def text(self):
        p = []
        if self.vm is not None: p.append(f'vmcnt({self.vm})')
        if self.lg is not None: p.append(f'lgkmcnt({self.lg})')
        return 's_waitcnt ' + ' '.join(p) if p else None

class Op:
    def __init__(self, text, kind, rd=(), wr=(), tag=None, waittags=()):
        self.text, self.kind, self.rd, self.wr, self.tag, self.waittags = text, kind, list(rd), list(wr), tag, list(waittags)

def mfma(d, a, b, c):
    rd = a.set() + b.set() + (c.set() if isinstance(c, Reg) else [])
    return Op(f'v_mfma_f32_16x16x32_bf16 {d}, {a}, {b}, {c}', 'mfma', rd=rd)
def valu(text, rd=()):
    r = []
    for x in rd: r += x.set()
    return Op(text, 'valu', rd=r)
def salu(text): return Op(text, 's')
def ds_tr(d, addr, off): return Op(f'ds_read_b64_tr_b16 {d}, {addr} offset:{off}', 'ds', wr=d.set())
def ds_128(d, addr, off): return Op(f'ds_read_b128 {d}, {addr} offset:{off}', 'ds', wr=d.set())
def vload(text, d=None, tag=None): return Op(text, 'vm', wr=d.set() if d is not None else (), tag=tag)
def vstore(text, rd=()):
    r = []
    for x in rd: r += x.set()
    return Op(text, 'vm', rd=r)
def barrier(tags=(), lg0=False):
    o = Op('s_barrier', 's', waittags=tags); o.lg0 = lg0
    return o

def gap_cost(ops, nwait):
    t = nwait; seenv = False; prev = None
    for o in ops:
        if o.text.endswith(':'): continue
        if o.kind == 's': t += 1
        else:
            t = max(t, 1)
            if o.kind in ('ds', 'vm') and seenv: t += 2
            if o.kind == 'vm' and prev is not None and ' m0,' in prev.text: t += 9
            t += 2 if (o.kind == 'vm' or o.text.startswith(TRANS) or o.text.startswith('v_permlane')) else 1
            if o.kind == 'ds' and prev is not None and prev.kind == 'ds': t += 1
            if o.kind == 'valu': seenv = True
        prev = o
    return t
def parse(text):
    out = []; grp = None
    for l in (text.split('\n') if isinstance(text, str) else text):
        l = l.strip()
        if not l: continue
        if l.startswith('s_cmp') or l.startswith('s_bitcmp'):
            grp = [salu(l)]; out.append(grp)
        elif l.startswith('s_cselect') or l.startswith('s_cbranch') or l.startswith('s_addc'):
            if len(grp) >= 3 and l.startswith('s_cselect'):
                grp = [grp[0]]; out.append(grp)
            grp.append(salu(l))
        else:
            out.append([salu(l) if l.startswith('s_') else valu(l)])
    return out

class Stream:
    MAXC = {'ds': 15, 'vm': 63}
    def __init__(self):
        self.items = []
        self.issued = {'ds': 0, 'vm': 0}
        self.done = {'ds': 0, 'vm': 0}
        self.pend = {}
        self.tags = {}
        self.q = []
    def raw(self, text):
        for l in text.split('\n'):
            if l.strip(): self.items.append(l.strip())
    def _needs(self, op):
        n = {'ds': 0, 'vm': 0}
        for r in op.rd + op.wr:
            if r in self.pend:
                c, s = self.pend[r]; n[c] = max(n[c], s)
        for t in op.waittags:
            n['vm'] = max(n['vm'], self.tags[t])
        if getattr(op, 'lg0', False): n['ds'] = self.issued['ds']
        if op.kind in ('ds', 'vm'): n[op.kind] = max(n[op.kind], self.issued[op.kind] + 1 - self.MAXC[op.kind])
        return n
    def _wait(self, w, n):
        for c in n:
            if n[c] > self.done[c]:
                w.need(c, min(self.issued[c] - n[c], self.MAXC[c])); self.done[c] = n[c]
    def _issue(self, op):
        self.items.append(op.text)
        if op.kind == 's0': self.tags[op.tag] = 0
        if op.kind in ('ds', 'vm'):
            self.issued[op.kind] += 1
            assert self.issued[op.kind] - self.done[op.kind] <= self.MAXC[op.kind], (op.text, self.issued, self.done)
            for r in op.wr: self.pend[r] = (op.kind, self.issued[op.kind])
            if op.tag: self.tags[op.tag] = self.issued[op.kind]
    def op(self, op):
        w = Wait(); self._wait(w, self._needs(op)); self.items.append(w); self._issue(op)
    def ops(self, l):
        for o in l: self.op(o)
    def gaps(self, mf, fill, nxt=None):
        for i, m in enumerate(mf):
            w0 = Wait(); self._wait(w0, self._needs(m)); self.items.append(w0)
            self._issue(m)
            w = Wait(); self.items.append(w)
            follow = mf[i + 1] if i + 1 < len(mf) else nxt
            ops = list(fill[i])
            look = ops + ([follow] if follow is not None else [])
            for o in look: self._wait(w, self._needs(o))
            while self.q:
                g = self.q[0]
                if isinstance(g, int):
                    self.q[0] = g - 1
                    if g <= 1: self.q.pop(0)
                    break
                if any(t not in self.tags for o in g for t in o.waittags): break
                nw = 1 if (w.text() or any(self._unmet(o) for o in g)) else 0
                cand = [g + ops] if (all(o.kind == 's' for o in g) and not getattr(self, '_front', False)) else []
                cand.append(ops + g)
                base = gap_cost(ops, 1 if w.text() else 0)
                ok = [c for c in cand if gap_cost(c, nw) <= max(3, 0)]
                if not ok and not ops and base <= 1 and gap_cost(g, 0) > 2: ok = [g]
                if not ok: break
                ops = ok[0]; self.q.pop(0); self._front = True
                for o in g: self._wait(w, self._needs(o))
            self._front = False
            for o in ops:
                w2 = Wait(); self._wait(w2, self._needs(o)); self.items.append(w2)
                self._issue(o)
    def _unmet(self, op):
        n = self._needs(op)
        return any(n[c] > self.done[c] for c in n)
    def push(self, ops):
        for o in ops: self.q.append(o if isinstance(o, (list, int)) else [o])
    def flush(self):
        prev = None
        for g in self.q:
            if isinstance(g, int):
                self.raw(f's_nop {min(15, 2 * g)}'); continue
            for o in g:
                if prev is not None and ' m0,' in prev.text and o.kind == 'vm': self.raw('s_nop 0')
                self.op(o); prev = o
        self.q = []
    def wait_all(self, vm=True, ds=True):
        w = Wait()
        if vm: w.need('vm', 0); self.done['vm'] = self.issued['vm']
        if ds: w.need('ds', 0); self.done['ds'] = self.issued['ds']
        self.items.append(w)
    def mark(self): return len(self.items)
    def fork(self):
        o = Stream()
        o.issued, o.done, o.pend, o.tags = dict(self.issued), dict(self.done), dict(self.pend), dict(self.tags)
        return o
    def fold(self, marks, label, sreg):
        trips = [self.items[marks[i]:marks[i + 1]] for i in range(len(marks) - 1)]
        body = trips[0]
        for t in trips[1:]:
            assert len(t) == len(body), (label, len(t), len(body))
            for x, y in zip(body, t):
                if isinstance(x, Wait): x.merge(y)
                else: assert x == y, (label, x, y)
        new = [f's_mov_b32 {sreg}, {-len(trips)}', '.p2align 3', f'{label}:'] + body + [f's_add_u32 {sreg}, {sreg}, 1', f's_cbranch_scc0 {label}']
        self.items[marks[0]:marks[-1]] = new
    def lines(self):
        out = []
        for it in self.items:
            if isinstance(it, Wait):
                t = it.text()
                if t: out.append(t)
            else: out.append(it)
        return out

RE_REG = re.compile(r'\b([va])(?:(\d+)\b|\[(\d+):(\d+)\])')
def _operands(text):
    m = text.split(None, 1)
    if len(m) < 2: return m[0], []
    ops = [x.strip() for x in m[1].split(',')]
    res = []
    for o in ops:
        mm = RE_REG.search(o.split()[0]) if o else None
        if mm:
            k = mm.group(1)
            lo = int(mm.group(2) if mm.group(2) is not None else mm.group(3)); hi = int(mm.group(2) if mm.group(2) is not None else mm.group(4))
            res.append({(k, i) for i in range(lo, hi + 1)})
        else: res.append(set())
    return m[0], res
def classify(text):
    op, o = _operands(text)
    U = lambda l: set().union(*l) if l else set()
    d = dict(op=op, rd=set(), wr=set(), kind='s', ab=set(), c=set(), states=1, sdata=set())
    if op == 's_nop': d['states'] = int(text.split()[1]) + 1
    elif op.startswith('v_mfma'):
        d.update(kind='mfma', wr=o[0], ab=o[1] | o[2], c=o[3], rd=o[1] | o[2] | o[3])
    elif op.startswith('v_smfmac'):
        d.update(kind='mfma', wr=o[0], ab=o[1] | o[2] | o[3], c=o[0], rd=o[0] | o[1] | o[2] | o[3])
    elif op.startswith('v_permlane'):
        d.update(kind='valu', wr=o[0] | o[1], rd=o[0] | o[1], perm=True)
    elif op.startswith('v_cmp') or op.startswith('v_readfirstlane') or op.startswith('v_readlane'):
        d.update(kind='valu', rd=U(o[1:]), lane=op.startswith('v_read'))
    elif op.startswith('v_'):
        d.update(kind='valu', wr=o[0], rd=U(o[1:]) | (o[0] if 'fmac' in op else set()), trans=op.startswith(TRANS),
                 dpp=('quad_perm' in text or 'row_' in text))
    elif op.startswith('ds_read'): d.update(kind='mem', wr=o[0], rd=o[1])
    elif op.startswith('ds_write'): d.update(kind='mem', rd=U(o))
    elif op.startswith('buffer_load') or op.startswith('global_load'):
        if text.rstrip().endswith('lds') or ' lds ' in text: d.update(kind='mem', rd=o[0], dma=True)
        else: d.update(kind='mem', wr=o[0], rd=o[1])
    elif op.startswith('buffer_store') or op.startswith('buffer_atomic'):
        d.update(kind='mem', rd=U(o), sdata=o[0] if 'x4' in op or 'x3' in op else set())
    elif op.startswith('global_store') or op.startswith('global_atomic'):
        d.update(kind='mem', rd=U(o), sdata=o[1] if 'x4' in op or 'x3' in op else set())
    d['m0w'] = bool(re.match(r's_\w+\s+m0\s*,', text))
    mm = re.match(r'v_read(?:first)?lane_b32\s+(s\d+)', text) or re.match(r'v_cmp\w*\s+(vcc|s\[\d+:\d+\])', text)
    d['sw'] = mm.group(1) if mm else None
    d['text'] = text
    return d
def hazards(lines):
    ins = []; labels = {}
    for l in lines:
        l = l.split(';')[0].strip()
        if not l or l.startswith('.'): continue
        if l.endswith(':'): labels[l[:-1]] = len(ins); continue
        ins.append(classify(l))
    errs = []
    def scan(seq):
        for i, c in enumerate(seq):
            dist = 0
            for j in range(i - 1, max(-1, i - 14), -1):
                p = seq[j]
                need = 0
                if p['kind'] == 'valu' and c['kind'] == 'mfma' and p['wr'] & c['rd']: need = 2
                if p['kind'] == 'mfma':
                    if c['kind'] == 'mfma':
                        if p['wr'] & c['ab']: need = 8
                        elif p['wr'] & c['c'] and p['wr'] != c['c']: need = 6
                        elif p['wr'] & c['wr'] and p['wr'] != c['c']: need = 6
                    elif c['kind'] in ('valu', 'mem') and p['wr'] & (c['rd'] | c['wr']): need = 8
                    if c['kind'] == 'valu' and p['c'] & c['wr']: need = max(need, 3)
                if p['kind'] == 'valu' and c['kind'] == 'valu':
                    if p.get('trans') and not c.get('trans') and p['wr'] & c['rd']: need = max(need, 1)
                    if (c.get('perm') or c.get('dpp')) and p['wr'] & c['rd']: need = max(need, 2)
                    if c.get('lane') and p['wr'] & c['rd']: need = max(need, 1)
                if p['sw']:
                    names = [p['sw']]
                    if p['sw'].startswith('s['):
                        lo = int(p['sw'][2:].split(':')[0]); names += [f's{lo}', f's{lo+1}']
                    used = any(re.search(r'(?<![\w\[])' + re.escape(n) + r'(?![\w])', c['text'].split(None, 1)[1] if ' ' in c['text'] else '') for n in names)
                    if used and c['kind'] == 'valu' and not c['sw'] == p['sw']: need = max(need, 2)
                    if used and c['kind'] == 'mem': need = max(need, 5)
                if p['m0w'] and c.get('dma'): need = max(need, 1)
                if p['sdata'] and c['kind'] in ('valu', 'mem', 'mfma') and p['sdata'] & c['wr']: need = max(need, 2)
                if need > dist: errs.append((p['text'], c['text'], dist, need))
                dist += p['states']
    scan(ins)
    for i, c in enumerate(ins):
        if c['op'].startswith('s_cbranch') or c['op'] == 's_branch':
            t = c['text'].split()[1]
            if t in labels:
                scan(ins[max(0, i - 14):i + 1] + ins[labels[t]:labels[t] + 14])
    return sorted(set(errs))

def kd(name, nv, acc, ns=96):
    return f'''.amdhsa_kernel {name}
  .amdhsa_next_free_vgpr {nv}
  .amdhsa_next_free_sgpr {ns}
  .amdhsa_accum_offset {acc}
  .amdhsa_group_segment_fixed_size 0
  .amdhsa_kernarg_size 104
  .amdhsa_user_sgpr_count 2
  .amdhsa_user_sgpr_kernarg_segment_ptr 1
  .amdhsa_system_sgpr_workgroup_id_x 1
  .amdhsa_float_denorm_mode_32 3
.end_amdhsa_kernel'''
def srd(s, base, size):
    return f's_mov_b32 s{s}, s{base}\ns_mov_b32 s{s+1}, s{base+1}\ns_mov_b32 s{s+2}, {size}\ns_mov_b32 s{s+3}, 0x20000'

STAMP_OFF = 48 << 20
class Stamps:
    def __init__(self, on, kidx, v): self.on, self.k, self.v, self.n = on, kidx, v, 0
    def stamp(self, st):
        if not self.on: return
        st.raw('s_memrealtime s[96:97]\ns_memtime s[98:99]')
        st.wait_all(vm=False)
        st.raw(f'v_writelane_b32 v{self.v}, s96, {self.n}\nv_writelane_b32 v{self.v+1}, s98, {self.n}')
        self.n += 1
    def flush(self, st, ws, t):
        if not self.on: return
        st.raw(f's_lshl_b32 s96, s2, 7\ns_add_u32 s96, s96, {STAMP_OFF + self.k * 65536}\nv_lshlrev_b32 v{t}, 3, v0\nv_mov_b32 v{t+1}, 0x40000000\nv_cmp_gt_u32 vcc, 16, v0\ns_nop 1\nv_cndmask_b32 v{t}, v{t+1}, v{t}, vcc')
        st.raw(f'buffer_store_dwordx2 v[{self.v}:{self.v+1}], v{t}, {ws}, s96 offen\ns_waitcnt vmcnt(0)')
```

```python
from fw import *

class Gemm:
    def __init__(self, name, nst, NA, acc, act, wr, waddr, pi, wsrd, wvoff, sW, wstride, m0base, sLds, asrd, avoff, sA,
                 swap=False, avoff2=None, NW=8, lead=4, asuf='', uni=False, winc=None, ainc=None):
        self.__dict__.update(locals())
        self.chain = None
    def wfrag(self, G, ks): return self.wr.sub((G % 4) * 8 + ks * 4, 4)
    def afrag(self, s, ks, b): return self.act.sub((s % 4) * 8 * self.NA + (ks * self.NA + b) * 4, 4)
    def reads(self, G):
        s, e = divmod(G, self.NW)
        if s >= self.nst: return self.chain.reads(G - self.nst * self.NW) if self.chain else []
        o = []
        for ks in range(2):
            for tt in range(2):
                off = (s % 4) * 16384 + ks * 8192 + tt * (1024 if self.pi == 'id' else 4096)
                o.append(ds_tr(self.wfrag(G, ks).sub(2 * tt, 2), self.waddr.sub(e), off))
        return o
    def window(self, s):
        w = []
        for i in range(4):
            pre = [salu(f's_add_u32 m0, {self.sLds}, {self.m0base + (s % 4) * 16384}')] if i == 0 else []
            post = [salu(f's_add_u32 {self.sW}, {self.sW}, {self.winc[s & 1] if self.winc else 64 * self.wstride}')] if i == 3 else []
            w.append((pre, vload(f'buffer_load_dwordx4 {self.wvoff.sub(i)}, {self.wsrd}, {self.sW} offen offset:{i*1024} lds', tag=f'{self.name}{s}'), post))
        n = 2 * self.NA
        for i in range(n):
            ks, b = divmod(i, self.NA)
            vo = self.avoff if i < 4 else self.avoff2
            post = []
            if i == n - 1: post.append(salu(f's_add_u32 {self.sA}, {self.sA}, {self.ainc[s & 1] if self.ainc else n * 1024}'))
            d = self.afrag(s, ks, b)
            w.append(([], vload(f'buffer_load_dwordx4 {d}, {vo}, {self.asrd}, {self.sA} offen offset:{(i % 4) * 1024}{self.asuf}', d), post))
        return w
    def positions(self):
        if self.uni and self.NA == 2:
            assert self.NW == 8 and self.lead == 4
            return [(1, 5, 1), (1, 6, 1), (1, 7, 1), (2, 0, 1), (1, 1, 1), (1, 2, 1), (1, 3, 1), (1, 4, 1)]
        if self.NA == 4:
            return [(0, 7, 1), (0, 7, 5), (1, 0, 1), (1, 0, 5), (1, 1, 1), (1, 1, 5), (1, 2, 1), (1, 2, 5), (1, 3, 1), (1, 3, 5), (1, 4, 1), (1, 4, 5)]
        if self.NW == 8:
            return [(0, 7, 1), (0, 7, 3), (1, 0, 1), (1, 1, 1), (1, 2, 1), (1, 3, 1), (1, 4, 1), (1, 5, 1)]
        assert self.NW == 6
        return [(0, 5, 1), (0, 5, 3), (1, 0, 1), (1, 0, 3), (1, 1, 1), (1, 2, 1), (1, 3, 0), (1, 3, 2)]
    def issue(self, st, elems, between=None):
        for pre, v, post in elems:
            st.ops(pre)
            if pre: st.raw('s_nop 0')
            st.op(v); st.ops(post)
            if between: between()
    def start(self, st):
        st.op(barrier([f'{self.name}0'], lg0=True))
        for G in range(3): st.ops(self.reads(G))
    def mf(self, s, e):
        m = []
        for b in range(self.NA):
            for ks in range(2):
                w, x = self.wfrag(self.NW * s + e, ks), self.afrag(s, ks, b)
                c = self.acc(e, b)
                m.append(mfma(c, x, w, c) if self.swap else mfma(c, w, x, c))
        return m
    def run(self, st, label, sreg, tail=None, extra=None, trip_end=None):
        self.loop(st, label, sreg, extra, trip_end)
        self.last(st, tail, extra)
    def loop(self, st, label, sreg, extra=None, trip_end=None):
        marks = self.stages(st, 0, self.nst - 4, None, extra, trip_end)
        st.fold(marks, label, sreg)
    def last(self, st, tail=None, extra=None, last_bar=None, chain=None):
        self.chain = chain
        if chain: last_bar = [chain.name + '0']
        self.stages(st, self.nst - 4, self.nst, tail, extra, None, last_bar)
        self.chain = None
    def stages(self, st, s0, s1, tail, extra, trip_end, last_bar=None):
        ng, NW = 2 * self.NA, self.NW
        pos = self.positions()
        wins = {}
        def win(s):
            if s not in wins:
                wins[s] = self.window(s) if s < self.nst else (tail(s - self.nst) if tail else [])
            return wins[s]
        marks = []
        carry = []
        for s in range(s0, s1):
            if s % 4 == 0: marks.append(st.mark())
            for e in range(NW):
                G = NW * s + e
                fill = [[] for _ in range(ng)]
                sc = [[] for _ in range(ng + 1)]
                sc[0] += carry; carry = []
                rd = self.reads(G + 3) if self.uni or e < NW - 3 or e == NW - 1 else (self.reads(G + 2) + self.reads(G + 3) if e == NW - 2 else [])
                if self.NA == 2: gp = [0, 0, 2, 2] if len(rd) <= 4 else [0, 0, 1, 1, 2, 2, 3, 3]
                else: gp = [0, 2, 4, 6] if len(rd) <= 4 else list(range(8))
                for o, g in zip(rd, gp): fill[g].append(o)
                for idx, (so, pe, pg) in enumerate(pos):
                    if pe != e: continue
                    w = win(s + self.lead - so)
                    if idx >= len(w) or w[idx] is None: continue
                    pre, v, post = w[idx]
                    assert pg > 0 or not pre
                    sc[pg - 1] += pre; fill[pg].append(v); sc[pg + 1] += post
                if e == NW - (4 if self.uni else 3) and s + 1 < self.nst:
                    fill[ng - 1].append(barrier([f'{self.name}{s+1}'], lg0=not self.uni))
                if e == NW - (4 if self.uni else 3) and s + 1 == self.nst and last_bar is not None:
                    fill[ng - 1].append(barrier(last_bar, lg0=not self.uni))
                if extra:
                    for g, l in extra(s, e).items(): fill[g] += l
                carry = sc[ng]
                if e == NW - 1 and s % 4 == 3:
                    fill[ng - 1] += carry; carry = []
                for g in range(ng): fill[g] = sc[g] + fill[g]
                nxt = self.mf(s, e + 1)[0] if e < NW - 1 else (self.mf(s + 1, 0)[0] if s + 1 < self.nst else None)
                st.gaps(self.mf(s, e), fill, nxt)
            if s % 4 == 3 and trip_end: trip_end(st)
        marks.append(st.mark())
        return marks

def waddr_setup(dst, base, pi, t):
    L = [f'v_bfe_u32 v{t}, v0, 4, 2', f'v_bfe_u32 v{t+1}, v0, 2, 2',
         f'v_and_b32 v{t+2}, 1, v{t}', f'v_lshl_or_b32 v{t+2}, v{t+2}, 2, v{t+1}',
         f'v_lshl_add_u32 v{t}, v{t}, {3 if pi == "id" else 2}, v{t+1}', f'v_lshlrev_b32 v{t}, 8, v{t}',
         f'v_and_b32 v{t+1}, 3, v0', f'v_lshl_add_u32 v{t}, v{t+1}, 3, v{t}', f'v_add_u32 v{t}, {base}, v{t}']
    for e in range(8):
        L += [f'v_xor_b32 v{t+1}, {e}, v{t+2}', f'v_lshl_add_u32 {dst.sub(e)}, v{t+1}, 5, v{t}']
    return L

def wvoff_setup(dst, sstride, pi, t, slimit=None):
    L = [f'v_bfe_u32 v{t}, v0, 4, 2', f'v_lshrrev_b32 v{t+1}, 6, v0', f'v_lshl_add_u32 v{t+1}, v{t+1}, 4, v{t}', f'v_and_b32 v{t+3}, 15, v0']
    for i in range(4):
        hi = pi[i] if isinstance(pi, list) else 4 * (((i >> 1) & 1) if pi == 'id' else (i & 1))
        d = dst.sub(i)
        L += [f'v_add_u32 {d}, {4*i}, v{t+1}', f'v_mul_u32_u24 {d}, {sstride}, {d}',
              f'v_or_b32 v{t+2}, {hi}, v{t}', f'v_lshlrev_b32 v{t+2}, 1, v{t+2}', f'v_xor_b32 v{t+2}, v{t+2}, v{t+3}']
        if slimit: L += [f'v_cmp_gt_u32 vcc, {slimit}, v{t+2}']
        L += [f'v_lshl_add_u32 {d}, v{t+2}, 4, {d}']
        if i: L += [f'v_subrev_u32 {d}, {i * 1024}, {d}']
        if slimit: L += [f'v_mov_b32 v{t+2}, 0x40000000', f'v_cndmask_b32 {d}, v{t+2}, {d}, vcc']
    return L
```

```python
from fw import *
from gemm import *
from k1 import XNF, HF, UF, OF, GB, FL, WS_SIZE, SHADOW
import math, struct
def f2h(x): return '0x%08x' % struct.unpack('<I', struct.pack('<f', x))[0]

KBASE, VBASE, QRING, FLAG = 0, 65536, 98304, 131072
MARGIN = 80.0
sWS, sWQ, sKC, sVC, sW1, sWN, sWO, sBB = ['s[%d:%d]' % (i, i + 3) for i in range(4, 36, 4)]
sOUT = sW1
sWAVE, sLDS, sCNT, sQW, sQA, sK, sV, sGW, sGA, sO, sU, sPF, sMODE, sROT = ['s%d' % i for i in range(36, 50)]
sKV0, sGW0, sGA0, sPF0, sT, sT2, sG2, sB = ['s%d' % i for i in range(50, 58)]
sC = 's[58:59]'
sSLOT, sIDX, sHEAD, sQ64, sST, sDT, sT3, sT4 = ['s%d' % i for i in range(60, 68)]
sX = 's[68:71]'
sQI, sQJ, sGI, sGJ = ['s72', 's73'], ['s74', 's75'], ['s76', 's77'], ['s78', 's79']
sNI, sNJ, sSI = sQI, sQJ, sGI
sW3, sA3, sSIG, sFO, sFU, sFW, sFG, sG, sR0, sR1, sSTR, sTG, sGRP, sP0, sROLE, sBN = ['s%d' % i for i in range(80, 96)]
sP1, sRDY = 's100', 's101'

vL16 = V(1)
vWq, vWg, vKd, vVd = V(2, 4), V(6, 4), V(10, 4), V(14, 2)
vKa, vVa, vWa = V(16, 4), V(20, 8), V(28, 8)
vPF, vDUM, vTMP = V(36), V(37), 38
vZERO, vONE, vFL, vX = V(42), V(43), V(252), V(253)
vL16b = vX
Q = V(44, 64)
QACC = V(108, 128)
S, T, P, NEGM, LS, ONES, vIDX = V(108, 8), V(116, 4), V(120, 64), V(184, 16), V(200, 16), V(216, 4), V(220)
BIAS = V(236, 16)
ACC3, XF, GF, SEL = V(108, 64), V(44, 64), V(172, 64), V(10, 6)
O, KF, VF, GACT = A(0, 128), A(128, 32), A(160, 32), A(192, 64)

def Pf(tile, u, b, n=4): return P.sub((tile & 1) * 32 + b * 8 + u * 4, n)
def Qf(b, t): return Q.sub((b * 4 + t) * 4, 4)
def Kf(c, t): return KF.sub((c & 1) * 16 + t * 4, 4)
def Vf(e, u): return VF.sub((e & 3) * 8 + u * 4, 4)
def kread(tile, c, t): return ds_128(Kf(c, t), vKa.sub(t), (tile & 3) * 16384 + c * 4096)
def vread(tile, e, u, tt): return ds_tr(Vf(e, u).sub(2 * tt, 2), vVa.sub(e), (tile & 3) * 16384 + u * 8192 + tt * 4096)
def kdma(n):
    return [([salu(f's_add_u32 m0, {sLDS}, {KBASE + (n & 3) * 16384}')] if i == 0 else [],
             vload(f'buffer_load_dwordx4 {vKd.sub(i)}, {sKC}, {sK} offen offset:{i*1024} lds', tag=f'K{n}'),
             [salu(f's_add_u32 {sK}, {sK}, 16384')] if i == 3 else []) for i in range(4)]
def vdma(n):
    return [([salu(f's_add_u32 m0, {sLDS}, {VBASE + (n & 3) * 16384}')] if i == 0 else [],
             vload(f'buffer_load_dwordx4 {vVd.sub(i & 1)}, {sVC}, {sV} offen offset:{i*1024} lds', tag=f'V{n}'),
             [salu(f's_add_u32 {sV}, {sV}, 16384')] if i == 3 else []) for i in range(4)]
def flat(elems):
    o = []
    for pre, v, post in elems: o += pre + [v] + post
    return o
def rowsum(j, b): return Op(f'v_smfmac_f32_16x16x64_bf16 {LS.sub(4*b,4)}, {ONES}, {Pf(j, 0, b, 8)}, {vIDX}', 'mfma')

def att_iter(st, j, gn, opt):
    a = j + 1
    qk, pv = a <= 31, j >= 0
    t_ = vTMP
    def window(w):
        k = kdma(w + 4) if w + 4 <= 31 else (gn.window(w - 28)[:4] if w - 28 <= 2 else [])
        v = vdma(w + 3) if w + 3 <= 31 else gn.window(w - 29)[4:]
        return k, v
    kcur, vcur = window(j)
    kprev, vprev = window(j - 1) if j >= 0 else ([], [])
    dma = {11: kcur[0:1], 13: kcur[1:2], 15: kcur[2:3], 1: kprev[3:4], 3: vprev[0:1], 5: vprev[1:2], 7: vprev[2:3], 9: vprev[3:4]}
    dd = opt.get('dd', 0)
    if dd: dma = {11: kcur[0:2], 15: kcur[2:4], 3: vprev[0:2], 7: vprev[2:4]}
    if j == 31: dma = {}
    Z = P.sub(32, 4)
    mf_all, fill_all = [], []
    pend = []
    for n in range(16):
        c, b, e = n >> 2, n & 3, n >> 1
        m = [None] * 9
        f = [[] for _ in range(9)]
        sc = [[] for _ in range(9)]
        sc[0] += pend; pend = []
        Sn, Sp = S.sub((n & 1) * 4, 4), S.sub(((n + 1) & 1) * 4, 4)
        if qk:
            for t in range(4): m[t] = mfma(Sn, Kf(c, t), Qf(b, t), NEGM.sub(4 * b, 4) if t == 0 else Sn)
        for jj in range(2):
            bb = 2 * (n & 1) + jj
            Ob = O.sub((e * 4 + bb) * 4, 4)
            if pv:
                for u in range(2): m[4 + 2 * jj + u] = mfma(Ob, Vf(e, u), Pf(j, u, bb), Ob)
            else: m[5 + 2 * jj] = mfma(Ob, Z, Z, 0)
        if j == 31:
            if n == 0: m[0], m[2] = rowsum(j, 0), rowsum(j, 1)
            if n == 1: m[0], m[8] = rowsum(j, 2), rowsum(j, 3)
        elif b == 3: m[8] = rowsum(j, c) if pv else mfma(LS.sub(4 * c, 4), Z, Z, 0)
        pt, pn = (a, n - 1) if n > 0 else (j, 15)
        if 0 <= pt <= 31:
            pc, pb = pn >> 2, pn & 3
            for i in range(4): f[2 * i].append(valu(f'v_exp_f32 {T.sub(i)}, {Sp.sub(i)}'))
            f[3].append(valu(f'v_cvt_pk_bf16_f32 {Pf(pt, pc >> 1, pb).sub(2 * (pc & 1))}, {T.sub(0)}, {T.sub(1)}'))
            if not pv: f[7].append(salu('s_nop 0'))
        elif pt < 0: f[7].append(salu('s_nop 3'))
        pt, pn = (a, n - 2) if n > 1 else (j, 14 + n)
        if 0 <= pt <= 31:
            pc, pb = pn >> 2, pn & 3
            f[1].append(valu(f'v_cvt_pk_bf16_f32 {Pf(pt, pc >> 1, pb).sub(2 * (pc & 1) + 1)}, {T.sub(2)}, {T.sub(3)}'))
        kq = 16 * a + n + 5
        kt, kc, kk = kq >> 4, (kq >> 2) & 3, kq & 3
        if kt <= 31: f[5].insert(0, kread(kt, kc, kk))
        vq = 16 * j + n + 3
        vt, ve, vu = vq >> 4, (vq >> 1) & 7, vq & 1
        if 0 <= vt <= 31:
            g0, g1 = (1, 3) if (qk or n < 2) else (4, 6)
            f[g0].insert(0, vread(vt, ve, vu, 0)); f[g1].insert(0, vread(vt, ve, vu, 1))
        for k, (pre, v, post) in enumerate(dma.get(n, [])):
            sc[6] += pre; f[7 + k].append(v)
            if n == 15: f[8] += post
            else: pend += post
        if n == 10 and j <= 30:
            f[7].append(barrier([f'V{j+1}'] + ([f'K{j+2}'] if j + 2 <= 31 else [])))
        if opt.get('pf_w', 1) and 0 <= j < 28 and n == 2 and (j & 3) == 0:
            f[7].append(vload(f'buffer_load_dword {vDUM}, {vPF}, {sWN}, {sPF} offen'))
            pend.append(salu(f's_add_u32 {sPF}, {sPF}, 4096'))
        if j == 28 and n == 0: f[7] += [valu(f'v_and_b32 v{t_}, 15, v0'), valu(f'v_lshlrev_b32 v{t_}, 1, v{t_}')]
        if j == 28 and n == 2: f[7].append(flag_load(sFW))
        if j in (28, 29) and n in (4, 6, 8, 12):
            k = (j - 28) * 4 + (4, 6, 8, 12).index(n)
            f[7].append(vload(f'buffer_load_ushort {BIAS.sub(k)}, v{t_}, {sBB}, {sBN} offen offset:{32*k}', BIAS.sub(k)))
        if j == 29 and n == 13: f[5].append(valu(f'v_readfirstlane_b32 {sT}, {vFL}', rd=[vFL]))
        if j == 29 and n == 14: f[7] += [salu(f's_cmp_lt_u32 {sT}, {sTG}'), salu('s_cbranch_scc1 L2_wn'), salu('L2_wn_r:')]
        for g in range(9):
            ops = sc[g] + f[g]
            if m[g] is not None: mf_all.append(m[g]); fill_all.append(ops)
            elif fill_all: fill_all[-1] += ops
            else: st.ops(ops)
    assert not pend
    nxt = mfma(S.sub(0, 4), Kf(0, 0), Qf(0, 0), NEGM.sub(0, 4)) if a + 1 <= 31 else None
    st.gaps(mf_all, fill_all, nxt)

def negm_finish(a, M, margin):
    M2 = P.sub(20, 4)
    for p in ('16', '32'):
        for b in range(4): a(f'v_mov_b32 {M2.sub(b)}, {M.sub(b)}')
        for b in range(4): a(f'v_permlane{p}_swap_b32 {M2.sub(b)}, {M.sub(b)}')
        for b in range(4): a(f'v_max_f32 {M.sub(b)}, {M.sub(b)}, {M2.sub(b)}')
    for b in range(4):
        for i in range(2): a(f'v_sub_f32 {NEGM.sub(4*b+i)}, {f2h(-margin)}, {M.sub(b)}')
        a(f'v_mov_b64 {NEGM.sub(4*b+2,2)}, {NEGM.sub(4*b,2)}')

def act_store(st, NB, nt, fn, soffs, T0):
    a = st.raw
    k = 0
    for tt in range(nt):
        for b in range(NB):
            x = T0.sub((k & 1) * 8, 8); k += 1
            d = fn(x, tt, b)
            for i in range(4): a(f'v_cvt_pk_bf16_f32 {d.sub(i)}, {x.sub(2*i)}, {x.sub(2*i+1)}')
            st.op(vstore(f'buffer_store_dwordx4 {d}, {vL16}, {sWS}, {soffs[b >> 1][tt >> 1]} offen offset:{(tt & 1) * 2048 + (b & 1) * 1024} sc1'))

def signal(soff):
    return f's_mov_b64 exec, 1\nbuffer_atomic_add {vONE}, {vZERO}, {sWS}, {soff} offen sc1\ns_mov_b64 exec, -1'
def flag_load(soff):
    return vload(f'buffer_load_dword {vFL}, {vZERO}, {sWS}, {soff} offen sc1', vFL)
def spin(label, soff, target):
    return (f's_mov_b32 {sT2}, {-(1 << 20)}\n{label}:\nbuffer_load_dword {vFL}, {vZERO}, {sWS}, {soff} offen sc1\ns_add_u32 {sT2}, {sT2}, 1\ns_cbranch_scc1 {label}_x\n'
            f's_waitcnt vmcnt(0)\nv_readfirstlane_b32 {sT}, {vFL}\ns_nop 0\ns_cmp_lt_u32 {sT}, {target}\ns_cbranch_scc1 {label}\n{label}_x:\ns_waitcnt vmcnt(0)')
def rot_setup(srot, sw, sa, swi, sai, winc, ainc):
    L = f's_cmp_lg_u32 {srot}, 0\ns_cselect_b32 {sT}, -1, 1\ns_cselect_b32 {sT2}, 3, 1\n'
    L += f's_mul_i32 {swi[0]}, {sT}, {winc}\ns_mul_i32 {swi[1]}, {sT2}, {winc}\n'
    if sai: L += f's_mul_i32 {sai[0]}, {sT}, {ainc}\ns_mul_i32 {sai[1]}, {sT2}, {ainc}\n'
    L += f's_mul_i32 {sT}, {srot}, {winc}\ns_add_u32 {sw}, {sw}, {sT}\ns_mul_i32 {sT}, {srot}, {ainc}\ns_add_u32 {sa}, {sa}, {sT}'
    return L

def q_epilogue(st, bias=False):
    a = st.raw
    for n in range(17):
        tt, b = n >> 2, n & 3
        if n < 16:
            d = Qf(b, tt)
            for jj in range(2):
                s_ = QACC.sub(((2 * tt + jj) * 4 + b) * 4, 4)
                a(f'v_pk_mul_f32 {s_.sub(0,2)}, {s_.sub(0,2)}, {sC}\nv_pk_mul_f32 {s_.sub(2,2)}, {s_.sub(2,2)}, {sC}')
            for jj in range(2):
                s_ = QACC.sub(((2 * tt + jj) * 4 + b) * 4, 4)
                a(f'v_cvt_pk_bf16_f32 {d.sub(2*jj)}, {s_.sub(0)}, {s_.sub(1)}\nv_cvt_pk_bf16_f32 {d.sub(2*jj+1)}, {s_.sub(2)}, {s_.sub(3)}')
        else: a('s_nop 0')
        if n:
            d = Qf((n - 1) & 3, (n - 1) >> 2)
            a(f'v_permlane16_swap_b32 {d.sub(0)}, {d.sub(2)}\nv_permlane16_swap_b32 {d.sub(1)}, {d.sub(3)}')
    if bias:
        for e in range(8):
            x = QACC.sub(16 * e, 16)
            for h in range(2):
                st.op(valu(f'v_lshlrev_b32 {x.sub(2*h)}, 16, {BIAS.sub(2*e+h)}', rd=[BIAS.sub(2 * e + h)]))
                a(f'v_and_b32 {x.sub(2*h+1)}, 0xffff0000, {BIAS.sub(2*e+h)}')
            for i in range(2, 8): a(f'v_mov_b64 {x.sub(2*i,2)}, {x.sub(2*(i&1),2)}')

def gen_k2(opt):
    st = Stream(); a = st.raw
    far = []
    A0, NYY = opt.get('a0', 6), opt.get('nyy', 8)
    NSY = 2 * (A0 + NYY)
    t = vTMP
    a('att_kernel:')
    a('s_cmp_ge_u32 s2, 256\ns_cbranch_scc1 L2_end')
    sp = Stamps(opt.get('stamp'), 1, 254)
    sp.stamp(st)
    a(f"""s_load_dwordx2 s[4:5], s[0:1], 96
s_load_dwordx2 s[8:9], s[0:1], 24
s_lshr_b32 {sROLE}, s2, 7
s_cmp_eq_u32 {sROLE}, 0
s_cselect_b32 {sT}, 80, 48
s_cselect_b32 {sT2}, 64, 32
s_cselect_b32 {sT3}, 72, 56
s_load_dwordx2 s[20:21], s[0:1], {sT}
s_load_dwordx2 s[24:25], s[0:1], {sT2}
s_load_dwordx2 s[32:33], s[0:1], {sT3}
s_load_dwordx2 s[12:13], s[0:1], 8
s_load_dwordx2 s[16:17], s[0:1], 16
s_load_dwordx2 s[28:29], s[0:1], 32
s_load_dwordx2 s[68:69], s[0:1], 0
s_mov_b32 s22, 14680064
s_cselect_b32 s26, s22, 8388608
s_cselect_b32 s22, 4194304, s22
s_movk_i32 s34, 7168
s_cselect_b32 s34, 4096, s34""")
    a(f'v_lshrrev_b32 v{t}, 6, v0\nv_and_b32 {vL16}, 63, v0\nv_readfirstlane_b32 {sWAVE}, v{t}\nv_lshlrev_b32 {vPF}, 6, {vL16}\nv_lshlrev_b32 {vL16}, 4, {vL16}')
    a(f'v_bfe_u32 v{t}, v0, 3, 3\nv_cmp_eq_u32 vcc, 3, v{t}\nv_add_u32 v{t+1}, {SHADOW}, {vL16}\ns_mov_b32 {sSTR}, 8192\nv_cndmask_b32 {vL16}, {vL16}, v{t+1}, vcc\nv_add_u32 {vL16b}, 4096, {vL16}')
    a('\n'.join(wvoff_setup(vWq, sSTR, 'id', t)))
    for s, size in ((4, WS_SIZE), (8, 8388608), (12, 16777216), (16, 16777216), (20, 0), (24, 0), (28, 8388608), (32, 0), (68, 4194304)):
        if size: a(f's_mov_b32 s{s+2}, {size}')
        a(f's_mov_b32 s{s+3}, 0x20000')
    a(f"""s_bfe_u32 {sIDX}, s2, 0x40003
s_and_b32 {sSLOT}, s2, 7
s_lshr_b32 {sHEAD}, {sIDX}, 3
s_add_u32 {sROT}, {sHEAD}, {sIDX}
s_and_b32 {sROT}, {sROT}, {opt.get('rotq', 1)}
s_lshl_b32 {sQ64}, {sSLOT}, 1
s_add_u32 {sHEAD}, {sHEAD}, {sQ64}
s_cmp_lt_u32 {sHEAD}, {A0}
s_cselect_b32 {sT}, 0, {NYY}
s_cmp_lt_u32 {sHEAD}, {NYY}
s_cselect_b32 {sT2}, {A0}, 16
s_cselect_b32 {sGRP}, 1, 2
s_cmp_eq_u32 {sROLE}, 0
s_cselect_b32 {sT}, {sT}, {sT2}
s_cselect_b32 {sGRP}, 0, {sGRP}
s_add_u32 {sHEAD}, {sHEAD}, {sT}
s_and_b32 {sQ64}, {sIDX}, 7
s_lshl_b32 {sQ64}, {sQ64}, 2
s_add_u32 {sQ64}, {sQ64}, {sWAVE}
s_lshl_b32 {sLDS}, {sWAVE}, 12
s_lshl_b32 {sQW}, {sHEAD}, 8
s_lshl_b32 {sQA}, {sQ64}, 17
s_cmp_lt_u32 {sIDX}, 14
s_cselect_b32 {sG2}, {sROLE}, 0""")
    assert XNF == 0
    a(rot_setup(sROT, sQW, sQA, sQI, sQJ, 64 * 8192, 8192))
    accq = lambda e, b: QACC.sub((e * 4 + b) * 4, 4)
    acc2 = lambda e, b: Q.sub((e * 2 + b) * 4, 4)
    acc3 = lambda e, b: ACC3.sub((e * 2 + b) * 4, 4)
    gq = Gemm('Q', 16, 4, accq, A(128, 128), A(0, 32), vWa, 'id', sWQ, vWq, sQW, 0, QRING, sLDS, sWS, vL16, sQA, avoff2=vL16b, lead=3, uni=True, winc=sQI, ainc=sQJ)
    g2 = Gemm('G', 32, 4, accq, A(128, 128), A(0, 32), vWa, 'id', sW1, vWg, sW3, 0, QRING, sLDS, sWS, vL16, sA3, avoff2=vL16b, lead=3, uni=True, winc=sGI, ainc=sGJ)
    g4 = Gemm('N', 56, 2, acc2, GACT, KF, vWa, 'blk', sWN, vWq, sGW, 0, KBASE, sLDS, sWS, vL16, sGA, swap=True, asuf=' sc1', winc=sNI, ainc=sNJ)
    g3y = Gemm('N', NSY, 2, acc2, GACT, KF, vWa, 'blk', sWN, vWq, sGW, 0, KBASE, sLDS, sWS, vL16, sGA, asuf=' sc1', winc=sNI, ainc=sNJ)
    g3s = Gemm('S', 64 - NSY, 2, acc3, GACT, KF, vVa, 'blk', sWO, vWg, sW3, 0, VBASE, sLDS, sWS, vL16, sA3, asuf=' sc1', winc=sSI, ainc=sNJ)
    a('s_waitcnt lgkmcnt(0)')
    if opt.get('pf_w1', 1):
        a(f's_cmp_lg_u32 {sG2}, {sROLE}\ns_cbranch_scc1 L2_pf\nL2_pf_r:')
        pfl = '\n'.join(f'buffer_load_dword {vDUM}, {vFL}, {sW1}, {sT} offen\ns_add_u32 {sT}, {sT}, 524288' for _ in range(4))
        far.append(f"""L2_pf:
s_sub_u32 {sT}, {sIDX}, 14
s_lshl_b32 {sT}, {sT}, 3
s_add_u32 {sT}, {sT}, {sSLOT}
s_lshl_b32 {sT}, {sT}, 2
s_add_u32 {sT}, {sT}, {sWAVE}
s_lshl_b32 {sT}, {sT}, 13
v_lshlrev_b32 {vFL}, 1, {vPF}
s_mov_b32 {sCNT}, -7
L2_pf1:
{pfl}
s_add_u32 {sCNT}, {sCNT}, 1
s_cbranch_scc0 L2_pf1
s_waitcnt vmcnt(0)
s_branch L2_pf_r""")
    su = waddr_setup(vWa, QRING, 'id', t) + [f'v_mov_b64 {QACC.sub(2*i,2)}, 0' for i in range(64)]
    first = gq.window(0) + gq.window(1) + gq.window(2)[:2]
    cnt = [0]
    def between():
        cnt[0] += 1
        if cnt[0] == 12 and opt.get('pf_code', 1):
            a(f's_getpc_b64 s[66:67]\nL2_pc:\ns_lshr_b32 {sT}, s2, 3\ns_lshl_b32 {sT}, {sT}, 2\ns_add_u32 {sT}, {sT}, {sWAVE}\ns_mul_i32 {sT}, {sT}, 640\ns_min_u32 {sT}, {sT}, L2_redo-L2_pc\ns_add_u32 s66, s66, {sT}\ns_addc_u32 s67, s67, 0\nv_lshrrev_b32 {vDUM}, 2, {vPF}')
            st.op(vload(f'global_load_dword {vDUM}, {vDUM}, s[66:67]'))
        if cnt[0] > 12:
            a('\n'.join(su[:7])); del su[:7]
    gq.issue(st, first, between)
    assert not su
    gq.start(st)
    sp.stamp(st)
    gq.loop(st, 'L2_q', sCNT)
    a(f's_cmp_lg_u32 {sG2}, 0\ns_cbranch_scc1 L2_G')
    sg = st.fork(); spg = sp.n

    cs = math.log2(math.e) / math.sqrt(128.0)
    su_kv = f's_lshl_b32 {sKV0}, {sHEAD}, 19\ns_mov_b32 {sK}, {sKV0}\ns_mov_b32 {sV}, {sKV0}\n'
    su_kv += f'v_bfe_u32 v{t}, v0, 4, 2\nv_lshrrev_b32 v{t+1}, 6, v0\nv_lshl_add_u32 v{t+1}, v{t+1}, 4, v{t}\nv_lshlrev_b32 v{t+1}, 8, v{t+1}\nv_and_b32 v{t+2}, 15, v0\n'
    for i in range(4):
        su_kv += f'v_or_b32 v{t+3}, {4*i}, v{t}\nv_xor_b32 v{t+3}, v{t+3}, v{t+2}\nv_lshl_add_u32 {vKd.sub(i)}, v{t+3}, 4, v{t+1}\n'
    for i in range(2):
        su_kv += f'v_or_b32 v{t+3}, {4*i}, v{t}\nv_lshlrev_b32 v{t+3}, 1, v{t+3}\nv_xor_b32 v{t+3}, v{t+3}, v{t+2}\nv_lshl_add_u32 {vVd.sub(i)}, v{t+3}, 4, v{t+1}\n'
    su_kv += f'v_and_b32 v{t+1}, 1, v{t}\nv_lshlrev_b32 v{t+1}, 1, v{t+1}\nv_lshrrev_b32 v{t+3}, 1, v{t}\nv_or_b32 v{t+1}, v{t+1}, v{t+3}\n'
    su_kv += f'v_xor_b32 v{t+1}, v{t+1}, v{t+2}\nv_lshlrev_b32 v{t+2}, 8, v{t+2}\n'
    for i in range(4):
        su_kv += f'v_xor_b32 v{t+3}, {4*i}, v{t+1}\nv_lshl_add_u32 {vKa.sub(i)}, v{t+3}, 4, v{t+2}\n'
    su_kv += f'v_mov_b32 {vZERO}, 0\nv_mov_b32 {vONE}, 1\n' + '\n'.join(waddr_setup(vVa, VBASE, 'blk', t))
    su_c = f's_mov_b32 s58, {f2h(cs)}\ns_mov_b32 s59, {f2h(cs)}'
    su_g2 = f"""s_and_b32 {sT3}, {sSLOT}, 1
s_lshl_b32 {sT3}, {sT3}, 1
s_and_b32 {sT}, {sIDX}, 1
s_add_u32 {sT3}, {sT3}, {sT}
s_lshl_b32 {sT}, {sT3}, 8
s_add_u32 {sFU}, {sT}, {FL + 6144}
s_lshr_b32 {sT}, {sSLOT}, 1
s_mul_i32 {sT}, {sT}, 7
s_lshr_b32 {sT4}, {sIDX}, 1
s_add_u32 {sT}, {sT}, {sT4}
s_add_u32 {sT4}, {sT4}, {sIDX}
s_and_b32 {sT4}, {sT4}, {opt.get('rotg', 1)}
s_lshl_b32 {sW3}, {sT}, 8
s_mov_b32 {sB}, {sW3}
s_lshl_b32 {sU}, {sT}, 13
s_lshl_b32 {sT}, {sT3}, 2
s_add_u32 {sT}, {sT}, {sWAVE}
s_lshl_b32 {sA3}, {sT}, 18
s_add_u32 {sA3}, {sA3}, {HF}
s_mul_i32 {sT}, {sT}, {2*112*2048}
s_add_u32 {sU}, {sU}, {sT}
s_add_u32 {sU}, {sU}, {UF}
s_movk_i32 {sSTR}, 7168
""" + rot_setup(sT4, sW3, sA3, sGI, sGJ, 64 * 7168, 8192) + '\n' + '\n'.join(wvoff_setup(vWg, sSTR, 'id', t))
    su_g2 += f'\nv_bfe_u32 {vFL}, v0, 4, 2\nv_lshlrev_b32 {vFL}, 3, {vFL}'
    su_n = f"""s_lshl_b32 {sO}, {sQ64}, 19
s_lshl_b32 {sT}, {sHEAD}, 13
s_add_u32 {sO}, {sO}, {sT}
s_add_u32 {sO}, {sO}, {OF}
s_lshl_b32 {sT2}, {sGRP}, 3
s_and_b32 {sT}, {sIDX}, 7
s_add_u32 {sT}, {sT}, {sT2}
s_lshl_b32 {sT}, {sT}, 8
s_add_u32 {sFO}, {sT}, {FL}
s_and_b32 {sST}, {sSLOT}, 3
s_lshl_b32 {sST}, {sST}, 2
s_and_b32 {sT}, {sIDX}, 3
s_add_u32 {sST}, {sST}, {sT}
s_and_b32 {sDT}, {sSLOT}, 4
s_lshr_b32 {sT}, {sIDX}, 2
s_add_u32 {sDT}, {sDT}, {sT}
s_lshl_b32 {sT}, {sST}, 3
s_add_u32 {sT}, {sT}, {sDT}
s_lshl_b32 {sT}, {sT}, 2
s_add_u32 {sT}, {sT}, {sWAVE}
s_lshl_b32 {sG}, {sT}, 13
s_add_u32 {sG}, {sG}, {GB}
s_lshl_b32 {sT}, {sT}, 7
s_add_u32 {sFG}, {sT}, {FL + 8192}
s_lshl_b32 {sT}, {sIDX}, 3
s_add_u32 {sT}, {sT}, {sSLOT}
s_lshl_b32 {sT}, {sT}, 2
s_add_u32 {sT}, {sT}, {sWAVE}
s_mul_i32 {sPF0}, {sT}, 28672
s_mov_b32 {sMODE}, 0
s_lshl_b32 {sT}, {sDT}, 2
s_add_u32 {sT}, {sT}, {sWAVE}
s_mul_i32 {sT}, {sT}, {112*2048}
s_add_u32 {sT}, {sT}, {UF}
s_lshl_b32 {sT2}, {sST}, 2
s_add_u32 {sT2}, {sT2}, {sWAVE}
s_lshl_b32 {sR0}, {sT2}, 16
s_lshl_b32 {sT2}, {sT2}, 18
s_add_u32 {sT2}, {sT2}, {OF}
s_lshl_b32 {sT3}, {sDT}, 8
s_add_u32 {sR0}, {sR0}, {sT3}
s_add_u32 {sR1}, {sR0}, 32768
s_lshl_b32 {sT4}, {sST}, 8
s_lshr_b32 {sFW}, {sDT}, 1
s_add_u32 {sFW}, {sFW}, 24
s_lshr_b32 {sTG}, {sST}, 1
s_cmp_eq_u32 {sROLE}, 0
s_cselect_b32 {sGA0}, {sT}, {sT2}
s_cselect_b32 {sGW0}, {sT4}, {sT3}
s_cselect_b32 {sBN}, {sT4}, 0x10000
s_cselect_b32 {sFW}, {sFW}, {sTG}
s_cselect_b32 {sTG}, 28, 16
s_lshl_b32 {sFW}, {sFW}, 8
s_add_u32 {sFW}, {sFW}, {FL}
s_cmp_eq_u32 {sWAVE}, 0
s_cselect_b32 {sSIG}, {sG2}, 0
s_mul_i32 {sSIG}, {sSIG}, -7
s_lshr_b32 {sSTR}, 4096, {sROLE}
s_lshl_b32 {sT3}, {sSTR}, 6
s_add_u32 {sROT}, {sST}, {sDT}
s_and_b32 {sROT}, {sROT}, {opt.get('rot', 1)}
"""
    su_n2 = rot_setup(sROT, sGW0, sGA0, sNI, sNJ, sT3, 4096) + '\n' + '\n'.join(wvoff_setup(vWq, sSTR, 'blk', t))
    su_n2 += f'\nv_mov_b32 v{t+1}, {FLAG}'
    pre_kv = kdma(0) + kdma(1) + vdma(0) + kdma(2) + vdma(1)
    kvtail = lambda i: pre_kv[i * 12:(i + 1) * 12]
    def last_before_att(g, s_, pre):
        n = g.nst
        def ex(s, e):
            if s == n - 4 and e == 0: s_.push(parse(su_kv) + parse(pre) + parse(su_n))
            if s == n - 3 and e == 6: assert len(s_.q) <= len(parse(su_n)) + 40, len(s_.q)
            if s == n - 2 and e == 0: s_.push(parse(su_n2))
            if s == n - 1 and e == 5:
                assert not s_.q
                s_.push([kread(0, 0, tt) for tt in range(4)] + [kread(0, 1, 0), Op(f'ds_write_b32 v{t+1}, {vZERO}', 'ds')])
                s_.push([valu(f'v_subrev_u32 {vWa.sub(e_)}, {VBASE - KBASE}, {vVa.sub(e_)}') for e_ in range(8)])
            return {}
        g.last(s_, kvtail, ex, last_bar=['K0'])
        assert not s_.q
    last_before_att(gq, st, su_c)
    sp.stamp(st)
    q_epilogue(st)
    sp.stamp(st); sp.stamp(st)
    a('L2_join:')
    pre = [f'v_mov_b32 {ONES.sub(i)}, 0x3f803f80' for i in range(4)]
    pre += f'v_and_b32 {vIDX}, 1, v0\nv_sub_u32 {vIDX}, 0, {vIDX}\nv_and_b32 {vIDX}, 0xaaaaaaaa, {vIDX}\nv_or_b32 {vIDX}, 0x44444444, {vIDX}'.split('\n')
    M = P.sub(16, 4)
    mx = lambda b: [valu(f'v_max3_f32 {M.sub(b)}, {P.sub(4*b)}, {P.sub(4*b+1)}, {P.sub(4*b+2)}'), valu(f'v_max_f32 {M.sub(b)}, {M.sub(b)}, {P.sub(4*b+3)}')]
    mf = [mfma(P.sub(4 * b, 4), Kf(0, tt), Qf(b, tt), P.sub(4 * b, 4) if tt else 0) for b in range(4) for tt in range(4)]
    fl = [[] for _ in mf]
    for i in range(4): fl[4 + i] = [valu(x) for x in pre[2 * i:2 * i + 2]]
    fl[8] = mx(0); fl[15] = mx(1) + [salu('s_nop 1')] + mx(2) + [salu('s_nop 1')] + mx(3)
    a('s_nop 0')
    st.gaps(mf, fl)
    negm_finish(a, M, opt.get('margin', MARGIN))
    sp.stamp(st)
    a('L2_att:')
    a(f'v_mov_b64 {P.sub(32,2)}, 0\nv_mov_b64 {P.sub(34,2)}, 0')
    a(f's_mov_b32 {sGW}, {sGW0}\ns_mov_b32 {sGA}, {sGA0}\ns_mov_b32 {sPF}, {sPF0}')
    def sig_end(name, soff):
        far.append(f'{name}:\n{signal(soff)}\ns_mov_b32 {sSIG}, 0\ns_branch {name}_r')
        return f's_cmp_eq_u32 {sCNT}, {sSIG}\ns_cbranch_scc1 {name}\n{name}_r:'
    usig = sig_end('L2_su', sFU)
    far.append(f'L2_wn:\n{spin("L2_wn1", sFW, sTG)}\ns_branch L2_wn_r')
    far.append(f'L2_bad:\nds_write_b32 v{t+1}, {vONE}\ns_waitcnt lgkmcnt(0)\ns_branch L2_bad_r')
    su_s = f's_lshl_b32 {sW3}, {sDT}, 8\ns_add_u32 {sW3}, {sW3}, {NSY*64*2048}\ns_lshl_b32 {sT}, {sST}, 2\ns_add_u32 {sT}, {sT}, {sWAVE}\ns_lshl_b32 {sA3}, {sT}, 18\ns_add_u32 {sA3}, {sA3}, {OF + NSY*4096}\n'
    su_s += rot_setup(sROT, sW3, sA3, sSI, None, 64 * 2048, 4096)
    su_s += f'\nv_bfe_u32 v{t+2}, v0, 4, 2\nv_lshrrev_b32 v{t+3}, 6, v0\nv_lshl_add_u32 v{t+2}, v{t+3}, 4, v{t+2}\nv_lshlrev_b32 v{t+2}, 11, v{t+2}'
    for i in range(4): su_s += f'\nv_sub_u32 {vWg.sub(i)}, {vWq.sub(i)}, v{t+2}' + (f'\nv_subrev_u32 {vWg.sub(i)}, {4*i*2048}, {vWg.sub(i)}' if i else '')
    marks = []
    for j in range(-1, 31):
        if 0 <= j <= 28 and j % 4 == 0: marks.append(st.mark())
        if j == 30: st.push(parse(su_s))
        att_iter(st, j, g4, opt)
        assert not st.q
        if 0 <= j < 28 and j % 4 == 3: a(usig)
    st.fold(marks, 'L2_loop', sCNT)
    st.push([10] + ([] if opt.get('dd', 0) else flat(g4.window(2)[3:4])) + flat(g4.window(1)[4:]))
    st.push([valu(f'v_add_f32 {LS.sub(4*b)}, {LS.sub(4*b)}, {LS.sub(4*b+1)}') for b in range(4)])
    st.push(parse(f'v_add_f32 v{t+2}, {LS.sub(0)}, {LS.sub(4)}\nv_add_f32 v{t+3}, {LS.sub(8)}, {LS.sub(12)}\nv_add_f32 v{t+2}, v{t+2}, v{t+3}\nv_cmp_nge_f32 vcc, 0x47800000, v{t+2}'))
    st.push([valu(f'v_rcp_f32 {LS.sub(4*b)}, {LS.sub(4*b)}') for b in range(2)])
    st.push([[salu('s_cbranch_vccnz L2_bad'), salu('L2_bad_r:')], barrier(['N0']), Op(f'ds_read_b32 v{t}, v{t+1}', 'ds', wr=V(t).set())])
    st.push([valu(f'v_rcp_f32 {LS.sub(4*b)}, {LS.sub(4*b)}') for b in range(2, 4)])
    st.push(flat(g4.window(2)[4:]))
    st.push([valu(f'v_readfirstlane_b32 {sT}, v{t}', rd=[V(t)])])
    st.push([valu(f'v_mov_b32 {LS.sub(4*b+1)}, {LS.sub(4*b)}') for b in range(4)])
    st.push([[salu(f's_cmp_gt_u32 {sT}, {sMODE}'), salu('s_cbranch_scc1 L2_redo')]])
    st.push(flat(g4.window(3)[:2]))
    st.push(parse(f's_add_u32 {sT}, {sO}, 4096\ns_add_u32 {sT2}, {sO}, {128*2048}\ns_add_u32 {sT3}, {sT2}, 4096'))
    st.push(parse(f's_lshr_b32 {sFW}, {sST}, 1\ns_lshl_b32 {sFW}, {sFW}, 8\ns_add_u32 {sFW}, {sFW}, {FL}'))
    ini = [valu(f'v_lshlrev_b32 {Q.sub(8*e+i)}, 16, {BIAS.sub(e)}', rd=[BIAS.sub(e)]) for e in range(8) for i in range(2)]
    rd = g4.reads(0) + g4.reads(1) + g4.reads(2)
    for i in range(12): st.push([rd[i], ini[i]])
    st.push(ini[12:])
    att_iter(st, 31, g4, opt)
    st.flush()
    sp.stamp(st)
    for e in range(8):
        for i in range(1, 4): a(f'v_mov_b64 {Q.sub(8*e+2*i,2)}, {Q.sub(8*e,2)}')
    kk = [0]
    def onorm(x, tt, b):
        for jj in range(2):
            for i in range(4): a(f'v_accvgpr_read_b32 {x.sub(4*jj+i)}, {O.sub(((2*tt+jj)*4+b)*4+i)}')
        for i in range(4): a(f'v_pk_mul_f32 {x.sub(2*i,2)}, {x.sub(2*i,2)}, {LS.sub(4*b,2)}')
        kk[0] += 1
        return P.sub(4 * (kk[0] - 1), 4)
    act_store(st, 4, 4, onorm, [[sO, sT], [sT2, sT3]], NEGM)
    sp.stamp(st)
    a(f's_cmp_lg_u32 {sROLE}, 0\ns_cbranch_scc1 L2_Y')
    sy = st.fork(); spn = sp.n
    def chk_extra(sig):
        def f(s, e):
            if s % 4 == 2 and e == 0: return {3: [flag_load(sFW)]}
            if sig and s % 4 == 3 and e == 0: return {3: [salu(x) for x in sig.split('\n')]}
            if s % 4 == 3 and e == 7: return {3: [valu(f'v_readfirstlane_b32 {sT}, {vFL}', rd=[vFL])]}
            return {}
        return f
    def chk_end(name, cntval, target):
        far.append(f'{name}:\ns_cmp_ge_u32 {sT}, {target}\ns_cbranch_scc1 {name}_r\n{spin(name + "1", sFW, target)}\ns_branch {name}_r')
        return lambda s_: s_.raw(f's_cmp_eq_u32 {sCNT}, {cntval}\ns_cbranch_scc1 {name}\n{name}_r:')

    a(f's_cmp_eq_u32 {sWAVE}, 0\ns_cselect_b32 {sSIG}, -13, 0')
    g4.loop(st, 'L2_y', sCNT, extra=chk_extra(sig_end('L2_so', sFO)), trip_end=chk_end('L2_c0', -1, 16))
    l2e = f2h(-math.log2(math.e))
    st.push(parse(f's_mov_b32 s58, {l2e}\ns_mov_b32 s59, {l2e}\ns_add_u32 {sFW}, {sFW}, 4096\ns_lshl_b32 {sT}, {sWAVE}, 14\ns_lshl_b32 {sT2}, {sWAVE}, 11'))
    st.push(parse(f'v_and_b32 v{t+1}, 63, v0\nv_lshlrev_b32 v{t+1}, 4, v{t+1}\nv_add_u32 v{t}, {sT2}, v{t+1}\nv_add_u32 v{t+1}, {sT}, v{t+1}'))
    st.push([valu(f'v_mov_b32 {ACC3.sub(i)}, 0') for i in range(40)])
    g4.last(st, g3s.window, chain=g3s)
    st.flush()
    sp.stamp(st)
    for i in range(20, 32): a(f'v_mov_b64 {ACC3.sub(2*i,2)}, 0')
    for e in range(8):
        x = BIAS.sub((e & 1) * 8, 8); y = Q.sub(8 * e, 8)
        for i in range(4): a(f'v_pk_mul_f32 {x.sub(2*i,2)}, {y.sub(2*i,2)}, {sC}')
        for i in range(8): a(f'v_exp_f32 {x.sub(i)}, {x.sub(i)}')
        for i in range(4): a(f'v_pk_add_f32 {x.sub(2*i,2)}, {x.sub(2*i,2)}, 1.0 op_sel_hi:[1,0]')
        for i in range(8): a(f'v_rcp_f32 {x.sub(i)}, {x.sub(i)}')
        for i in range(4): a(f'v_pk_mul_f32 {y.sub(2*i,2)}, {x.sub(2*i,2)}, {y.sub(2*i,2)}')
        if e in (0, 4): st.wait_all(vm=False)
        for b in range(2): st.op(Op(f'ds_write_b128 v{t}, {y.sub(4*b,4)} offset:{8192*e + 1024*b}', 'ds'))
    st.wait_all(vm=False)
    sp.stamp(st)
    n3 = g3s.nst
    g3s.loop(st, 'L2_s', sCNT, extra=chk_extra(None), trip_end=chk_end('L2_c2', -(n3 // 4 - 1) + (16 - A0) // 2 - 2, 16 - NYY))
    XR = GF.sub(0, 32); PR = A(0, 32)
    pl = lambda so: [vload(f'buffer_load_dwordx4 {PR.sub(4*n,4)}, {vL16}, {sWS}, {so[n >> 2]} offen offset:{1024*(n & 3)} sc1', PR.sub(4 * n, 4)) for n in range(8)]
    def s3x(s, e):
        if s == n3 - 4 and e == 0:
            st.push(parse(f'v_bfe_u32 v{t+2}, v0, 4, 1\nv_bfe_u32 v{t+3}, v0, 5, 1\nv_lshlrev_b32 v{t+2}, 5, v{t+2}\nv_lshl_or_b32 v{t+2}, v{t+3}, 4, v{t+2}\nv_and_b32 v{t+3}, 15, v0\nv_lshl_add_u32 {vX}, v{t+3}, 11, v{t+2}'))
            st.push([vload(f'buffer_load_dwordx4 {XR.sub(4*n,4)}, {vX}, {sX}, {[sR0, sR1][n >> 2]} offen offset:{64*(n & 3)}', XR.sub(4 * n, 4)) for n in range(8)])
            st.push([flag_load(sFG)])
            st.push(parse(f'v_bfe_u32 v{t+2}, v0, 4, 2\nv_lshlrev_b32 v{t+2}, 2, v{t+2}\nv_sub_u32 v{t+2}, v{t+3}, v{t+2}\nv_and_b32 v{t+3}, 1, v0\nv_lshlrev_b32 v{t+3}, 4, v{t+3}\nv_mov_b32 {SEL.sub(0)}, 0x3f80\nv_lshlrev_b32 v{t+3}, v{t+3}, {SEL.sub(0)}\nv_lshrrev_b32 v{t+2}, 1, v{t+2}'))
            st.push(parse(f'v_cmp_eq_u32 vcc, 0, v{t+2}\nv_mov_b32 {SEL.sub(0)}, 0\nv_mov_b32 {SEL.sub(1)}, 0\nv_cndmask_b32 {SEL.sub(2)}, 0, v{t+3}, vcc\nv_cmp_eq_u32 vcc, 1, v{t+2}\nv_mov_b32 {SEL.sub(4)}, 0\nv_mov_b32 {SEL.sub(5)}, 0\nv_cndmask_b32 {SEL.sub(3)}, 0, v{t+3}, vcc'))
        if s == n3 - 2 and e == opt.get('pe', 0):
            st.push([valu(f'v_readfirstlane_b32 {sRDY}, {vFL}', rd=[vFL]), 1])
            st.push(parse(f's_cmp_lg_u32 {sRDY}, 0\ns_cselect_b32 {sP0}, {sG}, 0x40000000\ns_add_u32 {sP1}, {sP0}, 4096'))
            st.push(pl([sP0, sP1]))
            for n in range(8):
                b, p = n >> 2, n & 3
                d = XR.sub(4 * n, 4)
                st.push([valu(f'v_permlane16_swap_b32 {d.sub(0)}, {d.sub(2)}', rd=[d]), valu(f'v_permlane16_swap_b32 {d.sub(1)}, {d.sub(3)}')])
                for h in range(4):
                    x = XF.sub(((2 * p + (h >> 1)) * 2 + b) * 4 + 2 * (h & 1), 2)
                    st.push(parse(f'v_lshlrev_b32 {x.sub(0)}, 16, {d.sub(h)}\nv_and_b32 {x.sub(1)}, 0xffff0000, {d.sub(h)}'))
                st.push([ds_128(GF.sub(32 + 4 * n, 4), V(t + 1), 8192 * (n & 1) + 1024 * (4 + (n >> 1)))])
            st.push([ds_128(GF.sub(4 * n, 4), V(t + 1), 8192 * (n & 1) + 1024 * (n >> 1)) for n in range(8)])
        return {}
    g3s.last(st, None, s3x)
    sp.stamp(st)
    far.append(f'L2_wg:\n{spin("L2_wg1", sFG, 1)}\ns_add_u32 {sP1}, {sG}, 4096\n' + '\n'.join(o.text for o in pl([sG, sP1])) + '\ns_waitcnt vmcnt(0)\ns_branch L2_wg_r')
    while any(isinstance(g, list) and g[0].kind == 'vm' for g in st.q):
        g = st.q.pop(0)
        if isinstance(g, list): st.ops(g)
    a(f's_cmp_eq_u32 {sRDY}, 0\ns_cbranch_scc1 L2_wg\nL2_wg_r:')
    sp.stamp(st)
    mf = [mfma(acc3(e, b), SEL.sub(2 - 2 * (e & 1), 4), PR.sub((b * 4 + (e >> 1)) * 4, 4), acc3(e, b)) for b in range(2) for e in range(8)]
    st.gaps(mf, [[] for _ in mf])
    st.flush()
    prev = None
    osc = ' sc1' if opt.get('out_sc1', 0) else ''
    for n in range(8):
        b, p = n >> 2, n & 3
        d = BIAS.sub(4 * (n & 3), 4)
        os_ = [((2 * p + (h >> 1)) * 2 + b) * 4 + 2 * (h & 1) for h in range(4)]
        for h in range(4): st.op(valu(f'v_pk_fma_f32 {XF.sub(os_[h],2)}, {ACC3.sub(os_[h],2)}, {GF.sub(os_[h],2)}, {XF.sub(os_[h],2)}', rd=[GF.sub(os_[h], 2)]))
        if prev: prev()
        for h in range(4): a(f'v_cvt_pk_bf16_f32 {d.sub(h)}, {XF.sub(os_[h])}, {XF.sub(os_[h]+1)}')
        def fin(d=d, b=b, p=p):
            a(f'v_permlane16_swap_b32 {d.sub(0)}, {d.sub(2)}\nv_permlane16_swap_b32 {d.sub(1)}, {d.sub(3)}')
            st.op(vstore(f'buffer_store_dwordx4 {d}, {vX}, {sOUT}, {[sR0, sR1][b]} offen offset:{64*p}{osc}'))
        prev = fin
    a('s_nop 1')
    prev()
    if sp.on: a('s_waitcnt vmcnt(0)')
    sp.stamp(st)
    sp.flush(st, sWS, t)
    a('L2_end:\ns_endpgm')

    a = sy.raw; sp.n = spn
    a('L2_Y:')
    nf = NSY // 4 - 1
    a(f's_cmp_eq_u32 {sWAVE}, 0\ns_cselect_b32 {sSIG}, {-nf}, 0\ns_add_u32 {sFW}, {sFW}, 2048')
    g3y.loop(sy, 'L2_sy', sCNT, extra=chk_extra(sig_end('L2_yo', sFO)), trip_end=chk_end('L2_c1', -nf + A0 // 2 - 2, NYY))
    a(f's_add_u32 {sT2}, {sG}, 4096')
    def pstore(p):
        o = []
        for b in range(2):
            d = GF.sub((b * 4 + p) * 4, 4)
            for h in range(4):
                k = ((2 * p + (h >> 1)) * 2 + b) * 4 + 2 * (h & 1)
                o.append(valu(f'v_cvt_pk_bf16_f32 {d.sub(h)}, {Q.sub(k)}, {Q.sub(k+1)}'))
            o.append(vstore(f'buffer_store_dwordx4 {d}, {vL16}, {sWS}, {[sG, sT2][b]} offen offset:{1024*p} sc1'))
        return o
    def yx(s, e):
        if s == NSY - 1 and e in (4, 6): sy.push(pstore(e // 2 - 2))
        return {}
    g3y.last(sy, None, yx)
    sy.flush()
    sp.stamp(sy); sp.stamp(sy); sp.stamp(sy)
    sy.ops(pstore(2)); sy.ops(pstore(3))
    a('s_waitcnt vmcnt(0)')
    sp.stamp(sy)
    a(f'{signal(sFG)}\ns_waitcnt vmcnt(0)')
    sp.stamp(sy)
    sp.flush(sy, sWS, t)
    a('s_endpgm')

    a = sg.raw; sp.n = spg
    a('L2_G:')
    def gx(s, e):
        if s == 12 and e == 0:
            sg.push(parse(su_g2) + parse(su_c))
        if s == 13 and e == 6:
            assert not sg.q
            sg.push([vload(f'buffer_load_dwordx2 {BIAS.sub(2*n,2)}, {vFL}, {sBB}, {sB} offen offset:{32*n}', BIAS.sub(2 * n, 2)) for n in range(8)])
        return {}
    gq.last(sg, g2.window, gx, chain=g2)
    assert not sg.q
    sp.stamp(sg)
    q_epilogue(sg, True)
    sp.stamp(sg)
    g2.loop(sg, 'L2_g', sCNT)
    k0 = 2.0 * math.sqrt(2.0 / math.pi) * math.log2(math.e)
    last_before_att(g2, sg, f's_mov_b32 s58, {f2h(-k0*0.044715)}\ns_mov_b32 s59, {f2h(-k0*0.044715)}')
    sp.stamp(sg)
    C1 = V(t + 2, 2)
    a(f'v_mov_b32 {C1.sub(0)}, {f2h(-k0)}\nv_mov_b32 {C1.sub(1)}, {f2h(-k0)}')
    a(f's_add_u32 {sT}, {sU}, 4096\ns_add_u32 {sT2}, {sU}, {112*2048}\ns_add_u32 {sT3}, {sT2}, 4096')
    def gelu(x, tt, b):
        u = [accq(2 * tt + (i >> 1), b).sub(2 * (i & 1), 2) for i in range(4)]
        for i in range(4): a(f'v_pk_mul_f32 {x.sub(2*i,2)}, {u[i]}, {u[i]}')
        for i in range(4): a(f'v_pk_fma_f32 {x.sub(2*i,2)}, {x.sub(2*i,2)}, {sC}, {C1}')
        for i in range(4): a(f'v_pk_mul_f32 {x.sub(2*i,2)}, {x.sub(2*i,2)}, {u[i]}')
        for i in range(8): a(f'v_exp_f32 {x.sub(i)}, {x.sub(i)}')
        for i in range(4): a(f'v_pk_add_f32 {x.sub(2*i,2)}, {x.sub(2*i,2)}, 1.0 op_sel_hi:[1,0]')
        for i in range(8): a(f'v_rcp_f32 {x.sub(i)}, {x.sub(i)}')
        for i in range(4): a(f'v_pk_mul_f32 {x.sub(2*i,2)}, {x.sub(2*i,2)}, {u[i]}')
        return accq(2 * tt, b)
    act_store(sg, 4, 4, gelu, [[sU, sT], [sT2, sT3]], BIAS)
    a('s_branch L2_join')
    for x in far: a(x)

    a('L2_redo:')
    a(f's_mov_b32 {sMODE}, 1\ns_mov_b32 {sK}, {sKV0}\ns_mov_b32 {sCNT}, -32')
    for b in range(4): a(f'v_mov_b32 {M.sub(b)}, 0xff800000')
    a('L2_mx:\ns_waitcnt vmcnt(0) lgkmcnt(0)\ns_barrier')
    for pre, v, post in kdma(0):
        for o in pre: a(o.text + '\ns_nop 0')
        a(v.text)
        for o in post: a(o.text)
    a('s_waitcnt vmcnt(0)\ns_barrier')
    for c in range(4):
        for tt in range(4): a(kread(0, c, tt).text)
        a('s_waitcnt lgkmcnt(0)')
        for b in range(4):
            for tt in range(4): a(mfma(P.sub(4 * b, 4), Kf(c, tt), Qf(b, tt), P.sub(4 * b, 4) if tt else 0).text)
        a('s_nop 7')
        for b in range(4):
            x = P.sub(4 * b, 4)
            a(f'v_max3_f32 {M.sub(b)}, {M.sub(b)}, {x.sub(0)}, {x.sub(1)}\nv_max3_f32 {M.sub(b)}, {M.sub(b)}, {x.sub(2)}, {x.sub(3)}')
    a(f's_add_u32 {sCNT}, {sCNT}, 1\ns_cbranch_scc0 L2_mx')
    negm_finish(a, M, 0.0)
    a(f's_mov_b32 {sK}, {sKV0}\ns_mov_b32 {sV}, {sKV0}\ns_barrier')
    for pre, v, post in pre_kv:
        for o in pre: a(o.text + '\ns_nop 0')
        a(v.text)
        for o in post: a(o.text)
    a('s_waitcnt vmcnt(0)\ns_barrier')
    for tt in range(4): a(kread(0, 0, tt).text)
    a(kread(0, 1, 0).text)
    a('s_waitcnt lgkmcnt(0)\ns_branch L2_att')
    return st.lines() + sy.lines() + sg.lines(), kd('att_kernel', 512, 256, 102), '; @launch kernel=att_kernel grid=(256,1,1) block=(256,1,1) lds=163840'
```

```python
from fw import *

class Gemm:
    def __init__(self, name, nst, NA, acc, act, wr, waddr, pi, wsrd, wvoff, sW, wstride, m0base, sLds, asrd, avoff, sA,
                 swap=False, avoff2=None, NW=8, lead=4, asuf='', uni=False, winc=None, ainc=None, dist=3):
        self.__dict__.update(locals())
        self.chain = None; self.bar_rd = []
    def hook(self, s, e, fill): return []
    def wfrag(self, G, ks): return self.wr.sub((G % 4) * 8 + ks * 4, 4)
    def afrag(self, s, ks, b): return self.act.sub((s % 4) * 8 * self.NA + (ks * self.NA + b) * 4, 4)
    def reads(self, G):
        s, e = divmod(G, self.NW)
        if s >= self.nst: return self.chain.reads(G - self.nst * self.NW) if self.chain else []
        o = []
        for ks in range(2):
            for tt in range(2):
                off = (s % 4) * 16384 + ks * 8192 + tt * (1024 if self.pi == 'id' else 4096)
                o.append(ds_tr(self.wfrag(G, ks).sub(2 * tt, 2), self.waddr.sub(e), off))
        return o
    def window(self, s):
        w = []
        for i in range(4):
            pre = [salu(f's_add_u32 m0, {self.sLds}, {self.m0base + (s % 4) * 16384}')] if i == 0 else []
            post = [salu(f's_add_u32 {self.sW}, {self.sW}, {self.winc[s & 1] if self.winc else 64 * self.wstride}')] if i == 3 else []
            w.append((pre, vload(f'buffer_load_dwordx4 {self.wvoff.sub(i)}, {self.wsrd}, {self.sW} offen offset:{i*1024} lds', tag=f'{self.name}{s}'), post))
        n = 2 * self.NA
        for i in range(n):
            ks, b = divmod(i, self.NA)
            vo = self.avoff if i < 4 else self.avoff2
            post = []
            if i == n - 1: post.append(salu(f's_add_u32 {self.sA}, {self.sA}, {self.ainc[s & 1] if self.ainc else n * 1024}'))
            d = self.afrag(s, ks, b)
            w.append(([], vload(f'buffer_load_dwordx4 {d}, {vo}, {self.asrd}, {self.sA} offen offset:{(i % 4) * 1024}{self.asuf}', d), post))
        return w
    def positions(self):
        if self.uni and self.NA == 2:
            assert self.NW == 8 and self.lead == 4
            return [(1, 5, 1), (1, 6, 1), (1, 7, 1), (2, 0, 1), (1, 1, 1), (1, 2, 1), (1, 3, 1), (1, 4, 1)]
        if self.NA == 4:
            return [(0, 7, 1), (0, 7, 5), (1, 0, 1), (1, 0, 5), (1, 1, 1), (1, 1, 5), (1, 2, 1), (1, 2, 5), (1, 3, 1), (1, 3, 5), (1, 4, 1), (1, 4, 5)]
        if self.NW == 8:
            return [(0, 7, 1), (0, 7, 3), (1, 0, 1), (1, 1, 1), (1, 2, 1), (1, 3, 1), (1, 4, 1), (1, 5, 1)]
        assert self.NW == 6
        return [(0, 5, 1), (0, 5, 3), (1, 0, 1), (1, 0, 3), (1, 1, 1), (1, 2, 1), (1, 3, 0), (1, 3, 2)]
    def issue(self, st, elems, between=None):
        for pre, v, post in elems:
            st.ops(pre)
            if pre: st.raw('s_nop 0')
            st.op(v); st.ops(post)
            if between: between()
    def start(self, st):
        st.op(barrier([f'{self.name}0'], lg0=True))
        for G in range(self.dist): st.ops(self.reads(G))
    def mf(self, s, e):
        m = []
        for b in range(self.NA):
            for ks in range(2):
                w, x = self.wfrag(self.NW * s + e, ks), self.afrag(s, ks, b)
                c = self.acc(e, b)
                m.append(mfma(c, x, w, c) if self.swap else mfma(c, w, x, c))
        return m
    def run(self, st, label, sreg, tail=None, extra=None, trip_end=None):
        self.loop(st, label, sreg, extra, trip_end)
        self.last(st, tail, extra)
    def loop(self, st, label, sreg, extra=None, trip_end=None):
        marks = self.stages(st, 0, self.nst - 4, None, extra, trip_end)
        st.fold(marks, label, sreg)
    def last(self, st, tail=None, extra=None, last_bar=None, chain=None):
        self.chain = chain
        if chain: last_bar = [chain.name + '0']
        self.stages(st, self.nst - 4, self.nst, tail, extra, None, last_bar)
        self.chain = None
    def stages(self, st, s0, s1, tail, extra, trip_end, last_bar=None):
        ng, NW = 2 * self.NA, self.NW
        pos = self.positions()
        wins = {}
        def win(s):
            if s not in wins:
                wins[s] = self.window(s) if s < self.nst else (tail(s - self.nst) if tail else [])
            return wins[s]
        marks = []
        carry = []
        for s in range(s0, s1):
            if s % 4 == 0: marks.append(st.mark())
            for e in range(NW):
                G = NW * s + e
                fill = [[] for _ in range(ng)]
                sc = [[] for _ in range(ng + 1)]
                sc[0] += carry; carry = []
                rd = self.reads(G + self.dist) if self.uni or e < NW - 3 or e == NW - 1 else (self.reads(G + 2) + self.reads(G + 3) if e == NW - 2 else [])
                if self.NA == 2: gp = [0, 0, 2, 2] if len(rd) <= 4 else [0, 0, 1, 1, 2, 2, 3, 3]
                else: gp = [0, 2, 4, 6] if len(rd) <= 4 else list(range(8))
                for o, g in zip(rd, gp): fill[g].append(o)
                for idx, (so, pe, pg) in enumerate(pos):
                    if pe != e: continue
                    w = win(s + self.lead - so)
                    if idx >= len(w) or w[idx] is None: continue
                    pre, v, post = w[idx]
                    assert pg > 0 or not pre
                    sc[pg - 1] += pre; fill[pg].append(v); sc[pg + 1] += post
                more = self.hook(s, e, fill)
                if e == NW - (1 + self.dist if self.uni else 3):
                    if s + 1 < self.nst: fill[ng - 1].append(barrier([f'{self.name}{s+1}'], lg0=not self.uni))
                    elif last_bar is not None:
                        fill[ng - 1].append(barrier(last_bar, lg0=not self.uni)); fill[ng - 1][-1].rd = list(self.bar_rd)
                if extra:
                    for g, l in extra(s, e).items(): fill[g] += l
                carry = sc[ng]
                if e == NW - 1 and s % 4 == 3:
                    fill[ng - 1] += carry; carry = []
                for g in range(ng): fill[g] = sc[g] + fill[g]
                nxt = self.mf(s, e + 1)[0] if e < NW - 1 else (self.mf(s + 1, 0)[0] if s + 1 < self.nst else None)
                st.gaps(self.mf(s, e) + more, fill + [[] for _ in more], nxt)
            if s % 4 == 3 and trip_end: trip_end(st)
        marks.append(st.mark())
        return marks

class GemmX(Gemm):
    def xsetup(self, xbase, xvoff, xaddr, sA2, ones, idx, cs):
        self.xbase, self.xvoff, self.xaddr, self.sA2, self.ones, self.idx, self.cs = xbase, xvoff, xaddr, sA2, ones, idx, cs
    def window(self, s):
        w = Gemm.window(self, s)[:4]
        for i in range(8):
            so = self.sA if i < 4 else self.sA2
            pre = [salu(f's_add_u32 m0, {self.sLds}, {self.xbase[s & 1] + (i >> 2) * 16384}')] if i % 4 == 0 else []
            post = [salu(f's_add_u32 {so}, {so}, 128')] if i % 4 == 3 else []
            w.append((pre, vload(f'buffer_load_dwordx4 {self.xvoff.sub(i & 3)}, {self.asrd}, {so} offen offset:{(i & 3) * 1024} lds', tag=f'X{s}_{i}'), post))
        return w
    def xreads(self, s, b):
        o = []
        for ks in range(2):
            r = ds_128(self.afrag(s, ks, b), self.xaddr.sub(ks), self.xbase[s & 1] - min(self.xbase) + (b >> 1) * 16384 + (b & 1) * 2048)
            r.waittags = [f'X{s}_{2*b+1}']; o.append(r)
        return o
    def hook(self, s, e, fill):
        if e >= 4 and s + 1 < self.nst:
            r = self.xreads(s + 1, e - 4); fill[3].append(r[0]); fill[7].append(r[1])
        if e < 2: return [Op(f'v_smfmac_f32_16x16x64_bf16 {self.cs.sub(4*e,4)}, {self.ones}, {self.wr.sub(((8*s+e) % 4) * 8, 8)}, {self.idx}', 'mfma')]
        return []

def waddr_setup(dst, base, pi, t):
    L = [f'v_bfe_u32 v{t}, v0, 4, 2', f'v_bfe_u32 v{t+1}, v0, 2, 2',
         f'v_and_b32 v{t+2}, 1, v{t}', f'v_lshl_or_b32 v{t+2}, v{t+2}, 2, v{t+1}',
         f'v_lshl_add_u32 v{t}, v{t}, {3 if pi == "id" else 2}, v{t+1}', f'v_lshlrev_b32 v{t}, 8, v{t}',
         f'v_and_b32 v{t+1}, 3, v0', f'v_lshl_add_u32 v{t}, v{t+1}, 3, v{t}', f'v_add_u32 v{t}, {base}, v{t}']
    for e in range(8):
        L += [f'v_xor_b32 v{t+1}, {e}, v{t+2}', f'v_lshl_add_u32 {dst.sub(e)}, v{t+1}, 5, v{t}']
    return L

def wvoff_setup(dst, sstride, pi, t, slimit=None):
    L = [f'v_bfe_u32 v{t}, v0, 4, 2', f'v_lshrrev_b32 v{t+1}, 6, v0', f'v_lshl_add_u32 v{t+1}, v{t+1}, 4, v{t}', f'v_and_b32 v{t+3}, 15, v0']
    for i in range(4):
        hi = pi[i] if isinstance(pi, list) else 4 * (((i >> 1) & 1) if pi == 'id' else (i & 1))
        d = dst.sub(i)
        L += [f'v_add_u32 {d}, {4*i}, v{t+1}', f'v_mul_u32_u24 {d}, {sstride}, {d}',
              f'v_or_b32 v{t+2}, {hi}, v{t}', f'v_lshlrev_b32 v{t+2}, 1, v{t+2}', f'v_xor_b32 v{t+2}, v{t+2}, v{t+3}']
        if slimit: L += [f'v_cmp_gt_u32 vcc, {slimit}, v{t+2}']
        L += [f'v_lshl_add_u32 {d}, v{t+2}, 4, {d}']
        if i: L += [f'v_subrev_u32 {d}, {i * 1024}, {d}']
        if slimit: L += [f'v_mov_b32 v{t+2}, 0x40000000', f'v_cndmask_b32 {d}, v{t+2}, {d}, vcc']
    return L
```

```python
from fw import *
from gemm import *
STAT, HF, UF, OF, GB, FL = 0, 4 << 20, 8 << 20, 16 << 20, 32 << 20, 40 << 20
WS_SIZE = 128 << 20
SHADOW = (64 << 20) + 128
LSTR = 2112
KNAME = 'recurrent_scan__mha_block_cached__mixer_token_mlp__prompt_kernel'
import math, struct
def f2h(x): return '0x%08x' % struct.unpack('<I', struct.pack('<f', x))[0]

KBASE, VBASE, QRING, FLAG = 0, 65536, 98304, 131072
MARGIN = 80.0
sWS, sWQ, sKC, sVC, sW1, sWN, sWO, sBB = ['s[%d:%d]' % (i, i + 3) for i in range(4, 36, 4)]
sOUT = sW1
sWAVE, sLDS, sCNT, sQW, sQA, sK, sV, sGW, sGA, sO, sU, sPF, sMODE, sROT = ['s%d' % i for i in range(36, 50)]
sKV0, sGW0, sGA0, sPF0, sT, sT2, sG2, sB = ['s%d' % i for i in range(50, 58)]
sC = 's[58:59]'
sSLOT, sIDX, sHEAD, sQ64, sST, sDT, sT3, sT4 = ['s%d' % i for i in range(60, 68)]
sX = 's[68:71]'
sQI, sQJ, sGI, sGJ = ['s72', 's73'], ['s74', 's75'], ['s76', 's77'], ['s78', 's79']
sNI, sNJ, sSI = sQI, sQJ, sGI
sW3, sA3, sSIG, sFO, sFU, sFW, sFG, sG, sR0, sR1, sSTR, sTG, sGRP, sP0, sROLE, sBN = ['s%d' % i for i in range(80, 96)]
sP1, sRDY = 's100', 's101'
sDBG, sQA2 = 's[72:75]', 's3'
XSLOT, CSB = [65536, 32768], 49152

vL16 = V(1)
vWq, vWg, vKd, vVd = V(2, 4), V(6, 4), V(10, 4), V(14, 2)
vKa, vVa, vWa = V(16, 4), V(20, 8), V(28, 8)
vPF, vDUM, vTMP = V(36), V(37), 38
vZERO, vONE, vFL, vX = V(42), V(43), V(252), V(253)
vL16b = vX
Q = V(44, 64)
QACC = V(108, 128)
S, T, P, NEGM, LS, ONES, vIDX = V(108, 8), V(116, 4), V(120, 64), V(184, 16), V(200, 16), V(216, 4), V(220)
BIAS = V(236, 16)
ACC3, XF, GF, SEL = V(108, 64), V(44, 64), V(172, 64), V(10, 6)
ONESQ, IDXQ, CS, vXd, vXa, vCw, vCr = V(44, 4), V(48), V(52, 8), V(60, 4), V(64, 2), V(66), V(68, 4)
O, KF, VF, GACT = A(0, 128), A(128, 32), A(160, 32), A(192, 64)

def Pf(tile, u, b, n=4): return P.sub((tile & 1) * 32 + b * 8 + u * 4, n)
def Qf(b, t): return Q.sub((b * 4 + t) * 4, 4)
def Kf(c, t): return KF.sub((c & 1) * 16 + t * 4, 4)
def Vf(e, u): return VF.sub((e & 3) * 8 + u * 4, 4)
def kread(tile, c, t): return ds_128(Kf(c, t), vKa.sub(t), (tile & 3) * 16384 + c * 4096)
def vread(tile, e, u, tt): return ds_tr(Vf(e, u).sub(2 * tt, 2), vVa.sub(e), (tile & 3) * 16384 + u * 8192 + tt * 4096)
def kdma(n):
    return [([salu(f's_add_u32 m0, {sLDS}, {KBASE + (n & 3) * 16384}')] if i == 0 else [],
             vload(f'buffer_load_dwordx4 {vKd.sub(i)}, {sKC}, {sK} offen offset:{i*1024} lds', tag=f'K{n}'),
             [salu(f's_add_u32 {sK}, {sK}, 16384')] if i == 3 else []) for i in range(4)]
def vdma(n):
    return [([salu(f's_add_u32 m0, {sLDS}, {VBASE + (n & 3) * 16384}')] if i == 0 else [],
             vload(f'buffer_load_dwordx4 {vVd.sub(i & 1)}, {sVC}, {sV} offen offset:{i*1024} lds', tag=f'V{n}'),
             [salu(f's_add_u32 {sV}, {sV}, 16384')] if i == 3 else []) for i in range(4)]
def flat(elems):
    o = []
    for pre, v, post in elems: o += pre + [v] + post
    return o
def rowsum(j, b): return Op(f'v_smfmac_f32_16x16x64_bf16 {LS.sub(4*b,4)}, {ONES}, {Pf(j, 0, b, 8)}, {vIDX}', 'mfma')

def att_iter(st, j, gn, opt):
    a = j + 1
    qk, pv = a <= 31, j >= 0
    t_ = vTMP
    def window(w):
        k = kdma(w + 4) if w + 4 <= 31 else (gn.window(w - 28)[:4] if w - 28 <= 2 else [])
        v = vdma(w + 3) if w + 3 <= 31 else gn.window(w - 29)[4:]
        return k, v
    kcur, vcur = window(j)
    kprev, vprev = window(j - 1) if j >= 0 else ([], [])
    dma = {11: kcur[0:1], 13: kcur[1:2], 15: kcur[2:3], 1: kprev[3:4], 3: vprev[0:1], 5: vprev[1:2], 7: vprev[2:3], 9: vprev[3:4]}
    dd = opt.get('dd', 0)
    if dd: dma = {11: kcur[0:2], 15: kcur[2:4], 3: vprev[0:2], 7: vprev[2:4]}
    if j == 31: dma = {}
    Z = P.sub(32, 4)
    mf_all, fill_all = [], []
    pend = []
    for n in range(16):
        c, b, e = n >> 2, n & 3, n >> 1
        m = [None] * 9
        f = [[] for _ in range(9)]
        sc = [[] for _ in range(9)]
        sc[0] += pend; pend = []
        Sn, Sp = S.sub((n & 1) * 4, 4), S.sub(((n + 1) & 1) * 4, 4)
        if qk:
            for t in range(4): m[t] = mfma(Sn, Kf(c, t), Qf(b, t), NEGM.sub(4 * b, 4) if t == 0 else Sn)
        for jj in range(2):
            bb = 2 * (n & 1) + jj
            Ob = O.sub((e * 4 + bb) * 4, 4)
            if pv:
                for u in range(2): m[4 + 2 * jj + u] = mfma(Ob, Vf(e, u), Pf(j, u, bb), Ob)
            else: m[5 + 2 * jj] = mfma(Ob, Z, Z, 0)
        if j == 31:
            if n == 0: m[0], m[2] = rowsum(j, 0), rowsum(j, 1)
            if n == 1: m[0], m[8] = rowsum(j, 2), rowsum(j, 3)
        elif b == 3: m[8] = rowsum(j, c) if pv else mfma(LS.sub(4 * c, 4), Z, Z, 0)
        pt, pn = (a, n - 1) if n > 0 else (j, 15)
        if 0 <= pt <= 31:
            pc, pb = pn >> 2, pn & 3
            for i in range(4): f[2 * i].append(valu(f'v_exp_f32 {T.sub(i)}, {Sp.sub(i)}'))
            f[3].append(valu(f'v_cvt_pk_bf16_f32 {Pf(pt, pc >> 1, pb).sub(2 * (pc & 1))}, {T.sub(0)}, {T.sub(1)}'))
            if not pv: f[7].append(salu('s_nop 0'))
        elif pt < 0: f[7].append(salu('s_nop 3'))
        pt, pn = (a, n - 2) if n > 1 else (j, 14 + n)
        if 0 <= pt <= 31:
            pc, pb = pn >> 2, pn & 3
            f[1].append(valu(f'v_cvt_pk_bf16_f32 {Pf(pt, pc >> 1, pb).sub(2 * (pc & 1) + 1)}, {T.sub(2)}, {T.sub(3)}'))
        kq = 16 * a + n + 5
        kt, kc, kk = kq >> 4, (kq >> 2) & 3, kq & 3
        if kt <= 31: f[5].insert(0, kread(kt, kc, kk))
        vq = 16 * j + n + 3
        vt, ve, vu = vq >> 4, (vq >> 1) & 7, vq & 1
        if 0 <= vt <= 31:
            g0, g1 = (1, 3) if (qk or n < 2) else (4, 6)
            f[g0].insert(0, vread(vt, ve, vu, 0)); f[g1].insert(0, vread(vt, ve, vu, 1))
        for k, (pre, v, post) in enumerate(dma.get(n, [])):
            sc[6] += pre; f[7 + k].append(v)
            if n == 15: f[8] += post
            else: pend += post
        if n == 10 and j <= 30:
            f[7].append(barrier([f'V{j+1}'] + ([f'K{j+2}'] if j + 2 <= 31 else [])))
        if opt.get('pf_w', 1) and 0 <= j < 28 and n == 2 and (j & 3) == 0:
            f[7].append(vload(f'buffer_load_dword {vDUM}, {vPF}, {sWN}, {sPF} offen'))
            pend.append(salu(f's_add_u32 {sPF}, {sPF}, 4096'))
        if j == 28 and n == 0: f[7] += [valu(f'v_and_b32 v{t_}, 15, v0'), valu(f'v_lshlrev_b32 v{t_}, 1, v{t_}')]
        if j == 28 and n == 2: f[7].append(flag_load(sFW))
        if j in (28, 29) and n in (4, 6, 8, 12):
            k = (j - 28) * 4 + (4, 6, 8, 12).index(n)
            f[7].append(vload(f'buffer_load_ushort {BIAS.sub(k)}, v{t_}, {sBB}, {sBN} offen offset:{32*k}', BIAS.sub(k)))
        if j == 29 and n == 13: f[5].append(valu(f'v_readfirstlane_b32 {sT}, {vFL}', rd=[vFL]))
        if j == 29 and n == 14: f[7] += [salu(f's_cmp_lt_u32 {sT}, {sTG}'), salu('s_cbranch_scc1 L2_wn'), salu('L2_wn_r:')]
        for g in range(9):
            ops = sc[g] + f[g]
            if m[g] is not None: mf_all.append(m[g]); fill_all.append(ops)
            elif fill_all: fill_all[-1] += ops
            else: st.ops(ops)
    assert not pend
    nxt = mfma(S.sub(0, 4), Kf(0, 0), Qf(0, 0), NEGM.sub(0, 4)) if a + 1 <= 31 else None
    st.gaps(mf_all, fill_all, nxt)

def negm_finish(a, M, margin):
    M2 = P.sub(20, 4)
    for p in ('16', '32'):
        for b in range(4): a(f'v_mov_b32 {M2.sub(b)}, {M.sub(b)}')
        for b in range(4): a(f'v_permlane{p}_swap_b32 {M2.sub(b)}, {M.sub(b)}')
        for b in range(4): a(f'v_max_f32 {M.sub(b)}, {M.sub(b)}, {M2.sub(b)}')
    for b in range(4):
        for i in range(2): a(f'v_sub_f32 {NEGM.sub(4*b+i)}, {f2h(-margin)}, {M.sub(b)}')
        a(f'v_mov_b64 {NEGM.sub(4*b+2,2)}, {NEGM.sub(4*b,2)}')

def act_store(st, NB, nt, fn, soffs, T0):
    a = st.raw
    k = 0
    for tt in range(nt):
        for b in range(NB):
            x = T0.sub((k & 1) * 8, 8); k += 1
            d = fn(x, tt, b)
            for i in range(4): a(f'v_cvt_pk_bf16_f32 {d.sub(i)}, {x.sub(2*i)}, {x.sub(2*i+1)}')
            st.op(vstore(f'buffer_store_dwordx4 {d}, {vL16}, {sWS}, {soffs[b >> 1][tt >> 1]} offen offset:{(tt & 1) * 2048 + (b & 1) * 1024} sc1'))

def signal(soff, sWS=sWS):
    return f's_mov_b64 exec, 1\nbuffer_atomic_add {vONE}, {vZERO}, {sWS}, {soff} offen sc1\ns_mov_b64 exec, -1'
def flag_load(soff, sWS=sWS):
    return vload(f'buffer_load_dword {vFL}, {vZERO}, {sWS}, {soff} offen sc1', vFL)
def spin(label, soff, target, sWS=sWS):
    return (f's_mov_b32 {sT2}, {-(1 << 20)}\n{label}:\nbuffer_load_dword {vFL}, {vZERO}, {sWS}, {soff} offen sc1\ns_add_u32 {sT2}, {sT2}, 1\ns_cbranch_scc1 {label}_x\n'
            f's_waitcnt vmcnt(0)\nv_readfirstlane_b32 {sT}, {vFL}\ns_nop 0\ns_cmp_lt_u32 {sT}, {target}\ns_cbranch_scc1 {label}\n{label}_x:\ns_waitcnt vmcnt(0)')
def rot_setup(srot, sw, sa, swi, sai, winc, ainc):
    L = f's_cmp_lg_u32 {srot}, 0\ns_cselect_b32 {sT}, -1, 1\ns_cselect_b32 {sT2}, 3, 1\n'
    L += f's_mul_i32 {swi[0]}, {sT}, {winc}\ns_mul_i32 {swi[1]}, {sT2}, {winc}\n'
    if sai: L += f's_mul_i32 {sai[0]}, {sT}, {ainc}\ns_mul_i32 {sai[1]}, {sT2}, {ainc}\n'
    L += f's_mul_i32 {sT}, {srot}, {winc}\ns_add_u32 {sw}, {sw}, {sT}\ns_mul_i32 {sT}, {srot}, {ainc}\ns_add_u32 {sa}, {sa}, {sT}'
    return L

def halfsum(regs_, tmp):
    L = []
    for m in ('quad_perm:[1,0,3,2]', 'quad_perm:[2,3,0,1]', 'row_half_mirror', 'row_mirror'):
        L.append('s_nop 1' if len(regs_) == 1 else 's_nop 0')
        for v in regs_: L.append(f'v_add_f32_dpp {v}, {v}, {v} {m} row_mask:0xf bank_mask:0xf')
    for k, v in enumerate(regs_): L.append(f'v_mov_b32 {tmp.sub(k)}, {v}')
    L.append('s_nop 1')
    for k, v in enumerate(regs_): L.append(f'v_permlane16_swap_b32 {tmp.sub(k)}, {v}')
    for k, v in enumerate(regs_): L.append(f'v_add_f32 {v}, {v}, {tmp.sub(k)}')
    return L
def layernorm(X, Y, D, SC, two_pass):
    L = []
    M, Vv, TM = SC.sub(0, 2), SC.sub(2, 2), SC.sub(4, 2)
    rbf = lambda v: [f'v_cvt_pk_bf16_f32 {v}, {v}, {v}', f'v_lshlrev_b32 {v}, 16, {v}']
    sub = lambda i: f'v_pk_add_f32 {D.sub(2*i,2)}, {X.sub(2*i,2)}, {M} op_sel_hi:[1,0] neg_lo:[0,1] neg_hi:[0,1]'
    def sq(Z):
        o = [f'v_pk_mul_f32 {Vv}, {Z.sub(0,2)}, {Z.sub(0,2)}', f'v_pk_mul_f32 {TM}, {Z.sub(2,2)}, {Z.sub(2,2)}']
        for i in range(2, 16): o.append(f'v_pk_fma_f32 {[Vv, TM][i & 1]}, {Z.sub(2*i,2)}, {Z.sub(2*i,2)}, {[Vv, TM][i & 1]}')
        return o + [f'v_pk_add_f32 {Vv}, {Vv}, {TM}', f'v_add_f32 {Vv.sub(0)}, {Vv.sub(0)}, {Vv.sub(1)}']
    for i in range(8): L.append(f'v_pk_add_f32 {D.sub(2*i,2)}, {X.sub(2*i,2)}, {X.sub(2*i+16,2)}')
    for w in (4, 2, 1):
        for i in range(w): L.append(f'v_pk_add_f32 {D.sub(2*i,2)}, {D.sub(2*i,2)}, {D.sub(2*(i+w),2)}')
    L.append(f'v_add_f32 {M.sub(0)}, {D.sub(0)}, {D.sub(1)}')
    if two_pass:
        L += halfsum([M.sub(0)], TM) + [f'v_mul_f32 {M.sub(0)}, 0x3a800000, {M.sub(0)}']
        L += [sub(i) for i in range(16)] + sq(D) + halfsum([Vv.sub(0)], TM) + [f'v_mul_f32 {Vv.sub(0)}, 0x3a800000, {Vv.sub(0)}']
    else:
        L += sq(X) + ['s_nop 0'] + halfsum([M.sub(0), Vv.sub(0)], TM)
        L += [f'v_mul_f32 {M.sub(0)}, 0x3a800000, {M.sub(0)}', f'v_mul_f32 {Vv.sub(0)}, 0x3a800000, {Vv.sub(0)}',
              f'v_fma_f32 {Vv.sub(0)}, -{M.sub(0)}, {M.sub(0)}, {Vv.sub(0)}', f'v_max_f32 {Vv.sub(0)}, 0, {Vv.sub(0)}']
    v = Vv.sub(0)
    L += rbf(M.sub(0)) + rbf(v) + [f'v_add_f32 {v}, 0x3727c5ac, {v}'] + rbf(v) + [f'v_sqrt_f32 {v}, {v}']
    L += [sub(i) for i in range(16)] + rbf(v) + [f'v_rcp_f32 {v}, {v}']
    L += [f'v_cvt_pk_bf16_f32 {Y.sub(i)}, {D.sub(2*i)}, {D.sub(2*i+1)}' for i in range(16)]
    L += unpack(D, Y)
    L += [f'v_pk_mul_f32 {D.sub(2*i,2)}, {D.sub(2*i,2)}, {Vv} op_sel_hi:[1,0]' for i in range(16)]
    L += [f'v_cvt_pk_bf16_f32 {Y.sub(i)}, {D.sub(2*i)}, {D.sub(2*i+1)}' for i in range(16)]
    return L
def unpack(X, Y):
    L = []
    for i in range(Y.n): L += [f'v_lshlrev_b32 {X.sub(2*i)}, 16, {Y.sub(i)}', f'v_and_b32 {X.sub(2*i+1)}, 0xffff0000, {Y.sub(i)}']
    return L

def q_epilogue(st, SR, bias=False):
    a = st.raw
    sw = lambda d: a(f'v_permlane16_swap_b32 {d.sub(0)}, {d.sub(2)}\nv_permlane16_swap_b32 {d.sub(1)}, {d.sub(3)}')
    for tt in range(4):
        for b in range(4):
            r = SR.sub(2 * b, 2)
            for jj in range(2):
                s_ = QACC.sub(((2 * tt + jj) * 4 + b) * 4, 4)
                for h in range(2): st.op(valu(f'v_pk_mul_f32 {s_.sub(2*h,2)}, {s_.sub(2*h,2)}, {r} op_sel:[0,1] op_sel_hi:[1,1]', rd=[r]))
            for jj in range(2):
                s_ = QACC.sub(((2 * tt + jj) * 4 + b) * 4, 4); c_ = Qf(2 + jj, tt)
                for h in range(2): st.op(valu(f'v_pk_fma_f32 {s_.sub(2*h,2)}, {c_.sub(2*h,2)}, {r}, {s_.sub(2*h,2)} op_sel_hi:[1,0,1]', rd=[c_]))
        for b in range(4):
            d = Qf(b, tt)
            for jj in range(2):
                s_ = QACC.sub(((2 * tt + jj) * 4 + b) * 4, 4)
                a(f'v_cvt_pk_bf16_f32 {d.sub(2*jj)}, {s_.sub(0)}, {s_.sub(1)}\nv_cvt_pk_bf16_f32 {d.sub(2*jj+1)}, {s_.sub(2)}, {s_.sub(3)}')
        for b in range(4): sw(Qf(b, tt))
    if bias:
        for e in range(8):
            x = QACC.sub(16 * e, 16)
            for h in range(2):
                st.op(valu(f'v_lshlrev_b32 {x.sub(2*h)}, 16, {BIAS.sub(2*e+h)}', rd=[BIAS.sub(2 * e + h)]))
                a(f'v_and_b32 {x.sub(2*h+1)}, 0xffff0000, {BIAS.sub(2*e+h)}')
            for i in range(2, 8): a(f'v_mov_b64 {x.sub(2*i,2)}, {x.sub(2*(i&1),2)}')

def gen_k2(opt):
    st = Stream(); a = st.raw
    far = []
    A0, NYY = opt.get('a0', 6), opt.get('nyy', 8)
    NSY = 2 * (A0 + NYY)
    t = vTMP
    a(f'{KNAME}:')
    a('s_cmp_ge_u32 s2, 256\ns_cbranch_scc1 L2_end')
    sp = Stamps(opt.get('stamp'), 1, 254)
    sp.stamp(st)
    RAW, LX, LD, SC, HT = V(108, 16), V(124, 32), V(156, 32), V(188, 6), V(196, 16)
    vLg, vLw, vHr, vHs, vSt, vZf, SV = V(212), V(213), V(214), V(215), V(216), V(217), V(218, 2)
    a(f"""s_load_dwordx2 s[68:69], s[0:1], 0
s_load_dwordx2 s[8:9], s[0:1], 24
s_load_dwordx2 s[4:5], s[0:1], 96
s_lshr_b32 {sROLE}, s2, 7
s_cmp_eq_u32 {sROLE}, 0
s_cselect_b32 {sT}, 80, 48
s_cselect_b32 {sT2}, 64, 32
s_cselect_b32 {sT3}, 72, 56
s_load_dwordx2 s[20:21], s[0:1], {sT}
s_load_dwordx2 s[24:25], s[0:1], {sT2}
s_load_dwordx2 s[32:33], s[0:1], {sT3}
s_load_dwordx2 s[12:13], s[0:1], 8
s_load_dwordx2 s[16:17], s[0:1], 16
s_load_dwordx2 s[28:29], s[0:1], 32
s_load_dwordx2 s[72:73], s[0:1], 88
s_mov_b32 s22, 14680064
s_cselect_b32 s26, s22, 8388608
s_cselect_b32 s22, 4194304, s22
s_movk_i32 s34, 7168
s_cselect_b32 s34, 4096, s34
v_lshrrev_b32 v{t}, 6, v0
v_lshrrev_b32 v{t+1}, 5, v0
v_readfirstlane_b32 {sWAVE}, v{t}
v_and_b32 v{t+2}, 31, v0
v_lshlrev_b32 v{t+2}, 4, v{t+2}
v_lshl_add_u32 {vLg}, v{t+1}, 11, v{t+2}
v_mul_u32_u24 {vLw}, {LSTR}, v{t+1}
v_add_u32 {vLw}, {vLw}, v{t+2}
s_lshl_b32 {sT4}, s2, 14
s_mov_b32 {sSTR}, 8192""")
    for s, size in ((68, 4194304), (8, 8388608), (4, WS_SIZE), (12, 16777216), (16, 16777216), (20, 0), (24, 0), (28, 8388608), (32, 0), (72, 256)):
        if size: a(f's_mov_b32 s{s+2}, {size}')
        a(f's_mov_b32 s{s+3}, 0x20000')
    a(f"""s_bfe_u32 {sIDX}, s2, 0x40003
s_and_b32 {sSLOT}, s2, 7
s_lshr_b32 {sHEAD}, {sIDX}, 3
s_lshl_b32 {sQ64}, {sSLOT}, 1
s_add_u32 {sHEAD}, {sHEAD}, {sQ64}
s_cmp_lt_u32 {sHEAD}, {A0}
s_cselect_b32 {sT}, 0, {NYY}
s_cmp_lt_u32 {sHEAD}, {NYY}
s_cselect_b32 {sT2}, {A0}, 16
s_cselect_b32 {sGRP}, 1, 2
s_cmp_eq_u32 {sROLE}, 0
s_cselect_b32 {sT}, {sT}, {sT2}
s_cselect_b32 {sGRP}, 0, {sGRP}
s_add_u32 {sHEAD}, {sHEAD}, {sT}
s_and_b32 {sQ64}, {sIDX}, 7
s_lshl_b32 {sQ64}, {sQ64}, 2
s_add_u32 {sQ64}, {sQ64}, {sWAVE}
s_lshl_b32 {sLDS}, {sWAVE}, 12
s_lshl_b32 {sQW}, {sHEAD}, 8
s_lshl_b32 {sQA}, {sQ64}, 17
s_add_u32 {sQA2}, {sQA}, 65536
s_cmp_lt_u32 {sIDX}, 14
s_cselect_b32 {sG2}, {sROLE}, 0
s_waitcnt lgkmcnt(0)""")
    for i in range(4): st.op(vload(f'buffer_load_dwordx4 {RAW.sub(4*i,4)}, {vLg}, {sX}, {sT4} offen offset:{512*i}', RAW.sub(4 * i, 4)))
    accq = lambda e, b: QACC.sub((e * 4 + b) * 4, 4)
    acc2 = lambda e, b: Q.sub((e * 2 + b) * 4, 4)
    acc3 = lambda e, b: ACC3.sub((e * 2 + b) * 4, 4)
    gq = GemmX('Q', 16, 4, accq, A(128, 128), A(0, 32), vWa, 'id', sWQ, vWq, sQW, 8192, QRING, sLDS, sX, None, sQA, lead=3, uni=True, dist=2)
    gq.xsetup(XSLOT, vXd, vXa, sQA2, ONESQ, IDXQ, CS)
    gq.bar_rd = [('x', 0)]
    g2 = Gemm('G', 32, 4, accq, A(128, 128), A(0, 32), vWa, 'id', sW1, vWg, sW3, 0, QRING, sLDS, sWS, vL16, sA3, avoff2=vL16b, lead=3, uni=True, winc=sGI, ainc=sGJ, dist=2, asuf=' sc1')
    g4 = Gemm('N', 56, 2, acc2, GACT, KF, vWa, 'blk', sWN, vWq, sGW, 0, KBASE, sLDS, sWS, vL16, sGA, swap=True, asuf=' sc1', winc=sNI, ainc=sNJ)
    g3y = Gemm('N', NSY, 2, acc2, GACT, KF, vWa, 'blk', sWN, vWq, sGW, 0, KBASE, sLDS, sWS, vL16, sGA, asuf=' sc1', winc=sNI, ainc=sNJ)
    g3s = Gemm('S', 64 - NSY, 2, acc3, GACT, KF, vVa, 'blk', sWO, vWg, sW3, 0, VBASE, sLDS, sWS, vL16, sA3, asuf=' sc1', winc=sSI, ainc=sNJ)
    a('\n'.join(wvoff_setup(vWq, sSTR, 'id', t)))
    w0 = gq.window(0)
    gq.issue(st, w0[:4])
    a(f'v_bfe_u32 v{t}, v0, 3, 3\nv_and_b32 v{t+1}, 7, v0\nv_lshrrev_b32 v{t+2}, 1, v{t}\nv_xor_b32 v{t+1}, v{t+1}, v{t+2}\nv_lshlrev_b32 v{t+1}, 4, v{t+1}\nv_lshl_add_u32 {vXd.sub(0)}, v{t}, 11, v{t+1}')
    a(f'v_xor_b32 {vXd.sub(1)}, 64, {vXd.sub(0)}\nv_add_u32 {vXd.sub(1)}, {16384-1024}, {vXd.sub(1)}\nv_add_u32 {vXd.sub(2)}, {2*(16384-1024)}, {vXd.sub(0)}\nv_add_u32 {vXd.sub(3)}, {2*(16384-1024)}, {vXd.sub(1)}')
    gq.issue(st, w0[4:])
    a(f'v_and_b32 {vL16}, 63, v0\nv_lshlrev_b32 {vPF}, 6, {vL16}\nv_lshlrev_b32 {vL16}, 4, {vL16}\nv_cmp_eq_u32 vcc, 3, v{t}\nv_add_u32 v{t+1}, {SHADOW}, {vL16}\nv_lshlrev_b32 {vFL}, 7, v0\nv_cndmask_b32 {vL16}, {vL16}, v{t+1}, vcc\nv_add_u32 {vL16b}, 4096, {vL16}')
    if opt.get('pf_wq', 1):
        a(f's_lshl_b32 {sT}, s2, 15')
        st.op(vload(f'buffer_load_dword {vDUM}, {vFL}, {sWQ}, {sT} offen'))
    if opt.get('pf_code', 1):
        a(f's_getpc_b64 s[66:67]\nL2_pc:\ns_lshr_b32 {sT}, s2, 3\ns_lshl_b32 {sT}, {sT}, 2\ns_add_u32 {sT}, {sT}, {sWAVE}\ns_mul_i32 {sT}, {sT}, 640\ns_min_u32 {sT}, {sT}, L2_redo-L2_pc\ns_add_u32 s66, s66, {sT}\ns_addc_u32 s67, s67, 0\nv_lshrrev_b32 v{t}, 2, {vPF}')
        st.op(vload(f'global_load_dword {vDUM}, v{t}, s[66:67]'))
    a('\n'.join(waddr_setup(vWa, QRING, 'id', t)))
    a(f's_lshl_b32 {sROT}, {sWAVE}, 6')
    for e in range(8): a(f'v_xor_b32 {vWa.sub(e)}, {sROT}, {vWa.sub(e)}')
    a(f"""v_and_b32 v{t}, 15, v0
v_bfe_u32 v{t+1}, v0, 4, 2
v_lshrrev_b32 v{t+2}, 1, v{t}
v_xor_b32 v{t+2}, v{t+2}, v{t+1}
v_lshlrev_b32 v{t+2}, 4, v{t+2}
v_lshl_add_u32 v{t+2}, v{t}, 7, v{t+2}
s_add_u32 {sT}, {sLDS}, {min(XSLOT)}
v_add_u32 {vXa.sub(0)}, {sT}, v{t+2}
v_xor_b32 {vXa.sub(1)}, 64, {vXa.sub(0)}
s_add_u32 {sT}, {sLDS}, {CSB}
v_lshl_add_u32 {vCw}, v{t}, 2, {sT}
v_lshl_add_u32 {vCr.sub(0)}, v{t+1}, 4, {sT}
v_xor_b32 {vCr.sub(1)}, 0x1000, {vCr.sub(0)}
v_xor_b32 {vCr.sub(2)}, 0x2000, {vCr.sub(0)}
v_xor_b32 {vCr.sub(3)}, 0x3000, {vCr.sub(0)}
v_and_b32 {IDXQ}, 1, v0
v_sub_u32 {IDXQ}, 0, {IDXQ}
v_and_b32 {IDXQ}, 0xaaaaaaaa, {IDXQ}
v_or_b32 {IDXQ}, 0x44444444, {IDXQ}
v_mov_b32 {vZERO}, 0
v_mov_b32 {vONE}, 1
v_bfe_u32 {vHr}, v0, 2, 2
v_mul_u32_u24 {vHr}, {LSTR}, {vHr}
v_lshrrev_b32 v{t+2}, 4, v0
v_lshl_add_u32 {vHr}, v{t+2}, 5, {vHr}
v_and_b32 v{t+2}, 3, v0
v_lshl_add_u32 {vHr}, v{t+2}, 3, {vHr}
v_lshlrev_b32 {vHs}, 10, v{t+1}
v_lshl_add_u32 {vHs}, v{t}, 4, {vHs}
s_and_b32 {sT}, s2, 3
s_lshl_b32 {sT}, {sT}, 8
v_add_u32 {vHs}, {sT}, {vHs}
v_bfe_u32 v{t+2}, {vHs}, 7, 3
v_cmp_eq_u32 vcc, 3, v{t+2}
v_add_u32 v{t+3}, {SHADOW}, {vHs}
s_lshr_b32 {sT2}, s2, 2
v_cndmask_b32 {vHs}, {vHs}, v{t+3}, vcc
s_lshl_b32 {sT2}, {sT2}, 12
s_lshl_b32 {sT}, {sWAVE}, 18
s_add_u32 {sT2}, {sT2}, {sT}
s_add_u32 {sT2}, {sT2}, {HF}
v_and_b32 v{t+2}, 31, v0
v_cmp_eq_u32 vcc, 0, v{t+2}
v_lshrrev_b32 {vSt}, 2, v0
v_mov_b32 v{t+3}, 0x40000000
v_cndmask_b32 {vSt}, v{t+3}, {vSt}, vcc
v_cmp_gt_u32 vcc, 0x80, v0
v_lshlrev_b32 {vZf}, 2, v0
s_lshl_b32 {sT3}, s2, 7
v_cndmask_b32 {vZf}, v{t+3}, {vZf}, vcc
s_lshl_b32 {sT4}, s2, 9
s_add_u32 {sT4}, {sT4}, {FL}
s_bfe_u32 {sSIG}, s2, 0x20004
s_and_b32 {sSIG}, {sSIG}, {opt.get('sigsp', 3)}
s_add_u32 {sSIG}, {sSIG}, 3
s_bfe_u32 {sFU}, s2, 0x10003
s_lshl_b32 {sFU}, {sFU}, 7
s_mov_b32 {sMODE}, 0
s_cmp_eq_u32 {sWAVE}, 0
s_cselect_b32 {sSIG}, {sSIG}, 0
s_cselect_b32 {sRDY}, 0x80, 0
s_cselect_b32 {sP0}, 0, 0x1000""")
    if opt.get('xq') == 'nopoll': a(f's_mov_b32 {sRDY}, 0\ns_mov_b32 {sP0}, 0x1000')
    if opt.get('xq') == 'nosig': a(f's_mov_b32 {sRDY}, 0\ns_mov_b32 {sP0}, 0x1000\ns_mov_b32 {sSIG}, 0')
    assert STAT == 0
    for i in range(4): a(f'v_mov_b32 {ONESQ.sub(i)}, 0x3f803f80\nv_mov_b64 {CS.sub(2*i,2)}, 0')
    cs = math.log2(math.e) / math.sqrt(128.0)
    st.op(valu(unpack(LX, RAW)[0], rd=[RAW]))
    sp.stamp(st)
    ln = unpack(LX, RAW)[1:] + layernorm(LX, RAW, LD, SC, True)
    ln += [f'v_mul_f32 {SV.sub(1)}, {f2h(cs)}, {SC.sub(2)}', f'v_mul_f32_e64 {SV.sub(0)}, -{SC.sub(0)}, {SV.sub(1)}']
    ln += [vstore(f'buffer_store_dwordx2 {SV}, {vSt}, {sWS}, {sT3} offen sc1'), vstore(f'buffer_store_dword {vZERO}, {vZf}, {sWS}, {sT4} offen sc1')]
    ln += unpack(LX, RAW) + layernorm(LX, RAW, LD, SC, False)
    rest = gq.window(1) + gq.window(2)[:2]
    step = len(ln) // (len(rest) + 1)
    for k, x in enumerate(ln):
        if isinstance(x, Op): st.op(x)
        else: a(x)
        if k % step == step - 1 and rest: gq.issue(st, [rest.pop(0)])
    assert not rest
    for i in range(4): st.op(Op(f'ds_write_b128 {vLw}, {RAW.sub(4*i,4)} offset:{512*i}', 'ds'))
    zq = [f'v_mov_b64 {QACC.sub(2*i,2)}, 0' for i in range(64)]
    a('\n'.join(zq[8:44]))
    st.op(barrier(['Q0'], lg0=True))
    for i in range(4):
        for tt in range(2): st.op(ds_tr(HT.sub(4 * i + 2 * tt, 2), vHr, 512 * i + 4 * LSTR * tt))
    a('\n'.join(zq[:8] + zq[56:]))
    for i in range(4):
        st.op(vstore(f'buffer_store_dwordx4 {HT.sub(4*i,4)}, {vHs}, {sWS}, {sT2} offen sc1', rd=[HT.sub(4 * i, 4)]))
        a(f's_add_u32 {sT2}, {sT2}, {1 << 20}')
        st.ops(gq.xreads(0, i))
    st.ops(gq.reads(0))
    a('\n'.join(zq[44:56]))
    st.ops(gq.reads(1))
    if opt.get('pf_w1', 1):
        a(f's_cmp_lg_u32 {sG2}, {sROLE}\ns_cbranch_scc1 L2_pf\nL2_pf_r:')
        pfl = '\n'.join(f'buffer_load_dword {vDUM}, {vFL}, {sW1}, {sT} offen\ns_add_u32 {sT}, {sT}, 524288' for _ in range(4))
        far.append(f"""L2_pf:
s_waitcnt vmcnt(0)
s_barrier
s_cmp_eq_u32 {sSIG}, 0
s_cbranch_scc1 L2_pf0
{signal(sFU, sDBG)}
s_mov_b32 {sSIG}, 0
L2_pf0:
s_sub_u32 {sT}, {sIDX}, 14
s_lshl_b32 {sT}, {sT}, 3
s_add_u32 {sT}, {sT}, {sSLOT}
s_lshl_b32 {sT}, {sT}, 15
s_mov_b32 {sCNT}, -7
L2_pf1:
{pfl}
s_add_u32 {sCNT}, {sCNT}, 1
s_cbranch_scc0 L2_pf1
s_waitcnt vmcnt(0)
s_branch L2_pf_r""")
    sp.stamp(st)
    for k in range(4): far.append(f'L2_sl{k}:\n{signal(sFU, sDBG)}\ns_branch L2_sl{k}_r')
    def qx(s, e):
        if e == 2: return {3: [salu(f's_add_u32 {sMODE}, {sMODE}, 1')], 7: [salu(f's_cmp_eq_u32 {sMODE}, {sSIG}'), salu(f's_cbranch_scc1 L2_sl{s % 4}'), salu(f'L2_sl{s % 4}_r:')]}
        return {}
    gq.loop(st, 'L2_q', sCNT, extra=qx)
    a(f's_cmp_lg_u32 {sG2}, 0\ns_cbranch_scc1 L2_G')
    sg = st.fork(); spg = sp.n
    def q_last_extra(s_, SR, nm):
        ld = f'buffer_load_dword v75, v74, {sDBG}, {sP0} offen sc1'
        far.append(f'{nm}:\ns_mov_b32 {sCNT}, {-(1 << 20)}\n{nm}1:\n{ld}\ns_add_u32 {sCNT}, {sCNT}, 1\ns_cbranch_scc1 {nm}_x\ns_sleep 8\ns_waitcnt vmcnt(0)\n'
                   f'v_cmp_gt_u32 vcc, {sRDY}, v75\ns_nop 4\ns_cbranch_vccnz {nm}1\n{nm}_x:\ns_waitcnt vmcnt(0)\ns_branch {nm}_r')
        def f(s, e):
            if s == 12 and e == 2: return {3: [valu('v_and_b32 v74, 1, v0'), valu('v_lshlrev_b32 v74, 7, v74')], 7: [vload(ld, V(75))]}
            if s == 13 and e == 5: return {1: [valu(f'v_cmp_gt_u32 vcc, {sRDY}, v75', rd=[V(75)])], 5: [salu(f's_cbranch_vccnz {nm}'), salu(f'{nm}_r:')]}
            if s == 12 and e == 0: return {3: [valu(f'v_bfe_u32 v72, v0, 3, 1'), valu(f'v_and_b32 v73, 7, v0')], 7: [valu('v_lshlrev_b32 v72, 7, v72'), valu('v_lshl_add_u32 v72, v73, 3, v72')]}
            if s == 12 and e == 1: return {3: [salu(f's_lshl_b32 {sP1}, {sQ64}, 10')]}
            if s == 14 and e in (5, 6):
                return {g: [vload(f'buffer_load_dwordx2 {SR.sub(2*n,2)}, v72, {sWS}, {sP1} offen offset:{256*n} sc1', SR.sub(2 * n, 2))] for g, n in ((1, 2 * (e - 5)), (5, 2 * (e - 5) + 1))}
            if s == 15 and e == 3:
                return {3: [valu(f'v_add_f32 {CS.sub(4*k)}, {CS.sub(4*k)}, {CS.sub(4*k+1)}') for k in range(2)],
                        7: [Op(f'ds_write2_b32 {vCw}, {CS.sub(0)}, {CS.sub(4)} offset0:0 offset1:16', 'ds', wr=[('x', 0)])]}
            if s == 15 and e == 6: s_.push([ds_128(Qf(2 + (k & 1), k >> 1), vCr.sub(k >> 1), 64 * (k & 1)) for k in range(8)])
            return {}
        return f

    su_kv = f's_lshl_b32 {sKV0}, {sHEAD}, 19\ns_mov_b32 {sK}, {sKV0}\ns_mov_b32 {sV}, {sKV0}\n'
    su_kv += f'v_bfe_u32 v{t}, v0, 4, 2\nv_lshrrev_b32 v{t+1}, 6, v0\nv_lshl_add_u32 v{t+1}, v{t+1}, 4, v{t}\nv_lshlrev_b32 v{t+1}, 8, v{t+1}\nv_and_b32 v{t+2}, 15, v0\n'
    for i in range(4):
        su_kv += f'v_or_b32 v{t+3}, {4*i}, v{t}\nv_xor_b32 v{t+3}, v{t+3}, v{t+2}\nv_lshl_add_u32 {vKd.sub(i)}, v{t+3}, 4, v{t+1}\n'
    for i in range(2):
        su_kv += f'v_or_b32 v{t+3}, {4*i}, v{t}\nv_lshlrev_b32 v{t+3}, 1, v{t+3}\nv_xor_b32 v{t+3}, v{t+3}, v{t+2}\nv_lshl_add_u32 {vVd.sub(i)}, v{t+3}, 4, v{t+1}\n'
    su_kv += f'v_and_b32 v{t+1}, 1, v{t}\nv_lshlrev_b32 v{t+1}, 1, v{t+1}\nv_lshrrev_b32 v{t+3}, 1, v{t}\nv_or_b32 v{t+1}, v{t+1}, v{t+3}\n'
    su_kv += f's_lshl_b32 {sT}, {sWAVE}, 2\nv_xor_b32 v{t+1}, {sT}, v{t+1}\nv_xor_b32 v{t+1}, v{t+1}, v{t+2}\nv_lshlrev_b32 v{t+2}, 8, v{t+2}\n'
    for i in range(4):
        su_kv += f'v_xor_b32 v{t+3}, {4*i}, v{t+1}\nv_lshl_add_u32 {vKa.sub(i)}, v{t+3}, 4, v{t+2}\n'
    su_kv += '\n'.join(waddr_setup(vVa, VBASE, 'blk', t))
    su_g2 = f"""s_and_b32 {sT3}, {sSLOT}, 1
s_lshl_b32 {sT3}, {sT3}, 1
s_and_b32 {sT}, {sIDX}, 1
s_add_u32 {sT3}, {sT3}, {sT}
s_lshl_b32 {sT}, {sT3}, 8
s_add_u32 {sFU}, {sT}, {FL + 6144}
s_lshr_b32 {sT}, {sSLOT}, 1
s_mul_i32 {sT}, {sT}, 7
s_lshr_b32 {sT4}, {sIDX}, 1
s_add_u32 {sT}, {sT}, {sT4}
s_add_u32 {sT4}, {sT4}, {sIDX}
s_and_b32 {sT4}, {sT4}, {opt.get('rotg', 1)}
s_lshl_b32 {sW3}, {sT}, 8
s_mov_b32 {sB}, {sW3}
s_lshl_b32 {sU}, {sT}, 13
s_lshl_b32 {sT}, {sT3}, 2
s_add_u32 {sT}, {sT}, {sWAVE}
s_lshl_b32 {sA3}, {sT}, 18
s_add_u32 {sA3}, {sA3}, {HF}
s_mul_i32 {sT}, {sT}, {2*112*2048}
s_add_u32 {sU}, {sU}, {sT}
s_add_u32 {sU}, {sU}, {UF}
s_movk_i32 {sSTR}, 7168
""" + rot_setup(sT4, sW3, sA3, sGI, sGJ, 64 * 7168, 8192) + '\n' + '\n'.join(wvoff_setup(vWg, sSTR, 'id', t))
    su_g2 += f'\nv_bfe_u32 {vFL}, v0, 4, 2\nv_lshlrev_b32 {vFL}, 3, {vFL}'
    su_n = f"""s_lshl_b32 {sO}, {sQ64}, 19
s_lshl_b32 {sT}, {sHEAD}, 13
s_add_u32 {sO}, {sO}, {sT}
s_add_u32 {sO}, {sO}, {OF}
s_lshl_b32 {sT2}, {sGRP}, 3
s_and_b32 {sT}, {sIDX}, 7
s_add_u32 {sT}, {sT}, {sT2}
s_lshl_b32 {sT}, {sT}, 8
s_add_u32 {sFO}, {sT}, {FL}
s_and_b32 {sST}, {sSLOT}, 3
s_lshl_b32 {sST}, {sST}, 2
s_and_b32 {sT}, {sIDX}, 3
s_add_u32 {sST}, {sST}, {sT}
s_and_b32 {sDT}, {sSLOT}, 4
s_lshr_b32 {sT}, {sIDX}, 2
s_add_u32 {sDT}, {sDT}, {sT}
s_lshl_b32 {sT}, {sST}, 3
s_add_u32 {sT}, {sT}, {sDT}
s_lshl_b32 {sT}, {sT}, 2
s_add_u32 {sT}, {sT}, {sWAVE}
s_lshl_b32 {sG}, {sT}, 13
s_add_u32 {sG}, {sG}, {GB}
s_lshl_b32 {sT}, {sT}, 7
s_add_u32 {sFG}, {sT}, {FL + 8192}
s_lshl_b32 {sT}, {sIDX}, 3
s_add_u32 {sT}, {sT}, {sSLOT}
s_lshl_b32 {sT}, {sT}, 2
s_add_u32 {sT}, {sT}, {sWAVE}
s_mul_i32 {sPF0}, {sT}, 28672
s_mov_b32 {sMODE}, 0
s_lshl_b32 {sT}, {sDT}, 2
s_add_u32 {sT}, {sT}, {sWAVE}
s_mul_i32 {sT}, {sT}, {112*2048}
s_add_u32 {sT}, {sT}, {UF}
s_lshl_b32 {sT2}, {sST}, 2
s_add_u32 {sT2}, {sT2}, {sWAVE}
s_lshl_b32 {sR0}, {sT2}, 16
s_lshl_b32 {sT2}, {sT2}, 18
s_add_u32 {sT2}, {sT2}, {OF}
s_lshl_b32 {sT3}, {sDT}, 8
s_add_u32 {sR0}, {sR0}, {sT3}
s_add_u32 {sR1}, {sR0}, 32768
s_lshl_b32 {sT4}, {sST}, 8
s_lshr_b32 {sFW}, {sDT}, 1
s_add_u32 {sFW}, {sFW}, 24
s_lshr_b32 {sTG}, {sST}, 1
s_cmp_eq_u32 {sROLE}, 0
s_cselect_b32 {sGA0}, {sT}, {sT2}
s_cselect_b32 {sGW0}, {sT4}, {sT3}
s_cselect_b32 {sBN}, {sT4}, 0x10000
s_cselect_b32 {sFW}, {sFW}, {sTG}
s_cselect_b32 {sTG}, 28, 16
s_lshl_b32 {sFW}, {sFW}, 8
s_add_u32 {sFW}, {sFW}, {FL}
s_cmp_eq_u32 {sWAVE}, 0
s_cselect_b32 {sSIG}, {sG2}, 0
s_mul_i32 {sSIG}, {sSIG}, -7
s_lshr_b32 {sSTR}, 4096, {sROLE}
s_lshl_b32 {sT3}, {sSTR}, 6
s_add_u32 {sROT}, {sST}, {sDT}
s_and_b32 {sROT}, {sROT}, {opt.get('rot', 1)}
"""
    su_n2 = rot_setup(sROT, sGW0, sGA0, sNI, sNJ, sT3, 4096) + '\n' + '\n'.join(wvoff_setup(vWq, sSTR, 'blk', t))
    su_n2 += f'\nv_mov_b32 v{t+1}, {FLAG}'
    pre_kv = kdma(0) + kdma(1) + vdma(0) + vdma(1) + kdma(2)
    kvtail = lambda i: pre_kv[i * 12:(i + 1) * 12]
    def last_before_att(g, s_, pre, more=None):
        n = g.nst
        def ex(s, e):
            if s == n - 4 and e == 0: s_.push(parse(su_kv) + parse(pre) + parse(su_n))
            if s == n - 3 and e == 6: assert len(s_.q) <= len(parse(su_n)) + 40, len(s_.q)
            if s == n - 2 and e == 0: s_.push(parse(su_n2))
            if s == n - 1 and e == 6: assert not s_.q
            r = more(s, e) if more else {}
            if s == n - 1 and e == 6:
                s_.push([kread(0, 0, tt) for tt in range(4)] + [kread(0, 1, 0), Op(f'ds_write_b32 v{t+1}, {vZERO}', 'ds')])
                s_.push([valu(f'v_subrev_u32 {vWa.sub(e_)}, {VBASE - KBASE}, {vVa.sub(e_)}') for e_ in range(8)])
            return r
        g.last(s_, kvtail, ex, last_bar=['K0'])
        s_.flush()
    last_before_att(gq, st, '', q_last_extra(st, BIAS.sub(0, 8), 'L2_wa'))
    sp.stamp(st)
    q_epilogue(st, BIAS.sub(0, 8))
    sp.stamp(st); sp.stamp(st)
    a('L2_join:')
    pre = [f'v_mov_b32 {ONES.sub(i)}, 0x3f803f80' for i in range(4)]
    pre += f'v_and_b32 {vIDX}, 1, v0\nv_sub_u32 {vIDX}, 0, {vIDX}\nv_and_b32 {vIDX}, 0xaaaaaaaa, {vIDX}\nv_or_b32 {vIDX}, 0x44444444, {vIDX}'.split('\n')
    M = P.sub(16, 4)
    mx = lambda b: [valu(f'v_max3_f32 {M.sub(b)}, {P.sub(4*b)}, {P.sub(4*b+1)}, {P.sub(4*b+2)}'), valu(f'v_max_f32 {M.sub(b)}, {M.sub(b)}, {P.sub(4*b+3)}')]
    mf = [mfma(P.sub(4 * b, 4), Kf(0, tt), Qf(b, tt), P.sub(4 * b, 4) if tt else 0) for b in range(4) for tt in range(4)]
    fl = [[] for _ in mf]
    for i in range(4): fl[4 + i] = [valu(x) for x in pre[2 * i:2 * i + 2]]
    fl[8] = mx(0); fl[15] = mx(1) + [salu('s_nop 1')] + mx(2) + [salu('s_nop 1')] + mx(3)
    a('s_nop 0')
    st.gaps(mf, fl)
    negm_finish(a, M, opt.get('margin', MARGIN))
    sp.stamp(st)
    a('L2_att:')
    a(f'v_mov_b64 {P.sub(32,2)}, 0\nv_mov_b64 {P.sub(34,2)}, 0')
    a(f's_mov_b32 {sGW}, {sGW0}\ns_mov_b32 {sGA}, {sGA0}\ns_mov_b32 {sPF}, {sPF0}')
    def sig_end(name, soff):
        far.append(f'{name}:\n{signal(soff)}\ns_mov_b32 {sSIG}, 0\ns_branch {name}_r')
        return f's_cmp_eq_u32 {sCNT}, {sSIG}\ns_cbranch_scc1 {name}\n{name}_r:'
    usig = sig_end('L2_su', sFU)
    far.append(f'L2_wn:\n{spin("L2_wn1", sFW, sTG)}\ns_branch L2_wn_r')
    far.append(f'L2_bad:\nds_write_b32 v{t+1}, {vONE}\ns_waitcnt lgkmcnt(0)\ns_branch L2_bad_r')
    su_s = f's_lshl_b32 {sW3}, {sDT}, 8\ns_add_u32 {sW3}, {sW3}, {NSY*64*2048}\ns_lshl_b32 {sT}, {sST}, 2\ns_add_u32 {sT}, {sT}, {sWAVE}\ns_lshl_b32 {sA3}, {sT}, 18\ns_add_u32 {sA3}, {sA3}, {OF + NSY*4096}\n'
    su_s += rot_setup(sROT, sW3, sA3, sSI, None, 64 * 2048, 4096)
    su_s += f'\nv_bfe_u32 v{t+2}, v0, 4, 2\nv_lshrrev_b32 v{t+3}, 6, v0\nv_lshl_add_u32 v{t+2}, v{t+3}, 4, v{t+2}\nv_lshlrev_b32 v{t+2}, 11, v{t+2}'
    for i in range(4): su_s += f'\nv_sub_u32 {vWg.sub(i)}, {vWq.sub(i)}, v{t+2}' + (f'\nv_subrev_u32 {vWg.sub(i)}, {4*i*2048}, {vWg.sub(i)}' if i else '')
    marks = []
    for j in range(-1, 31):
        if 0 <= j <= 28 and j % 4 == 0: marks.append(st.mark())
        if j == 30: st.push(parse(su_s))
        att_iter(st, j, g4, opt)
        assert not st.q
        if 0 <= j < 28 and j % 4 == 3: a(usig)
    st.fold(marks, 'L2_loop', sCNT)
    st.push([10] + ([] if opt.get('dd', 0) else flat(g4.window(2)[3:4])) + flat(g4.window(1)[4:]))
    st.push([valu(f'v_add_f32 {LS.sub(4*b)}, {LS.sub(4*b)}, {LS.sub(4*b+1)}') for b in range(4)])
    st.push(parse(f'v_add_f32 v{t+2}, {LS.sub(0)}, {LS.sub(4)}\nv_add_f32 v{t+3}, {LS.sub(8)}, {LS.sub(12)}\nv_add_f32 v{t+2}, v{t+2}, v{t+3}\nv_cmp_nge_f32 vcc, 0x47800000, v{t+2}'))
    st.push([valu(f'v_rcp_f32 {LS.sub(4*b)}, {LS.sub(4*b)}') for b in range(2)])
    st.push([[salu('s_cbranch_vccnz L2_bad'), salu('L2_bad_r:')], barrier(['N0']), Op(f'ds_read_b32 v{t}, v{t+1}', 'ds', wr=V(t).set())])
    st.push([valu(f'v_rcp_f32 {LS.sub(4*b)}, {LS.sub(4*b)}') for b in range(2, 4)])
    st.push(flat(g4.window(2)[4:]))
    st.push([valu(f'v_readfirstlane_b32 {sT}, v{t}', rd=[V(t)])])
    st.push([valu(f'v_mov_b32 {LS.sub(4*b+1)}, {LS.sub(4*b)}') for b in range(4)])
    st.push([[salu(f's_cmp_gt_u32 {sT}, {sMODE}'), salu('s_cbranch_scc1 L2_redo')]])
    st.push(flat(g4.window(3)[:2]))
    st.push(parse(f's_add_u32 {sT}, {sO}, 4096\ns_add_u32 {sT2}, {sO}, {128*2048}\ns_add_u32 {sT3}, {sT2}, 4096'))
    st.push(parse(f's_lshr_b32 {sFW}, {sST}, 1\ns_lshl_b32 {sFW}, {sFW}, 8\ns_add_u32 {sFW}, {sFW}, {FL}'))
    ini = [valu(f'v_lshlrev_b32 {Q.sub(8*e+i)}, 16, {BIAS.sub(e)}', rd=[BIAS.sub(e)]) for e in range(8) for i in range(2)]
    rd = g4.reads(0) + g4.reads(1) + g4.reads(2)
    for i in range(12): st.push([rd[i], ini[i]])
    st.push(ini[12:])
    att_iter(st, 31, g4, opt)
    st.flush()
    sp.stamp(st)
    for e in range(8):
        for i in range(1, 4): a(f'v_mov_b64 {Q.sub(8*e+2*i,2)}, {Q.sub(8*e,2)}')
    kk = [0]
    def onorm(x, tt, b):
        for jj in range(2):
            for i in range(4): a(f'v_accvgpr_read_b32 {x.sub(4*jj+i)}, {O.sub(((2*tt+jj)*4+b)*4+i)}')
        for i in range(4): a(f'v_pk_mul_f32 {x.sub(2*i,2)}, {x.sub(2*i,2)}, {LS.sub(4*b,2)}')
        kk[0] += 1
        return P.sub(4 * (kk[0] - 1), 4)
    act_store(st, 4, 4, onorm, [[sO, sT], [sT2, sT3]], NEGM)
    sp.stamp(st)
    a(f's_cmp_lg_u32 {sROLE}, 0\ns_cbranch_scc1 L2_Y')
    sy = st.fork(); spn = sp.n
    def chk_extra(sig):
        def f(s, e):
            if s % 4 == 2 and e == 0: return {3: [flag_load(sFW)]}
            if sig and s % 4 == 3 and e == 0: return {3: [salu(x) for x in sig.split('\n')]}
            if s % 4 == 3 and e == 7: return {3: [valu(f'v_readfirstlane_b32 {sT}, {vFL}', rd=[vFL])]}
            return {}
        return f
    def chk_end(name, cntval, target):
        far.append(f'{name}:\ns_cmp_ge_u32 {sT}, {target}\ns_cbranch_scc1 {name}_r\n{spin(name + "1", sFW, target)}\ns_branch {name}_r')
        return lambda s_: s_.raw(f's_cmp_eq_u32 {sCNT}, {cntval}\ns_cbranch_scc1 {name}\n{name}_r:')

    a(f's_cmp_eq_u32 {sWAVE}, 0\ns_cselect_b32 {sSIG}, -13, 0')
    g4.loop(st, 'L2_y', sCNT, extra=chk_extra(sig_end('L2_so', sFO)), trip_end=chk_end('L2_c0', -1, 16))
    l2e = f2h(-math.log2(math.e))
    st.push(parse(f's_mov_b32 s58, {l2e}\ns_mov_b32 s59, {l2e}\ns_add_u32 {sFW}, {sFW}, 4096\ns_lshl_b32 {sT}, {sWAVE}, 14\ns_lshl_b32 {sT2}, {sWAVE}, 11'))
    st.push(parse(f'v_and_b32 v{t+1}, 63, v0\nv_lshlrev_b32 v{t+1}, 4, v{t+1}\nv_add_u32 v{t}, {sT2}, v{t+1}\nv_add_u32 v{t+1}, {sT}, v{t+1}'))
    st.push([valu(f'v_mov_b32 {ACC3.sub(i)}, 0') for i in range(40)])
    g4.last(st, g3s.window, chain=g3s)
    st.flush()
    sp.stamp(st)
    for i in range(20, 32): a(f'v_mov_b64 {ACC3.sub(2*i,2)}, 0')
    for e in range(8):
        x = BIAS.sub((e & 1) * 8, 8); y = Q.sub(8 * e, 8)
        for i in range(4): a(f'v_pk_mul_f32 {x.sub(2*i,2)}, {y.sub(2*i,2)}, {sC}')
        for i in range(8): a(f'v_exp_f32 {x.sub(i)}, {x.sub(i)}')
        for i in range(4): a(f'v_pk_add_f32 {x.sub(2*i,2)}, {x.sub(2*i,2)}, 1.0 op_sel_hi:[1,0]')
        for i in range(8): a(f'v_rcp_f32 {x.sub(i)}, {x.sub(i)}')
        for i in range(4): a(f'v_pk_mul_f32 {y.sub(2*i,2)}, {x.sub(2*i,2)}, {y.sub(2*i,2)}')
        if e in (0, 4): st.wait_all(vm=False)
        for b in range(2): st.op(Op(f'ds_write_b128 v{t}, {y.sub(4*b,4)} offset:{8192*e + 1024*b}', 'ds'))
    st.wait_all(vm=False)
    sp.stamp(st)
    n3 = g3s.nst
    g3s.loop(st, 'L2_s', sCNT, extra=chk_extra(None), trip_end=chk_end('L2_c2', -(n3 // 4 - 1) + (16 - A0) // 2 - 2, 16 - NYY))
    XR = GF.sub(0, 32); PR = A(0, 32)
    pl = lambda so: [vload(f'buffer_load_dwordx4 {PR.sub(4*n,4)}, {vL16}, {sWS}, {so[n >> 2]} offen offset:{1024*(n & 3)} sc1', PR.sub(4 * n, 4)) for n in range(8)]
    def s3x(s, e):
        if s == n3 - 4 and e == 0:
            st.push(parse(f'v_bfe_u32 v{t+2}, v0, 4, 1\nv_bfe_u32 v{t+3}, v0, 5, 1\nv_lshlrev_b32 v{t+2}, 5, v{t+2}\nv_lshl_or_b32 v{t+2}, v{t+3}, 4, v{t+2}\nv_and_b32 v{t+3}, 15, v0\nv_lshl_add_u32 {vX}, v{t+3}, 11, v{t+2}'))
            st.push([vload(f'buffer_load_dwordx4 {XR.sub(4*n,4)}, {vX}, {sX}, {[sR0, sR1][n >> 2]} offen offset:{64*(n & 3)}', XR.sub(4 * n, 4)) for n in range(8)])
            st.push([flag_load(sFG)])
            st.push(parse(f'v_bfe_u32 v{t+2}, v0, 4, 2\nv_lshlrev_b32 v{t+2}, 2, v{t+2}\nv_sub_u32 v{t+2}, v{t+3}, v{t+2}\nv_and_b32 v{t+3}, 1, v0\nv_lshlrev_b32 v{t+3}, 4, v{t+3}\nv_mov_b32 {SEL.sub(0)}, 0x3f80\nv_lshlrev_b32 v{t+3}, v{t+3}, {SEL.sub(0)}\nv_lshrrev_b32 v{t+2}, 1, v{t+2}'))
            st.push(parse(f'v_cmp_eq_u32 vcc, 0, v{t+2}\nv_mov_b32 {SEL.sub(0)}, 0\nv_mov_b32 {SEL.sub(1)}, 0\nv_cndmask_b32 {SEL.sub(2)}, 0, v{t+3}, vcc\nv_cmp_eq_u32 vcc, 1, v{t+2}\nv_mov_b32 {SEL.sub(4)}, 0\nv_mov_b32 {SEL.sub(5)}, 0\nv_cndmask_b32 {SEL.sub(3)}, 0, v{t+3}, vcc'))
        if s == n3 - 2 and e == opt.get('pe', 0):
            st.push([valu(f'v_readfirstlane_b32 {sRDY}, {vFL}', rd=[vFL]), 1])
            st.push(parse(f's_cmp_lg_u32 {sRDY}, 0\ns_cselect_b32 {sP0}, {sG}, 0x40000000\ns_add_u32 {sP1}, {sP0}, 4096'))
            st.push(pl([sP0, sP1]))
            for n in range(8):
                b, p = n >> 2, n & 3
                d = XR.sub(4 * n, 4)
                st.push([valu(f'v_permlane16_swap_b32 {d.sub(0)}, {d.sub(2)}', rd=[d]), valu(f'v_permlane16_swap_b32 {d.sub(1)}, {d.sub(3)}')])
                for h in range(4):
                    x = XF.sub(((2 * p + (h >> 1)) * 2 + b) * 4 + 2 * (h & 1), 2)
                    st.push(parse(f'v_lshlrev_b32 {x.sub(0)}, 16, {d.sub(h)}\nv_and_b32 {x.sub(1)}, 0xffff0000, {d.sub(h)}'))
                st.push([ds_128(GF.sub(32 + 4 * n, 4), V(t + 1), 8192 * (n & 1) + 1024 * (4 + (n >> 1)))])
            st.push([ds_128(GF.sub(4 * n, 4), V(t + 1), 8192 * (n & 1) + 1024 * (n >> 1)) for n in range(8)])
        return {}
    g3s.last(st, None, s3x)
    sp.stamp(st)
    far.append(f'L2_wg:\n{spin("L2_wg1", sFG, 1)}\ns_add_u32 {sP1}, {sG}, 4096\n' + '\n'.join(o.text for o in pl([sG, sP1])) + '\ns_waitcnt vmcnt(0)\ns_branch L2_wg_r')
    while any(isinstance(g, list) and g[0].kind == 'vm' for g in st.q):
        g = st.q.pop(0)
        if isinstance(g, list): st.ops(g)
    a(f's_cmp_eq_u32 {sRDY}, 0\ns_cbranch_scc1 L2_wg\nL2_wg_r:')
    sp.stamp(st)
    mf = [mfma(acc3(e, b), SEL.sub(2 - 2 * (e & 1), 4), PR.sub((b * 4 + (e >> 1)) * 4, 4), acc3(e, b)) for b in range(2) for e in range(8)]
    st.gaps(mf, [[] for _ in mf])
    st.flush()
    prev = None
    osc = ' sc1' if opt.get('out_sc1', 0) else ''
    for n in range(8):
        b, p = n >> 2, n & 3
        d = BIAS.sub(4 * (n & 3), 4)
        os_ = [((2 * p + (h >> 1)) * 2 + b) * 4 + 2 * (h & 1) for h in range(4)]
        for h in range(4): st.op(valu(f'v_pk_fma_f32 {XF.sub(os_[h],2)}, {ACC3.sub(os_[h],2)}, {GF.sub(os_[h],2)}, {XF.sub(os_[h],2)}', rd=[GF.sub(os_[h], 2)]))
        if prev: prev()
        for h in range(4): a(f'v_cvt_pk_bf16_f32 {d.sub(h)}, {XF.sub(os_[h])}, {XF.sub(os_[h]+1)}')
        def fin(d=d, b=b, p=p):
            a(f'v_permlane16_swap_b32 {d.sub(0)}, {d.sub(2)}\nv_permlane16_swap_b32 {d.sub(1)}, {d.sub(3)}')
            st.op(vstore(f'buffer_store_dwordx4 {d}, {vX}, {sOUT}, {[sR0, sR1][b]} offen offset:{64*p}{osc}'))
        prev = fin
    a('s_nop 1')
    prev()
    if sp.on: a('s_waitcnt vmcnt(0)')
    sp.stamp(st)
    sp.flush(st, sWS, t)
    a('L2_end:\ns_endpgm')

    a = sy.raw; sp.n = spn
    a('L2_Y:')
    nf = NSY // 4 - 1
    a(f's_cmp_eq_u32 {sWAVE}, 0\ns_cselect_b32 {sSIG}, {-nf}, 0\ns_add_u32 {sFW}, {sFW}, 2048')
    g3y.loop(sy, 'L2_sy', sCNT, extra=chk_extra(sig_end('L2_yo', sFO)), trip_end=chk_end('L2_c1', -nf + A0 // 2 - 2, NYY))
    a(f's_add_u32 {sT2}, {sG}, 4096')
    def pstore(p):
        o = []
        for b in range(2):
            d = GF.sub((b * 4 + p) * 4, 4)
            for h in range(4):
                k = ((2 * p + (h >> 1)) * 2 + b) * 4 + 2 * (h & 1)
                o.append(valu(f'v_cvt_pk_bf16_f32 {d.sub(h)}, {Q.sub(k)}, {Q.sub(k+1)}'))
            o.append(vstore(f'buffer_store_dwordx4 {d}, {vL16}, {sWS}, {[sG, sT2][b]} offen offset:{1024*p} sc1'))
        return o
    def yx(s, e):
        if s == NSY - 1 and e in (4, 6): sy.push(pstore(e // 2 - 2))
        return {}
    g3y.last(sy, None, yx)
    sy.flush()
    sp.stamp(sy); sp.stamp(sy); sp.stamp(sy)
    sy.ops(pstore(2)); sy.ops(pstore(3))
    a('s_waitcnt vmcnt(0)')
    sp.stamp(sy)
    a(f'{signal(sFG)}\ns_waitcnt vmcnt(0)')
    sp.stamp(sy)
    sp.flush(sy, sWS, t)
    a('s_endpgm')

    a = sg.raw; sp.n = spg
    a('L2_G:')
    qm = q_last_extra(sg, V(10, 8), 'L2_wb')
    def gx(s, e):
        if s == 12 and e == 0:
            sg.push(parse(su_g2))
        if s == 15 and e in (2, 6): sg.push([valu(f'v_xor_b32 {vWa.sub(k)}, {sROT}, {vWa.sub(k)}') for k in (range(2) if e == 2 else range(2, 8))])
        if s == 13 and e == 6:
            assert not sg.q
            sg.push([vload(f'buffer_load_dwordx2 {BIAS.sub(2*n,2)}, {vFL}, {sBB}, {sB} offen offset:{32*n}', BIAS.sub(2 * n, 2)) for n in range(8)])
        return qm(s, e)
    gq.last(sg, g2.window, gx, chain=g2)
    sg.flush()
    sp.stamp(sg)
    q_epilogue(sg, V(10, 8), True)
    sp.stamp(sg)
    g2.loop(sg, 'L2_g', sCNT)
    k0 = 2.0 * math.sqrt(2.0 / math.pi) * math.log2(math.e)
    last_before_att(g2, sg, f's_mov_b32 s58, {f2h(-k0*0.044715)}\ns_mov_b32 s59, {f2h(-k0*0.044715)}')
    sp.stamp(sg)
    C1 = V(t + 2, 2)
    a(f'v_mov_b32 {C1.sub(0)}, {f2h(-k0)}\nv_mov_b32 {C1.sub(1)}, {f2h(-k0)}')
    a(f's_add_u32 {sT}, {sU}, 4096\ns_add_u32 {sT2}, {sU}, {112*2048}\ns_add_u32 {sT3}, {sT2}, 4096')
    def gelu(x, tt, b):
        u = [accq(2 * tt + (i >> 1), b).sub(2 * (i & 1), 2) for i in range(4)]
        for i in range(4): a(f'v_pk_mul_f32 {x.sub(2*i,2)}, {u[i]}, {u[i]}')
        for i in range(4): a(f'v_pk_fma_f32 {x.sub(2*i,2)}, {x.sub(2*i,2)}, {sC}, {C1}')
        for i in range(4): a(f'v_pk_mul_f32 {x.sub(2*i,2)}, {x.sub(2*i,2)}, {u[i]}')
        for i in range(8): a(f'v_exp_f32 {x.sub(i)}, {x.sub(i)}')
        for i in range(4): a(f'v_pk_add_f32 {x.sub(2*i,2)}, {x.sub(2*i,2)}, 1.0 op_sel_hi:[1,0]')
        for i in range(8): a(f'v_rcp_f32 {x.sub(i)}, {x.sub(i)}')
        for i in range(4): a(f'v_pk_mul_f32 {x.sub(2*i,2)}, {x.sub(2*i,2)}, {u[i]}')
        return accq(2 * tt, b)
    act_store(sg, 4, 4, gelu, [[sU, sT], [sT2, sT3]], BIAS)
    a('s_branch L2_join')
    for x in far: a(x)

    a('L2_redo:')
    a(f's_mov_b32 {sMODE}, 1\ns_mov_b32 {sK}, {sKV0}\ns_mov_b32 {sCNT}, -32')
    for b in range(4): a(f'v_mov_b32 {M.sub(b)}, 0xff800000')
    a('L2_mx:\ns_waitcnt vmcnt(0) lgkmcnt(0)\ns_barrier')
    for pre, v, post in kdma(0):
        for o in pre: a(o.text + '\ns_nop 0')
        a(v.text)
        for o in post: a(o.text)
    a('s_waitcnt vmcnt(0)\ns_barrier')
    for c in range(4):
        for tt in range(4): a(kread(0, c, tt).text)
        a('s_waitcnt lgkmcnt(0)')
        for b in range(4):
            for tt in range(4): a(mfma(P.sub(4 * b, 4), Kf(c, tt), Qf(b, tt), P.sub(4 * b, 4) if tt else 0).text)
        a('s_nop 7')
        for b in range(4):
            x = P.sub(4 * b, 4)
            a(f'v_max3_f32 {M.sub(b)}, {M.sub(b)}, {x.sub(0)}, {x.sub(1)}\nv_max3_f32 {M.sub(b)}, {M.sub(b)}, {x.sub(2)}, {x.sub(3)}')
    a(f's_add_u32 {sCNT}, {sCNT}, 1\ns_cbranch_scc0 L2_mx')
    negm_finish(a, M, 0.0)
    a(f's_mov_b32 {sK}, {sKV0}\ns_mov_b32 {sV}, {sKV0}\ns_barrier')
    for pre, v, post in pre_kv:
        for o in pre: a(o.text + '\ns_nop 0')
        a(v.text)
        for o in post: a(o.text)
    a('s_waitcnt vmcnt(0)\ns_barrier')
    for tt in range(4): a(kread(0, 0, tt).text)
    a(kread(0, 1, 0).text)
    a('s_waitcnt lgkmcnt(0)\ns_branch L2_att')
    return st.lines() + sy.lines() + sg.lines(), kd(KNAME, 512, 256, 102), '; @launch ' + (f'kernel={KNAME} ' if opt.get('aslist') or 'probe' in opt else '') + 'grid=(256,1,1) block=(256,1,1) lds=163840'
```

```python
from fw import *

class Gemm:
    def __init__(self, name, nst, NA, acc, act, wr, waddr, pi, wsrd, wvoff, sW, wstride, m0base, sLds, asrd, avoff, sA,
                 swap=False, avoff2=None, NW=8, lead=4, asuf='', uni=False, winc=None, ainc=None, dist=3, aoff=0, split=False):
        self.__dict__.update(locals())
        self.chain = None; self.bar_rd = []
    def hook(self, s, e, fill): return []
    def wfrag(self, G, ks): return self.wr.sub((G % 4) * 8 + ks * 4, 4)
    def afrag(self, s, ks, b): return self.act.sub(((s + self.aoff) % 4) * 8 * self.NA + (ks * self.NA + b) * 4, 4)
    def reads(self, G):
        s, e = divmod(G, self.NW)
        if s >= self.nst: return self.chain.reads(G - self.nst * self.NW) if self.chain else []
        o = []
        if getattr(self, 'xn', 0) and s & 1: return o
        for ks in range(2):
            for tt in range(2):
                off = (s % 4) * 16384 + ks * 8192 + tt * (1024 if self.pi == 'id' else 4096)
                o.append(ds_tr(self.wfrag(G, ks).sub(2 * tt, 2), self.waddr.sub(e), off))
        return o
    def window(self, s):
        w = []
        for i in range(4):
            pre = [salu(f's_add_u32 m0, {self.sLds}, {self.m0base + (s % 4) * 16384}')] if i == 0 else []
            post = [salu(f's_add_u32 {self.sW}, {self.sW}, {self.winc[s & 1] if self.winc else 64 * self.wstride}')] if i == 3 else []
            w.append((pre, vload(f'buffer_load_dwordx4 {self.wvoff.sub(i)}, {self.wsrd}, {self.sW} offen offset:{i*1024} lds', tag=f'{self.name}{s}'), post))
        if getattr(self, 'xn', 0) and s & 1:
            for _, v, _ in w: v.text = 's_nop 0'; v.kind = 's0'
        n = 2 * self.NA
        for i in range(n):
            ks, b = divmod(i, self.NA)
            if self.split: ks, b = (i >> 1) & 1, (i & 1) + 2 * (i >> 2)
            vo = self.avoff if i < 4 else self.avoff2
            post = []
            if i == n - 1: post.append(salu(f's_add_u32 {self.sA}, {self.sA}, {self.ainc[s & 1] if self.ainc else n * 1024}'))
            d = self.afrag(s, ks, b)
            w.append(([], vload(f'buffer_load_dwordx4 {d}, {vo}, {self.asrd}, {self.sA} offen offset:{(i % 4) * 1024}{self.asuf}', d), post))
        return w
    def positions(self):
        if self.uni and self.NA == 2:
            assert self.NW == 8 and self.lead == 4
            return [(1, 5, 1), (1, 6, 1), (1, 7, 1), (2, 0, 1), (1, 1, 1), (1, 2, 1), (1, 3, 1), (1, 4, 1)]
        if self.NA == 4:
            return [(0, self.NW - 1, 1), (0, self.NW - 1, 5), (1, 0, 1), (1, 0, 5), (1, 1, 1), (1, 1, 5), (1, 2, 1), (1, 2, 5), (1, 3, 1), (1, 3, 5), (1, 4, 1), (1, 4, 5)]
        if self.NW == 8:
            return [(0, 7, 1), (0, 7, 3), (1, 0, 1), (1, 1, 1), (1, 2, 1), (1, 3, 1), (1, 4, 1), (1, 5, 1)]
        assert self.NW == 6
        return [(0, 5, 1), (0, 5, 3), (1, 0, 1), (1, 0, 3), (1, 1, 1), (1, 2, 1), (1, 3, 0), (1, 3, 2)]
    def issue(self, st, elems, between=None):
        for pre, v, post in elems:
            st.ops(pre)
            if pre: st.raw('s_nop 0')
            st.op(v); st.ops(post)
            if between: between()
    def start(self, st):
        st.op(barrier([f'{self.name}0'], lg0=True))
        for G in range(self.dist): st.ops(self.reads(G))
    def mf(self, s, e):
        m = []
        for b in range(self.NA):
            for k_ in range(2):
                ks = k_ ^ (b & 1) if getattr(self, 'zig', 0) else k_
                w, x = self.wfrag(self.NW * s + e, ks), self.afrag(s, ks, b)
                c = self.acc(e, b)
                m.append(mfma(c, x, w, c) if self.swap else mfma(c, w, x, c))
        return m
    def run(self, st, label, sreg, tail=None, extra=None, trip_end=None):
        self.loop(st, label, sreg, extra, trip_end)
        self.last(st, tail, extra)
    def loop(self, st, label, sreg, extra=None, trip_end=None):
        marks = self.stages(st, 0, self.nst // 4 * 4 - 4, None, extra, trip_end)
        st.fold(marks, label, sreg)
    def last(self, st, tail=None, extra=None, last_bar=None, chain=None):
        self.chain = chain
        if chain: last_bar = [chain.name + '0']
        self.stages(st, self.nst // 4 * 4 - 4, self.nst, tail, extra, None, last_bar)
        self.chain = None
    def stages(self, st, s0, s1, tail, extra, trip_end, last_bar=None):
        ng, NW = 2 * self.NA, self.NW
        pos = self.positions()
        wins = {}
        def win(s):
            if s not in wins:
                wins[s] = self.window(s) if s < self.nst else (tail(s - self.nst) if tail else [])
            return wins[s]
        marks = []
        carry = []
        for s in range(s0, s1):
            if s % 4 == 0: marks.append(st.mark())
            for e in range(NW):
                G = NW * s + e
                fill = [[] for _ in range(ng)]
                sc = [[] for _ in range(ng + 1)]
                sc[0] += carry; carry = []
                rd = self.reads(G + self.dist) if self.uni or e < NW - 3 or e == NW - 1 else (self.reads(G + 2) + self.reads(G + 3) if e == NW - 2 else [])
                if self.NA == 2: gp = [0, 0, 2, 2] if len(rd) <= 4 else [0, 0, 1, 1, 2, 2, 3, 3]
                else: gp = [0, 2, 4, 6] if len(rd) <= 4 else list(range(8))
                for o, g in zip(rd, gp): fill[g].append(o)
                for idx, (so, pe, pg) in enumerate(pos):
                    if pe != e: continue
                    w = win(s + self.lead - so)
                    if idx >= len(w) or w[idx] is None: continue
                    pre, v, post = w[idx]
                    assert pg > 0 or not pre
                    sc[pg - 1] += pre; fill[pg].append(v)
                    for k_, o_ in enumerate(post): sc[pg + 1 + min(k_, 1)].append(o_)
                more = self.hook(s, e, fill)
                if e == NW - (1 + self.dist if self.uni else 3):
                    if s + 1 < self.nst: fill[ng - 1].append(barrier([f'{self.name}{s+1}'], lg0=not self.uni))
                    elif last_bar is not None:
                        fill[ng - 1].append(barrier(last_bar, lg0=not self.uni)); fill[ng - 1][-1].rd = list(self.bar_rd)
                if extra:
                    for g, l in extra(s, e).items(): fill[g] += l
                carry = sc[ng]
                if e == NW - 1 and s % 4 == 3:
                    fill[ng - 1] += carry; carry = []
                for g in range(ng): fill[g] = sc[g] + fill[g]
                if getattr(self, 'pat', 0) == 1 and len(rd) == 4 and not sc[2]: fill[2].insert(0, salu('s_nop 0'))
                nxt = self.mf(s, e + 1)[0] if e < NW - 1 else (self.mf(s + 1, 0)[0] if s + 1 < self.nst else None)
                st.gaps(self.mf(s, e) + more, fill + [[] for _ in more], nxt)
            if s % 4 == 3 and trip_end: trip_end(st)
        marks.append(st.mark())
        return marks

class GemmX(Gemm):
    def xsetup(self, xbase, xvoff, xaddr, sA2, ones, idx, cs):
        self.xbase, self.xvoff, self.xaddr, self.sA2, self.ones, self.idx, self.cs = xbase, xvoff, xaddr, sA2, ones, idx, cs
    def window(self, s):
        w = Gemm.window(self, s)[:4]
        rt = getattr(self, 'rtab', None)
        step = lambda r, sh: [salu(f's_bfe_i32 vcc_lo, {rt}, {0x80000 + 8 * (s & 3)}'), salu(f's_lshl_b32 vcc_lo, vcc_lo, {sh}'), salu(f's_add_u32 {r}, {r}, vcc_lo')]
        if rt: w[3] = (w[3][0], w[3][1], step(self.sW, 19))
        for i in range(8):
            so = self.sA if i < 4 else self.sA2
            pre = [salu(f's_add_u32 m0, {self.sLds}, {self.xbase[s & 1] + (i >> 2) * 16384}')] if i % 4 == 0 else []
            post = (step(so, 7) if rt else [salu(f's_add_u32 {so}, {so}, 128')]) if i % 4 == 3 else []
            w.append((pre, vload(f'buffer_load_dwordx4 {self.xvoff.sub(i & 3)}, {self.asrd}, {so} offen offset:{(i & 3) * 1024} lds', tag=f'X{s}_{i}'), post))
        return w
    def xreads(self, s, b):
        o = []
        for ks in range(2):
            r = ds_128(self.afrag(s, ks, b), self.xaddr.sub(ks), self.xbase[s & 1] - min(self.xbase) + (b >> 1) * 16384 + (b & 1) * 2048)
            r.waittags = [f'X{s}_{2*b+1}']; o.append(r)
        return o
    def hook(self, s, e, fill):
        if e >= 4 and s + 1 < self.nst:
            r = self.xreads(s + 1, e - 4); fill[3].append(r[0]); fill[7].append(r[1])
        if e < 2: return [Op(f'v_smfmac_f32_16x16x64_bf16 {self.cs.sub(4*e,4)}, {self.ones}, {self.wr.sub(((8*s+e) % 4) * 8, 8)}, {self.idx}', 'mfma')]
        return []

def waddr_setup(dst, base, pi, t):
    L = [f'v_bfe_u32 v{t}, v0, 4, 2', f'v_bfe_u32 v{t+1}, v0, 2, 2',
         f'v_and_b32 v{t+2}, 1, v{t}', f'v_lshl_or_b32 v{t+2}, v{t+2}, 2, v{t+1}',
         f'v_lshl_add_u32 v{t}, v{t}, {3 if pi == "id" else 2}, v{t+1}', f'v_lshlrev_b32 v{t}, 8, v{t}',
         f'v_and_b32 v{t+1}, 3, v0', f'v_lshl_add_u32 v{t}, v{t+1}, 3, v{t}', f'v_add_u32 v{t}, {base}, v{t}']
    for e in range(8):
        L += [f'v_xor_b32 v{t+1}, {e}, v{t+2}', f'v_lshl_add_u32 {dst.sub(e)}, v{t+1}, 5, v{t}']
    return L

def wvoff_setup(dst, sstride, pi, t, sodd=None):
    L = [f'v_bfe_u32 v{t}, v0, 4, 2', f'v_lshrrev_b32 v{t+1}, 6, v0', f'v_lshl_add_u32 v{t+1}, v{t+1}, 4, v{t}']
    for i in range(4):
        hi = 4 * (((i >> 1) & 1) if pi == 'id' else (i & 1))
        d = dst.sub(i)
        if i == 0 or sodd: L += [f'v_and_b32 v{t+3}, 15, v0']
        L += [f'v_add_u32 {d}, {4*i}, v{t+1}', f'v_mul_u32_u24 {d}, {sstride}, {d}',
              f'v_or_b32 v{t+2}, {hi}, v{t}', f'v_lshlrev_b32 v{t+2}, 1, v{t+2}', f'v_xor_b32 v{t+2}, v{t+2}, v{t+3}']
        if sodd:
            L += [f'v_cmp_gt_u32 vcc, 14, v{t+2}', f'v_add_u32 v{t+2}, {sodd}, v{t+2}', f'v_subrev_u32 v{t+3}, 14, v{t+2}', f'v_min_u32 v{t+2}, v{t+2}, v{t+3}']
        L += [f'v_lshl_add_u32 {d}, v{t+2}, 4, {d}']
        if i: L += [f'v_subrev_u32 {d}, {i * 1024}, {d}']
        if sodd: L += [f'v_mov_b32 v{t+2}, 0x40000000', f'v_cndmask_b32 {d}, v{t+2}, {d}, vcc']
    return L
```

```python
from fw import *
from gemm import *
STAT, HF, UF, OF, GB, FL, YB = 0, 4 << 20, 8 << 20, 16 << 20, 32 << 20, 40 << 20, 44 << 20
WS_SIZE = 128 << 20
SHADOW = (64 << 20) + 128
LSTR = 2112
KNAME = 'recurrent_scan__mha_block_cached__mixer_token_mlp__prompt_kernel'
import math, struct
def f2h(x): return '0x%08x' % struct.unpack('<I', struct.pack('<f', x))[0]

KBASE, VBASE, QRING, FLAG = 0, 65536, 98304, 131072
MARGIN = 102.0
sWS, sWQ, sKC, sVC, sW1, sWN, sWO, sBB = ['s[%d:%d]' % (i, i + 3) for i in range(4, 36, 4)]
sOUT = sW1
sWAVE, sLDS, sCNT, sQW, sQA, sK, sV, sGW, sGA, sO, sU, sPF, sMODE, sROT = ['s%d' % i for i in range(36, 50)]
sKV0, sGW0, sGA0, sPF0, sT, sT2 = ['s%d' % i for i in range(50, 56)]
sB = sGW
sC = 's[58:59]'
sSLOT, sIDX, sHEAD, sQ64, sST, sDT, sT3, sT4 = ['s%d' % i for i in range(60, 68)]
sX = 's[68:71]'
sQI, sQJ, sGI, sGJ = ['s72', 's73'], ['s74', 's75'], ['s76', 's77'], ['s78', 's79']
sNI, sNJ, sSI, sSJ = sQI, sQJ, sGI, sGJ
sW3, sA3, sSIG, sFO, sFU, sFW, sFG, sG, sR0, sR1, sSTR, sTG, sGRP, sP0, sROLE, sBN = ['s%d' % i for i in range(80, 96)]
sP1, sRDY = 's100', 's101'
vCO = V(251)
def pfcode(): return vload(f'global_load_dword {vDUM}, {vCO}, s[56:57]')
sDBG, sQA2 = 's[72:75]', 's3'
XSLOT, CSB = [65536, 32768], 49152

vL16 = V(1)
vWq, vWg, vKd, vVd = V(2, 4), V(6, 4), V(10, 4), V(14, 2)
vKa, vVa, vWa = V(16, 4), V(20, 8), V(28, 8)
vPF, vDUM, vTMP = V(36), V(37), 38
vZERO, vONE, vFL, vX = V(42), V(43), V(252), V(253)
vL16b = vX
Q = V(44, 64)
QACC = V(108, 128)
S, T, P, NEGM, LS, ONES, vIDX = V(108, 8), V(116, 4), V(120, 64), V(184, 16), V(200, 16), V(216, 4), V(220)
BIAS = V(236, 16)
XF, SEL, vA0, vA1 = V(44, 64), V(10, 6), V(250), V(253)
ONESQ, IDXQ, CS, vXd, vXa, vCw, vCr = V(44, 4), V(48), V(52, 8), V(60, 4), V(64, 2), V(66), V(68, 4)
O, KF, VF, GACT = A(0, 128), A(128, 32), A(160, 32), A(192, 64)

def Pf(tile, u, b, n=4): return P.sub((tile & 1) * 32 + b * 8 + u * 4, n)
def Qf(b, t): return Q.sub((b * 4 + t) * 4, 4)
def Kf(c, t): return KF.sub((c & 1) * 16 + t * 4, 4)
def Vf(e, u): return VF.sub((e & 3) * 8 + u * 4, 4)
def kread(tile, c, t): return ds_128(Kf(c, t), vKa.sub(t), (tile & 3) * 16384 + c * 4096)
def vread(tile, e, u, tt): return ds_tr(Vf(e, u).sub(2 * tt, 2), vVa.sub(e), (tile & 3) * 16384 + u * 8192 + tt * 4096)
def kdma(n):
    return [([salu(f's_add_u32 m0, {sLDS}, {KBASE + (n & 3) * 16384}')] if i == 0 else [],
             vload(f'buffer_load_dwordx4 {vKd.sub(i)}, {sKC}, {sK} offen offset:{i*1024} lds', tag=f'K{n}'),
             [salu(f's_add_u32 {sK}, {sK}, 16384')] if i == 3 else []) for i in range(4)]
def vdma(n):
    return [([salu(f's_add_u32 m0, {sLDS}, {VBASE + (n & 3) * 16384}')] if i == 0 else [],
             vload(f'buffer_load_dwordx4 {vVd.sub(i & 1)}, {sVC}, {sV} offen offset:{i*1024} lds', tag=f'V{n}'),
             [salu(f's_add_u32 {sV}, {sV}, 16384')] if i == 3 else []) for i in range(4)]
def flat(elems):
    o = []
    for pre, v, post in elems: o += pre + [v] + post
    return o
def pfw1():
    return [vload(f'buffer_load_dword {vDUM}, {vPF}, {sWQ}, {sQW} offen'), salu(f's_add_u32 {sQW}, {sQW}, {1 << 21}')]
def rowsum(j, b): return Op(f'v_smfmac_f32_16x16x64_bf16 {LS.sub(4*b,4)}, {ONES}, {Pf(j, 0, b, 8)}, {vIDX}', 'mfma')

def att_iter(st, j, gn, opt):
    a = j + 1
    qk, pv = a <= 31, j >= 0
    t_ = vTMP
    def window(w):
        k = kdma(w + 4) if w + 4 <= 31 else gn.window(w - 28)[:(4, 4, 2, 0)[w - 28]]
        v = vdma(w + 3) if w + 3 <= 31 else []
        return k, v
    kcur, vcur = window(j)
    kprev, vprev = window(j - 1) if j >= 0 else ([], [])
    dma = {11: kcur[0:1], 13: kcur[1:2], 15: kcur[2:3], 1: kprev[3:4], 3: vprev[0:1], 5: vprev[1:2], 7: vprev[2:3], 9: vprev[3:4]}
    dd = opt.get('dd', 0)
    if dd: dma = {11: kcur[0:2], 15: kcur[2:4], 3: vprev[0:2], 7: vprev[2:4]}
    if j == 31: dma = {}
    Z = P.sub(32, 4)
    mf_all, fill_all = [], []
    pend = []
    for n in range(16):
        c, b, e = n >> 2, n & 3, n >> 1
        m = [None] * 9
        f = [[] for _ in range(9)]
        sc = [[] for _ in range(9)]
        sc[0] += pend; pend = []
        Sn, Sp = S.sub((n & 1) * 4, 4), S.sub(((n + 1) & 1) * 4, 4)
        if qk:
            for t in range(4): m[t] = mfma(Sn, Kf(c, t), Qf(b, t), NEGM.sub(4 * b, 4) if t == 0 else Sn)
        for jj in range(2):
            bb = 2 * (n & 1) + jj
            Ob = O.sub((e * 4 + bb) * 4, 4)
            if pv:
                for u in range(2):
                    uu = u ^ jj if opt.get('zig', 0) else u
                    m[4 + 2 * jj + u] = mfma(Ob, Pf(j, uu, bb), Vf(e, uu), Ob) if opt.get('xswap') else mfma(Ob, Vf(e, uu), Pf(j, uu, bb), Ob)
            else: m[5 + 2 * jj] = mfma(Ob, Z, Z, 0)
        if j == 31:
            if n == 0: m[0], m[2] = rowsum(j, 0), rowsum(j, 1)
            if n == 1: m[0], m[8] = rowsum(j, 2), rowsum(j, 3)
        elif b == 3: m[8] = rowsum(j, c) if pv else mfma(LS.sub(4 * c, 4), Z, Z, 0)
        pt, pn = (a, n - 1) if n > 0 else (j, 15)
        if 0 <= pt <= 31:
            pc, pb = pn >> 2, pn & 3
            for i in range(4): f[2 * i].append(valu(f'v_exp_f32 {T.sub(i)}, {Sp.sub(i)}'))
            f[3].append(valu(f'v_cvt_pk_bf16_f32 {Pf(pt, pc >> 1, pb).sub(2 * (pc & 1))}, {T.sub(0)}, {T.sub(1)}'))
            if not pv: f[7].append(salu('s_nop 0'))
        elif pt < 0: f[7].append(salu('s_nop 3'))
        pt, pn = (a, n - 2) if n > 1 else (j, 14 + n)
        if 0 <= pt <= 31:
            pc, pb = pn >> 2, pn & 3
            f[1].append(valu(f'v_cvt_pk_bf16_f32 {Pf(pt, pc >> 1, pb).sub(2 * (pc & 1) + 1)}, {T.sub(2)}, {T.sub(3)}'))
        if 0 <= j < 28 and 'e' in opt.get('xa', ''): f = [[] for _ in range(9)]
        kq = 16 * a + n + 5
        kt, kc, kk = kq >> 4, (kq >> 2) & 3, kq & 3
        if kt <= 31: f[5].insert(0, kread(kt, kc, kk))
        vq = 16 * j + n + 3
        vt, ve, vu = vq >> 4, (vq >> 1) & 7, vq & 1
        if 0 <= vt <= 31:
            g0, g1 = (1, 3) if (qk or n < 2) else (4, 6)
            f[g0].insert(0, vread(vt, ve, vu, 0)); f[g1].insert(0, vread(vt, ve, vu, 1))
        if 0 <= j < 28 and 'r' in opt.get('xa', ''): f = [[o for o in x if o.kind != 'ds'] for x in f]
        if 0 <= j < 28 and 'd' in opt.get('xa', ''):
            for pre, v, post in dma.get(n, []): v.text = 's_nop 0'
        for k, (pre, v, post) in enumerate(dma.get(n, [])):
            sc[6] += pre; f[7 + k].append(v)
            if n == 15: f[8] += post
            else: pend += post
        if n == 10 and j <= 30:
            f[7].append(barrier([f'V{j+1}'] + ([f'K{j+2}'] if j + 2 <= 31 else [])))
        if opt.get('pf_w', 1) and 0 <= j < 28 and n == 2 and (j & 3) == 0:
            f[7].append(vload(f'buffer_load_dword {vDUM}, {vPF}, {sWN}, {sPF} offen'))
            pend.append(salu(f's_add_u32 {sPF}, {sPF}, 4096'))
        if opt.get('pf_w1', 1) and j < 28 and n == 2 and (j & 1):
            f[7].append(pfw1()[0]); pend.append(pfw1()[1])
        if opt.get('rpf', 1) and 0 <= j < 28 and n == 2 and (j & 3) == 2: f[7].append(pfcode())
        if j == 28 and n == 0: f[7] += [valu(f'v_and_b32 v{t_}, 15, v0'), valu(f'v_lshlrev_b32 v{t_}, 1, v{t_}')]
        if j == 28 and n == 2: f[7].append(flag_load(sFW))
        if j in (28, 29) and n in (4, 6, 8, 12):
            k = (j - 28) * 4 + (4, 6, 8, 12).index(n)
            f[7].append(vload(f'buffer_load_ushort {BIAS.sub(k)}, v{t_}, {sBB}, {sBN} offen offset:{32*k}', BIAS.sub(k)))
        if j == 29 and n == 13: f[5].append(valu(f'v_readfirstlane_b32 {sT}, {vFL}', rd=[vFL]))
        if j == 29 and n == 14: f[7] += [salu(f's_cmp_lt_u32 {sT}, {sTG}'), salu('s_cbranch_scc1 L2_wn'), salu('L2_wn_r:')]
        for g in range(9):
            ops = sc[g] + f[g]
            if m[g] is not None: mf_all.append(m[g]); fill_all.append(ops)
            elif fill_all: fill_all[-1] += ops
            else: st.ops(ops)
    assert not pend
    nxt = mfma(S.sub(0, 4), Kf(0, 0), Qf(0, 0), NEGM.sub(0, 4)) if a + 1 <= 31 else None
    st.gaps(mf_all, fill_all, nxt)

def negm_finish(a, M, margin):
    M2 = P.sub(20, 4)
    for p in ('16', '32'):
        for b in range(4): a(f'v_mov_b32 {M2.sub(b)}, {M.sub(b)}')
        for b in range(4): a(f'v_permlane{p}_swap_b32 {M2.sub(b)}, {M.sub(b)}')
        for b in range(4): a(f'v_max_f32 {M.sub(b)}, {M.sub(b)}, {M2.sub(b)}')
    for b in range(4):
        for i in range(2): a(f'v_sub_f32 {NEGM.sub(4*b+i)}, {f2h(-margin)}, {M.sub(b)}')
        a(f'v_mov_b64 {NEGM.sub(4*b+2,2)}, {NEGM.sub(4*b,2)}')

def act_store(st, NB, nt, fn, soffs, T0):
    a = st.raw
    k = 0
    for tt in range(nt):
        for b in range(NB):
            x = T0.sub((k & 1) * 8, 8); k += 1
            d = fn(x, tt, b)
            for i in range(4): a(f'v_cvt_pk_bf16_f32 {d.sub(i)}, {x.sub(2*i)}, {x.sub(2*i+1)}')
            st.op(vstore(f'buffer_store_dwordx4 {d}, {vL16}, {sWS}, {soffs[b >> 1][tt >> 1]} offen offset:{(tt & 1) * 2048 + (b & 1) * 1024} sc1'))

def signal(soff, sWS=sWS):
    return f's_mov_b64 exec, 1\nbuffer_atomic_add {vONE}, {vZERO}, {sWS}, {soff} offen sc1\ns_mov_b64 exec, -1'
def flag_load(soff, sWS=sWS):
    return vload(f'buffer_load_dword {vFL}, {vZERO}, {sWS}, {soff} offen sc1', vFL)
def spin(label, soff, target, sWS=sWS, nap=4):
    return (f's_mov_b32 {sT2}, {-(1 << 20)}\n{label}:\nbuffer_load_dword {vFL}, {vZERO}, {sWS}, {soff} offen sc1\ns_add_u32 {sT2}, {sT2}, 1\ns_cbranch_scc1 {label}_x\n'
            f's_sleep {nap}\ns_waitcnt vmcnt(0)\nv_readfirstlane_b32 {sT}, {vFL}\ns_nop 0\ns_cmp_lt_u32 {sT}, {target}\ns_cbranch_scc1 {label}\n{label}_x:\ns_waitcnt vmcnt(0)')
def rot_setup(srot, sw, sa, swi, sai, winc, ainc):
    L = f's_cmp_lg_u32 {srot}, 0\ns_cselect_b32 {sT}, -1, 1\ns_cselect_b32 {sT2}, 3, 1\n'
    L += f's_mul_i32 {swi[0]}, {sT}, {winc}\ns_mul_i32 {swi[1]}, {sT2}, {winc}\n'
    if sai: L += f's_mul_i32 {sai[0]}, {sT}, {ainc}\ns_mul_i32 {sai[1]}, {sT2}, {ainc}\n'
    L += f's_mul_i32 {sT}, {srot}, {winc}\ns_add_u32 {sw}, {sw}, {sT}\ns_mul_i32 {sT}, {srot}, {ainc}\ns_add_u32 {sa}, {sa}, {sT}'
    return L

def halfsum(regs_, tmp):
    L = []
    for m in ('quad_perm:[1,0,3,2]', 'quad_perm:[2,3,0,1]', 'row_half_mirror', 'row_mirror'):
        L.append('s_nop 1' if len(regs_) == 1 else 's_nop 0')
        for v in regs_: L.append(f'v_add_f32_dpp {v}, {v}, {v} {m} row_mask:0xf bank_mask:0xf')
    for k, v in enumerate(regs_): L.append(f'v_mov_b32 {tmp.sub(k)}, {v}')
    L.append('s_nop 1')
    for k, v in enumerate(regs_): L.append(f'v_permlane16_swap_b32 {tmp.sub(k)}, {v}')
    for k, v in enumerate(regs_): L.append(f'v_add_f32 {v}, {v}, {tmp.sub(k)}')
    return L
def layernorm2(X, Y, SC, SV, cs):
    L = []
    M, Vv, TM, AB = SC.sub(0, 2), SC.sub(2, 2), SC.sub(4, 2), SC.sub(6, 2)
    m, mb, v, r = M.sub(0), M.sub(1), Vv.sub(0), Vv.sub(1)
    m2, v2 = TM.sub(0), TM.sub(1)
    rbf = lambda d, x: [f'v_cvt_pk_bf16_f32 {d}, {x}, {x}', f'v_lshlrev_b32 {d}, 16, {d}']
    rstd = lambda d, x, fill: rbf(d, x) + [f'v_add_f32 {d}, 0x3727c5ac, {d}'] + rbf(d, d) + [f'v_sqrt_f32 {d}, {d}', fill[0]] + rbf(d, d) + [f'v_rcp_f32 {d}, {d}', fill[1]]
    for i in range(8): L.append(f'v_pk_add_f32 {Y.sub(2*i,2)}, {X.sub(2*i,2)}, {X.sub(2*i+16,2)}')
    for w in (4, 2, 1):
        for i in range(w): L.append(f'v_pk_add_f32 {Y.sub(2*i,2)}, {Y.sub(2*i,2)}, {Y.sub(2*(i+w),2)}')
    L.append(f'v_add_f32 {m}, {Y.sub(0)}, {Y.sub(1)}')
    L += halfsum([m], TM) + [f'v_mul_f32 {m}, 0x3a800000, {m}']
    L += [f'v_pk_add_f32 {X.sub(2*i,2)}, {X.sub(2*i,2)}, {M} op_sel_hi:[1,0] neg_lo:[0,1] neg_hi:[0,1]' for i in range(16)]
    L += [f'v_pk_mul_f32 {Vv}, {X.sub(0,2)}, {X.sub(0,2)}', f'v_pk_mul_f32 {TM}, {X.sub(2,2)}, {X.sub(2,2)}']
    for i in range(2, 16): L.append(f'v_pk_fma_f32 {[Vv, TM][i & 1]}, {X.sub(2*i,2)}, {X.sub(2*i,2)}, {[Vv, TM][i & 1]}')
    L += [f'v_pk_add_f32 {Vv}, {Vv}, {TM}', f'v_add_f32 {v}, {Vv.sub(0)}, {Vv.sub(1)}']
    L += halfsum([v], TM) + [f'v_mul_f32 {v}, 0x3a800000, {v}']
    L += rstd(r, v, rbf(mb, m))
    L += [f'v_mul_f32 {SV.sub(1)}, {f2h(cs)}, {r}', f'v_sub_f32 {m}, {m}, {mb}', f'v_mul_f32_e64 {SV.sub(0)}, -{mb}, {SV.sub(1)}']
    R_ = [f'v_mul_f32 {m}, {m}, {r}', f'v_mul_f32 {v}, {v}, {r}', f'v_mul_f32 {v}, {v}, {r}']
    R_ += rstd(v2, v, rbf(m2, m))
    R_ += [f'v_sub_f32 {m}, {m}, {m2}', f'v_mul_f32 {AB.sub(0)}, {r}, {v2}', f'v_mul_f32 {AB.sub(1)}, {m}, {v2}']
    R_ += [f'v_pk_fma_f32 {X.sub(2*i,2)}, {X.sub(2*i,2)}, {AB}, {AB} op_sel:[0,0,1] op_sel_hi:[1,0,1]' for i in range(16)]
    R_ += [f'v_cvt_pk_bf16_f32 {Y.sub(i)}, {X.sub(2*i)}, {X.sub(2*i+1)}' for i in range(16)]
    return L, R_
def unpack(X, Y):
    L = []
    for i in range(Y.n): L += [f'v_lshlrev_b32 {X.sub(2*i)}, 16, {Y.sub(i)}', f'v_and_b32 {X.sub(2*i+1)}, 0xffff0000, {Y.sub(i)}']
    return L

def q_epilogue(st, SR, bias=False):
    a = st.raw
    sw = lambda d: a(f'v_permlane16_swap_b32 {d.sub(0)}, {d.sub(2)}\nv_permlane16_swap_b32 {d.sub(1)}, {d.sub(3)}')
    for tt in range(4):
        for b in range(4):
            r = SR.sub(2 * b, 2)
            for jj in range(2):
                s_ = QACC.sub(((2 * tt + jj) * 4 + b) * 4, 4)
                for h in range(2): st.op(valu(f'v_pk_mul_f32 {s_.sub(2*h,2)}, {s_.sub(2*h,2)}, {r} op_sel:[0,1] op_sel_hi:[1,1]', rd=[r]))
            for jj in range(2):
                s_ = QACC.sub(((2 * tt + jj) * 4 + b) * 4, 4); c_ = Qf(2 + jj, tt)
                for h in range(2): st.op(valu(f'v_pk_fma_f32 {s_.sub(2*h,2)}, {c_.sub(2*h,2)}, {r}, {s_.sub(2*h,2)} op_sel_hi:[1,0,1]', rd=[c_]))
        for b in range(4):
            d = Qf(b, tt)
            for jj in range(2):
                s_ = QACC.sub(((2 * tt + jj) * 4 + b) * 4, 4)
                a(f'v_cvt_pk_bf16_f32 {d.sub(2*jj)}, {s_.sub(0)}, {s_.sub(1)}\nv_cvt_pk_bf16_f32 {d.sub(2*jj+1)}, {s_.sub(2)}, {s_.sub(3)}')
        for b in range(4): sw(Qf(b, tt))
    if bias:
        for e in range(bias):
            x = QACC.sub(16 * e, 16)
            for h in range(2):
                st.op(valu(f'v_lshlrev_b32 {x.sub(2*h)}, 16, {BIAS.sub(2*e+h)}', rd=[BIAS.sub(2 * e + h)]))
                a(f'v_and_b32 {x.sub(2*h+1)}, 0xffff0000, {BIAS.sub(2*e+h)}')
            for i in range(2, 8): a(f'v_mov_b64 {x.sub(2*i,2)}, {x.sub(2*(i&1),2)}')

def gen_k2(opt):
    st = Stream(); a = st.raw
    far = []
    A1, Y1 = opt.get('a1', 3), opt.get('y1', 3)
    NY = 2 * (A1 + Y1); NSY = 2 * NY
    GW = opt.get('g2w', 8)
    opt.setdefault('pf_w1', 1 if GW == 7 else 0)
    hasg2 = lambda d: f's_cmp_lt_u32 {sIDX}, {112 // GW}\ns_cselect_b32 {d}, {sROLE}, 0'
    t = vTMP
    a(f'{KNAME}:')
    a('s_cmp_ge_u32 s2, 256\ns_cbranch_scc1 L2_end')
    sp = Stamps(opt.get('stamp'), 1, 254)
    sp.stamp(st)
    RAW, LX, SC, HT = V(108, 16), V(124, 32), V(156, 8), V(196, 16)
    vLg, vLw, vHr, vHs, vSt, vZf, SV = V(212), V(213), V(214), V(215), V(216), V(217), V(218, 2)
    a(f"""s_load_dwordx2 s[68:69], s[0:1], 0
s_load_dwordx2 s[8:9], s[0:1], 24
v_lshrrev_b32 v{t+1}, 5, v0
v_and_b32 v{t+2}, 31, v0
v_lshlrev_b32 v{t+2}, 4, v{t+2}
v_lshl_add_u32 {vLg}, v{t+1}, 11, v{t+2}
v_lshlrev_b32 {vFL}, 7, v0
s_lshl_b32 {sT4}, s2, 14
s_lshl_b32 {sT}, s2, 15
s_mov_b32 s70, 4194304
s_mov_b32 s71, 0x20000
s_mov_b32 s10, 8388608
s_mov_b32 s11, 0x20000
s_waitcnt lgkmcnt(0)""")
    for i in range(4): st.op(vload(f'buffer_load_dwordx4 {RAW.sub(4*i,4)}, {vLg}, {sX}, {sT4} offen offset:{512*i}', RAW.sub(4 * i, 4)))
    if opt.get('pf_wq', 0): st.op(vload(f'buffer_load_dword {vDUM}, {vFL}, {sWQ}, {sT} offen'))
    a(f"""s_load_dwordx2 s[4:5], s[0:1], 96
s_lshr_b32 {sROLE}, s2, 7
s_cmp_eq_u32 {sROLE}, 0
s_cselect_b32 {sT}, 80, 48
s_cselect_b32 {sT2}, 64, 32
s_cselect_b32 {sT3}, 72, 56
s_load_dwordx2 s[20:21], s[0:1], {sT}
s_load_dwordx2 s[24:25], s[0:1], {sT2}
s_load_dwordx2 s[32:33], s[0:1], {sT3}
s_load_dwordx2 s[12:13], s[0:1], 8
s_load_dwordx2 s[16:17], s[0:1], 16
s_load_dwordx2 s[28:29], s[0:1], 32
s_load_dwordx2 s[72:73], s[0:1], 88
s_load_dwordx2 s[58:59], s[0:1], 48
s_mov_b32 s22, 14680064
s_cselect_b32 s26, s22, 8388608
s_cselect_b32 s22, 4194304, s22
s_movk_i32 s34, 7168
s_cselect_b32 s34, 4096, s34
v_lshrrev_b32 v{t}, 6, v0
v_mul_u32_u24 {vLw}, {LSTR}, v{t+1}
v_readfirstlane_b32 {sWAVE}, v{t}
v_add_u32 {vLw}, {vLw}, v{t+2}
v_and_b32 {vL16}, 63, v0
v_lshlrev_b32 {vPF}, 6, {vL16}
s_mov_b32 {sSTR}, 8192""")
    if opt.get('pf_code', 1):
        a(f's_getpc_b64 s[56:57]\nL2_pc:\ns_lshr_b32 {sT}, s2, 3\ns_lshl_b32 {sT}, {sT}, 2\ns_add_u32 {sT}, {sT}, {sWAVE}\ns_mul_i32 {sT}, {sT}, 704\ns_min_u32 {sT}, {sT}, L2_redo-L2_pc\ns_add_u32 s56, s56, {sT}\ns_addc_u32 s57, s57, 0\nv_lshrrev_b32 {vCO}, 2, {vPF}\nv_min_u32 {vCO}, 0x2b0, {vCO}')
        st.op(pfcode())
    for s, size in ((4, WS_SIZE), (12, 16777216), (16, 16777216), (20, 0), (24, 0), (28, 8388608), (32, 0), (72, 256)):
        if size: a(f's_mov_b32 s{s+2}, {size}')
        a(f's_mov_b32 s{s+3}, 0x20000')
    a(f"""s_bfe_u32 {sIDX}, s2, 0x40003
s_and_b32 {sSLOT}, s2, 7
s_lshr_b32 {sHEAD}, {sIDX}, 3
s_lshl_b32 {sQ64}, {sSLOT}, 1
s_add_u32 {sHEAD}, {sHEAD}, {sQ64}
s_cmp_eq_u32 {sROLE}, 0
s_cselect_b32 {sT}, {A1}, {Y1}
s_cselect_b32 {sT2}, {Y1}, {A1}
s_cselect_b32 {sQ64}, {Y1}, {16 - 2 * A1}
s_cmp_ge_u32 {sHEAD}, {sT}
s_cselect_b32 {sT2}, {sT2}, 0
s_addc_u32 {sGRP}, 1, 0
s_lshl_b32 {sT}, {sT}, 1
s_cmp_ge_u32 {sHEAD}, {sT}
s_cselect_b32 {sQ64}, {sQ64}, 0
s_addc_u32 {sGRP}, {sGRP}, 0
s_mul_i32 {sGRP}, {sGRP}, {sROLE}
s_mul_i32 {sT}, {sROLE}, {A1}
s_add_u32 {sHEAD}, {sHEAD}, {sT}
s_add_u32 {sHEAD}, {sHEAD}, {sT2}
s_add_u32 {sHEAD}, {sHEAD}, {sQ64}
s_and_b32 {sQ64}, {sIDX}, 7
s_lshl_b32 {sQ64}, {sQ64}, 2
s_add_u32 {sQ64}, {sQ64}, {sWAVE}
s_lshl_b32 {sLDS}, {sWAVE}, 12
s_lshl_b32 {sQW}, {sHEAD}, 8
s_lshl_b32 {sQA}, {sQ64}, 17
s_add_u32 {sQA2}, {sQA}, 65536""")
    accq = lambda e, b: QACC.sub((e * 4 + b) * 4, 4)
    acc3 = lambda e, b: accq(e, 2 + b)
    gq = GemmX('Q', 16, 4, accq, A(128, 128), A(0, 32), vWa, 'id', sWQ, vWq, sQW, 8192, QRING, sLDS, sX, None, sQA, lead=3, uni=True, dist=2)
    gq.xsetup(XSLOT, vXd, vXa, sQA2, ONESQ, IDXQ, CS)
    gq.bar_rd = [('x', 0)]
    RQ = opt.get('rq', 0)
    if RQ:
        tabs = [sum(((((k + 1) ^ r if k < 3 else 4 + r) - (k ^ r)) & 0xff) << (8 * k) for k in range(4)) for r in range(4)]
        a(f"""s_lshr_b32 {sT}, s2, 6
s_add_u32 {sT}, {sT}, {sIDX}
s_and_b32 {sT}, {sT}, {RQ}
s_bitcmp1_b32 {sT}, 0
s_mov_b32 {sPF}, {tabs[0]}
s_cselect_b32 {sPF}, {tabs[1]}, {sPF}
s_mov_b32 {sT2}, {tabs[2]}
s_cselect_b32 {sT2}, {tabs[3]}, {sT2}
s_bitcmp1_b32 {sT}, 1
s_cselect_b32 {sPF}, {sT2}, {sPF}
s_lshl_b32 {sT2}, {sT}, 19
s_add_u32 {sQW}, {sQW}, {sT2}
s_lshl_b32 {sT2}, {sT}, 7
s_add_u32 {sQA}, {sQA}, {sT2}
s_add_u32 {sQA2}, {sQA2}, {sT2}""")
        gq.rtab = sPF
    g2 = Gemm('G', 32, 4, accq, A(128, 128), A(0, 32), vWa, 'id', sW1, vWg, sW3, 0, QRING, sLDS, sWS, vL16, sA3, avoff2=vL16b, lead=3, uni=True, winc=sGI, ainc=sGJ, dist=2, asuf=' sc1', NW=GW)
    kwn = dict(avoff2=vA1, asuf=' sc1', winc=sNI, ainc=sNJ, lead=3, uni=True, dist=2, aoff=2, split=True)
    g4 = Gemm('N', 28, 4, accq, A(128, 128), Q.sub(0, 32), vWa, 'blk', sWN, vWq, sGW, 0, KBASE, sLDS, sWS, vA0, sGA, swap=True, **kwn)
    g3y = Gemm('N', NY, 4, accq, A(128, 128), Q.sub(0, 32), vWa, 'blk', sWN, vWq, sGW, 0, KBASE, sLDS, sWS, vA0, sGA, **kwn)
    g3s = Gemm('S', 64 - NSY, 2, acc3, A(0, 64), A(64, 32), vVa, 'blk', sWO, vWg, sW3, 0, VBASE, sLDS, sWS, vL16, sA3, asuf=' sc1', winc=sSI, ainc=sSJ)
    for g_ in (gq, g2, g4, g3y, g3s): g_.zig = opt.get('zig', 0)
    a('\n'.join(wvoff_setup(vWq, sSTR, 'id', t)))
    rest = gq.window(0) + gq.window(1) + gq.window(2)[:2]
    early = opt.get('early', 12)
    a(f'v_bfe_u32 v{t}, v0, 3, 3\nv_and_b32 v{t+1}, 7, v0\nv_lshrrev_b32 v{t+2}, 1, v{t}\nv_xor_b32 v{t+1}, v{t+1}, v{t+2}\nv_lshlrev_b32 v{t+1}, 4, v{t+1}\nv_lshl_add_u32 {vXd.sub(0)}, v{t}, 11, v{t+1}')
    a(f'v_xor_b32 {vXd.sub(1)}, 64, {vXd.sub(0)}\nv_add_u32 {vXd.sub(1)}, {16384-1024}, {vXd.sub(1)}\nv_add_u32 {vXd.sub(2)}, {2*(16384-1024)}, {vXd.sub(0)}\nv_add_u32 {vXd.sub(3)}, {2*(16384-1024)}, {vXd.sub(1)}')
    gq.issue(st, rest[:early]); del rest[:early]
    a(f'v_lshlrev_b32 {vL16}, 4, {vL16}\nv_cmp_eq_u32 vcc, 3, v{t}\nv_add_u32 v{t+1}, {SHADOW}, {vL16}\ns_nop 0\nv_cndmask_b32 {vL16}, {vL16}, v{t+1}, vcc\nv_add_u32 {vL16b}, 4096, {vL16}')
    PD = opt.get('pd', 4)
    if PD:
        a(f"""s_and_b32 {sT}, {sQ64}, 31
s_lshl_b32 {sT}, {sT}, 14
v_bfe_u32 v{t}, v0, 2, 1
v_bfe_u32 v{t+1}, v0, 3, 1
v_lshlrev_b32 v{t}, 7, v{t}
v_lshl_add_u32 v{t}, v{t+1}, 13, v{t}
v_add_u32 v{t}, {sT}, v{t}
v_add_u32 v49, {PD * 524288}, v{t}
v_bfe_u32 v{t+1}, v0, 4, 2
v_min_u32 v{t+1}, {PD - 1}, v{t+1}
v_lshl_add_u32 v50, v{t+1}, 19, v{t}
s_lshl_b32 {sP1}, {sHEAD}, 8
s_add_u32 {sP1}, {sP1}, {(4 if RQ else 3) * 524288}""")
        rest.insert(opt.get('ppos', 0), ([], vload(f'buffer_load_dword {vDUM}, v50, {sWQ}, {sP1} offen'), []))
    a('\n'.join(waddr_setup(vWa, QRING, 'id', t)))
    a(f's_lshl_b32 {sROT}, {sWAVE}, 6')
    for e in range(8): a(f'v_xor_b32 {vWa.sub(e)}, {sROT}, {vWa.sub(e)}')
    a(f"""v_and_b32 v{t}, 15, v0
v_bfe_u32 v{t+1}, v0, 4, 2
v_lshrrev_b32 v{t+2}, 1, v{t}
v_xor_b32 v{t+2}, v{t+2}, v{t+1}
v_lshlrev_b32 v{t+2}, 4, v{t+2}
v_lshl_add_u32 v{t+2}, v{t}, 7, v{t+2}
s_add_u32 {sT}, {sLDS}, {min(XSLOT)}
v_add_u32 {vXa.sub(0)}, {sT}, v{t+2}
v_xor_b32 {vXa.sub(1)}, 64, {vXa.sub(0)}
s_add_u32 {sT}, {sLDS}, {CSB}
v_lshl_add_u32 {vCw}, v{t}, 2, {sT}
v_lshl_add_u32 {vCr.sub(0)}, v{t+1}, 4, {sT}
v_xor_b32 {vCr.sub(1)}, 0x1000, {vCr.sub(0)}
v_xor_b32 {vCr.sub(2)}, 0x2000, {vCr.sub(0)}
v_xor_b32 {vCr.sub(3)}, 0x3000, {vCr.sub(0)}
v_and_b32 {IDXQ}, 1, v0
v_sub_u32 {IDXQ}, 0, {IDXQ}
v_and_b32 {IDXQ}, 0xaaaaaaaa, {IDXQ}
v_or_b32 {IDXQ}, 0x44444444, {IDXQ}
v_mov_b32 {vZERO}, 0
v_mov_b32 {vONE}, 1
v_bfe_u32 {vHr}, v0, 2, 2
v_mul_u32_u24 {vHr}, {LSTR}, {vHr}
v_lshrrev_b32 v{t+2}, 4, v0
v_lshl_add_u32 {vHr}, v{t+2}, 5, {vHr}
v_and_b32 v{t+2}, 3, v0
v_lshl_add_u32 {vHr}, v{t+2}, 3, {vHr}
v_lshlrev_b32 {vHs}, 10, v{t+1}
v_lshl_add_u32 {vHs}, v{t}, 4, {vHs}
s_and_b32 {sT}, s2, 3
s_lshl_b32 {sT}, {sT}, 8
v_add_u32 {vHs}, {sT}, {vHs}
v_bfe_u32 v{t+2}, {vHs}, 7, 3
v_cmp_eq_u32 vcc, 3, v{t+2}
v_add_u32 v{t+3}, {SHADOW}, {vHs}
s_lshr_b32 {sT2}, s2, 2
v_cndmask_b32 {vHs}, {vHs}, v{t+3}, vcc
s_lshl_b32 {sT2}, {sT2}, 12
s_lshl_b32 {sT}, {sWAVE}, 18
s_add_u32 {sT2}, {sT2}, {sT}
s_add_u32 {sT2}, {sT2}, {HF}
v_and_b32 v{t+2}, 31, v0
v_cmp_eq_u32 vcc, 0, v{t+2}
v_lshrrev_b32 {vSt}, 2, v0
v_mov_b32 v{t+3}, 0x40000000
v_cndmask_b32 {vSt}, v{t+3}, {vSt}, vcc
v_cmp_gt_u32 vcc, 0x80, v0
v_lshlrev_b32 {vZf}, 2, v0
s_lshl_b32 {sT3}, s2, 7
v_cndmask_b32 {vZf}, v{t+3}, {vZf}, vcc
s_lshl_b32 {sT4}, s2, 9
s_add_u32 {sT4}, {sT4}, {FL}
s_bfe_u32 {sSIG}, s2, 0x20004
s_and_b32 {sSIG}, {sSIG}, {opt.get('sigsp', 3)}
s_add_u32 {sSIG}, {sSIG}, 3
s_bfe_u32 {sFU}, s2, 0x10003
s_lshl_b32 {sFU}, {sFU}, 7
s_mov_b32 {sMODE}, 0
s_cmp_eq_u32 {sWAVE}, 0
s_cselect_b32 {sSIG}, {sSIG}, 0
s_cselect_b32 {sRDY}, 0x80, 0
s_cselect_b32 {sP0}, 0, 0x1000""")
    if opt.get('xq') == 'nopoll': a(f's_mov_b32 {sRDY}, 0\ns_mov_b32 {sP0}, 0x1000')
    if opt.get('xq') == 'nosig': a(f's_mov_b32 {sRDY}, 0\ns_mov_b32 {sP0}, 0x1000\ns_mov_b32 {sSIG}, 0')
    assert STAT == 0
    for i in range(4): a(f'v_mov_b32 {ONESQ.sub(i)}, 0x3f803f80\nv_mov_b64 {CS.sub(2*i,2)}, 0')
    cs = math.log2(math.e) / math.sqrt(128.0)
    zq = [f'v_mov_b64 {QACC.sub(2*i,2)}, 0' for i in range(64)]
    a('\n'.join(zq[28:44] + zq[56:]) + '\ns_waitcnt lgkmcnt(0)')
    st.op(valu(unpack(LX, RAW)[0], rd=[RAW]))
    sp.stamp(st)
    l1, l2 = layernorm2(LX, RAW, SC, SV, cs)
    ln = unpack(LX, RAW)[1:] + l1
    ln += [vstore(f'buffer_store_dwordx2 {SV}, {vSt}, {sWS}, {sT3} offen sc1'), vstore(f'buffer_store_dword {vZERO}, {vZf}, {sWS}, {sT4} offen sc1')]
    ln += l2
    nin = opt.get('nin', 12)
    step = len(ln) // (nin + 1)
    for k, x in enumerate(ln):
        if isinstance(x, Op): st.op(x)
        else: a(x)
        if k % step == step - 1 and nin and rest: gq.issue(st, [rest.pop(0)]); nin -= 1
    for i in range(4): st.op(Op(f'ds_write_b128 {vLw}, {RAW.sub(4*i,4)} offset:{512*i}', 'ds'))
    zz = zq[8:28]
    gq.issue(st, rest, lambda: a('\n'.join(zz.pop() for _ in range(min(2, len(zz))))))
    a('\n'.join(zz))
    st.op(barrier(['Q0'], lg0=True))
    for i in range(4):
        for tt in range(2): st.op(ds_tr(HT.sub(4 * i + 2 * tt, 2), vHr, 512 * i + 4 * LSTR * tt))
    a('\n'.join(zq[:8]))
    for i in range(4):
        st.op(vstore(f'buffer_store_dwordx4 {HT.sub(4*i,4)}, {vHs}, {sWS}, {sT2} offen sc1', rd=[HT.sub(4 * i, 4)]))
        a(f's_add_u32 {sT2}, {sT2}, {1 << 20}')
        st.ops(gq.xreads(0, i))
    st.ops(gq.reads(0))
    a('\n'.join(zq[44:56]))
    st.ops(gq.reads(1))
    sp.stamp(st)
    for k in range(4): far.append(f'L2_sl{k}:\n{signal(sFU, sDBG)}\ns_branch L2_sl{k}_r')
    def qx(s, e):
        if e == 2: return {3: [salu(f's_add_u32 {sMODE}, {sMODE}, 1')], 7: [salu(f's_cmp_eq_u32 {sMODE}, {sSIG}'), salu(f's_cbranch_scc1 L2_sl{s % 4}'), salu(f'L2_sl{s % 4}_r:')]}
        if e == 5 and PD: return {1: [vload(f'buffer_load_dword {vDUM}, v49, {sWQ}, {sQW} offen')]}
        return {}
    gq.loop(st, 'L2_q', sCNT, extra=qx)
    a(hasg2(sT) + f'\ns_cmp_lg_u32 {sT}, 0\ns_cbranch_scc1 L2_G')
    sg = st.fork(); spg = sp.n
    def q_last_extra(s_, SR, nm):
        ld = f'buffer_load_dword v75, v74, {sDBG}, {sP0} offen sc1'
        far.append(f'{nm}:\ns_mov_b32 {sCNT}, {-(1 << 20)}\n{nm}1:\n{ld}\ns_add_u32 {sCNT}, {sCNT}, 1\ns_cbranch_scc1 {nm}_x\ns_sleep 8\ns_waitcnt vmcnt(0)\n'
                   f'v_cmp_gt_u32 vcc, {sRDY}, v75\ns_nop 4\ns_cbranch_vccnz {nm}1\n{nm}_x:\ns_waitcnt vmcnt(0)\ns_branch {nm}_r')
        def f(s, e):
            if s == 12 and e == 2: return {3: [valu('v_and_b32 v74, 1, v0'), valu('v_lshlrev_b32 v74, 7, v74')], 7: [vload(ld, V(75))]}
            if s == 13 and e == 5: return {1: [valu(f'v_cmp_gt_u32 vcc, {sRDY}, v75', rd=[V(75)])], 5: [salu(f's_cbranch_vccnz {nm}'), salu(f'{nm}_r:')]}
            if s == 12 and e == 0: return {3: [valu(f'v_bfe_u32 v72, v0, 3, 1'), valu(f'v_and_b32 v73, 7, v0')], 7: [valu('v_lshlrev_b32 v72, 7, v72'), valu('v_lshl_add_u32 v72, v73, 3, v72')]}
            if s == 12 and e == 1: return {3: [salu(f's_lshl_b32 {sP1}, {sQ64}, 10')]}
            if s == 14 and e in (5, 6):
                return {g: [vload(f'buffer_load_dwordx2 {SR.sub(2*n,2)}, v72, {sWS}, {sP1} offen offset:{256*n} sc1', SR.sub(2 * n, 2))] for g, n in ((1, 2 * (e - 5)), (5, 2 * (e - 5) + 1))}
            if s == 15 and e == 3:
                return {3: [valu(f'v_add_f32 {CS.sub(4*k)}, {CS.sub(4*k)}, {CS.sub(4*k+1)}') for k in range(2)],
                        7: [Op(f'ds_write2_b32 {vCw}, {CS.sub(0)}, {CS.sub(4)} offset0:0 offset1:16', 'ds', wr=[('x', 0)])]}
            if s == 15 and e == 6: s_.push([ds_128(Qf(2 + (k & 1), k >> 1), vCr.sub(k >> 1), 64 * (k & 1)) for k in range(8)])
            return {}
        return f

    su_kv = f's_lshl_b32 {sKV0}, {sHEAD}, 19\ns_mov_b32 {sK}, {sKV0}\ns_mov_b32 {sV}, {sKV0}\n'
    su_kv += f'v_bfe_u32 v{t}, v0, 4, 2\nv_lshrrev_b32 v{t+1}, 6, v0\nv_lshl_add_u32 v{t+1}, v{t+1}, 4, v{t}\nv_lshlrev_b32 v{t+1}, 8, v{t+1}\nv_and_b32 v{t+2}, 15, v0\n'
    for i in range(4):
        su_kv += f'v_or_b32 v{t+3}, {4*i}, v{t}\nv_xor_b32 v{t+3}, v{t+3}, v{t+2}\nv_lshl_add_u32 {vKd.sub(i)}, v{t+3}, 4, v{t+1}\n'
    for i in range(2):
        su_kv += f'v_or_b32 v{t+3}, {4*i}, v{t}\nv_lshlrev_b32 v{t+3}, 1, v{t+3}\nv_xor_b32 v{t+3}, v{t+3}, v{t+2}\nv_lshl_add_u32 {vVd.sub(i)}, v{t+3}, 4, v{t+1}\n'
    su_kv += f'v_and_b32 v{t+1}, 1, v{t}\nv_lshlrev_b32 v{t+1}, 1, v{t+1}\nv_lshrrev_b32 v{t+3}, 1, v{t}\nv_or_b32 v{t+1}, v{t+1}, v{t+3}\n'
    su_kv += f's_lshl_b32 {sT}, {sWAVE}, 2\nv_xor_b32 v{t+1}, {sT}, v{t+1}\nv_xor_b32 v{t+1}, v{t+1}, v{t+2}\nv_lshlrev_b32 v{t+2}, 8, v{t+2}\n'
    for i in range(4):
        su_kv += f'v_xor_b32 v{t+3}, {4*i}, v{t+1}\nv_lshl_add_u32 {vKa.sub(i)}, v{t+3}, 4, v{t+2}\n'
    su_kv += '\n'.join(waddr_setup(vVa, VBASE, 'blk', t))
    su_g2 = f"""s_and_b32 {sT3}, {sSLOT}, 1
s_lshl_b32 {sT3}, {sT3}, 1
s_and_b32 {sT}, {sIDX}, 1
s_add_u32 {sT3}, {sT3}, {sT}
s_lshl_b32 {sT}, {sT3}, 8
s_add_u32 {sFU}, {sT}, {FL + 8192}
s_lshr_b32 {sT}, {sSLOT}, 1
s_mul_i32 {sT}, {sT}, {56 // GW}
s_lshr_b32 {sT4}, {sIDX}, 1
s_add_u32 {sT}, {sT}, {sT4}
s_add_u32 {sT4}, {sT4}, {sIDX}
s_and_b32 {sT4}, {sT4}, {opt.get('rotg', 1)}
s_mul_i32 {sW3}, {sT}, {32 * GW}
s_and_b32 {sR0}, {sT}, {GW & 1}
s_lshl_b32 {sB}, {sR0}, 5
s_add_u32 {sB}, {sB}, {sW3}
s_mul_i32 {sBN}, {sR0}, -224
s_add_u32 {sBN}, {sBN}, {sB}
s_mul_i32 {sU}, {sT}, {GW}
s_add_u32 {sU}, {sU}, {sR0}
s_lshl_b32 {sU}, {sU}, 10
s_mul_i32 {sQA}, {sR0}, {8 - 4 * 2048}
s_add_u32 {sQA}, {sQA}, {3 * 2048}
s_lshl_b32 {sR0}, {sR0}, 1
s_lshl_b32 {sT}, {sT3}, 2
s_add_u32 {sT}, {sT}, {sWAVE}
s_lshl_b32 {sA3}, {sT}, 18
s_add_u32 {sA3}, {sA3}, {HF}
s_mul_i32 {sT}, {sT}, {2*112*2048}
s_add_u32 {sU}, {sU}, {sT}
s_add_u32 {sU}, {sU}, {UF}
s_movk_i32 {sSTR}, 7168
""".replace(sQA + ',', sGA + ',') + rot_setup(sT4, sW3, sA3, sGI, sGJ, 64 * 7168, 8192) + '\n' + '\n'.join(wvoff_setup(vWg, sSTR, 'id', t, sR0 if GW == 7 else None))
    su_g2 += f'\nv_bfe_u32 {vFL}, v0, 4, 2\nv_lshlrev_b32 {vFL}, 3, {vFL}'
    su_n = f"""s_lshl_b32 {sO}, {sQ64}, 19
s_lshl_b32 {sT}, {sHEAD}, 13
s_add_u32 {sO}, {sO}, {sT}
s_add_u32 {sO}, {sO}, {OF}
s_lshl_b32 {sT2}, {sGRP}, 3
s_and_b32 {sT}, {sIDX}, 7
s_add_u32 {sT}, {sT}, {sT2}
s_lshl_b32 {sT}, {sT}, 8
s_add_u32 {sFO}, {sT}, {FL}
s_and_b32 {sST}, {sSLOT}, 3
s_lshl_b32 {sST}, {sST}, 2
s_and_b32 {sT}, {sIDX}, 3
s_add_u32 {sST}, {sST}, {sT}
s_and_b32 {sDT}, {sSLOT}, 4
s_lshr_b32 {sT}, {sIDX}, 2
s_add_u32 {sDT}, {sDT}, {sT}
s_lshl_b32 {sT}, {sST}, 3
s_add_u32 {sT}, {sT}, {sDT}
s_lshl_b32 {sT}, {sT}, 2
s_add_u32 {sT}, {sT}, {sWAVE}
s_mov_b32 {sG}, {sT}
s_lshl_b32 {sT}, {sIDX}, 3
s_add_u32 {sT}, {sT}, {sSLOT}
s_lshl_b32 {sT}, {sT}, 2
s_add_u32 {sT}, {sT}, {sWAVE}
s_mul_i32 {sPF0}, {sT}, 28672
s_mov_b32 {sMODE}, 0
s_lshl_b32 {sT2}, {sST}, 2
s_add_u32 {sT2}, {sT2}, {sWAVE}
s_lshl_b32 {sR0}, {sT2}, 16
s_lshl_b32 {sT3}, {sDT}, 8
s_add_u32 {sR0}, {sR0}, {sT3}
s_add_u32 {sR1}, {sR0}, 32768
s_andn2_b32 {sT2}, {sT2}, 4
s_lshl_b32 {sT2}, {sT2}, 18
s_add_u32 {sT2}, {sT2}, {OF}
s_and_b32 {sT}, {sST}, 1
s_mul_i32 {sT4}, {sT}, {NY * 4096}
s_add_u32 {sT2}, {sT2}, {sT4}
s_mul_i32 {sT4}, {sT}, {NY * 64 * 2048}
s_add_u32 {sT3}, {sT3}, {sT4}
s_andn2_b32 {sT}, {sDT}, 1
s_lshl_b32 {sT}, {sT}, 2
s_add_u32 {sT}, {sT}, {sWAVE}
s_mul_i32 {sGA0}, {sT}, {112*2048}
s_add_u32 {sGA0}, {sGA0}, {UF}
s_and_b32 {sT}, {sDT}, 1
s_mul_i32 {sT4}, {sT}, {28 * 4096}
s_add_u32 {sGA0}, {sGA0}, {sT4}
s_mul_i32 {sGW0}, {sT}, {28 * 64 * 4096}
s_lshl_b32 {sT4}, {sST}, 8
s_add_u32 {sGW0}, {sGW0}, {sT4}
s_lshr_b32 {sFW}, {sDT}, 1
s_add_u32 {sROT}, {sFW}, {sST}
s_add_u32 {sFW}, {sFW}, 32
s_lshr_b32 {sTG}, {sST}, 1
s_add_u32 {sT}, {sTG}, {sDT}
s_cmp_eq_u32 {sROLE}, 0
s_cselect_b32 {sGA0}, {sGA0}, {sT2}
s_cselect_b32 {sGW0}, {sGW0}, {sT3}
s_cselect_b32 {sROT}, {sROT}, {sT}
s_cselect_b32 {sBN}, {sT4}, 0x10000
s_cselect_b32 {sFW}, {sFW}, {sTG}
s_cselect_b32 {sTG}, {224 // GW}, 16
s_lshl_b32 {sFW}, {sFW}, 8
s_add_u32 {sFW}, {sFW}, {FL}
{hasg2(sSIG)}
s_cmp_eq_u32 {sWAVE}, 0
s_cselect_b32 {sSIG}, {sSIG}, 0
s_mul_i32 {sSIG}, {sSIG}, -7
s_lshr_b32 {sSTR}, 4096, {sROLE}
s_lshl_b32 {sT3}, {sSTR}, 6
s_and_b32 {sROT}, {sROT}, {opt.get('rot', 1)}
"""
    su_n2 = rot_setup(sROT, sGW0, sGA0, sNI, sNJ, sT3, 4096) + '\n' + '\n'.join(wvoff_setup(vWq, sSTR, 'blk', t))
    su_n2 += f'\nv_mov_b32 v{t+1}, {FLAG}'
    pre_kv = kdma(0) + kdma(1) + vdma(0) + vdma(1) + kdma(2)
    kvtail = lambda i: pre_kv[i * 12:(i + 1) * 12]
    def last_before_att(g, s_, pre, more=None):
        n = g.nst
        def ex(s, e):
            if s == n - 4 and e == 0: s_.push(parse(su_kv) + parse(pre) + parse(su_n))
            if s == n - 3 and e == g.NW - 2: assert len(s_.q) <= len(parse(su_n)) + 40, len(s_.q)
            if s == n - 2 and e == 0: s_.push(parse(su_n2))
            if s == n - 1 and e == g.NW - 2: assert not s_.q
            r = more(s, e) if more else {}
            if s == n - 1 and e == g.NW - 2:
                s_.push([kread(0, 0, tt) for tt in range(4)] + [kread(0, 1, 0), Op(f'ds_write_b32 v{t+1}, {vZERO}', 'ds')])
                s_.push([valu(f'v_subrev_u32 {vWa.sub(e_)}, {VBASE - KBASE}, {vVa.sub(e_)}') for e_ in range(8)])
            return r
        g.last(s_, kvtail, ex, last_bar=['K0'])
        s_.flush()
    qa = q_last_extra(st, BIAS.sub(0, 8), 'L2_wa')
    def qs(s, e):
        if s == 13 and e == 1:
            st.push(parse(f's_mov_b32 s8, s58\ns_mov_b32 s9, s59\ns_cmp_eq_u32 {sROLE}, 0\ns_cselect_b32 s10, 14680064, 0\ns_lshl_b32 {sQW}, s2, 2\ns_add_u32 {sQW}, {sQW}, {sWAVE}\ns_lshl_b32 {sQW}, {sQW}, 12'))
        if (s, e) in [tuple(x) for x in opt.get('pfpos', [(15, 7)])] and opt.get('pf_w1', 1): st.push(pfw1())
        return qa(s, e)
    last_before_att(gq, st, '', qs)
    sp.stamp(st)
    q_epilogue(st, BIAS.sub(0, 8))
    sp.stamp(st); sp.stamp(st)
    a('L2_join:')
    pre = [f'v_mov_b32 {ONES.sub(i)}, 0x3f803f80' for i in range(4)]
    pre += f'v_and_b32 {vIDX}, 1, v0\nv_sub_u32 {vIDX}, 0, {vIDX}\nv_and_b32 {vIDX}, 0xaaaaaaaa, {vIDX}\nv_or_b32 {vIDX}, 0x44444444, {vIDX}'.split('\n')
    M = P.sub(16, 4)
    mx = lambda b: [valu(f'v_max3_f32 {M.sub(b)}, {P.sub(4*b)}, {P.sub(4*b+1)}, {P.sub(4*b+2)}'), valu(f'v_max_f32 {M.sub(b)}, {M.sub(b)}, {P.sub(4*b+3)}')]
    mf = [mfma(P.sub(4 * b, 4), Kf(0, tt), Qf(b, tt), P.sub(4 * b, 4) if tt else 0) for b in range(4) for tt in range(4)]
    fl = [[] for _ in mf]
    for i in range(4): fl[4 + i] = [valu(x) for x in pre[2 * i:2 * i + 2]]
    fl[8] = mx(0); fl[15] = mx(1) + [salu('s_nop 1')] + mx(2) + [salu('s_nop 1')] + mx(3)
    a('s_nop 0')
    st.gaps(mf, fl)
    negm_finish(a, M, opt.get('margin', MARGIN))
    RC, PA = opt.get('rc', [0]), opt.get('pa', 3)
    sRCM, sRCF = sQA, sQA2
    a(f's_mov_b32 {sRCM}, {sum(1 << ((k - 7) & 31) for k in RC)}\ns_mov_b32 {sRCF}, 0')
    sp.stamp(st)
    a('L2_att:')
    a(f'v_mov_b64 {P.sub(32,2)}, 0\nv_mov_b64 {P.sub(34,2)}, 0')
    a(f's_mov_b32 {sGW}, {sGW0}\ns_mov_b32 {sGA}, {sGA0}\ns_mov_b32 {sPF}, {sPF0}')
    def sig_end(name, soff):
        far.append(f'{name}:\n{signal(soff)}\ns_mov_b32 {sSIG}, 0\ns_branch {name}_r')
        return f's_cmp_eq_u32 {sCNT}, {sSIG}\ns_cbranch_scc1 {name}\n{name}_r:'
    usig = sig_end('L2_su', sFU)
    far.append(f'L2_wn:\n{spin("L2_wn1", sFW, sTG)}\ns_branch L2_wn_r')
    far.append(f'L2_bad:\nds_write_b32 v{t+1}, {vONE}\ns_waitcnt lgkmcnt(0)\ns_branch L2_bad_r')
    su_s = f's_lshl_b32 {sW3}, {sDT}, 8\ns_add_u32 {sW3}, {sW3}, {NSY*64*2048}\ns_lshl_b32 {sT}, {sST}, 2\ns_add_u32 {sT}, {sT}, {sWAVE}\ns_lshl_b32 {sA3}, {sT}, 18\ns_add_u32 {sA3}, {sA3}, {OF + NSY*4096}\n'
    su_s += f's_add_u32 {sT3}, {sST}, {sDT}\ns_and_b32 {sT3}, {sT3}, {opt.get("rot", 1)}\n' + rot_setup(sT3, sW3, sA3, sSI, sSJ, 64 * 2048, 4096)
    su_s += f'\nv_bfe_u32 v{t+2}, v0, 4, 2\nv_lshrrev_b32 v{t+3}, 6, v0\nv_lshl_add_u32 v{t+2}, v{t+3}, 4, v{t+2}\nv_lshlrev_b32 v{t+2}, 11, v{t+2}'
    for i in range(4): su_s += f'\nv_sub_u32 {vWg.sub(i)}, {vWq.sub(i)}, v{t+2}' + (f'\nv_subrev_u32 {vWg.sub(i)}, {4*i*2048}, {vWg.sub(i)}' if i else '')
    su_a = f's_and_b32 {sT3}, {sDT}, 1\ns_mov_b32 {sT2}, {1 << 20}\ns_cmp_eq_u32 {sROLE}, 0\ns_cselect_b32 {sT2}, {4*112*2048}, {sT2}\ns_cselect_b32 {sT3}, {sT3}, 0\n'
    su_a += f's_mul_i32 {sT3}, {sT3}, {sT2}\ns_sub_u32 {sT2}, {sT2}, {sT3}\nv_add_u32 {vA0}, {sT3}, {vL16}\nv_add_u32 {vA1}, {sT2}, {vL16}'
    FR, TR = V(222, 8), V(230, 4)
    mg = int(opt.get('margin', MARGIN))
    ra = f'L2_ra:\ns_mov_b32 {sRCF}, 1\ns_nop 7\n'
    for b in range(4): ra += f'v_add_f32 {TR.sub(b)}, {LS.sub(4*b)}, {LS.sub(4*b+1)}\n'
    for b in range(4): ra += f'v_frexp_exp_i32_f32 {TR.sub(b)}, {TR.sub(b)}\n'
    for b in range(4): ra += f'v_sub_u32 {TR.sub(b)}, {1 - mg}, {TR.sub(b)}\n'
    for b in range(4): ra += f'v_ldexp_f32 {FR.sub(2*b)}, 1.0, {TR.sub(b)}\nv_cvt_f32_i32 {TR.sub(b)}, {TR.sub(b)}\n'
    for b in range(4):
        for i in range(4): ra += f'v_add_f32 {NEGM.sub(4*b+i)}, {NEGM.sub(4*b+i)}, {TR.sub(b)}\n'
    rb = f'L2_rb:\ns_mov_b32 {sRCF}, 0\nv_mov_b32 {TR.sub(1)}, 0x7f800000\ns_nop 7\n'
    for b in range(4):
        rb += f'v_add_f32 {TR.sub(0)}, {LS.sub(4*b)}, {LS.sub(4*b+1)}\nv_cmp_ge_f32 vcc, 0x47800000, {TR.sub(0)}\ns_nop 1\nv_cndmask_b32 {FR.sub(2*b)}, {TR.sub(1)}, {FR.sub(2*b)}, vcc\n'
        rb += f'v_pk_mul_f32 {LS.sub(4*b,2)}, {LS.sub(4*b,2)}, {FR.sub(2*b,2)} op_sel_hi:[1,0]\n'
    for k in range(32):
        for i in range(4): rb += f'v_accvgpr_read_b32 {TR.sub(i)}, {O.sub(4*k+i)}\n'
        for h in (0, 2): rb += f'v_pk_mul_f32 {TR.sub(h,2)}, {TR.sub(h,2)}, {FR.sub(2*(k & 3),2)} op_sel_hi:[1,0]\n'
        for i in range(4): rb += f'v_accvgpr_write_b32 {O.sub(4*k+i)}, {TR.sub(i)}\n'
    if RC: far += [ra + 's_branch L2_ra_r', rb + 's_branch L2_rb_r']
    marks = []
    for j in range(-1, 31):
        if 0 <= j <= 28 and j % 4 == 0: marks.append(st.mark())
        if j == 28: st.push(parse(su_a))
        if j == 30: st.push(flat(g4.window(0)[4:]) + parse(su_s))
        att_iter(st, j, g4, opt)
        assert not st.q
        if RC and 0 <= j < 28 and j % 4 == PA: a(f's_bitcmp1_b32 {sRCM}, {sCNT}\ns_cbranch_scc1 L2_ra\nL2_ra_r:')
        if RC and 0 <= j < 28 and j % 4 == (PA + 1) % 4: a(f's_cmp_lg_u32 {sRCF}, 0\ns_cbranch_scc1 L2_rb\nL2_rb_r:')
        if 0 <= j < 28 and j % 4 == 3: a(usig)
    st.fold(marks, 'L2_loop', sCNT)
    w1_ = flat(g4.window(1)[4:])
    st.push([10] + w1_[:5])
    st.push([valu(f'v_add_f32 {LS.sub(4*b)}, {LS.sub(4*b)}, {LS.sub(4*b+1)}') for b in range(4)])
    st.push(parse(f'v_add_f32 v{t+2}, {LS.sub(0)}, {LS.sub(4)}\nv_add_f32 v{t+3}, {LS.sub(8)}, {LS.sub(12)}\nv_add_f32 v{t+2}, v{t+2}, v{t+3}\nv_cmp_nge_f32 vcc, 0x47800000, v{t+2}'))
    st.push([valu(f'v_rcp_f32 {LS.sub(4*b)}, {LS.sub(4*b)}') for b in range(2)])
    st.push([[salu('s_cbranch_vccnz L2_bad'), salu('L2_bad_r:')], barrier(['N0']), Op(f'ds_read_b32 v{t}, v{t+1}', 'ds', wr=V(t).set())])
    st.push([valu(f'v_rcp_f32 {LS.sub(4*b)}, {LS.sub(4*b)}') for b in range(2, 4)])
    st.push(w1_[5:])
    st.push([valu(f'v_readfirstlane_b32 {sT}, v{t}', rd=[V(t)])])
    st.push([valu(f'v_mov_b32 {LS.sub(4*b+1)}, {LS.sub(4*b)}') for b in range(4)])
    st.push([[salu(f's_cmp_gt_u32 {sT}, {sMODE}'), salu('s_cbranch_scc1 L2_redo')]])
    st.push(parse(f's_add_u32 {sT}, {sO}, 4096\ns_add_u32 {sT2}, {sO}, {128*2048}\ns_add_u32 {sT3}, {sT2}, 4096'))
    st.push(parse(f's_lshr_b32 {sFW}, {sST}, 1\ns_lshl_b32 {sFW}, {sFW}, 8\ns_add_u32 {sFW}, {sFW}, {FL}'))
    def ini(e):
        x = QACC.sub(16 * e, 16)
        o = [valu(f'v_lshlrev_b32 {x.sub(i)}, 16, {BIAS.sub(e)}', rd=[BIAS.sub(e)]) for i in range(2)]
        return o + [valu(f'v_mov_b64 {x.sub(2*i,2)}, {x.sub(0,2) if i < 4 else 0}') for i in range(1, 8)]
    rd = g4.reads(0) + g4.reads(1)
    early_ = ini(0) + ini(1) + ini(7)
    for r in rd: st.push([r, early_.pop(0)])
    st.push(early_)
    att_iter(st, 31, g4, opt)
    st.flush()
    sp.stamp(st)
    kk = [0]
    def onorm(x, tt, b):
        for jj in range(2):
            for i in range(4): a(f'v_accvgpr_read_b32 {x.sub(4*jj+i)}, {O.sub(((2*tt+jj)*4+b)*4+i)}')
        for i in range(4): a(f'v_pk_mul_f32 {x.sub(2*i,2)}, {x.sub(2*i,2)}, {LS.sub(4*b,2)}')
        kk[0] += 1
        return Q.sub(32 + 4 * (kk[0] & 7), 4)
    act_store(st, 4, 4, onorm, [[sO, sT], [sT2, sT3]], NEGM)
    for e in range(2, 7): st.ops(ini(e))
    sp.stamp(st)
    a(f's_cmp_lg_u32 {sROLE}, 0\ns_cbranch_scc1 L2_Y')
    sy = st.fork(); spn = sp.n
    def hooks(g, name, events, sig=None, sigpos=2, code=False):
        pos = {c % 4 for c in events}; assert len(pos) == 1; pos = pos.pop()
        nf = g.nst // 4 - 1
        inl = {c: x for c, x in events.items() if c < 4 * nf}
        out = [c for c in events if c >= 4 * nf]
        txt = f'{name}:\n'
        for c, x in inl.items(): txt += f's_cmp_lg_u32 {sCNT}, {c // 4 - nf}\ns_cbranch_scc1 {name}_{c}\n{x}\n{name}_{c}:\n'
        if inl: far.append(txt + f's_branch {name}_r')
        mask = sum(1 << ((c // 4 - nf) & 31) for c in inl)
        def f(s, e):
            fold = s < 4 * nf
            want = lambda d: ((s + d) % 4 == pos and (inl or any(c - d < 4 * nf for c in out))) if fold else (s + d) in out
            if g.NA == 4 and e == 0 and want(1): return {3: [flag_load(sFW)]}
            if g.NA == 2 and e == 0 and want(2): return {3: [flag_load(sFW)]}
            if e == 7 and want(1): return {3: [valu(f'v_readfirstlane_b32 {sT}, {vFL}', rd=[vFL])]}
            if e == 0 and fold and inl and s % 4 == pos: return {3: [salu(f's_bitcmp1_b32 {mask}, {sCNT}'), salu(f's_cbranch_scc1 {name}'), salu(f'{name}_r:')]}
            if e == 0 and s in out:
                far.append(f'{name}o:\n{events[s]}\ns_branch {name}o_r')
                return {3: [salu(f's_branch {name}o'), salu(f'{name}o_r:')]}
            if fold and sig and (s % 4, e) == sigpos: return {(1 if g.NA == 4 else 3): [salu(x) for x in sig.split('\n')]}
            if e == 2 and fold and code and s % 4 == 0 and opt.get('rpf', 1): return {3: [pfcode()]}
            return {}
        return f
    def need(name, target): return f's_cmp_ge_u32 {sT}, {target}\ns_cbranch_scc1 {name}_k\n{spin(name, sFW, target)}\n{name}_k:'
    def pack_store(x, y, so, off, zero=False):
        o = [valu(f'v_cvt_pk_bf16_f32 {x.sub(h)}, {(x, y)[h >> 1].sub(2*(h & 1))}, {(x, y)[h >> 1].sub(2*(h & 1)+1)}') for h in range(4)]
        o.append(vstore(f'buffer_store_dwordx4 {x}, {vL16}, {sWS}, {so} offen offset:{off} sc1'))
        if zero: o += [valu(f'v_mov_b64 {r.sub(h,2)}, 0') for r in (y, x) for h in (0, 2)]
        return o

    a(f's_cmp_eq_u32 {sWAVE}, 0\ns_cselect_b32 {sSIG}, -6, 0')
    h4 = hooks(g4, 'L2_h4', {25: need('L2_c0', 16)}, sig_end('L2_so', sFO), (1, 6), True)
    g4.loop(st, 'L2_y', sCNT, extra=h4)
    n3 = g3s.nst
    l2e = f2h(-math.log2(math.e))
    su4 = f"""s_mov_b32 s58, {l2e}
s_mov_b32 s59, {l2e}
s_xor_b32 {sT3}, {sG}, 4
s_lshl_b32 {sP0}, {sT3}, 13
s_add_u32 {sP0}, {sP0}, {YB}
s_add_u32 {sP1}, {sP0}, 4096
s_lshl_b32 {sT3}, {sT3}, 7
s_add_u32 {sFO}, {sT3}, {FL + 16384 + 64}
s_lshl_b32 {sT3}, {sG}, 7
s_add_u32 {sFG}, {sT3}, {FL + 16384}
s_add_u32 {sFU}, {sFW}, {3 * 2048}
s_add_u32 {sFW}, {sFG}, 64
s_mov_b32 {sSIG}, {1 - n3 // 4}
s_lshl_b32 {sT3}, {sWAVE}, 14
s_lshl_b32 {sT4}, {sWAVE}, 11
v_and_b32 v{t+1}, 63, v0
v_lshlrev_b32 v{t+1}, 4, v{t+1}
v_add_u32 v{t}, {sT4}, v{t+1}
v_add_u32 v{t+1}, {sT3}, v{t+1}
v_bfe_u32 v{t+2}, v0, 4, 2
v_and_b32 v{t+3}, 15, v0
v_lshlrev_b32 v{t+2}, 2, v{t+2}
v_sub_u32 v{t+2}, v{t+3}, v{t+2}
v_and_b32 v{t+3}, 1, v0
v_lshlrev_b32 v{t+3}, 4, v{t+3}
v_mov_b32 {SEL.sub(0)}, 0x3f80
v_lshlrev_b32 v{t+3}, v{t+3}, {SEL.sub(0)}
v_lshrrev_b32 v{t+2}, 1, v{t+2}
v_cmp_eq_u32 vcc, 0, v{t+2}
v_mov_b32 {SEL.sub(0)}, 0
v_mov_b32 {SEL.sub(1)}, 0
v_cndmask_b32 {SEL.sub(2)}, 0, v{t+3}, vcc
v_cmp_eq_u32 vcc, 1, v{t+2}
v_mov_b32 {SEL.sub(4)}, 0
v_mov_b32 {SEL.sub(5)}, 0
v_cndmask_b32 {SEL.sub(3)}, 0, v{t+3}, vcc"""
    ysend = lambda e: pack_store(accq(e, 2), accq(e, 3), [sP0, sP1][e >> 2], 1024 * (e & 3), True)
    def g4x(s, e):
        if s == 25 and e == 1: st.push(parse(su4))
        if s == 27 and e == 2: assert not st.q
        if s == 27 and e >= 2: st.push(ysend(e - 2))
        return h4(s, e)
    pre3 = g3s.window(0) + g3s.window(1) + g3s.window(2) + g3s.window(3)[:2]
    g4.last(st, lambda i: pre3[12 * i:12 * i + 12], g4x, chain=g3s)
    st.ops(g3s.reads(2))
    st.flush()
    sp.stamp(st)
    st.ops(ysend(6) + ysend(7))
    sp.stamp(st)
    YR, PR = A(96, 32), A(128, 64)
    ev1 = need('L2_cy', 1) + f'\ns_lshl_b32 {sP0}, {sG}, 13\ns_add_u32 {sP0}, {sP0}, {YB}\ns_add_u32 {sP1}, {sP0}, 4096\ns_mov_b32 {sFW}, {sFU}\n'
    ev1 += '\n'.join(f'buffer_load_dwordx4 {YR.sub(4*e,4)}, {vL16}, {sWS}, {[sP0, sP1][e >> 2]} offen offset:{1024*(e & 3)} sc1' for e in range(8))
    ev2 = [mfma(accq(e, b), SEL.sub(2 - 2 * b, 4), YR.sub(4 * e, 4), accq(e, b)).text for e in range(8) for b in range(2)]
    for e in range(8):
        x = BIAS.sub((e & 1) * 8, 8); y = QACC.sub(16 * e, 8)
        ev2 += [f'v_pk_mul_f32 {x.sub(2*i,2)}, {y.sub(2*i,2)}, {sC}' for i in range(4)]
        ev2 += [f'v_exp_f32 {x.sub(i)}, {x.sub(i)}' for i in range(8)]
        ev2 += [f'v_pk_add_f32 {x.sub(2*i,2)}, {x.sub(2*i,2)}, 1.0 op_sel_hi:[1,0]' for i in range(4)]
        ev2 += [f'v_rcp_f32 {x.sub(i)}, {x.sub(i)}' for i in range(8)]
        ev2 += [f'v_pk_mul_f32 {y.sub(2*i,2)}, {x.sub(2*i,2)}, {y.sub(2*i,2)}' for i in range(4)]
        if e in (0, 4): ev2.append('s_waitcnt lgkmcnt(0)')
        ev2 += [f'ds_write_b128 v{t}, {y.sub(4*b,4)} offset:{8192*e + 1024*b}' for b in range(2)]
    ev2 = '\n'.join(ev2) + '\ns_waitcnt lgkmcnt(0)'
    c2 = 2 * (16 - 2 * A1) - 3
    ev = {9: ev1, 13: ev2}
    ev[c2] = (ev[c2] + '\n' if c2 in ev else '') + need('L2_c2', 16 - 2 * Y1)
    assert c2 >= 13 and c2 < n3 - 4
    g3s.loop(st, 'L2_s', sCNT, extra=hooks(g3s, 'L2_h3', ev, sig_end('L2_sy1', sFO), (3, 1)))
    GFb = lambda k: accq(k >> 1, k & 1)
    pl = lambda so: [vload(f'buffer_load_dwordx4 {PR.sub(4*n,4)}, {vL16}, {sWS}, {so[n >> 2]} offen offset:{1024*(n & 3)} sc1', PR.sub(4 * n, 4)) for n in range(16)]
    PS = [sP0, sP1, sT4, sFU]
    pset = f's_add_u32 {sP1}, {sP0}, 4096\ns_add_u32 {sT4}, {sP0}, 8192\ns_add_u32 {sFU}, {sP0}, 12288'
    XT = 131072
    vXo, vXe = vWq, vWa
    su_x = f'v_bfe_u32 v{t+2}, v0, 4, 2\nv_and_b32 v{t+3}, 15, v0\nv_xor_b32 {vXo.sub(0)}, v{t+2}, v{t+3}\nv_lshlrev_b32 {vXo.sub(0)}, 4, {vXo.sub(0)}\nv_lshl_add_u32 {vXo.sub(0)}, v{t+2}, 11, {vXo.sub(0)}\n'
    for k in range(1, 4): su_x += f'v_xor_b32 {vXo.sub(k)}, {64*k}, {vXo.sub(0)}\nv_add_u32 {vXo.sub(k)}, {k*(8192-1024)}, {vXo.sub(k)}\n'
    su_x += f's_lshl_b32 {sT3}, {sWAVE}, 13\ns_add_u32 {sT3}, {sT3}, {XT}\ns_lshl_b32 {sG}, {sG}, 14\ns_add_u32 {sG}, {sG}, {GB}'
    su_e = f'v_lshrrev_b32 v{t}, 1, v{t+2}\nv_xor_b32 v{t}, v{t}, v{t+3}\nv_lshlrev_b32 v{t}, 4, v{t}\nv_lshl_add_u32 v{t}, v{t+3}, 8, v{t}\nv_and_b32 {vX}, 1, v{t+2}\nv_lshl_add_u32 v{t}, {vX}, 3, v{t}\nv_add_u32 {vXe.sub(0)}, {sT3}, v{t}\n'
    for k in range(1, 8): su_e += f'v_xor_b32 {vXe.sub(k)}, {32*k}, {vXe.sub(0)}\n'
    su_e += f'v_and_b32 {vX}, 63, v0\nv_lshl_add_u32 {vX}, {vX}, 4, {sT3}'
    a(su_x)
    def xwin(i_):
        if i_: return []
        return [([salu(f's_add_u32 m0, {sT3}, {4096 * (n >> 2)}')] if n % 4 == 0 else [],
                 vload(f'buffer_load_dwordx4 {vXo.sub(n & 3)}, {sX}, {[sR0, sR1][n >> 2]} offen offset:{1024*(n & 3)} lds', tag=f'x{n}'), []) for n in range(8)]
    FE = opt.get('fe', 8)
    def s3x(s, e):
        if s == n3 - 4 and e == 0:
            v_ = parse(su_e)
            for k in range(16): st.push([ds_128(GFb(k), V(t + 1), 8192 * (k & 1) + 1024 * (k >> 1)), v_.pop(0)])
            un = v_
            for k in range(16):
                b, e_ = k >> 3, k & 7
                x = XF.sub((e_ * 2 + b) * 4, 4)
                st.push([Op(f'ds_read_b64 {x.sub(2,2)}, {vXe.sub(e_)} offset:{4096*b}', 'ds', wr=x.sub(2, 2).set(), waittags=[f'x{4*b+3}'])])
                if k >= 4: st.push([un.pop(0)])
                un += [valu(f'v_lshlrev_b32 {x.sub(0)}, 16, {x.sub(2)}', rd=[x]), valu(f'v_and_b32 {x.sub(1)}, 0xffff0000, {x.sub(2)}'),
                       valu(f'v_lshlrev_b32 {x.sub(2)}, 16, {x.sub(3)}'), valu(f'v_and_b32 {x.sub(3)}, 0xffff0000, {x.sub(3)}')]
            st.push(un)
        if 8 * (s - n3 + 4) + e == FE: return {3: [flag_load(sFG)]}
        if 8 * (s - n3 + 3) + e == FE:
            old = st.q; st.q = []
            st.push([valu(f'v_readfirstlane_b32 {sRDY}, {vFL}', rd=[vFL]), 1])
            st.push(parse(f's_cmp_ge_u32 {sRDY}, 2\ns_cselect_b32 {sP0}, {sG}, 0x40000000\n' + pset))
            st.push(pl(PS))
            st.q += old
        return {}
    g3s.last(st, xwin, s3x)
    sp.stamp(st)
    far.append(f'L2_wg:\n{spin("L2_wg1", sFG, 2, nap=0)}\ns_mov_b32 {sP0}, {sG}\n{pset}\n' + '\n'.join(o.text for o in pl(PS)) + '\ns_branch L2_wg_r')
    KP = opt.get('keep', 32)
    keep = st.q[-KP:]; st.q = st.q[:-KP]
    assert all(g[0].kind == 'valu' for g in keep)
    st.flush(); st.q = keep
    assert st.pend[('a', 128)][1] == st.issued['vm'] - 15 and st.done['vm'] < st.issued['vm'] - 15
    a(f's_cmp_lt_u32 {sRDY}, 2\ns_cbranch_scc1 L2_wg\nL2_wg_r:')
    sp.stamp(st)
    mf = [mfma(acc3(e, b), SEL.sub(2 - 2 * (e & 1), 4), PR.sub((j * 8 + b * 4 + (e >> 1)) * 4, 4), acc3(e, b)) for j in range(2) for b in range(2) for e in range(8)]
    st.gaps(mf, [[] for _ in mf])
    st.flush()
    OD = lambda n: accq(n, 0)
    ost = lambda n: st.op(vstore(f'buffer_store_dwordx4 {OD(n)}, {vXo.sub(n & 3)}, {sOUT}, {[sR0, sR1][n >> 2]} offen offset:{1024*(n & 3)}', rd=[OD(n)]))
    for b in range(2):
        for e in range(8):
            k = (e * 2 + b) * 4
            for h in (0, 2): st.op(valu(f'v_pk_fma_f32 {XF.sub(k+h,2)}, {acc3(e, b).sub(h,2)}, {accq(e, b).sub(h,2)}, {XF.sub(k+h,2)}', rd=[accq(e, b)]))
            for h in (0, 2): a(f'v_cvt_pk_bf16_f32 {XF.sub(k + h // 2)}, {XF.sub(k+h)}, {XF.sub(k+h+1)}')
            st.op(Op(f'ds_write_b64 {vXe.sub(e)}, {XF.sub(k,2)} offset:{4096*b}', 'ds'))
            if b == 1 and e >= 4: ost(e - 4)
        for n in range(4 * b, 4 * b + 4): st.op(ds_128(OD(n), vX, 1024 * n))
    for n in range(4, 8): ost(n)
    if sp.on: a('s_waitcnt vmcnt(0)')
    sp.stamp(st)
    sp.flush(st, sWS, t)
    a('L2_end:\ns_endpgm')

    a = sy.raw; sp.n = spn
    a('L2_Y:')
    a(f"""s_cmp_eq_u32 {sWAVE}, 0
s_cselect_b32 {sSIG}, {1 - NY // 4}, 0
s_and_b32 {sT3}, {sST}, 1
s_lshl_b32 {sT4}, {sT3}, 11
s_add_u32 {sFW}, {sFW}, {sT4}
s_add_u32 {sFW}, {sFW}, 2048
s_andn2_b32 {sG}, {sG}, 32
s_lshl_b32 {sFG}, {sG}, 7
s_add_u32 {sFG}, {sFG}, {FL + 16384}
s_lshl_b32 {sG}, {sG}, 14
s_lshl_b32 {sT3}, {sT3}, 13
s_add_u32 {sG}, {sG}, {sT3}
s_add_u32 {sG}, {sG}, {GB}
s_add_u32 {sP0}, {sG}, 4096
s_add_u32 {sR0}, {sG}, {32 << 14}
s_add_u32 {sR1}, {sR0}, 4096""")
    hy = hooks(g3y, 'L2_hy', {2 * A1 - 2: need('L2_c1', Y1)}, sig_end('L2_yo', sFO), (1, 6), True)
    g3y.loop(sy, 'L2_sy', sCNT, extra=hy)
    def pstore(p):
        o = []
        for b in range(4): o += pack_store(accq(2 * p, b), accq(2 * p + 1, b), [sG, sP0, sR0, sR1][b], 1024 * p)
        return o
    def yx(s, e):
        if s == NY - 1 and e in (3, 5, 7): sy.push(pstore(e // 2 - 1))
        return hy(s, e)
    g3y.last(sy, None, yx)
    sy.flush()
    sp.stamp(sy); sp.stamp(sy); sp.stamp(sy)
    sy.ops(pstore(3))
    a(f'v_and_b32 v{t}, 1, v0\nv_lshlrev_b32 v{t}, 12, v{t}\ns_waitcnt vmcnt(0)')
    sp.stamp(sy)
    a(f's_mov_b64 exec, 3\nbuffer_atomic_add {vONE}, v{t}, {sWS}, {sFG} offen sc1\ns_mov_b64 exec, -1\ns_waitcnt vmcnt(0)')
    sp.stamp(sy)
    sp.flush(sy, sWS, t)
    a('s_endpgm')

    a = sg.raw; sp.n = spg
    a('L2_G:')
    qm = q_last_extra(sg, V(10, 8), 'L2_wb')
    def gx(s, e):
        if s == 12 and e == 0:
            sg.push(parse(su_g2))
        if s == 15 and e in (2, 6): sg.push([valu(f'v_xor_b32 {vWa.sub(k)}, {sROT}, {vWa.sub(k)}') for k in (range(2) if e == 2 else range(2, 8))])
        if s == 13 and e == 4: assert not sg.q
        if s == 13 and e == 6:
            sg.push([vload(f'buffer_load_dwordx2 {BIAS.sub(2*n,2)}, {vFL}, {sBB}, {sB if n < 6 else sBN} offen offset:{32*n}', BIAS.sub(2 * n, 2)) for n in range(GW)])
        return qm(s, e)
    gq.last(sg, g2.window, gx, chain=g2)
    sg.flush()
    sp.stamp(sg)
    q_epilogue(sg, V(10, 8), GW)
    a(f'v_lshrrev_b32 {vCO}, 2, {vPF}\nv_min_u32 {vCO}, 0x2b0, {vCO}')
    sp.stamp(sg)
    g2.loop(sg, 'L2_g', sCNT, extra=lambda s, e: {1: [pfcode()]} if (opt.get('rpf', 1) and s % 4 == 0 and e == 5) else {})
    k0 = 2.0 * math.sqrt(2.0 / math.pi) * math.log2(math.e)
    last_before_att(g2, sg, f's_mov_b32 s10, 0\ns_mov_b32 s58, {f2h(-k0*0.044715)}\ns_mov_b32 s59, {f2h(-k0*0.044715)}')
    sp.stamp(sg)
    C1 = V(t + 2, 2)
    a(f'v_mov_b32 {C1.sub(0)}, {f2h(-k0)}\nv_mov_b32 {C1.sub(1)}, {f2h(-k0)}')
    a(f's_add_u32 {sT}, {sU}, 4096\ns_add_u32 {sT2}, {sU}, {112*2048}\ns_add_u32 {sT3}, {sT2}, 4096')
    def gelu(x, tt, b):
        u = [(accq(2 * tt + (i >> 1), b) if tt < GW // 2 else accq(6, b + (i >> 1))).sub(2 * (i & 1), 2) for i in range(4)]
        for i in range(4): a(f'v_pk_mul_f32 {x.sub(2*i,2)}, {u[i]}, {u[i]}')
        for i in range(4): a(f'v_pk_fma_f32 {x.sub(2*i,2)}, {x.sub(2*i,2)}, {sC}, {C1}')
        for i in range(4): a(f'v_pk_mul_f32 {x.sub(2*i,2)}, {x.sub(2*i,2)}, {u[i]}')
        for i in range(8): a(f'v_exp_f32 {x.sub(i)}, {x.sub(i)}')
        for i in range(4): a(f'v_pk_add_f32 {x.sub(2*i,2)}, {x.sub(2*i,2)}, 1.0 op_sel_hi:[1,0]')
        for i in range(8): a(f'v_rcp_f32 {x.sub(i)}, {x.sub(i)}')
        for i in range(4): a(f'v_pk_mul_f32 {x.sub(2*i,2)}, {x.sub(2*i,2)}, {u[i]}')
        return accq(2 * tt, b)
    act_store(sg, 4, GW // 2, gelu, [[sU, sT], [sT2, sT3]], BIAS)
    a(f's_add_u32 {sT}, {sU}, {sGA}\ns_add_u32 {sT2}, {sT2}, {sGA}')
    for b in ((0, 2) if GW == 7 else ()):
        x = BIAS.sub(4 * b, 8); d = gelu(x, 3, b)
        for i in range(4): a(f'v_cvt_pk_bf16_f32 {d.sub(i)}, {x.sub(2*i)}, {x.sub(2*i+1)}')
        for h in range(2): sg.op(vstore(f'buffer_store_dwordx2 {d.sub(2*h,2)}, {vL16}, {sWS}, {[sT, sT2][b >> 1]} offen offset:{1024*h} sc1'))
    a(f'v_lshrrev_b32 {vCO}, 2, {vPF}\nv_min_u32 {vCO}, 0x2b0, {vCO}\ns_branch L2_join')
    for x in far: a(x)

    a('L2_redo:')
    a(f's_mov_b32 {sMODE}, 1\ns_mov_b32 {sRCM}, 0\ns_mov_b32 {sK}, {sKV0}\ns_mov_b32 {sCNT}, -32')
    for b in range(4): a(f'v_mov_b32 {M.sub(b)}, 0xff800000')
    a('L2_mx:\ns_waitcnt vmcnt(0) lgkmcnt(0)\ns_barrier')
    for pre, v, post in kdma(0):
        for o in pre: a(o.text + '\ns_nop 0')
        a(v.text)
        for o in post: a(o.text)
    a('s_waitcnt vmcnt(0)\ns_barrier')
    for c in range(4):
        for tt in range(4): a(kread(0, c, tt).text)
        a('s_waitcnt lgkmcnt(0)')
        for b in range(4):
            for tt in range(4): a(mfma(P.sub(4 * b, 4), Kf(c, tt), Qf(b, tt), P.sub(4 * b, 4) if tt else 0).text)
        a('s_nop 7')
        for b in range(4):
            x = P.sub(4 * b, 4)
            a(f'v_max3_f32 {M.sub(b)}, {M.sub(b)}, {x.sub(0)}, {x.sub(1)}\nv_max3_f32 {M.sub(b)}, {M.sub(b)}, {x.sub(2)}, {x.sub(3)}')
    a(f's_add_u32 {sCNT}, {sCNT}, 1\ns_cbranch_scc0 L2_mx')
    negm_finish(a, M, 0.0)
    a(f's_mov_b32 {sK}, {sKV0}\ns_mov_b32 {sV}, {sKV0}\ns_barrier')
    for pre, v, post in pre_kv:
        for o in pre: a(o.text + '\ns_nop 0')
        a(v.text)
        for o in post: a(o.text)
    a('s_waitcnt vmcnt(0)\ns_barrier')
    for tt in range(4): a(kread(0, 0, tt).text)
    a(kread(0, 1, 0).text)
    a('s_waitcnt lgkmcnt(0)\ns_branch L2_att')
    return st.lines() + sy.lines() + sg.lines(), kd(KNAME, 512, 256, 102), '; @launch ' + (f'kernel={KNAME} ' if opt.get('aslist') or 'probe' in opt else '') + 'grid=(256,1,1) block=(256,1,1) lds=163840'
```

```python
import re
TRANS = ('v_exp_', 'v_log_', 'v_rcp_', 'v_rsq_', 'v_sqrt_', 'v_sin_', 'v_cos_')

def R(kind, lo, n=1):
    return f'{kind}{lo}' if n == 1 else f'{kind}[{lo}:{lo+n-1}]'
def regs(kind, lo, n=1):
    return [(kind, lo + i) for i in range(n)]

class Reg:
    def __init__(self, kind, lo, n=1):
        self.kind, self.lo, self.n = kind, lo, n
    def __str__(self): return R(self.kind, self.lo, self.n)
    def sub(self, off, n=1):
        assert off + n <= self.n, (off, n, self.n)
        return Reg(self.kind, self.lo + off, n)
    def set(self): return regs(self.kind, self.lo, self.n)
def V(lo, n=1): return Reg('v', lo, n)
def A(lo, n=1): return Reg('a', lo, n)

class Wait:
    def __init__(self): self.lg = None; self.vm = None
    def need(self, cls, n):
        if cls == 'ds': self.lg = n if self.lg is None else min(self.lg, n)
        else: self.vm = n if self.vm is None else min(self.vm, n)
    def merge(self, o):
        if o.lg is not None: self.need('ds', o.lg)
        if o.vm is not None: self.need('vm', o.vm)
    def text(self):
        p = []
        if self.vm is not None: p.append(f'vmcnt({self.vm})')
        if self.lg is not None: p.append(f'lgkmcnt({self.lg})')
        return 's_waitcnt ' + ' '.join(p) if p else None

class Op:
    def __init__(self, text, kind, rd=(), wr=(), tag=None, waittags=()):
        self.text, self.kind, self.rd, self.wr, self.tag, self.waittags = text, kind, list(rd), list(wr), tag, list(waittags)

def mfma(d, a, b, c):
    rd = a.set() + b.set() + (c.set() if isinstance(c, Reg) else [])
    return Op(f'v_mfma_f32_16x16x32_bf16 {d}, {a}, {b}, {c}', 'mfma', rd=rd)
def valu(text, rd=()):
    r = []
    for x in rd: r += x.set()
    return Op(text, 'valu', rd=r)
def salu(text): return Op(text, 's')
def ds_tr(d, addr, off): return Op(f'ds_read_b64_tr_b16 {d}, {addr} offset:{off}', 'ds', wr=d.set())
def ds_128(d, addr, off): return Op(f'ds_read_b128 {d}, {addr} offset:{off}', 'ds', wr=d.set())
def vload(text, d=None, tag=None): return Op(text, 'vm', wr=d.set() if d is not None else (), tag=tag)
def vstore(text, rd=()):
    r = []
    for x in rd: r += x.set()
    return Op(text, 'vm', rd=r)
def barrier(tags=(), lg0=False):
    o = Op('s_barrier', 's', waittags=tags); o.lg0 = lg0
    return o

def gap_cost(ops, nwait):
    t = nwait; seenv = False; prev = None
    for o in ops:
        if o.text.endswith(':'): continue
        if o.kind == 's': t += 1
        else:
            t = max(t, 1)
            if o.kind in ('ds', 'vm') and seenv: t += 2
            if o.kind == 'vm' and prev is not None and ' m0,' in prev.text: t += 9
            t += 2 if (o.kind == 'vm' or o.text.startswith(TRANS) or o.text.startswith('v_permlane')) else 1
            if o.kind == 'ds' and prev is not None and prev.kind == 'ds': t += 1
            if o.kind == 'valu': seenv = True
        prev = o
    return t
def parse(text):
    out = []; grp = None
    for l in (text.split('\n') if isinstance(text, str) else text):
        l = l.strip()
        if not l: continue
        if l.startswith('s_cmp') or l.startswith('s_bitcmp'):
            grp = [salu(l)]; out.append(grp)
        elif l.startswith('s_cselect') or l.startswith('s_cbranch') or l.startswith('s_addc'):
            if len(grp) >= 3 and l.startswith('s_cselect'):
                grp = [grp[0]]; out.append(grp)
            grp.append(salu(l))
        else:
            out.append([salu(l) if l.startswith('s_') else valu(l)])
    return out

class Stream:
    MAXC = {'ds': 15, 'vm': 63}
    def __init__(self):
        self.items = []
        self.issued = {'ds': 0, 'vm': 0}
        self.done = {'ds': 0, 'vm': 0}
        self.pend = {}
        self.tags = {}
        self.q = []
    def raw(self, text):
        for l in text.split('\n'):
            if l.strip(): self.items.append(l.strip())
    def _needs(self, op):
        n = {'ds': 0, 'vm': 0}
        for r in op.rd + op.wr:
            if r in self.pend:
                c, s = self.pend[r]; n[c] = max(n[c], s)
        for t in op.waittags:
            n['vm'] = max(n['vm'], self.tags[t])
        if getattr(op, 'lg0', False): n['ds'] = self.issued['ds']
        if op.kind in ('ds', 'vm'): n[op.kind] = max(n[op.kind], self.issued[op.kind] + 1 - self.MAXC[op.kind])
        return n
    def _wait(self, w, n):
        for c in n:
            if n[c] > self.done[c]:
                w.need(c, min(self.issued[c] - n[c], self.MAXC[c])); self.done[c] = n[c]
    def _issue(self, op):
        self.items.append(op.text)
        if op.kind == 's0': self.tags[op.tag] = 0
        if op.kind in ('ds', 'vm'):
            self.issued[op.kind] += 1
            assert self.issued[op.kind] - self.done[op.kind] <= self.MAXC[op.kind], (op.text, self.issued, self.done)
            for r in op.wr: self.pend[r] = (op.kind, self.issued[op.kind])
            if op.tag: self.tags[op.tag] = self.issued[op.kind]
    def op(self, op):
        w = Wait(); self._wait(w, self._needs(op)); self.items.append(w); self._issue(op)
    def ops(self, l):
        for o in l: self.op(o)
    def gaps(self, mf, fill, nxt=None):
        for i, m in enumerate(mf):
            w0 = Wait(); self._wait(w0, self._needs(m)); self.items.append(w0)
            self._issue(m)
            w = Wait(); self.items.append(w)
            follow = mf[i + 1] if i + 1 < len(mf) else nxt
            ops = list(fill[i])
            look = ops + ([follow] if follow is not None else [])
            for o in look: self._wait(w, self._needs(o))
            while self.q:
                g = self.q[0]
                if isinstance(g, int):
                    self.q[0] = g - 1
                    if g <= 1: self.q.pop(0)
                    break
                if any(t not in self.tags for o in g for t in o.waittags): break
                nw = 1 if (w.text() or any(self._unmet(o) for o in g)) else 0
                cand = [g + ops] if (all(o.kind == 's' for o in g) and not getattr(self, '_front', False)) else []
                cand.append(ops + g)
                base = gap_cost(ops, 1 if w.text() else 0)
                ok = [c for c in cand if gap_cost(c, nw) <= max(3, 0)]
                if not ok and not ops and base <= 1 and gap_cost(g, 0) > 2: ok = [g]
                if not ok: break
                ops = ok[0]; self.q.pop(0); self._front = True
                for o in g: self._wait(w, self._needs(o))
            self._front = False
            for o in ops:
                w2 = Wait(); self._wait(w2, self._needs(o)); self.items.append(w2)
                self._issue(o)
    def _unmet(self, op):
        n = self._needs(op)
        return any(n[c] > self.done[c] for c in n)
    def push(self, ops):
        for o in ops: self.q.append(o if isinstance(o, (list, int)) else [o])
    def flush(self):
        prev = None
        for g in self.q:
            if isinstance(g, int):
                self.raw(f's_nop {min(15, 2 * g)}'); continue
            for o in g:
                if prev is not None and ' m0,' in prev.text and o.kind == 'vm': self.raw('s_nop 0')
                self.op(o); prev = o
        self.q = []
    def wait_all(self, vm=True, ds=True):
        w = Wait()
        if vm: w.need('vm', 0); self.done['vm'] = self.issued['vm']
        if ds: w.need('ds', 0); self.done['ds'] = self.issued['ds']
        self.items.append(w)
    def mark(self): return len(self.items)
    def fork(self):
        o = Stream()
        o.issued, o.done, o.pend, o.tags = dict(self.issued), dict(self.done), dict(self.pend), dict(self.tags)
        return o
    def fold(self, marks, label, sreg):
        trips = [self.items[marks[i]:marks[i + 1]] for i in range(len(marks) - 1)]
        body = trips[0]
        for t in trips[1:]:
            assert len(t) == len(body), (label, len(t), len(body))
            for x, y in zip(body, t):
                if isinstance(x, Wait): x.merge(y)
                else: assert x == y, (label, x, y)
        new = [f's_mov_b32 {sreg}, {-len(trips)}', '.p2align 3', f'{label}:'] + body + [f's_add_u32 {sreg}, {sreg}, 1', f's_cbranch_scc0 {label}']
        self.items[marks[0]:marks[-1]] = new
    def lines(self):
        out = []
        for it in self.items:
            if isinstance(it, Wait):
                t = it.text()
                if t: out.append(t)
            else: out.append(it)
        return out

RE_REG = re.compile(r'\b([va])(?:(\d+)\b|\[(\d+):(\d+)\])')
def _operands(text):
    m = text.split(None, 1)
    if len(m) < 2: return m[0], []
    ops = [x.strip() for x in m[1].split(',')]
    res = []
    for o in ops:
        mm = RE_REG.search(o.split()[0]) if o else None
        if mm:
            k = mm.group(1)
            lo = int(mm.group(2) if mm.group(2) is not None else mm.group(3)); hi = int(mm.group(2) if mm.group(2) is not None else mm.group(4))
            res.append({(k, i) for i in range(lo, hi + 1)})
        else: res.append(set())
    return m[0], res
def classify(text):
    op, o = _operands(text)
    U = lambda l: set().union(*l) if l else set()
    d = dict(op=op, rd=set(), wr=set(), kind='s', ab=set(), c=set(), states=1, sdata=set())
    if op == 's_nop': d['states'] = int(text.split()[1]) + 1
    elif op.startswith('v_mfma'):
        d.update(kind='mfma', wr=o[0], ab=o[1] | o[2], c=o[3], rd=o[1] | o[2] | o[3])
    elif op.startswith('v_smfmac'):
        d.update(kind='mfma', wr=o[0], ab=o[1] | o[2] | o[3], c=o[0], rd=o[0] | o[1] | o[2] | o[3])
    elif op.startswith('v_permlane'):
        d.update(kind='valu', wr=o[0] | o[1], rd=o[0] | o[1], perm=True)
    elif op.startswith('v_cmp') or op.startswith('v_readfirstlane') or op.startswith('v_readlane'):
        d.update(kind='valu', rd=U(o[1:]), lane=op.startswith('v_read'))
    elif op.startswith('v_'):
        d.update(kind='valu', wr=o[0], rd=U(o[1:]) | (o[0] if 'fmac' in op else set()), trans=op.startswith(TRANS),
                 dpp=('quad_perm' in text or 'row_' in text))
    elif op.startswith('ds_read'): d.update(kind='mem', wr=o[0], rd=o[1])
    elif op.startswith('ds_write'): d.update(kind='mem', rd=U(o))
    elif op.startswith('buffer_load') or op.startswith('global_load'):
        if text.rstrip().endswith('lds') or ' lds ' in text: d.update(kind='mem', rd=o[0], dma=True)
        else: d.update(kind='mem', wr=o[0], rd=o[1])
    elif op.startswith('buffer_store') or op.startswith('buffer_atomic'):
        d.update(kind='mem', rd=U(o), sdata=o[0] if 'x4' in op or 'x3' in op else set())
    elif op.startswith('global_store') or op.startswith('global_atomic'):
        d.update(kind='mem', rd=U(o), sdata=o[1] if 'x4' in op or 'x3' in op else set())
    d['m0w'] = bool(re.match(r's_\w+\s+m0\s*,', text))
    mm = re.match(r'v_read(?:first)?lane_b32\s+(s\d+)', text) or re.match(r'v_cmp\w*\s+(vcc|s\[\d+:\d+\])', text)
    d['sw'] = mm.group(1) if mm else None
    d['text'] = text
    return d
def hazards(lines):
    ins = []; labels = {}
    for l in lines:
        l = l.split(';')[0].strip()
        if not l or l.startswith('.'): continue
        if l.endswith(':'): labels[l[:-1]] = len(ins); continue
        ins.append(classify(l))
    errs = []
    def scan(seq):
        for i, c in enumerate(seq):
            dist = 0
            for j in range(i - 1, max(-1, i - 14), -1):
                p = seq[j]
                need = 0
                if p['kind'] == 'valu' and c['kind'] == 'mfma' and p['wr'] & c['rd']: need = 2
                if p['kind'] == 'mfma':
                    if c['kind'] == 'mfma':
                        if p['wr'] & c['ab']: need = 8
                        elif p['wr'] & c['c'] and p['wr'] != c['c']: need = 6
                        elif p['wr'] & c['wr'] and p['wr'] != c['c']: need = 6
                    elif c['kind'] in ('valu', 'mem') and p['wr'] & (c['rd'] | c['wr']): need = 8
                    if c['kind'] == 'valu' and p['c'] & c['wr']: need = max(need, 3)
                if p['kind'] == 'valu' and c['kind'] == 'valu':
                    if p.get('trans') and not c.get('trans') and p['wr'] & c['rd']: need = max(need, 1)
                    if (c.get('perm') or c.get('dpp')) and p['wr'] & c['rd']: need = max(need, 2)
                    if c.get('lane') and p['wr'] & c['rd']: need = max(need, 1)
                if p['sw']:
                    names = [p['sw']]
                    if p['sw'].startswith('s['):
                        lo = int(p['sw'][2:].split(':')[0]); names += [f's{lo}', f's{lo+1}']
                    used = any(re.search(r'(?<![\w\[])' + re.escape(n) + r'(?![\w])', c['text'].split(None, 1)[1] if ' ' in c['text'] else '') for n in names)
                    if used and c['kind'] == 'valu' and not c['sw'] == p['sw']: need = max(need, 2)
                    if used and c['kind'] == 'mem': need = max(need, 5)
                if p['m0w'] and c.get('dma'): need = max(need, 1)
                if p['sdata'] and c['kind'] in ('valu', 'mem', 'mfma') and p['sdata'] & c['wr']: need = max(need, 2)
                if need > dist: errs.append((p['text'], c['text'], dist, need))
                dist += p['states']
    scan(ins)
    for i, c in enumerate(ins):
        if c['op'].startswith('s_cbranch') or c['op'] == 's_branch':
            t = c['text'].split()[1]
            if t in labels:
                scan(ins[max(0, i - 14):i + 1] + ins[labels[t]:labels[t] + 14])
    return sorted(set(errs))

def kd(name, nv, acc, ns=96):
    return f'''.amdhsa_kernel {name}
  .amdhsa_next_free_vgpr {nv}
  .amdhsa_next_free_sgpr {ns}
  .amdhsa_accum_offset {acc}
  .amdhsa_group_segment_fixed_size 0
  .amdhsa_kernarg_size 104
  .amdhsa_user_sgpr_count 2
  .amdhsa_user_sgpr_kernarg_segment_ptr 1
  .amdhsa_system_sgpr_workgroup_id_x 1
  .amdhsa_float_denorm_mode_32 3
.end_amdhsa_kernel'''
def srd(s, base, size):
    return f's_mov_b32 s{s}, s{base}\ns_mov_b32 s{s+1}, s{base+1}\ns_mov_b32 s{s+2}, {size}\ns_mov_b32 s{s+3}, 0x20000'

STAMP_OFF = 48 << 20
class Stamps:
    def __init__(self, on, kidx, v): self.on, self.k, self.v, self.n = on, kidx, v, 0
    def stamp(self, st):
        if getattr(self, 'jit', None):
            self.c = getattr(self, 'c', 0) + 1
            seed, mask, perwave = self.jit
            k = (seed * 2654435761 + self.c * 40503) & 0x7fffffff | 1
            pw = 'v_readfirstlane_b32 s97, v0\ns_nop 3\ns_lshl_b32 s97, s97, 4\ns_add_u32 s96, s96, s97\n' if perwave else ''
            st.raw(f's_add_u32 s96, s2, {self.c * 17}\n{pw}s_mul_i32 s96, s96, {k}\ns_lshr_b32 s97, s96, 15\ns_xor_b32 s96, s96, s97\ns_mul_i32 s96, s96, 0x2c1b3c6d\ns_lshr_b32 s96, s96, 20\ns_and_b32 s96, s96, {mask}\nL_j{self.c}:\ns_sleep 8\ns_sub_u32 s96, s96, 1\ns_cbranch_scc0 L_j{self.c}')
        if not self.on or getattr(self, 'on2', False): return
        st.raw('s_memrealtime s[96:97]\ns_memtime s[98:99]')
        st.wait_all(vm=False)
        st.raw(f'v_writelane_b32 v{self.v}, s96, {self.n}\nv_writelane_b32 v{self.v+1}, s98, {self.n}')
        self.n += 1
    def flush(self, st, ws, t):
        if not self.on: return
        st.raw(f's_lshl_b32 s96, s2, 7\ns_add_u32 s96, s96, {STAMP_OFF + self.k * 65536}\nv_lshlrev_b32 v{t}, 3, v0\nv_mov_b32 v{t+1}, 0x40000000\nv_cmp_gt_u32 vcc, 16, v0\ns_nop 1\nv_cndmask_b32 v{t}, v{t+1}, v{t}, vcc')
        st.raw(f'buffer_store_dwordx2 v[{self.v}:{self.v+1}], v{t}, {ws}, s96 offen\ns_waitcnt vmcnt(0)')

def align_runs(lines, minrun=8, inloop=()):
    import subprocess, tempfile, os
    body = [l for l in lines if not l.startswith('.')]
    d = tempfile.mkdtemp()
    open(d + '/a.s', 'w').write('.amdgcn_target "amdgcn-amd-amdhsa--gfx950"\n.text\n' + '\n'.join(body) + '\n')
    subprocess.run(['clang', '-x', 'assembler', '-target', 'amdgcn-amd-amdhsa', '-mcpu=gfx950', '-c', d + '/a.s', '-o', d + '/a.o'], check=True)
    dis = subprocess.run(['llvm-objdump', '-d', '--mcpu=gfx950', d + '/a.o'], capture_output=True, text=True).stdout
    sizes = [4 * len(m.group(1).split()) for m in re.finditer(r'// [0-9A-F]+: ((?:[0-9A-F]{8} ?)+)', dis)]
    ins = [i for i, l in enumerate(lines) if not l.startswith('.') and not l.endswith(':')]
    assert len(ins) == len(sizes), (len(ins), len(sizes))
    sz = dict(zip(ins, sizes))
    out = []; pc = 0; n = 0
    for k, l in enumerate(lines):
        if l.startswith('.p2align'):
            a_ = 1 << int(l.split()[1]); pc = (pc + a_ - 1) // a_ * a_
        elif k in sz:
            if sz[k] == 8 and pc % 8:
                good = 0; par = 0; j = k
                while j < len(lines) and good < minrun:
                    if j in sz:
                        if 'mfma' in lines[j] or lines[j].startswith(('s_branch', 's_endpgm')): break
                        if sz[j] == 8:
                            if par: break
                            good += 1
                        else: par ^= 1
                    j += 1
                if good >= minrun: out.append('s_nop 0'); pc += 4; n += 1
            pc += sz[k]
        out.append(l)
    return out
```

```python
from fw import *
from gemm import *
STAT, HF, UF, OF, GB, FL, YB = 0, 4 << 20, 8 << 20, 16 << 20, 32 << 20, 40 << 20, 44 << 20
WS_SIZE = 128 << 20
SHADOW = (64 << 20) + 128
LSTR = 2112
KNAME = 'recurrent_scan__mha_block_cached__mixer_token_mlp__prompt_kernel'
import math, struct
def f2h(x): return '0x%08x' % struct.unpack('<I', struct.pack('<f', x))[0]

KBASE, VBASE, QRING, FLAG = 0, 65536, 98304, 131072
MARGIN = 102.0
sWS, sWQ, sKC, sVC, sW1, sWN, sWO, sBB = ['s[%d:%d]' % (i, i + 3) for i in range(4, 36, 4)]
sOUT = sW1
sWAVE, sLDS, sCNT, sQW, sQA, sK, sV, sGW, sGA, sO, sU, sPF, sMODE, sROT = ['s%d' % i for i in range(36, 50)]
sKV0, sGW0, sGA0, sPF0, sT, sT2 = ['s%d' % i for i in range(50, 56)]
sB = sGW
sC = 's[58:59]'
sSLOT, sIDX, sHEAD, sQ64, sST, sDT, sT3, sT4 = ['s%d' % i for i in range(60, 68)]
sX = 's[68:71]'
sQI, sQJ, sGI, sGJ = ['s72', 's73'], ['s74', 's75'], ['s76', 's77'], ['s78', 's79']
sNI, sNJ, sSI, sSJ = sQI, sQJ, sGI, sGJ
sW3, sA3, sSIG, sFO, sFU, sFW, sFG, sG, sR0, sR1, sSTR, sTG, sGRP, sP0, sROLE, sBN = ['s%d' % i for i in range(80, 96)]
sP1, sRDY = 's100', 's101'
vCO = V(251)
def pfcode(): return vload(f'global_load_dword {vDUM}, {vCO}, s[56:57]')
sDBG, sQA2 = 's[72:75]', 's3'
XSLOT, CSB = [65536, 32768], 49152

vL16 = V(1)
vWq, vWg, vKd, vVd = V(2, 4), V(6, 4), V(10, 4), V(14, 2)
vKa, vVa, vWa = V(16, 4), V(20, 8), V(28, 8)
vPF, vDUM, vTMP = V(36), V(37), 38
vZERO, vONE, vFL, vX = V(42), V(43), V(252), V(253)
vL16b = vX
Q = V(44, 64)
QACC = V(108, 128)
S, T, P, NEGM, LS, ONES, vIDX = V(108, 8), V(116, 4), V(120, 64), V(184, 16), V(200, 16), V(216, 4), V(220)
BIAS = V(236, 16)
XF, SEL, vA0, vA1 = V(44, 64), V(10, 6), V(250), V(253)
ONESQ, IDXQ, CS, vXd, vXa, vCw, vCr = V(44, 4), V(48), V(52, 8), V(60, 4), V(64, 2), V(66), V(68, 4)
O, KF, VF, GACT = A(0, 128), A(128, 32), A(160, 32), A(192, 64)

def Pf(tile, u, b, n=4): return P.sub((tile & 1) * 32 + b * 8 + u * 4, n)
def Qf(b, t): return Q.sub((b * 4 + t) * 4, 4)
def Kf(c, t): return KF.sub((c & 1) * 16 + t * 4, 4)
def Vf(e, u): return VF.sub((e & 3) * 8 + u * 4, 4)
def kread(tile, c, t): return ds_128(Kf(c, t), vKa.sub(t), (tile & 3) * 16384 + c * 4096)
def vread(tile, e, u, tt): return ds_tr(Vf(e, u).sub(2 * tt, 2), vVa.sub(e), (tile & 3) * 16384 + u * 8192 + tt * 4096)
def kdma(n):
    return [([salu(f's_add_u32 m0, {sLDS}, {KBASE + (n & 3) * 16384}')] if i == 0 else [],
             vload(f'buffer_load_dwordx4 {vKd.sub(i)}, {sKC}, {sK} offen offset:{i*1024} lds', tag=f'K{n}'),
             [salu(f's_add_u32 {sK}, {sK}, 16384')] if i == 3 else []) for i in range(4)]
def vdma(n):
    return [([salu(f's_add_u32 m0, {sLDS}, {VBASE + (n & 3) * 16384}')] if i == 0 else [],
             vload(f'buffer_load_dwordx4 {vVd.sub(i & 1)}, {sVC}, {sV} offen offset:{i*1024} lds', tag=f'V{n}'),
             [salu(f's_add_u32 {sV}, {sV}, 16384')] if i == 3 else []) for i in range(4)]
def flat(elems):
    o = []
    for pre, v, post in elems: o += pre + [v] + post
    return o
def pfw1():
    return [vload(f'buffer_load_dword {vDUM}, {vPF}, {sWQ}, {sQW} offen'), salu(f's_add_u32 {sQW}, {sQW}, {1 << 21}')]
def rowsum(j, b): return Op(f'v_smfmac_f32_16x16x64_bf16 {LS.sub(4*b,4)}, {ONES}, {Pf(j, 0, b, 8)}, {vIDX}', 'mfma')

def att_iter(st, j, gn, opt):
    a = j + 1
    qk, pv = a <= 31, j >= 0
    t_ = vTMP
    def window(w):
        k = kdma(w + 4) if w + 4 <= 31 else gn.window(w - 28)[:(4, 4, 2, 0)[w - 28]]
        v = vdma(w + 3) if w + 3 <= 31 else []
        return k, v
    kcur, vcur = window(j)
    kprev, vprev = window(j - 1) if j >= 0 else ([], [])
    dma = {11: kcur[0:1], 13: kcur[1:2], 15: kcur[2:3], 1: kprev[3:4], 3: vprev[0:1], 5: vprev[1:2], 7: vprev[2:3], 9: vprev[3:4]}
    dd = opt.get('dd', 0)
    if dd: dma = {11: kcur[0:2], 15: kcur[2:4], 3: vprev[0:2], 7: vprev[2:4]}
    if j == 31: dma = {}
    Z = P.sub(32, 4)
    mf_all, fill_all = [], []
    pend = []
    for n in range(16):
        c, b, e = n >> 2, n & 3, n >> 1
        m = [None] * 9
        f = [[] for _ in range(9)]
        sc = [[] for _ in range(9)]
        sc[0] += pend; pend = []
        Sn, Sp = S.sub((n & 1) * 4, 4), S.sub(((n + 1) & 1) * 4, 4)
        if qk:
            for t in range(4): m[t] = mfma(Sn, Kf(c, t), Qf(b, t), NEGM.sub(4 * b, 4) if t == 0 else Sn)
        for jj in range(2):
            bb = 2 * (n & 1) + jj
            Ob = O.sub((e * 4 + bb) * 4, 4)
            if pv:
                for u in range(2):
                    uu = u ^ jj if opt.get('zig', 1) else u
                    m[4 + 2 * jj + u] = mfma(Ob, Pf(j, uu, bb), Vf(e, uu), Ob) if opt.get('xswap') else mfma(Ob, Vf(e, uu), Pf(j, uu, bb), Ob)
            else: m[5 + 2 * jj] = mfma(Ob, Z, Z, 0)
        if j == 31:
            if n == 0: m[0], m[2] = rowsum(j, 0), rowsum(j, 1)
            if n == 1: m[0], m[8] = rowsum(j, 2), rowsum(j, 3)
        elif b == 3: m[8] = rowsum(j, c) if pv else mfma(LS.sub(4 * c, 4), Z, Z, 0)
        pt, pn = (a, n - 1) if n > 0 else (j, 15)
        if 0 <= pt <= 31:
            pc, pb = pn >> 2, pn & 3
            for i in range(4): f[2 * i].append(valu(f'v_exp_f32 {T.sub(i)}, {Sp.sub(i)}'))
            f[3].append(valu(f'v_cvt_pk_bf16_f32 {Pf(pt, pc >> 1, pb).sub(2 * (pc & 1))}, {T.sub(0)}, {T.sub(1)}'))
            if not pv: f[7].append(salu('s_nop 0'))
        elif pt < 0: f[7].append(salu('s_nop 3'))
        pt, pn = (a, n - 2) if n > 1 else (j, 14 + n)
        if 0 <= pt <= 31:
            pc, pb = pn >> 2, pn & 3
            f[1].append(valu(f'v_cvt_pk_bf16_f32 {Pf(pt, pc >> 1, pb).sub(2 * (pc & 1) + 1)}, {T.sub(2)}, {T.sub(3)}'))
        if 0 <= j < 28 and 'e' in opt.get('xa', ''): f = [[] for _ in range(9)]
        kq = 16 * a + n + 5
        kt, kc, kk = kq >> 4, (kq >> 2) & 3, kq & 3
        if kt <= 31: f[5].insert(0, kread(kt, kc, kk))
        vq = 16 * j + n + 3
        vt, ve, vu = vq >> 4, (vq >> 1) & 7, vq & 1
        if 0 <= vt <= 31:
            g0, g1 = (1, 3) if (qk or n < 2) else (4, 6)
            f[g0].insert(0, vread(vt, ve, vu, 0)); f[g1].insert(0, vread(vt, ve, vu, 1))
        if 0 <= j < 28 and 'r' in opt.get('xa', ''): f = [[o for o in x if o.kind != 'ds'] for x in f]
        if 0 <= j < 28 and 'd' in opt.get('xa', ''):
            for pre, v, post in dma.get(n, []): v.text = 's_nop 0'
        for k, (pre, v, post) in enumerate(dma.get(n, [])):
            sc[6] += pre; f[7 + k].append(v)
            if n == 15: f[8] += post
            else: pend += post
        if n == 10 and j <= 30:
            f[7].append(barrier([f'V{j+1}'] + ([f'K{j+2}'] if j + 2 <= 31 else [])))
        if opt.get('pf_w', 1) and 0 <= j < 28 and n == 2 and (j & 3) == 0:
            f[7].append(vload(f'buffer_load_dword {vDUM}, {vPF}, {sWN}, {sPF} offen'))
            pend.append(salu(f's_add_u32 {sPF}, {sPF}, 4096'))
        if opt.get('pf_w1', 1) and j < 28 and n == 2 and (j & 1):
            f[7].append(pfw1()[0]); pend.append(pfw1()[1])
        if opt.get('rpf', 1) and 0 <= j < 28 and n == 2 and (j & 3) == 2: f[7].append(pfcode())
        if j == 28 and n == 0: f[7] += [valu(f'v_and_b32 v{t_}, 15, v0'), valu(f'v_lshlrev_b32 v{t_}, 1, v{t_}')]
        if j == 28 and n == 2: f[7].append(flag_load(sFW))
        if j in (28, 29) and n in (4, 6, 8, 12):
            k = (j - 28) * 4 + (4, 6, 8, 12).index(n)
            f[7].append(vload(f'buffer_load_ushort {BIAS.sub(k)}, v{t_}, {sBB}, {sBN} offen offset:{32*k}', BIAS.sub(k)))
        if j == 29 and n == 13: f[5].append(valu(f'v_readfirstlane_b32 {sT}, {vFL}', rd=[vFL]))
        if j == 29 and n == 14: f[7] += [salu(f's_cmp_lt_u32 {sT}, {sTG}'), salu('s_cbranch_scc1 L2_wn'), salu('L2_wn_r:')]
        for g in range(9):
            ops = sc[g] + f[g]
            if m[g] is not None: mf_all.append(m[g]); fill_all.append(ops)
            elif fill_all: fill_all[-1] += ops
            else: st.ops(ops)
    assert not pend
    nxt = mfma(S.sub(0, 4), Kf(0, 0), Qf(0, 0), NEGM.sub(0, 4)) if a + 1 <= 31 else None
    st.gaps(mf_all, fill_all, nxt)

def first_tile(st, opt, pre):
    a = st.raw
    SQ = [LS.sub(4 * k, 4) for k in range(4)] + [P.sub(32 + 4 * k, 4) for k in range(8)] + [V(224, 4), V(228, 4), S.sub(0, 4), S.sub(4, 4)]
    M = V(232, 4)
    def mx(n):
        x, m = SQ[n], M.sub(n & 3)
        if n < 4: return [valu(f'v_max3_f32 {m}, {x.sub(0)}, {x.sub(1)}, {x.sub(2)}'), valu(f'v_max_f32 {m}, {m}, {x.sub(3)}')]
        return [valu(f'v_max3_f32 {m}, {m}, {x.sub(0)}, {x.sub(1)}'), valu(f'v_max3_f32 {m}, {m}, {x.sub(2)}, {x.sub(3)}')]
    mf, fl = [], []
    for n in range(16):
        c, b = n >> 2, n & 3
        for t in range(4):
            mf.append(mfma(SQ[n], Kf(c, t), Qf(b, t), SQ[n] if t else 0)); fl.append([])
        if n + 5 < 16: fl[-3].append(kread(0, (n + 5) >> 2, (n + 5) & 3))
        if n >= 2: fl[-1] += mx(n - 2)
    st.push([valu(x) for x in pre] + [valu(f'v_accvgpr_write_b32 {O.sub(i)}, 0') for i in range(128)])
    st.gaps(mf, fl)
    st.flush()
    a(f's_cmp_lg_u32 {sMODE}, 0\ns_cbranch_scc1 L2_m1')
    st.ops(mx(14) + mx(15))
    negm_finish(a, M, opt.get('margin', MARGIN), T)
    a('L2_m1:')
    mem = [barrier(['V0', 'K1'])] + [kread(1, 0, t) for t in range(4)] + [kread(1, 1, 0)]
    kd_ = kdma(3)
    mem += [kd_[0][0][0], vread(0, 0, 0, 0), kd_[0][1], vread(0, 0, 0, 1), kd_[1][1], vread(0, 0, 1, 0), kd_[2][1], vread(0, 0, 1, 1), vread(0, 1, 0, 0), vread(0, 1, 0, 1)]
    if opt.get('pf_w1', 1): mem = pfw1() + mem
    for n in range(16):
        c, b = n >> 2, n & 3
        x = SQ[n]
        for h in (0, 2): a(f'v_pk_add_f32 {x.sub(h,2)}, {x.sub(h,2)}, {NEGM.sub(4*b,2)}')
        if 0 < n < 15: a(f'v_cvt_pk_bf16_f32 {Pf(0, (n-1) >> 3, (n-1) & 3).sub(2 * (((n-1) >> 2) & 1) + 1)}, {T.sub(2)}, {T.sub(3)}')
        if n < 15:
            for i in range(4): a(f'v_exp_f32 {T.sub(i)}, {x.sub(i)}')
            a(f'v_cvt_pk_bf16_f32 {Pf(0, c >> 1, b).sub(2 * (c & 1))}, {T.sub(0)}, {T.sub(1)}')
        if n < 4: a(f'v_mov_b64 {x.sub(0,2)}, 0\nv_mov_b64 {x.sub(2,2)}, 0')
        if n >= 4:
            for _ in range(2):
                if mem: st.op(mem.pop(0))
    assert not mem

def negm_finish(a, M, margin, M2=None):
    M2 = M2 or P.sub(20, 4)
    for p in ('16', '32'):
        for b in range(4): a(f'v_mov_b32 {M2.sub(b)}, {M.sub(b)}')
        for b in range(4): a(f'v_permlane{p}_swap_b32 {M2.sub(b)}, {M.sub(b)}')
        for b in range(4): a(f'v_max_f32 {M.sub(b)}, {M.sub(b)}, {M2.sub(b)}')
    for b in range(4):
        for i in range(2): a(f'v_sub_f32 {NEGM.sub(4*b+i)}, {f2h(-margin)}, {M.sub(b)}')
        a(f'v_mov_b64 {NEGM.sub(4*b+2,2)}, {NEGM.sub(4*b,2)}')

def act_store(st, NB, nt, fn, soffs, T0):
    a = st.raw
    k = 0
    for tt in range(nt):
        for b in range(NB):
            x = T0.sub((k & 1) * 8, 8); k += 1
            d = fn(x, tt, b)
            for i in range(4): a(f'v_cvt_pk_bf16_f32 {d.sub(i)}, {x.sub(2*i)}, {x.sub(2*i+1)}')
            st.op(vstore(f'buffer_store_dwordx4 {d}, {vL16}, {sWS}, {soffs[b >> 1][tt >> 1]} offen offset:{(tt & 1) * 2048 + (b & 1) * 1024} sc1'))

def signal(soff, sWS=sWS):
    return f's_mov_b64 exec, 1\nbuffer_atomic_add {vONE}, {vZERO}, {sWS}, {soff} offen sc1\ns_mov_b64 exec, -1'
def flag_load(soff, sWS=sWS):
    return vload(f'buffer_load_dword {vFL}, {vZERO}, {sWS}, {soff} offen sc1', vFL)
def spin(label, soff, target, sWS=sWS, nap=4):
    return (f's_mov_b32 {sT2}, {-(1 << 20)}\n{label}:\nbuffer_load_dword {vFL}, {vZERO}, {sWS}, {soff} offen sc1\ns_add_u32 {sT2}, {sT2}, 1\ns_cbranch_scc1 {label}_x\n'
            f's_sleep {nap}\ns_waitcnt vmcnt(0)\nv_readfirstlane_b32 {sT}, {vFL}\ns_nop 0\ns_cmp_lt_u32 {sT}, {target}\ns_cbranch_scc1 {label}\n{label}_x:\ns_waitcnt vmcnt(0)')
def rot_setup(srot, sw, sa, swi, sai, winc, ainc):
    L = f's_cmp_lg_u32 {srot}, 0\ns_cselect_b32 {sT}, -1, 1\ns_cselect_b32 {sT2}, 3, 1\n'
    L += f's_mul_i32 {swi[0]}, {sT}, {winc}\ns_mul_i32 {swi[1]}, {sT2}, {winc}\n'
    if sai: L += f's_mul_i32 {sai[0]}, {sT}, {ainc}\ns_mul_i32 {sai[1]}, {sT2}, {ainc}\n'
    L += f's_mul_i32 {sT}, {srot}, {winc}\ns_add_u32 {sw}, {sw}, {sT}\ns_mul_i32 {sT}, {srot}, {ainc}\ns_add_u32 {sa}, {sa}, {sT}'
    return L

def halfsum(regs_, tmp):
    L = []
    for m in ('quad_perm:[1,0,3,2]', 'quad_perm:[2,3,0,1]', 'row_half_mirror', 'row_mirror'):
        L.append('s_nop 1' if len(regs_) == 1 else 's_nop 0')
        for v in regs_: L.append(f'v_add_f32_dpp {v}, {v}, {v} {m} row_mask:0xf bank_mask:0xf')
    for k, v in enumerate(regs_): L.append(f'v_mov_b32 {tmp.sub(k)}, {v}')
    L.append('s_nop 1')
    for k, v in enumerate(regs_): L.append(f'v_permlane16_swap_b32 {tmp.sub(k)}, {v}')
    for k, v in enumerate(regs_): L.append(f'v_add_f32 {v}, {v}, {tmp.sub(k)}')
    return L
def layernorm2(X, Y, SC, SV, cs):
    L = []
    M, Vv, TM, AB = SC.sub(0, 2), SC.sub(2, 2), SC.sub(4, 2), SC.sub(6, 2)
    m, mb, v, r = M.sub(0), M.sub(1), Vv.sub(0), Vv.sub(1)
    m2, v2 = TM.sub(0), TM.sub(1)
    rbf = lambda d, x: [f'v_cvt_pk_bf16_f32 {d}, {x}, {x}', f'v_lshlrev_b32 {d}, 16, {d}']
    rstd = lambda d, x, fill: rbf(d, x) + [f'v_add_f32 {d}, 0x3727c5ac, {d}'] + rbf(d, d) + [f'v_sqrt_f32 {d}, {d}', fill[0]] + rbf(d, d) + [f'v_rcp_f32 {d}, {d}', fill[1]]
    for i in range(8): L.append(f'v_pk_add_f32 {Y.sub(2*i,2)}, {X.sub(2*i,2)}, {X.sub(2*i+16,2)}')
    for w in (4, 2, 1):
        for i in range(w): L.append(f'v_pk_add_f32 {Y.sub(2*i,2)}, {Y.sub(2*i,2)}, {Y.sub(2*(i+w),2)}')
    L.append(f'v_add_f32 {m}, {Y.sub(0)}, {Y.sub(1)}')
    L += halfsum([m], TM) + [f'v_mul_f32 {m}, 0x3a800000, {m}']
    L += [f'v_pk_add_f32 {X.sub(2*i,2)}, {X.sub(2*i,2)}, {M} op_sel_hi:[1,0] neg_lo:[0,1] neg_hi:[0,1]' for i in range(16)]
    L += [f'v_pk_mul_f32 {Vv}, {X.sub(0,2)}, {X.sub(0,2)}', f'v_pk_mul_f32 {TM}, {X.sub(2,2)}, {X.sub(2,2)}']
    for i in range(2, 16): L.append(f'v_pk_fma_f32 {[Vv, TM][i & 1]}, {X.sub(2*i,2)}, {X.sub(2*i,2)}, {[Vv, TM][i & 1]}')
    L += [f'v_pk_add_f32 {Vv}, {Vv}, {TM}', f'v_add_f32 {v}, {Vv.sub(0)}, {Vv.sub(1)}']
    L += halfsum([v], TM) + [f'v_mul_f32 {v}, 0x3a800000, {v}']
    L += rstd(r, v, rbf(mb, m))
    L += [f'v_mul_f32 {SV.sub(1)}, {f2h(cs)}, {r}', f'v_sub_f32 {m}, {m}, {mb}', f'v_mul_f32_e64 {SV.sub(0)}, -{mb}, {SV.sub(1)}']
    R_ = [f'v_mul_f32 {m}, {m}, {r}', f'v_mul_f32 {v}, {v}, {r}', f'v_mul_f32 {v}, {v}, {r}']
    R_ += rstd(v2, v, rbf(m2, m))
    R_ += [f'v_sub_f32 {m}, {m}, {m2}', f'v_mul_f32 {AB.sub(0)}, {r}, {v2}', f'v_mul_f32 {AB.sub(1)}, {m}, {v2}']
    R_ += [f'v_pk_fma_f32 {X.sub(2*i,2)}, {X.sub(2*i,2)}, {AB}, {AB} op_sel:[0,0,1] op_sel_hi:[1,0,1]' for i in range(16)]
    R_ += [f'v_cvt_pk_bf16_f32 {Y.sub(i)}, {X.sub(2*i)}, {X.sub(2*i+1)}' for i in range(16)]
    return L, R_
def unpack(X, Y):
    L = []
    for i in range(Y.n): L += [f'v_lshlrev_b32 {X.sub(2*i)}, 16, {Y.sub(i)}', f'v_and_b32 {X.sub(2*i+1)}, 0xffff0000, {Y.sub(i)}']
    return L

def q_epilogue(st, SR, bias=False):
    a = st.raw
    sw = lambda d: a(f'v_permlane16_swap_b32 {d.sub(0)}, {d.sub(2)}\nv_permlane16_swap_b32 {d.sub(1)}, {d.sub(3)}')
    for tt in range(4):
        for b in range(4):
            r = SR.sub(2 * b, 2)
            for jj in range(2):
                s_ = QACC.sub(((2 * tt + jj) * 4 + b) * 4, 4)
                for h in range(2): st.op(valu(f'v_pk_mul_f32 {s_.sub(2*h,2)}, {s_.sub(2*h,2)}, {r} op_sel:[0,1] op_sel_hi:[1,1]', rd=[r]))
            for jj in range(2):
                s_ = QACC.sub(((2 * tt + jj) * 4 + b) * 4, 4); c_ = Qf(2 + jj, tt)
                for h in range(2): st.op(valu(f'v_pk_fma_f32 {s_.sub(2*h,2)}, {c_.sub(2*h,2)}, {r}, {s_.sub(2*h,2)} op_sel_hi:[1,0,1]', rd=[c_]))
        for b in range(4):
            d = Qf(b, tt)
            for jj in range(2):
                s_ = QACC.sub(((2 * tt + jj) * 4 + b) * 4, 4)
                a(f'v_cvt_pk_bf16_f32 {d.sub(2*jj)}, {s_.sub(0)}, {s_.sub(1)}\nv_cvt_pk_bf16_f32 {d.sub(2*jj+1)}, {s_.sub(2)}, {s_.sub(3)}')
        for b in range(4): sw(Qf(b, tt))
    if bias:
        for e in range(bias):
            x = QACC.sub(16 * e, 16)
            for h in range(2):
                st.op(valu(f'v_lshlrev_b32 {x.sub(2*h)}, 16, {BIAS.sub(2*e+h)}', rd=[BIAS.sub(2 * e + h)]))
                a(f'v_and_b32 {x.sub(2*h+1)}, 0xffff0000, {BIAS.sub(2*e+h)}')
            for i in range(2, 8): a(f'v_mov_b64 {x.sub(2*i,2)}, {x.sub(2*(i&1),2)}')

def gen_k2(opt):
    st = Stream(); a = st.raw
    far = []
    A1, Y1 = opt.get('a1', 3), opt.get('y1', 3)
    NY = 2 * (A1 + Y1); NSY = 2 * NY
    PW = opt.get('pw', 0); OM = 4 if PW else 1
    GW = opt.get('g2w', 8)
    opt.setdefault('pf_w1', 1 if GW == 7 else 0)
    hasg2 = lambda d: f's_cmp_lt_u32 {sIDX}, {112 // GW}\ns_cselect_b32 {d}, {sROLE}, 0'
    t = vTMP
    a(f'{KNAME}:')
    a('s_cmp_ge_u32 s2, 256\ns_cbranch_scc1 L2_end')
    sp = Stamps(opt.get('stamp'), 1, 254)
    sp.jit = opt.get('jit')
    sp.stamp(st)
    RAW, LX, SC, HT = V(108, 16), V(124, 32), V(156, 8), V(196, 16)
    vLg, vLw, vHr, vHs, vSt, vZf, SV = V(212), V(213), V(214), V(215), V(216), V(217), V(218, 2)
    DL = opt.get('dln', 0)
    if DL:
        RAW, LX, SC, HT, SV = V(6, 16), V(76, 32), V(236, 8), V(76, 16), V(244, 2)
        vLg, vLw, vHr, vHs, vSt, vZf = [V(22 + i) for i in range(6)]
    a(f"""s_load_dwordx2 s[68:69], s[0:1], 0
s_load_dwordx2 s[8:9], s[0:1], 24
v_lshrrev_b32 v{t+1}, 5, v0
v_and_b32 v{t+2}, 31, v0
v_lshlrev_b32 v{t+2}, 4, v{t+2}
v_lshl_add_u32 {vLg}, v{t+1}, 11, v{t+2}
v_lshlrev_b32 {vFL}, 7, v0
s_lshl_b32 {sT4}, s2, 14
s_lshl_b32 {sT}, s2, 15
s_mov_b32 s70, 4194304
s_mov_b32 s71, 0x20000
s_mov_b32 s10, 8388608
s_mov_b32 s11, 0x20000
s_lshl_b32 {sO}, s2, 14
s_waitcnt lgkmcnt(0)""")
    rawl = [([], vload(f'buffer_load_dwordx4 {RAW.sub(4*i,4)}, {vLg}, {sX}, {sO} offen offset:{512*i}', RAW.sub(4 * i, 4)), []) for i in range(4)]
    RP = opt.get('rpos', 0)
    if not RP: st.ops(flat(rawl))
    if opt.get('pf_wq', 0): st.op(vload(f'buffer_load_dword {vDUM}, {vFL}, {sWQ}, {sT} offen'))
    a(f"""s_load_dwordx2 s[4:5], s[0:1], 96
s_lshr_b32 {sROLE}, s2, 7
s_cmp_eq_u32 {sROLE}, 0
s_cselect_b32 {sT}, 80, 48
s_cselect_b32 {sT2}, 64, 32
s_cselect_b32 {sT3}, 72, 56
s_load_dwordx2 s[20:21], s[0:1], {sT}
s_load_dwordx2 s[24:25], s[0:1], {sT2}
s_load_dwordx2 s[32:33], s[0:1], {sT3}
s_load_dwordx2 s[12:13], s[0:1], 8
s_load_dwordx2 s[16:17], s[0:1], 16
s_load_dwordx2 s[28:29], s[0:1], 32
s_load_dwordx2 s[72:73], s[0:1], 88
s_load_dwordx2 s[58:59], s[0:1], 48
s_mov_b32 s22, 14680064
s_cselect_b32 s26, s22, 8388608
s_cselect_b32 s22, 4194304, s22
s_movk_i32 s34, 7168
s_cselect_b32 s34, 4096, s34
v_lshrrev_b32 v{t}, 6, v0
v_mul_u32_u24 {vLw}, {LSTR}, v{t+1}
v_readfirstlane_b32 {sWAVE}, v{t}
v_add_u32 {vLw}, {vLw}, v{t+2}
v_and_b32 {vL16}, 63, v0
v_lshlrev_b32 {vPF}, 6, {vL16}
s_mov_b32 {sSTR}, 8192""")
    if opt.get('pf_code', 1):
        a(f's_getpc_b64 s[56:57]\nL2_pc:\ns_lshr_b32 {sT}, s2, 3\ns_lshl_b32 {sT}, {sT}, 2\ns_add_u32 {sT}, {sT}, {sWAVE}\ns_mul_i32 {sT}, {sT}, 704\ns_min_u32 {sT}, {sT}, L2_redo-L2_pc\ns_add_u32 s56, s56, {sT}\ns_addc_u32 s57, s57, 0\nv_lshrrev_b32 {vCO}, 2, {vPF}\nv_min_u32 {vCO}, 0x2b0, {vCO}')
        st.op(pfcode())
    for s, size in ((4, WS_SIZE), (12, 16777216), (16, 16777216), (20, 0), (24, 0), (28, 8388608), (32, 0), (72, 256)):
        if size: a(f's_mov_b32 s{s+2}, {size}')
        a(f's_mov_b32 s{s+3}, 0x20000')
    a(f"""s_bfe_u32 {sIDX}, s2, 0x40003
s_and_b32 {sSLOT}, s2, 7
s_lshr_b32 {sHEAD}, {sIDX}, 3
s_lshl_b32 {sQ64}, {sSLOT}, 1
s_add_u32 {sHEAD}, {sHEAD}, {sQ64}
s_cmp_eq_u32 {sROLE}, 0
s_cselect_b32 {sT}, {A1}, {Y1}
s_cselect_b32 {sT2}, {Y1}, {A1}
s_cselect_b32 {sQ64}, {Y1}, {16 - 2 * A1}
s_cmp_ge_u32 {sHEAD}, {sT}
s_cselect_b32 {sT2}, {sT2}, 0
s_addc_u32 {sGRP}, 1, 0
s_lshl_b32 {sT}, {sT}, 1
s_cmp_ge_u32 {sHEAD}, {sT}
s_cselect_b32 {sQ64}, {sQ64}, 0
s_addc_u32 {sGRP}, {sGRP}, 0
s_mul_i32 {sGRP}, {sGRP}, {sROLE}
s_mul_i32 {sT}, {sROLE}, {A1}
s_add_u32 {sHEAD}, {sHEAD}, {sT}
s_add_u32 {sHEAD}, {sHEAD}, {sT2}
s_add_u32 {sHEAD}, {sHEAD}, {sQ64}
s_and_b32 {sQ64}, {sIDX}, 7
s_lshl_b32 {sQ64}, {sQ64}, 2
s_add_u32 {sQ64}, {sQ64}, {sWAVE}
s_lshl_b32 {sLDS}, {sWAVE}, 12
s_lshl_b32 {sQW}, {sHEAD}, 8
s_lshl_b32 {sQA}, {sQ64}, 17
s_add_u32 {sQA2}, {sQA}, 65536""")
    accq = lambda e, b: QACC.sub((e * 4 + b) * 4, 4)
    acc3 = lambda e, b: accq(e, 2 + b)
    gq = GemmX('Q', 16, 4, accq, A(128, 128), A(0, 32), vWa, 'id', sWQ, vWq, sQW, 8192, QRING, sLDS, sX, None, sQA, lead=3, uni=True, dist=2)
    gq.xsetup(XSLOT, vXd, vXa, sQA2, ONESQ, IDXQ, CS)
    gq.bar_rd = [('x', 0)]
    RQ = opt.get('rq', 0)
    if RQ:
        tabs = [sum(((((k + 1) ^ r if k < 3 else 4 + r) - (k ^ r)) & 0xff) << (8 * k) for k in range(4)) for r in range(4)]
        a(f"""s_lshr_b32 {sT}, s2, 6
s_add_u32 {sT}, {sT}, {sIDX}
s_and_b32 {sT}, {sT}, {RQ}
s_bitcmp1_b32 {sT}, 0
s_mov_b32 {sPF}, {tabs[0]}
s_cselect_b32 {sPF}, {tabs[1]}, {sPF}
s_mov_b32 {sT2}, {tabs[2]}
s_cselect_b32 {sT2}, {tabs[3]}, {sT2}
s_bitcmp1_b32 {sT}, 1
s_cselect_b32 {sPF}, {sT2}, {sPF}
s_lshl_b32 {sT2}, {sT}, 19
s_add_u32 {sQW}, {sQW}, {sT2}
s_lshl_b32 {sT2}, {sT}, 7
s_add_u32 {sQA}, {sQA}, {sT2}
s_add_u32 {sQA2}, {sQA2}, {sT2}""")
        gq.rtab = sPF
    g2 = Gemm('G', 32, 4, accq, A(128, 128), A(0, 32), vWa, 'id', sW1, vWg, sW3, 0, QRING, sLDS, sWS, vL16, sA3, avoff2=vL16b, lead=3, uni=True, winc=sGI, ainc=sGJ, dist=2, asuf=' sc1', NW=GW)
    kwn = dict(avoff2=vA1, asuf=' sc1', winc=sNI, ainc=sNJ, lead=3, uni=True, dist=2, aoff=2, split=True)
    g4 = Gemm('N', 28, 4, accq, A(128, 128), Q.sub(0, 32), vWa, 'blk', sWN, vWq, sGW, 0, KBASE, sLDS, sWS, vA0, sGA, swap=True, **kwn)
    g3y = Gemm('N', NY, 4, accq, A(128, 128), Q.sub(0, 32), vWa, 'blk', sWN, vWq, sGW, 0, KBASE, sLDS, sWS, vA0, sGA, **kwn)
    g3s = Gemm('S', 64 - NSY, 2, acc3, A(0, 64), A(64, 32), vVa, 'blk', sWO, vWg, sW3, 0, VBASE, sLDS, sWS, vL16, sA3, asuf=' sc1', winc=sSI, ainc=sSJ)
    for g_ in (gq, g2, g4, g3y, g3s): g_.zig = opt.get('zig', 1)
    g3s.pat = opt.get('pat', 0); g3s.uni = opt.get('uni3', 0)
    a('\n'.join(wvoff_setup(vWq, sSTR, 'id', t)))
    rest = gq.window(0) + gq.window(1) + gq.window(2)[:2]
    if RP: rest[RP:RP] = rawl
    early = opt.get('early', 12)
    a(f'v_bfe_u32 v{t}, v0, 3, 3\nv_and_b32 v{t+1}, 7, v0\nv_lshrrev_b32 v{t+2}, 1, v{t}\nv_xor_b32 v{t+1}, v{t+1}, v{t+2}\nv_lshlrev_b32 v{t+1}, 4, v{t+1}\nv_lshl_add_u32 {vXd.sub(0)}, v{t}, 11, v{t+1}')
    a(f'v_xor_b32 {vXd.sub(1)}, 64, {vXd.sub(0)}\nv_add_u32 {vXd.sub(1)}, {16384-1024}, {vXd.sub(1)}\nv_add_u32 {vXd.sub(2)}, {2*(16384-1024)}, {vXd.sub(0)}\nv_add_u32 {vXd.sub(3)}, {2*(16384-1024)}, {vXd.sub(1)}')
    gq.issue(st, rest[:early]); del rest[:early]
    a(f'v_lshlrev_b32 {vL16}, 4, {vL16}\nv_cmp_eq_u32 vcc, 3, v{t}\nv_add_u32 v{t+1}, {SHADOW}, {vL16}\ns_nop 0\nv_cndmask_b32 {vL16}, {vL16}, v{t+1}, vcc\nv_add_u32 {vL16b}, 4096, {vL16}')
    PD = opt.get('pd', 4)
    if PD:
        a(f"""s_and_b32 {sT}, {sQ64}, 31
s_lshl_b32 {sT}, {sT}, 14
v_bfe_u32 v{t}, v0, 2, 1
v_bfe_u32 v{t+1}, v0, 3, 1
v_lshlrev_b32 v{t}, 7, v{t}
v_lshl_add_u32 v{t}, v{t+1}, 13, v{t}
v_add_u32 v{t}, {sT}, v{t}
v_add_u32 v49, {PD * 524288}, v{t}
v_bfe_u32 v{t+1}, v0, 4, 2
v_min_u32 v{t+1}, {PD - 1}, v{t+1}
v_lshl_add_u32 v50, v{t+1}, 19, v{t}
s_lshl_b32 {sP1}, {sHEAD}, 8
s_add_u32 {sP1}, {sP1}, {(4 if RQ else 3) * 524288}""")
        rest.insert(opt.get('ppos', 0), ([], vload(f'buffer_load_dword {vDUM}, v50, {sWQ}, {sP1} offen'), []))
    a('\n'.join(waddr_setup(vWa, QRING, 'id', t)))
    a(f's_lshl_b32 {sROT}, {sWAVE}, 6')
    for e in range(8): a(f'v_xor_b32 {vWa.sub(e)}, {sROT}, {vWa.sub(e)}')
    a(f"""v_and_b32 v{t}, 15, v0
v_bfe_u32 v{t+1}, v0, 4, 2
v_lshrrev_b32 v{t+2}, 1, v{t}
v_xor_b32 v{t+2}, v{t+2}, v{t+1}
v_lshlrev_b32 v{t+2}, 4, v{t+2}
v_lshl_add_u32 v{t+2}, v{t}, 7, v{t+2}
s_add_u32 {sT}, {sLDS}, {min(XSLOT)}
v_add_u32 {vXa.sub(0)}, {sT}, v{t+2}
v_xor_b32 {vXa.sub(1)}, 64, {vXa.sub(0)}
s_add_u32 {sT}, {sLDS}, {CSB}
v_lshl_add_u32 {vCw}, v{t}, 2, {sT}
v_lshl_add_u32 {vCr.sub(0)}, v{t+1}, 4, {sT}
v_xor_b32 {vCr.sub(1)}, 0x1000, {vCr.sub(0)}
v_xor_b32 {vCr.sub(2)}, 0x2000, {vCr.sub(0)}
v_xor_b32 {vCr.sub(3)}, 0x3000, {vCr.sub(0)}
v_and_b32 {IDXQ}, 1, v0
v_sub_u32 {IDXQ}, 0, {IDXQ}
v_and_b32 {IDXQ}, 0xaaaaaaaa, {IDXQ}
v_or_b32 {IDXQ}, 0x44444444, {IDXQ}
v_mov_b32 {vZERO}, 0
v_mov_b32 {vONE}, 1
v_bfe_u32 {vHr}, v0, 2, 2
v_mul_u32_u24 {vHr}, {LSTR}, {vHr}
v_lshrrev_b32 v{t+2}, 4, v0
v_lshl_add_u32 {vHr}, v{t+2}, 5, {vHr}
v_and_b32 v{t+2}, 3, v0
v_lshl_add_u32 {vHr}, v{t+2}, 3, {vHr}
v_lshlrev_b32 {vHs}, 10, v{t+1}
v_lshl_add_u32 {vHs}, v{t}, 4, {vHs}
s_and_b32 {sT}, s2, 3
s_lshl_b32 {sT}, {sT}, 8
v_add_u32 {vHs}, {sT}, {vHs}
v_bfe_u32 v{t+2}, {vHs}, 7, 3
v_cmp_eq_u32 vcc, 3, v{t+2}
v_add_u32 v{t+3}, {SHADOW}, {vHs}
s_lshr_b32 {sT2}, s2, 2
v_cndmask_b32 {vHs}, {vHs}, v{t+3}, vcc
s_lshl_b32 {sT2}, {sT2}, 12
s_lshl_b32 {sT}, {sWAVE}, 18
s_add_u32 {sT2}, {sT2}, {sT}
s_add_u32 {sT2}, {sT2}, {HF}
v_and_b32 v{t+2}, 31, v0
v_cmp_eq_u32 vcc, 0, v{t+2}
v_lshrrev_b32 {vSt}, 2, v0
v_mov_b32 v{t+3}, 0x40000000
v_cndmask_b32 {vSt}, v{t+3}, {vSt}, vcc
v_cmp_gt_u32 vcc, 0x80, v0
v_lshlrev_b32 {vZf}, 2, v0
s_lshl_b32 {sT3}, s2, 7
v_cndmask_b32 {vZf}, v{t+3}, {vZf}, vcc
s_lshl_b32 {sT4}, s2, 9
s_add_u32 {sT4}, {sT4}, {FL}
s_bfe_u32 {sSIG}, s2, 0x20004
s_and_b32 {sSIG}, {sSIG}, {opt.get('sigsp', 3)}
s_and_b32 {sU}, {sSIG}, {opt.get('lnsp', 3)}
s_add_u32 {sU}, {sU}, {DL}
s_add_u32 {sSIG}, {sSIG}, {DL + 4 if DL else 3}
s_bfe_u32 {sFU}, s2, 0x10003
s_lshl_b32 {sFU}, {sFU}, 7
s_mov_b32 {sMODE}, 0
s_cmp_eq_u32 {sWAVE}, 0
s_cselect_b32 {sSIG}, {sSIG}, 0
s_cselect_b32 {sRDY}, 0x80, 0
s_cselect_b32 {sP0}, 0, 0x1000""")
    if opt.get('xq') == 'nopoll': a(f's_mov_b32 {sRDY}, 0\ns_mov_b32 {sP0}, 0x1000')
    if opt.get('xq') == 'nosig': a(f's_mov_b32 {sRDY}, 0\ns_mov_b32 {sP0}, 0x1000\ns_mov_b32 {sSIG}, 0')
    assert STAT == 0
    for i in range(4): a(f'v_mov_b32 {ONESQ.sub(i)}, 0x3f803f80\nv_mov_b64 {CS.sub(2*i,2)}, 0')
    cs = math.log2(math.e) / math.sqrt(128.0)
    zq = [f'v_mov_b64 {QACC.sub(2*i,2)}, 0' for i in range(64)]
    if not DL:
        a('\n'.join(zq[28:44] + zq[56:]) + '\ns_waitcnt lgkmcnt(0)')
        st.op(valu(unpack(LX, RAW)[0], rd=[RAW]))
        sp.stamp(st)
        l1, l2 = layernorm2(LX, RAW, SC, SV, cs)
        ln = unpack(LX, RAW)[1:] + l1
        ln += [vstore(f'buffer_store_dwordx2 {SV}, {vSt}, {sWS}, {sT3} offen sc1'), vstore(f'buffer_store_dword {vZERO}, {vZf}, {sWS}, {sT4} offen sc1')]
        ln += l2
        nin = opt.get('nin', 12)
        step = len(ln) // (nin + 1)
        for k, x in enumerate(ln):
            if isinstance(x, Op): st.op(x)
            else: a(x)
            if k % step == step - 1 and nin and rest: gq.issue(st, [rest.pop(0)]); nin -= 1
        for i in range(4): st.op(Op(f'ds_write_b128 {vLw}, {RAW.sub(4*i,4)} offset:{512*i}', 'ds'))
        zz = zq[8:28]
        gq.issue(st, rest, lambda: a('\n'.join(zz.pop() for _ in range(min(2, len(zz))))))
        a('\n'.join(zz))
        st.op(barrier(['Q0'], lg0=True))
        for i in range(4):
            for tt in range(2): st.op(ds_tr(HT.sub(4 * i + 2 * tt, 2), vHr, 512 * i + 4 * LSTR * tt))
        a('\n'.join(zq[:8]))
        for i in range(4):
            st.op(vstore(f'buffer_store_dwordx4 {HT.sub(4*i,4)}, {vHs}, {sWS}, {sT2} offen sc1', rd=[HT.sub(4 * i, 4)]))
            a(f's_add_u32 {sT2}, {sT2}, {1 << 20}')
            st.ops(gq.xreads(0, i))
        st.ops(gq.reads(0))
        a('\n'.join(zq[44:56]))
        st.ops(gq.reads(1))
        sp.stamp(st)
    else:
        sp.stamp(st)
        gq.issue(st, rest, lambda: a('\n'.join(zq.pop() for _ in range(min(5, len(zq))))))
        a('\n'.join(zq) + '\ns_waitcnt lgkmcnt(0)')
        st.op(barrier(['Q0']))
        for i in range(4): st.ops(gq.xreads(0, i))
        st.ops(gq.reads(0) + gq.reads(1))
        sp.stamp(st)
        l1, l2 = layernorm2(LX, RAW, SC, SV, cs)
        b1 = unpack(LX, RAW) + l1 + [f'buffer_store_dwordx2 {SV}, {vSt}, {sWS}, {sT3} offen sc1', f'buffer_store_dword {vZERO}, {vZf}, {sWS}, {sT4} offen sc1'] + l2
        b1 += [f'ds_write_b128 {vLw}, {RAW.sub(4*i,4)} offset:{512*i}' for i in range(4)] + ['s_waitcnt lgkmcnt(0)']
        b2 = ['s_waitcnt lgkmcnt(7)'] + [ds_tr(HT.sub(4 * i + 2 * tt, 2), vHr, 512 * i + 4 * LSTR * tt).text for i in range(4) for tt in range(2)]
        for i in range(4): b2 += [f's_waitcnt lgkmcnt({6 - 2 * i})', f'buffer_store_dwordx4 {HT.sub(4*i,4)}, {vHs}, {sWS}, {sT2} offen sc1', f's_add_u32 {sT2}, {sT2}, {1 << 20}']
        ret = f's_and_b32 {sT}, {sMODE}, 3\n' + ''.join(f's_cmp_eq_u32 {sT}, {k}\ns_cbranch_scc1 L2_n{k}_r\n' for k in range(3)) + 's_branch L2_n3_r'
        far.append(f'L2_n:\ns_cmp_eq_u32 {sT}, 0\ns_cbranch_scc0 L2_nb\n' + '\n'.join(b1) + '\ns_branch L2_nr\nL2_nb:\n' + '\n'.join(b2) + '\nL2_nr:\n' + ret)
    for k in range(4): far.append(f'L2_sl{k}:\n{signal(sFU, sDBG)}\ns_branch L2_sl{k}_r')
    def qx(s, e):
        if e == 2: return {3: [salu(f's_add_u32 {sMODE}, {sMODE}, 1')], 7: [salu(f's_cmp_eq_u32 {sMODE}, {sSIG}'), salu(f's_cbranch_scc1 L2_sl{s % 4}'), salu(f'L2_sl{s % 4}_r:')]}
        if DL and e == 0: return {3: [salu(f's_sub_u32 {sT}, {sMODE}, {sU}')], 7: [salu(f's_cmp_lt_u32 {sT}, 2'), salu('s_cbranch_scc1 L2_n'), salu(f'L2_n{s % 4}_r:')]}
        if e == 5 and PD: return {1: [vload(f'buffer_load_dword {vDUM}, v49, {sWQ}, {sQW} offen')]}
        return {}
    if opt.get('qdiag'):
        cntl = [0]
        def qx2(s, e):
            r = qx(s, e)
            if e == 2:
                far.append(f'L2_sx{s}:\n{signal(sFU, sDBG)}\ns_branch L2_sx{s}_r')
                r[7] = [r[7][0], salu(f's_cbranch_scc1 L2_sx{s}'), salu(f'L2_sx{s}_r:')]
            return r
        del far[-4:]
        for s_ in range(12):
            gq.stages(st, s_, s_ + 1, None, qx2, None)
            if s_ < 11: sp.stamp(st)
        sp.on2 = True
    else: gq.loop(st, 'L2_q', sCNT, extra=qx)
    a(hasg2(sT) + f'\ns_cmp_lg_u32 {sT}, 0\ns_cbranch_scc1 L2_G')
    sg = st.fork(); spg = sp.n
    def q_last_extra(s_, SR, nm):
        ld = f'buffer_load_dword v75, v74, {sDBG}, {sP0} offen sc1'
        far.append(f'{nm}:\ns_mov_b32 {sCNT}, {-(1 << 20)}\n{nm}1:\n{ld}\ns_add_u32 {sCNT}, {sCNT}, 1\ns_cbranch_scc1 {nm}_x\ns_sleep 8\ns_waitcnt vmcnt(0)\n'
                   f'v_cmp_gt_u32 vcc, {sRDY}, v75\ns_nop 4\ns_cbranch_vccnz {nm}1\n{nm}_x:\ns_waitcnt vmcnt(0)\ns_branch {nm}_r')
        def f(s, e):
            if s == 12 and e == 2: return {3: [valu('v_and_b32 v74, 1, v0'), valu('v_lshlrev_b32 v74, 7, v74')], 7: [vload(ld, V(75))]}
            if s == 13 and e == 5: return {1: [valu(f'v_cmp_gt_u32 vcc, {sRDY}, v75', rd=[V(75)])], 5: [salu(f's_cbranch_vccnz {nm}'), salu(f'{nm}_r:')]}
            if s == 12 and e == 0: return {3: [valu(f'v_bfe_u32 v72, v0, 3, 1'), valu(f'v_and_b32 v73, 7, v0')], 7: [valu('v_lshlrev_b32 v72, 7, v72'), valu('v_lshl_add_u32 v72, v73, 3, v72')]}
            if s == 12 and e == 1: return {3: [salu(f's_lshl_b32 {sP1}, {sQ64}, 10')]}
            if s == 14 and e in (5, 6):
                return {g: [vload(f'buffer_load_dwordx2 {SR.sub(2*n,2)}, v72, {sWS}, {sP1} offen offset:{256*n} sc1', SR.sub(2 * n, 2))] for g, n in ((1, 2 * (e - 5)), (5, 2 * (e - 5) + 1))}
            if s == 15 and e == 3:
                return {3: [valu(f'v_add_f32 {CS.sub(4*k)}, {CS.sub(4*k)}, {CS.sub(4*k+1)}') for k in range(2)],
                        7: [Op(f'ds_write2_b32 {vCw}, {CS.sub(0)}, {CS.sub(4)} offset0:0 offset1:16', 'ds', wr=[('x', 0)])]}
            if s == 15 and e == 6: s_.push([ds_128(Qf(2 + (k & 1), k >> 1), vCr.sub(k >> 1), 64 * (k & 1)) for k in range(8)])
            return {}
        return f

    su_kv = f's_lshl_b32 {sKV0}, {sHEAD}, 19\ns_mov_b32 {sK}, {sKV0}\ns_mov_b32 {sV}, {sKV0}\n'
    su_kv += f'v_bfe_u32 v{t}, v0, 4, 2\nv_lshrrev_b32 v{t+1}, 6, v0\nv_lshl_add_u32 v{t+1}, v{t+1}, 4, v{t}\nv_lshlrev_b32 v{t+1}, 8, v{t+1}\nv_and_b32 v{t+2}, 15, v0\n'
    for i in range(4):
        su_kv += f'v_or_b32 v{t+3}, {4*i}, v{t}\nv_xor_b32 v{t+3}, v{t+3}, v{t+2}\nv_lshl_add_u32 {vKd.sub(i)}, v{t+3}, 4, v{t+1}\n'
    for i in range(2):
        su_kv += f'v_or_b32 v{t+3}, {4*i}, v{t}\nv_lshlrev_b32 v{t+3}, 1, v{t+3}\nv_xor_b32 v{t+3}, v{t+3}, v{t+2}\nv_lshl_add_u32 {vVd.sub(i)}, v{t+3}, 4, v{t+1}\n'
    su_kv += f'v_and_b32 v{t+1}, 1, v{t}\nv_lshlrev_b32 v{t+1}, 1, v{t+1}\nv_lshrrev_b32 v{t+3}, 1, v{t}\nv_or_b32 v{t+1}, v{t+1}, v{t+3}\n'
    su_kv += f's_lshl_b32 {sT}, {sWAVE}, 2\nv_xor_b32 v{t+1}, {sT}, v{t+1}\nv_xor_b32 v{t+1}, v{t+1}, v{t+2}\nv_lshlrev_b32 v{t+2}, 8, v{t+2}\n'
    for i in range(4):
        su_kv += f'v_xor_b32 v{t+3}, {4*i}, v{t+1}\nv_lshl_add_u32 {vKa.sub(i)}, v{t+3}, 4, v{t+2}\n'
    su_kv += '\n'.join(waddr_setup(vVa, VBASE, 'blk', t))
    su_g2 = f"""s_and_b32 {sT3}, {sSLOT}, 1
s_lshl_b32 {sT3}, {sT3}, 1
s_and_b32 {sT}, {sIDX}, 1
s_add_u32 {sT3}, {sT3}, {sT}
s_lshl_b32 {sT}, {sT3}, 8
s_add_u32 {sFU}, {sT}, {FL + 8192}
s_lshr_b32 {sT}, {sSLOT}, 1
s_mul_i32 {sT}, {sT}, {56 // GW}
s_lshr_b32 {sT4}, {sIDX}, 1
s_add_u32 {sT}, {sT}, {sT4}
s_add_u32 {sT4}, {sT4}, {sIDX}
s_and_b32 {sT4}, {sT4}, {opt.get('rotg', 1)}
s_mul_i32 {sW3}, {sT}, {32 * GW}
s_and_b32 {sR0}, {sT}, {GW & 1}
s_lshl_b32 {sB}, {sR0}, 5
s_add_u32 {sB}, {sB}, {sW3}
s_mul_i32 {sBN}, {sR0}, -224
s_add_u32 {sBN}, {sBN}, {sB}
s_mul_i32 {sU}, {sT}, {GW}
s_add_u32 {sU}, {sU}, {sR0}
s_lshl_b32 {sU}, {sU}, 10
s_mul_i32 {sQA}, {sR0}, {8 - 4 * 2048}
s_add_u32 {sQA}, {sQA}, {3 * 2048}
s_lshl_b32 {sR0}, {sR0}, 1
s_lshl_b32 {sT}, {sT3}, 2
s_add_u32 {sT}, {sT}, {sWAVE}
s_lshl_b32 {sA3}, {sT}, 18
s_add_u32 {sA3}, {sA3}, {HF}
s_mul_i32 {sT}, {sT}, {2*112*2048}
s_add_u32 {sU}, {sU}, {sT}
s_add_u32 {sU}, {sU}, {UF}
s_movk_i32 {sSTR}, 7168
""".replace(sQA + ',', sGA + ',') + rot_setup(sT4, sW3, sA3, sGI, sGJ, 64 * 7168, 8192) + '\n' + '\n'.join(wvoff_setup(vWg, sSTR, 'id', t, sR0 if GW == 7 else None))
    su_g2 += f'\nv_bfe_u32 {vFL}, v0, 4, 2\nv_lshlrev_b32 {vFL}, 3, {vFL}'
    PFSEL = ''
    if opt.get('pf_w', 1) in (2, 3): PFSEL = f's_cmp_eq_u32 {sROLE}, {opt["pf_w"] - 2}\ns_cselect_b32 {sPF0}, {sPF0}, 0x20000000'
    su_n = f"""s_lshl_b32 {sO}, {sQ64}, 19
s_lshl_b32 {sT}, {sHEAD}, 13
s_add_u32 {sO}, {sO}, {sT}
s_add_u32 {sO}, {sO}, {OF}
s_lshl_b32 {sT2}, {sGRP}, 3
s_and_b32 {sT}, {sIDX}, 7
s_add_u32 {sT}, {sT}, {sT2}
s_lshl_b32 {sT}, {sT}, 8
s_add_u32 {sFO}, {sT}, {FL}
s_and_b32 {sST}, {sSLOT}, 3
s_lshl_b32 {sST}, {sST}, 2
s_and_b32 {sT}, {sIDX}, 3
s_add_u32 {sST}, {sST}, {sT}
s_and_b32 {sDT}, {sSLOT}, 4
s_lshr_b32 {sT}, {sIDX}, 2
s_add_u32 {sDT}, {sDT}, {sT}
s_lshl_b32 {sT}, {sST}, 3
s_add_u32 {sT}, {sT}, {sDT}
s_lshl_b32 {sT}, {sT}, 2
s_add_u32 {sT}, {sT}, {sWAVE}
s_mov_b32 {sG}, {sT}
s_lshl_b32 {sT}, {sIDX}, 3
s_add_u32 {sT}, {sT}, {sSLOT}
s_lshl_b32 {sT}, {sT}, 2
s_add_u32 {sT}, {sT}, {sWAVE}
s_mul_i32 {sPF0}, {sT}, 28672
{PFSEL}
s_mov_b32 {sMODE}, 0
s_lshl_b32 {sT2}, {sST}, 2
s_add_u32 {sT2}, {sT2}, {sWAVE}
s_lshl_b32 {sR0}, {sT2}, 16
s_lshl_b32 {sT3}, {sDT}, 8
s_add_u32 {sR0}, {sR0}, {sT3}
s_add_u32 {sR1}, {sR0}, 32768
s_andn2_b32 {sT2}, {sT2}, 4
s_lshl_b32 {sT2}, {sT2}, 18
s_add_u32 {sT2}, {sT2}, {OF}
s_and_b32 {sT}, {sST}, 1
s_mul_i32 {sT4}, {sT}, {NY * 4096}
s_add_u32 {sT2}, {sT2}, {sT4}
s_mul_i32 {sT4}, {sT}, {NY * 64 * 2048}
s_add_u32 {sT3}, {sT3}, {sT4}
s_andn2_b32 {sT}, {sDT}, 1
s_lshl_b32 {sT}, {sT}, 2
s_add_u32 {sT}, {sT}, {sWAVE}
s_mul_i32 {sGA0}, {sT}, {112*2048}
s_add_u32 {sGA0}, {sGA0}, {UF}
s_and_b32 {sT}, {sDT}, 1
s_mul_i32 {sT4}, {sT}, {28 * 4096}
s_add_u32 {sGA0}, {sGA0}, {sT4}
s_mul_i32 {sGW0}, {sT}, {28 * 64 * 4096}
s_lshl_b32 {sT4}, {sST}, 8
s_add_u32 {sGW0}, {sGW0}, {sT4}
s_lshr_b32 {sFW}, {sDT}, 1
s_add_u32 {sROT}, {sFW}, {sST}
s_add_u32 {sFW}, {sFW}, 32
s_lshr_b32 {sTG}, {sST}, 1
s_add_u32 {sT}, {sTG}, {sDT}
s_cmp_eq_u32 {sROLE}, 0
s_cselect_b32 {sGA0}, {sGA0}, {sT2}
s_cselect_b32 {sGW0}, {sGW0}, {sT3}
s_cselect_b32 {sROT}, {sROT}, {sT}
s_cselect_b32 {sBN}, {sT4}, 0x10000
s_cselect_b32 {sFW}, {sFW}, {sTG}
s_cselect_b32 {sTG}, {224 // GW}, {16 * OM}
s_lshl_b32 {sFW}, {sFW}, 8
s_add_u32 {sFW}, {sFW}, {FL}
{hasg2(sSIG)}
s_cmp_eq_u32 {sWAVE}, 0
s_cselect_b32 {sSIG}, {sSIG}, 0
s_mul_i32 {sSIG}, {sSIG}, -7
s_lshr_b32 {sSTR}, 4096, {sROLE}
s_lshl_b32 {sT3}, {sSTR}, 6
s_and_b32 {sROT}, {sROT}, {opt.get('rot', 1)}
"""
    su_n2 = rot_setup(sROT, sGW0, sGA0, sNI, sNJ, sT3, 4096) + '\n' + '\n'.join(wvoff_setup(vWq, sSTR, 'blk', t))
    su_n2 += f'\nv_mov_b32 v{t+1}, {FLAG}'
    pre_kv = kdma(0) + kdma(1) + vdma(0) + vdma(1) + kdma(2)
    kvtail = lambda i: pre_kv[i * 12:(i + 1) * 12]
    def last_before_att(g, s_, pre, more=None):
        n = g.nst
        def ex(s, e):
            if s == n - 4 and e == 0: s_.push(parse(su_kv) + parse(pre) + parse(su_n))
            if s == n - 3 and e == g.NW - 2: assert len(s_.q) <= len(parse(su_n)) + 40, len(s_.q)
            if s == n - 2 and e == 0: s_.push(parse(su_n2))
            if s == n - 1 and e == g.NW - 2: assert not s_.q
            r = more(s, e) if more else {}
            if s == n - 1 and e == g.NW - 2:
                s_.push([kread(0, 0, tt) for tt in range(4)] + [kread(0, 1, 0), Op(f'ds_write_b32 v{t+1}, {vZERO}', 'ds')])
                s_.push([valu(f'v_subrev_u32 {vWa.sub(e_)}, {VBASE - KBASE}, {vVa.sub(e_)}') for e_ in range(8)])
            return r
        g.last(s_, kvtail, ex, last_bar=['K0'])
        s_.flush()
    qa = q_last_extra(st, BIAS.sub(0, 8), 'L2_wa')
    def qs(s, e):
        if s == 13 and e == 1:
            st.push(parse(f's_mov_b32 s8, s58\ns_mov_b32 s9, s59\ns_cmp_eq_u32 {sROLE}, 0\ns_cselect_b32 s10, 14680064, 0\ns_lshl_b32 {sQW}, s2, 2\ns_add_u32 {sQW}, {sQW}, {sWAVE}\ns_lshl_b32 {sQW}, {sQW}, 12'))
        if (s, e) in [tuple(x) for x in opt.get('pfpos', [(15, 7)])] and opt.get('pf_w1', 1): st.push(pfw1())
        return qa(s, e)
    last_before_att(gq, st, '', qs)
    sp.stamp(st)
    q_epilogue(st, BIAS.sub(0, 8))
    sp.stamp(st); sp.stamp(st)
    a('L2_join:')
    pre = [f'v_mov_b32 {ONES.sub(i)}, 0x3f803f80' for i in range(4)]
    pre += f'v_and_b32 {vIDX}, 1, v0\nv_sub_u32 {vIDX}, 0, {vIDX}\nv_and_b32 {vIDX}, 0xaaaaaaaa, {vIDX}\nv_or_b32 {vIDX}, 0x44444444, {vIDX}'.split('\n')
    M = P.sub(16, 4)
    mx = lambda b: [valu(f'v_max3_f32 {M.sub(b)}, {P.sub(4*b)}, {P.sub(4*b+1)}, {P.sub(4*b+2)}'), valu(f'v_max_f32 {M.sub(b)}, {M.sub(b)}, {P.sub(4*b+3)}')]
    mf = [mfma(P.sub(4 * b, 4), Kf(0, tt), Qf(b, tt), P.sub(4 * b, 4) if tt else 0) for b in range(4) for tt in range(4)]
    fl = [[] for _ in mf]
    for i in range(4): fl[4 + i] = [valu(x) for x in pre[2 * i:2 * i + 2]]
    fl[8] = mx(0); fl[15] = mx(1) + [salu('s_nop 1')] + mx(2) + [salu('s_nop 1')] + mx(3)
    a('s_nop 0')
    FT = opt.get('ft', 1)
    if not FT:
        st.gaps(mf, fl)
        negm_finish(a, M, opt.get('margin', MARGIN))
    RC, PA = opt.get('rc', [1]), opt.get('pa', 1)
    sRCM, sRCF = sQA, sQA2
    a(f's_mov_b32 {sRCM}, {sum(1 << ((k - 7) & 31) for k in RC)}\ns_mov_b32 {sRCF}, 0')
    sp.stamp(st)
    a('L2_att:')
    if not FT: a(f'v_mov_b64 {P.sub(32,2)}, 0\nv_mov_b64 {P.sub(34,2)}, 0')
    a(f's_mov_b32 {sGW}, {sGW0}\ns_mov_b32 {sGA}, {sGA0}\ns_mov_b32 {sPF}, {sPF0}')
    def sig_end(name, soff, pre=''):
        far.append(f'{name}:\n{pre}{signal(soff)}\ns_mov_b32 {sSIG}, 0\ns_branch {name}_r')
        return f's_cmp_eq_u32 {sCNT}, {sSIG}\ns_cbranch_scc1 {name}\n{name}_r:'
    usig = sig_end('L2_su', sFU)
    far.append(f'L2_wn:\n{spin("L2_wn1", sFW, sTG)}\ns_branch L2_wn_r')
    far.append(f'L2_bad:\nds_write_b32 v{t+1}, {vONE}\ns_waitcnt lgkmcnt(0)\ns_branch L2_bad_r')
    su_s = f's_lshl_b32 {sW3}, {sDT}, 8\ns_add_u32 {sW3}, {sW3}, {NSY*64*2048}\ns_lshl_b32 {sT}, {sST}, 2\ns_add_u32 {sT}, {sT}, {sWAVE}\ns_lshl_b32 {sA3}, {sT}, 18\ns_add_u32 {sA3}, {sA3}, {OF + NSY*4096}\n'
    su_s += f's_add_u32 {sT3}, {sST}, {sDT}\ns_and_b32 {sT3}, {sT3}, {opt.get("rot", 1)}\n' + rot_setup(sT3, sW3, sA3, sSI, sSJ, 64 * 2048, 4096)
    su_s += f'\nv_bfe_u32 v{t+2}, v0, 4, 2\nv_lshrrev_b32 v{t+3}, 6, v0\nv_lshl_add_u32 v{t+2}, v{t+3}, 4, v{t+2}\nv_lshlrev_b32 v{t+2}, 11, v{t+2}'
    for i in range(4): su_s += f'\nv_sub_u32 {vWg.sub(i)}, {vWq.sub(i)}, v{t+2}' + (f'\nv_subrev_u32 {vWg.sub(i)}, {4*i*2048}, {vWg.sub(i)}' if i else '')
    su_a = f's_and_b32 {sT3}, {sDT}, 1\ns_mov_b32 {sT2}, {1 << 20}\ns_cmp_eq_u32 {sROLE}, 0\ns_cselect_b32 {sT2}, {4*112*2048}, {sT2}\ns_cselect_b32 {sT3}, {sT3}, 0\n'
    su_a += f's_mul_i32 {sT3}, {sT3}, {sT2}\ns_sub_u32 {sT2}, {sT2}, {sT3}\nv_add_u32 {vA0}, {sT3}, {vL16}\nv_add_u32 {vA1}, {sT2}, {vL16}'
    FR, TR = V(222, 8), V(230, 4)
    mg = int(opt.get('margin', MARGIN))
    ra = f'L2_ra:\ns_mov_b32 {sRCF}, 1\ns_nop 7\n'
    for b in range(4): ra += f'v_add_f32 {TR.sub(b)}, {LS.sub(4*b)}, {LS.sub(4*b+1)}\n'
    for b in range(4): ra += f'v_frexp_exp_i32_f32 {TR.sub(b)}, {TR.sub(b)}\n'
    for b in range(4): ra += f'v_sub_u32 {TR.sub(b)}, {1 - mg}, {TR.sub(b)}\n'
    for b in range(4): ra += f'v_ldexp_f32 {FR.sub(2*b)}, 1.0, {TR.sub(b)}\nv_cvt_f32_i32 {TR.sub(b)}, {TR.sub(b)}\n'
    for b in range(4):
        for i in range(4): ra += f'v_add_f32 {NEGM.sub(4*b+i)}, {NEGM.sub(4*b+i)}, {TR.sub(b)}\n'
    rb = f'L2_rb:\ns_mov_b32 {sRCF}, 0\nv_mov_b32 {TR.sub(1)}, 0x7f800000\ns_nop 7\n'
    for b in range(4):
        rb += f'v_add_f32 {TR.sub(0)}, {LS.sub(4*b)}, {LS.sub(4*b+1)}\nv_cmp_ge_f32 vcc, 0x47800000, {TR.sub(0)}\ns_nop 1\nv_cndmask_b32 {FR.sub(2*b)}, {TR.sub(1)}, {FR.sub(2*b)}, vcc\n'
        rb += f'v_pk_mul_f32 {LS.sub(4*b,2)}, {LS.sub(4*b,2)}, {FR.sub(2*b,2)} op_sel_hi:[1,0]\n'
    for k in range(32):
        for i in range(4): rb += f'v_accvgpr_read_b32 {TR.sub(i)}, {O.sub(4*k+i)}\n'
        for h in (0, 2): rb += f'v_pk_mul_f32 {TR.sub(h,2)}, {TR.sub(h,2)}, {FR.sub(2*(k & 3),2)} op_sel_hi:[1,0]\n'
        for i in range(4): rb += f'v_accvgpr_write_b32 {O.sub(4*k+i)}, {TR.sub(i)}\n'
    if RC: far += [ra + 's_branch L2_ra_r', rb + 's_branch L2_rb_r']
    marks = []
    for j in range(-1, 31):
        if 0 <= j <= 28 and j % 4 == 0: marks.append(st.mark())
        if j == 28: st.push(parse(su_a))
        if j == 30: st.push(flat(g4.window(0)[4:]) + parse(su_s))
        if j < 0 and FT: first_tile(st, opt, pre)
        else: att_iter(st, j, g4, opt)
        assert not st.q
        if RC and 0 <= j < 28 and j % 4 == PA: a(f's_bitcmp1_b32 {sRCM}, {sCNT}\ns_cbranch_scc1 L2_ra\nL2_ra_r:')
        if RC and 0 <= j < 28 and j % 4 == (PA + 1) % 4: a(f's_cmp_lg_u32 {sRCF}, 0\ns_cbranch_scc1 L2_rb\nL2_rb_r:')
        if 0 <= j < 28 and j % 4 == 3: a(usig)
    st.fold(marks, 'L2_loop', sCNT)
    w1_ = flat(g4.window(1)[4:])
    st.push([10] + w1_[:5])
    st.push([valu(f'v_add_f32 {LS.sub(4*b)}, {LS.sub(4*b)}, {LS.sub(4*b+1)}') for b in range(4)])
    st.push(parse(f'v_add_f32 v{t+2}, {LS.sub(0)}, {LS.sub(4)}\nv_add_f32 v{t+3}, {LS.sub(8)}, {LS.sub(12)}\nv_add_f32 v{t+2}, v{t+2}, v{t+3}\nv_cmp_nge_f32 vcc, 0x47800000, v{t+2}'))
    st.push([valu(f'v_rcp_f32 {LS.sub(4*b)}, {LS.sub(4*b)}') for b in range(2)])
    st.push([[salu('s_cbranch_vccnz L2_bad'), salu('L2_bad_r:')], barrier(['N0']), Op(f'ds_read_b32 v{t}, v{t+1}', 'ds', wr=V(t).set())])
    st.push([valu(f'v_rcp_f32 {LS.sub(4*b)}, {LS.sub(4*b)}') for b in range(2, 4)])
    st.push(w1_[5:])
    st.push([valu(f'v_readfirstlane_b32 {sT}, v{t}', rd=[V(t)])])
    st.push([valu(f'v_mov_b32 {LS.sub(4*b+1)}, {LS.sub(4*b)}') for b in range(4)])
    st.push([[salu(f's_cmp_gt_u32 {sT}, {sMODE}'), salu('s_cbranch_scc1 L2_redo')]])
    st.push(parse(f's_add_u32 {sT}, {sO}, 4096\ns_add_u32 {sT2}, {sO}, {128*2048}\ns_add_u32 {sT3}, {sT2}, 4096'))
    st.push(parse(f's_lshr_b32 {sFW}, {sST}, 1\ns_lshl_b32 {sFW}, {sFW}, 8\ns_add_u32 {sFW}, {sFW}, {FL}'))
    def ini(e):
        x = QACC.sub(16 * e, 16)
        o = [valu(f'v_lshlrev_b32 {x.sub(i)}, 16, {BIAS.sub(e)}', rd=[BIAS.sub(e)]) for i in range(2)]
        return o + [valu(f'v_mov_b64 {x.sub(2*i,2)}, {x.sub(0,2) if i < 4 else 0}') for i in range(1, 8)]
    rd = g4.reads(0) + g4.reads(1)
    early_ = ini(0) + ini(1) + ini(7)
    for r in rd: st.push([r, early_.pop(0)])
    st.push(early_)
    att_iter(st, 31, g4, opt)
    st.flush()
    sp.stamp(st)
    kk = [0]
    def onorm(x, tt, b):
        for jj in range(2):
            for i in range(4): a(f'v_accvgpr_read_b32 {x.sub(4*jj+i)}, {O.sub(((2*tt+jj)*4+b)*4+i)}')
        for i in range(4): a(f'v_pk_mul_f32 {x.sub(2*i,2)}, {x.sub(2*i,2)}, {LS.sub(4*b,2)}')
        kk[0] += 1
        return Q.sub(32 + 4 * (kk[0] & 7), 4)
    act_store(st, 4, 4, onorm, [[sO, sT], [sT2, sT3]], NEGM)
    for e in range(2, 7): st.ops(ini(e))
    sp.stamp(st)
    a(f's_cmp_lg_u32 {sROLE}, 0\ns_cbranch_scc1 L2_Y')
    sy = st.fork(); spn = sp.n
    def hooks(g, name, events, sig=None, sigpos=2, code=False):
        pos = {c % 4 for c in events}; assert len(pos) == 1; pos = pos.pop()
        nf = g.nst // 4 - 1
        inl = {c: x for c, x in events.items() if c < 4 * nf}
        out = [c for c in events if c >= 4 * nf]
        txt = f'{name}:\n'
        for c, x in inl.items(): txt += f's_cmp_lg_u32 {sCNT}, {c // 4 - nf}\ns_cbranch_scc1 {name}_{c}\n{x}\n{name}_{c}:\n'
        if inl: far.append(txt + f's_branch {name}_r')
        mask = sum(1 << ((c // 4 - nf) & 31) for c in inl)
        def f(s, e):
            fold = s < 4 * nf
            want = lambda d: ((s + d) % 4 == pos and (inl or any(c - d < 4 * nf for c in out))) if fold else (s + d) in out
            if g.NA == 4 and e == 0 and want(1): return {3: [flag_load(sFW)]}
            if g.NA == 2 and e == 0 and want(2): return {3: [flag_load(sFW)]}
            if e == 7 and want(1): return {3: [valu(f'v_readfirstlane_b32 {sT}, {vFL}', rd=[vFL])]}
            if e == 0 and fold and inl and s % 4 == pos: return {3: [salu(f's_bitcmp1_b32 {mask}, {sCNT}'), salu(f's_cbranch_scc1 {name}'), salu(f'{name}_r:')]}
            if e == 0 and s in out:
                far.append(f'{name}o:\n{events[s]}\ns_branch {name}o_r')
                return {3: [salu(f's_branch {name}o'), salu(f'{name}o_r:')]}
            if fold and sig and (s % 4, e) == sigpos: return {(1 if g.NA == 4 else 3): [salu(x) for x in sig.split('\n')]}
            if e == 2 and fold and code and s % 4 == 0 and opt.get('rpf', 1): return {3: [pfcode()]}
            return {}
        return f
    def need(name, target): return f's_cmp_ge_u32 {sT}, {target}\ns_cbranch_scc1 {name}_k\n{spin(name, sFW, target)}\n{name}_k:'
    def pack_store(x, y, so, off, zero=False):
        o = [valu(f'v_cvt_pk_bf16_f32 {x.sub(h)}, {(x, y)[h >> 1].sub(2*(h & 1))}, {(x, y)[h >> 1].sub(2*(h & 1)+1)}') for h in range(4)]
        o.append(vstore(f'buffer_store_dwordx4 {x}, {vL16}, {sWS}, {so} offen offset:{off} sc1'))
        if zero: o += [valu(f'v_mov_b64 {r.sub(h,2)}, 0') for r in (y, x) for h in (0, 2)]
        return o

    opre, opos = (f's_waitcnt vmcnt({10 + opt.get("rpf", 1)})\n', (0, opt.get('pe', 6))) if PW else ('', (1, 6))
    a(f's_mov_b32 {sSIG}, -6' if PW else f's_cmp_eq_u32 {sWAVE}, 0\ns_cselect_b32 {sSIG}, -6, 0')
    h4 = hooks(g4, 'L2_h4', {25: need('L2_c0', 16 * OM)}, sig_end('L2_so', sFO, opre), opos, True)
    g4.loop(st, 'L2_y', sCNT, extra=h4)
    n3 = g3s.nst
    l2e = f2h(-math.log2(math.e))
    su4 = f"""s_mov_b32 s58, {l2e}
s_mov_b32 s59, {l2e}
s_xor_b32 {sT3}, {sG}, 4
s_lshl_b32 {sP0}, {sT3}, 13
s_add_u32 {sP0}, {sP0}, {YB}
s_add_u32 {sP1}, {sP0}, 4096
s_lshl_b32 {sT3}, {sT3}, 7
s_add_u32 {sFO}, {sT3}, {FL + 16384 + 64}
s_lshl_b32 {sT3}, {sG}, 7
s_add_u32 {sFG}, {sT3}, {FL + 16384}
s_add_u32 {sFU}, {sFW}, {3 * 2048}
s_add_u32 {sFW}, {sFG}, 64
s_mov_b32 {sSIG}, {1 - n3 // 4}
s_lshl_b32 {sT3}, {sWAVE}, 14
s_lshl_b32 {sT4}, {sWAVE}, 11
v_and_b32 v{t+1}, 63, v0
v_lshlrev_b32 v{t+1}, 4, v{t+1}
v_add_u32 v{t}, {sT4}, v{t+1}
v_add_u32 v{t+1}, {sT3}, v{t+1}
v_bfe_u32 v{t+2}, v0, 4, 2
v_and_b32 v{t+3}, 15, v0
v_lshlrev_b32 v{t+2}, 2, v{t+2}
v_sub_u32 v{t+2}, v{t+3}, v{t+2}
v_and_b32 v{t+3}, 1, v0
v_lshlrev_b32 v{t+3}, 4, v{t+3}
v_mov_b32 {SEL.sub(0)}, 0x3f80
v_lshlrev_b32 v{t+3}, v{t+3}, {SEL.sub(0)}
v_lshrrev_b32 v{t+2}, 1, v{t+2}
v_cmp_eq_u32 vcc, 0, v{t+2}
v_mov_b32 {SEL.sub(0)}, 0
v_mov_b32 {SEL.sub(1)}, 0
v_cndmask_b32 {SEL.sub(2)}, 0, v{t+3}, vcc
v_cmp_eq_u32 vcc, 1, v{t+2}
v_mov_b32 {SEL.sub(4)}, 0
v_mov_b32 {SEL.sub(5)}, 0
v_cndmask_b32 {SEL.sub(3)}, 0, v{t+3}, vcc"""
    HP = opt.get('hp', 0)
    vHP = V(16)
    if HP:
        su4 += f"""
s_and_b32 {sT3}, {sST}, 3
s_lshl_b32 {sT3}, {sT3}, 1
s_bfe_u32 {sT4}, {sDT}, 0x10001
s_add_u32 {sT3}, {sT3}, {sT4}
s_lshl_b32 {sT3}, {sT3}, 2
s_add_u32 {sT3}, {sT3}, {sWAVE}
s_lshl_b32 {sT3}, {sT3}, 14
s_lshl_b32 {sT4}, {sT4}, 9
s_sub_u32 {sT3}, {sT3}, {sT4}
s_add_u32 {sT4}, {sST}, {sDT}
s_and_b32 {sT4}, {sT4}, {opt.get('rot', 1)}
s_lshl_b32 {sT4}, {sT4}, 17
s_sub_u32 {sT3}, {sT3}, {sT4}
s_add_u32 {sT3}, {sT3}, {opt.get('hd', 4) * 131072 + 256 + (128 if HP == 1 else 0)}
s_bitcmp1_b32 {sDT}, 0
s_cselect_b32 {sT3}, 0x20000000, {sT3}
v_bfe_u32 {vHP}, v0, 3, 3
v_lshlrev_b32 {vHP}, 11, {vHP}
v_bfe_u32 v{t+2}, v0, 2, {HP - 1}
v_lshl_add_u32 {vHP}, v{t+2}, 7, {vHP}
v_add_u32 {vHP}, {sT3}, {vHP}"""
    ysend = lambda e: pack_store(accq(e, 2), accq(e, 3), [sP0, sP1][e >> 2], 1024 * (e & 3), True)
    def g4x(s, e):
        if s == 25 and e == 1: st.push(parse(su4))
        if s == 27 and e == 2: assert not st.q
        if s == 27 and e >= 2: st.push(ysend(e - 2))
        return h4(s, e)
    pre3 = g3s.window(0) + g3s.window(1) + g3s.window(2) + g3s.window(3)[:2]
    if g3s.uni: pre3 = g3s.window(0) + g3s.window(1) + g3s.window(2)[4:] + g3s.window(2)[:3]
    g4.last(st, lambda i: pre3[12 * i:12 * i + 12], g4x, chain=g3s)
    st.ops(g3s.reads(2))
    st.flush()
    sp.stamp(st)
    st.ops(ysend(6) + ysend(7))
    sp.stamp(st)
    YR, PR = A(96, 32), A(128, 64)
    ev1 = need('L2_cy', 1) + f'\ns_lshl_b32 {sP0}, {sG}, 13\ns_add_u32 {sP0}, {sP0}, {YB}\ns_add_u32 {sP1}, {sP0}, 4096\ns_mov_b32 {sFW}, {sFU}\n'
    ev1 += '\n'.join(f'buffer_load_dwordx4 {YR.sub(4*e,4)}, {vL16}, {sWS}, {[sP0, sP1][e >> 2]} offen offset:{1024*(e & 3)} sc1' for e in range(8))
    ev2 = [mfma(accq(e, b), SEL.sub(2 - 2 * b, 4), YR.sub(4 * e, 4), accq(e, b)).text for e in range(8) for b in range(2)]
    for e in range(8):
        x = BIAS.sub((e & 1) * 8, 8); y = QACC.sub(16 * e, 8)
        ev2 += [f'v_pk_mul_f32 {x.sub(2*i,2)}, {y.sub(2*i,2)}, {sC}' for i in range(4)]
        ev2 += [f'v_exp_f32 {x.sub(i)}, {x.sub(i)}' for i in range(8)]
        ev2 += [f'v_pk_add_f32 {x.sub(2*i,2)}, {x.sub(2*i,2)}, 1.0 op_sel_hi:[1,0]' for i in range(4)]
        ev2 += [f'v_rcp_f32 {x.sub(i)}, {x.sub(i)}' for i in range(8)]
        ev2 += [f'v_pk_mul_f32 {y.sub(2*i,2)}, {x.sub(2*i,2)}, {y.sub(2*i,2)}' for i in range(4)]
        if e in (0, 4): ev2.append('s_waitcnt lgkmcnt(0)')
        ev2 += [f'ds_write_b128 v{t}, {y.sub(4*b,4)} offset:{8192*e + 1024*b}' for b in range(2)]
    ev2 = '\n'.join(ev2) + '\ns_waitcnt lgkmcnt(0)'
    c2 = 2 * (16 - 2 * A1) - 3
    ev = {9: ev1, 13: ev2}
    LT = opt.get('late', 0); tg2 = (16 - 2 * Y1) * OM
    if LT:
        ev[c2] = (ev[c2] + '\n' if c2 in ev else '') + f's_cmp_lt_u32 {sT}, {tg2}\ns_cselect_b32 {sRDY}, {(c2 + 3) // 4 - n3 // 4}, 0\ns_cselect_b32 {sT}, 0x40000000, 0\ns_mov_b32 {sP0}, {sA3}\ns_add_u32 {sA3}, {sA3}, {sT}'
        rl = '\n'.join(o.text for k in range(3) for o in flat(g3s.window(c2 + 3 + k)[4:]))
        far.append(f'L2_lt:\n{spin("L2_lt1", sFW, tg2, nap=1)}\ns_mov_b32 {sA3}, {sP0}\n{rl}\ns_waitcnt vmcnt(0)\ns_branch L2_lt_r')
        a(f's_mov_b32 {sRDY}, 0')
    else: ev[c2] = (ev[c2] + '\n' if c2 in ev else '') + need('L2_c2', tg2)
    assert c2 >= 13 and c2 < n3 - 4
    h3 = hooks(g3s, 'L2_h3', ev, sig_end('L2_sy1', sFO), (3, 1))
    g3s.loop(st, 'L2_s', sCNT, extra=lambda s, e: {3: [vload(f'buffer_load_dword {vDUM}, {vHP}, {sWO}, {sW3} offen')]} if (HP and s % 4 == 0 and e == 3) else h3(s, e),
             trip_end=(lambda s_: s_.raw(f's_cmp_eq_u32 {sCNT}, {sRDY}\ns_cbranch_scc1 L2_lt\nL2_lt_r:')) if LT else None)
    GFb = lambda k: accq(k >> 1, k & 1)
    pl = lambda so: [vload(f'buffer_load_dwordx4 {PR.sub(4*n,4)}, {vL16}, {sWS}, {so[n >> 2]} offen offset:{1024*(n & 3)} sc1', PR.sub(4 * n, 4)) for n in range(16)]
    PS = [sP0, sP1, sT4, sFU]
    pset = f's_add_u32 {sP1}, {sP0}, 4096\ns_add_u32 {sT4}, {sP0}, 8192\ns_add_u32 {sFU}, {sP0}, 12288'
    XT = 131072
    vXo, vXe = vWq, vWa
    su_x = f'v_bfe_u32 v{t+2}, v0, 4, 2\nv_and_b32 v{t+3}, 15, v0\nv_xor_b32 {vXo.sub(0)}, v{t+2}, v{t+3}\nv_lshlrev_b32 {vXo.sub(0)}, 4, {vXo.sub(0)}\nv_lshl_add_u32 {vXo.sub(0)}, v{t+2}, 11, {vXo.sub(0)}\n'
    for k in range(1, 4): su_x += f'v_xor_b32 {vXo.sub(k)}, {64*k}, {vXo.sub(0)}\nv_add_u32 {vXo.sub(k)}, {k*(8192-1024)}, {vXo.sub(k)}\n'
    su_x += f's_lshl_b32 {sT3}, {sWAVE}, 13\ns_add_u32 {sT3}, {sT3}, {XT}\ns_lshl_b32 {sG}, {sG}, 14\ns_add_u32 {sG}, {sG}, {GB}'
    su_e = f'v_lshrrev_b32 v{t}, 1, v{t+2}\nv_xor_b32 v{t}, v{t}, v{t+3}\nv_lshlrev_b32 v{t}, 4, v{t}\nv_lshl_add_u32 v{t}, v{t+3}, 8, v{t}\nv_and_b32 {vX}, 1, v{t+2}\nv_lshl_add_u32 v{t}, {vX}, 3, v{t}\nv_add_u32 {vXe.sub(0)}, {sT3}, v{t}\n'
    for k in range(1, 8): su_e += f'v_xor_b32 {vXe.sub(k)}, {32*k}, {vXe.sub(0)}\n'
    su_e += f'v_and_b32 {vX}, 63, v0\nv_lshl_add_u32 {vX}, {vX}, 4, {sT3}'
    a(su_x)
    def xwin(i_):
        if i_: return []
        r_ = xw()
        return r_[4:] + r_[:4] if g3s.uni else r_
    def xw():
        return [([salu(f's_add_u32 m0, {sT3}, {4096 * (n >> 2)}')] if n % 4 == 0 else [],
                 vload(f'buffer_load_dwordx4 {vXo.sub(n & 3)}, {sX}, {[sR0, sR1][n >> 2]} offen offset:{1024*(n & 3)} lds', tag=f'x{n}'), []) for n in range(8)]
    FE = opt.get('fe', 8)
    def s3x(s, e):
        if s == n3 - 4 and e == 0:
            v_ = parse(su_e)
            for k in range(16): st.push([ds_128(GFb(k), V(t + 1), 8192 * (k & 1) + 1024 * (k >> 1)), v_.pop(0)])
            un = v_
            for k in range(16):
                b, e_ = k >> 3, k & 7
                x = XF.sub((e_ * 2 + b) * 4, 4)
                st.push([Op(f'ds_read_b64 {x.sub(2,2)}, {vXe.sub(e_)} offset:{4096*b}', 'ds', wr=x.sub(2, 2).set(), waittags=[f'x{4*b+3}'])])
                if k >= 4: st.push([un.pop(0)])
                un += [valu(f'v_lshlrev_b32 {x.sub(0)}, 16, {x.sub(2)}', rd=[x]), valu(f'v_and_b32 {x.sub(1)}, 0xffff0000, {x.sub(2)}'),
                       valu(f'v_lshlrev_b32 {x.sub(2)}, 16, {x.sub(3)}'), valu(f'v_and_b32 {x.sub(3)}, 0xffff0000, {x.sub(3)}')]
            st.push(un)
        if 8 * (s - n3 + 4) + e == FE: return {3: [flag_load(sFG)]}
        if 8 * (s - n3 + 3) + e == FE:
            old = st.q; st.q = []
            st.push([valu(f'v_readfirstlane_b32 {sRDY}, {vFL}', rd=[vFL]), 1])
            st.push(parse(f's_cmp_ge_u32 {sRDY}, 2\ns_cselect_b32 {sP0}, {sG}, 0x40000000\n' + pset))
            st.push(pl(PS))
            st.q += old
        return {}
    g3s.last(st, xwin, s3x)
    sp.stamp(st)
    far.append(f'L2_wg:\n{spin("L2_wg1", sFG, 2, nap=0)}\ns_mov_b32 {sP0}, {sG}\n{pset}\n' + '\n'.join(o.text for o in pl(PS)) + '\ns_branch L2_wg_r')
    KP = opt.get('keep', 32)
    keep = st.q[-KP:]; st.q = st.q[:-KP]
    assert all(g[0].kind == 'valu' for g in keep)
    st.flush(); st.q = keep
    assert st.pend[('a', 128)][1] == st.issued['vm'] - 15 and st.done['vm'] < st.issued['vm'] - 15
    a(f's_cmp_lt_u32 {sRDY}, 2\ns_cbranch_scc1 L2_wg\nL2_wg_r:')
    sp.stamp(st)
    mf = [mfma(acc3(e, b), SEL.sub(2 - 2 * (e & 1), 4), PR.sub((j * 8 + b * 4 + (e >> 1)) * 4, 4), acc3(e, b)) for j in range(2) for b in range(2) for e in range(8)]
    st.gaps(mf, [[] for _ in mf])
    st.flush()
    OD = lambda n: accq(n, 0)
    ost = lambda n: st.op(vstore(f'buffer_store_dwordx4 {OD(n)}, {vXo.sub(n & 3)}, {sOUT}, {[sR0, sR1][n >> 2]} offen offset:{1024*(n & 3)}' + opt.get('osuf', ''), rd=[OD(n)]))
    for b in range(2):
        for e in range(8):
            k = (e * 2 + b) * 4
            for h in (0, 2): st.op(valu(f'v_pk_fma_f32 {XF.sub(k+h,2)}, {acc3(e, b).sub(h,2)}, {accq(e, b).sub(h,2)}, {XF.sub(k+h,2)}', rd=[accq(e, b)]))
            for h in (0, 2): a(f'v_cvt_pk_bf16_f32 {XF.sub(k + h // 2)}, {XF.sub(k+h)}, {XF.sub(k+h+1)}')
            st.op(Op(f'ds_write_b64 {vXe.sub(e)}, {XF.sub(k,2)} offset:{4096*b}', 'ds'))
            if b == 1 and e >= 4: ost(e - 4)
        for n in range(4 * b, 4 * b + 4): st.op(ds_128(OD(n), vX, 1024 * n))
    for n in range(4, 8): ost(n)
    if sp.on: a('s_waitcnt vmcnt(0)')
    sp.stamp(st)
    sp.flush(st, sWS, t)
    a('L2_end:\ns_endpgm')

    a = sy.raw; sp.n = spn
    a('L2_Y:')
    assert (2 * A1 - 3) % 4 != 0
    a(f"""s_cmp_eq_u32 {sWAVE}, {sWAVE if PW else 0}
s_cselect_b32 {sSIG}, {1 - NY // 4}, 0
s_and_b32 {sT3}, {sST}, 1
s_lshl_b32 {sT4}, {sT3}, 11
s_add_u32 {sFW}, {sFW}, {sT4}
s_add_u32 {sFW}, {sFW}, 2048
s_andn2_b32 {sG}, {sG}, 32
s_lshl_b32 {sFG}, {sG}, 7
s_add_u32 {sFG}, {sFG}, {FL + 16384}
s_lshl_b32 {sG}, {sG}, 14
s_lshl_b32 {sT3}, {sT3}, 13
s_add_u32 {sG}, {sG}, {sT3}
s_add_u32 {sG}, {sG}, {GB}
s_add_u32 {sP0}, {sG}, 4096
s_add_u32 {sR0}, {sG}, {32 << 14}
s_add_u32 {sR1}, {sR0}, 4096""")
    hy = hooks(g3y, 'L2_hy', {2 * A1 - 2: need('L2_c1', Y1 * OM)}, sig_end('L2_yo', sFO, opre), opos, True)
    g3y.loop(sy, 'L2_sy', sCNT, extra=hy)
    def pstore(p):
        o = []
        for b in range(4): o += pack_store(accq(2 * p, b), accq(2 * p + 1, b), [sG, sP0, sR0, sR1][b], 1024 * p)
        return o
    def yx(s, e):
        if s == NY - 1 and e in (3, 5, 7): sy.push(pstore(e // 2 - 1))
        return hy(s, e)
    g3y.last(sy, None, yx)
    sy.flush()
    sp.stamp(sy); sp.stamp(sy); sp.stamp(sy)
    sy.ops(pstore(3))
    a(f'v_and_b32 v{t}, 1, v0\nv_lshlrev_b32 v{t}, 12, v{t}\ns_waitcnt vmcnt(0)')
    sp.stamp(sy)
    a(f's_mov_b64 exec, 3\nbuffer_atomic_add {vONE}, v{t}, {sWS}, {sFG} offen sc1\ns_mov_b64 exec, -1\ns_waitcnt vmcnt(0)')
    sp.stamp(sy)
    sp.flush(sy, sWS, t)
    a('s_endpgm')

    a = sg.raw; sp.n = spg
    a('L2_G:')
    qm = q_last_extra(sg, V(10, 8), 'L2_wb')
    def gx(s, e):
        if s == 12 and e == 0:
            sg.push(parse(su_g2))
        if s == 15 and e in (2, 6): sg.push([valu(f'v_xor_b32 {vWa.sub(k)}, {sROT}, {vWa.sub(k)}') for k in (range(2) if e == 2 else range(2, 8))])
        if s == 13 and e == 4: assert not sg.q
        if s == 13 and e == 6:
            sg.push([vload(f'buffer_load_dwordx2 {BIAS.sub(2*n,2)}, {vFL}, {sBB}, {sB if n < 6 else sBN} offen offset:{32*n}', BIAS.sub(2 * n, 2)) for n in range(GW)])
        return qm(s, e)
    gq.last(sg, g2.window, gx, chain=g2)
    sg.flush()
    sp.stamp(sg)
    q_epilogue(sg, V(10, 8), GW)
    a(f'v_lshrrev_b32 {vCO}, 2, {vPF}\nv_min_u32 {vCO}, 0x2b0, {vCO}')
    sp.stamp(sg)
    g2.loop(sg, 'L2_g', sCNT, extra=lambda s, e: {1: [pfcode()]} if (opt.get('rpf', 1) and s % 4 == 0 and e == 5) else {})
    k0 = 2.0 * math.sqrt(2.0 / math.pi) * math.log2(math.e)
    last_before_att(g2, sg, f's_mov_b32 s10, 0\ns_mov_b32 s58, {f2h(-k0*0.044715)}\ns_mov_b32 s59, {f2h(-k0*0.044715)}')
    sp.stamp(sg)
    C1 = V(t + 2, 2)
    a(f'v_mov_b32 {C1.sub(0)}, {f2h(-k0)}\nv_mov_b32 {C1.sub(1)}, {f2h(-k0)}')
    a(f's_add_u32 {sT}, {sU}, 4096\ns_add_u32 {sT2}, {sU}, {112*2048}\ns_add_u32 {sT3}, {sT2}, 4096')
    def gelu(x, tt, b):
        u = [(accq(2 * tt + (i >> 1), b) if tt < GW // 2 else accq(6, b + (i >> 1))).sub(2 * (i & 1), 2) for i in range(4)]
        for i in range(4): a(f'v_pk_mul_f32 {x.sub(2*i,2)}, {u[i]}, {u[i]}')
        for i in range(4): a(f'v_pk_fma_f32 {x.sub(2*i,2)}, {x.sub(2*i,2)}, {sC}, {C1}')
        for i in range(4): a(f'v_pk_mul_f32 {x.sub(2*i,2)}, {x.sub(2*i,2)}, {u[i]}')
        for i in range(8): a(f'v_exp_f32 {x.sub(i)}, {x.sub(i)}')
        for i in range(4): a(f'v_pk_add_f32 {x.sub(2*i,2)}, {x.sub(2*i,2)}, 1.0 op_sel_hi:[1,0]')
        for i in range(8): a(f'v_rcp_f32 {x.sub(i)}, {x.sub(i)}')
        for i in range(4): a(f'v_pk_mul_f32 {x.sub(2*i,2)}, {x.sub(2*i,2)}, {u[i]}')
        return accq(2 * tt, b)
    act_store(sg, 4, GW // 2, gelu, [[sU, sT], [sT2, sT3]], BIAS)
    a(f's_add_u32 {sT}, {sU}, {sGA}\ns_add_u32 {sT2}, {sT2}, {sGA}')
    for b in ((0, 2) if GW == 7 else ()):
        x = BIAS.sub(4 * b, 8); d = gelu(x, 3, b)
        for i in range(4): a(f'v_cvt_pk_bf16_f32 {d.sub(i)}, {x.sub(2*i)}, {x.sub(2*i+1)}')
        for h in range(2): sg.op(vstore(f'buffer_store_dwordx2 {d.sub(2*h,2)}, {vL16}, {sWS}, {[sT, sT2][b >> 1]} offen offset:{1024*h} sc1'))
    a(f'v_lshrrev_b32 {vCO}, 2, {vPF}\nv_min_u32 {vCO}, 0x2b0, {vCO}')
    jn = Op('s_branch L2_join', 's', waittags=['K0', 'K1', 'K2', 'V0', 'V1']); jn.lg0 = True
    sg.op(jn)
    for x in far: a(x)

    a('L2_redo:')
    a(f's_mov_b32 {sMODE}, 1\ns_mov_b32 {sRCM}, 0\ns_mov_b32 {sK}, {sKV0}\ns_mov_b32 {sCNT}, -32')
    for b in range(4): a(f'v_mov_b32 {M.sub(b)}, 0xff800000')
    a('L2_mx:\ns_waitcnt vmcnt(0) lgkmcnt(0)\ns_barrier')
    for pre, v, post in kdma(0):
        for o in pre: a(o.text + '\ns_nop 0')
        a(v.text)
        for o in post: a(o.text)
    a('s_waitcnt vmcnt(0)\ns_barrier')
    for c in range(4):
        for tt in range(4): a(kread(0, c, tt).text)
        a('s_waitcnt lgkmcnt(0)')
        for b in range(4):
            for tt in range(4): a(mfma(P.sub(4 * b, 4), Kf(c, tt), Qf(b, tt), P.sub(4 * b, 4) if tt else 0).text)
        a('s_nop 7')
        for b in range(4):
            x = P.sub(4 * b, 4)
            a(f'v_max3_f32 {M.sub(b)}, {M.sub(b)}, {x.sub(0)}, {x.sub(1)}\nv_max3_f32 {M.sub(b)}, {M.sub(b)}, {x.sub(2)}, {x.sub(3)}')
    a(f's_add_u32 {sCNT}, {sCNT}, 1\ns_cbranch_scc0 L2_mx')
    negm_finish(a, M, 0.0)
    a(f's_mov_b32 {sK}, {sKV0}\ns_mov_b32 {sV}, {sKV0}\ns_barrier')
    for pre, v, post in pre_kv:
        for o in pre: a(o.text + '\ns_nop 0')
        a(v.text)
        for o in post: a(o.text)
    a('s_waitcnt vmcnt(0)\ns_barrier')
    for tt in range(4): a(kread(0, 0, tt).text)
    a(kread(0, 1, 0).text)
    a('s_waitcnt lgkmcnt(0)\ns_branch L2_att')
    return st.lines() + sy.lines() + sg.lines(), kd(KNAME, 512, 256, 102), '; @launch ' + (f'kernel={KNAME} ' if opt.get('aslist') or 'probe' in opt else '') + 'grid=(256,1,1) block=(256,1,1) lds=163840'
```

```python
import sys, json
from fw import *
HEADER = """
"""
def build(opt):
    parts = []
    import k2; parts.append(k2.gen_k2(opt))
    if 'probe' in opt:
        import probe; parts.append(probe.gen_probe(opt))
    out = [p[2] for p in parts]
    out.append(HEADER.strip())
    out.append('.amdgcn_target "amdgcn-amd-amdhsa--gfx950"\n.text')
    for p in parts:
        name = p[0][0][:-1]
        if opt.get('dsuf'): p[0][:] = [l[:-4] + opt['dsuf'] + ' lds' if l.endswith(' lds') else l for l in p[0]]
        if 'asuf' in opt: p[0][:] = [l[:-4] + opt['asuf'] if (l.startswith('buffer_load_dwordx4 a') and l.endswith(' sc1')) else l for l in p[0]]
        if opt.get('perm'): p[0][:] = [('v_perm_b32 %s v%d, v%d, s99' % (l.split()[1], int(l.split()[3][1:]), int(l.split()[2][1:-1])) if (l.startswith('v_cvt_pk_bf16_f32') and l.split()[2] in ('v116,', 'v118,') and l.split()[3] in ('v117', 'v119')) else l) for l in p[0]]
        if opt.get('nobar'):
            inl = None; o = []
            for l in p[0]:
                if l[:-1] in opt['nobar'] and l.endswith(':'): inl = l[:-1]
                if inl and l == 's_cbranch_scc0 ' + inl: inl = None
                o.append('s_nop 0' if (inl and l == 's_barrier') else l)
            p[0][:] = o
        if opt.get('align', 1): p[0][:] = align_runs(p[0])
        errs = hazards(p[0])
        for e in errs: print('HAZARD', name, e, file=sys.stderr)
        out.append(f'.globl {name}\n.p2align 8\n.type {name},@function')
        out += p[0]
    out.append('.section .rodata,"a"')
    for p in parts: out.append('.p2align 6\n' + p[1])
    return '\n'.join(out) + '\n'
if __name__ == '__main__':
    opt = json.loads(sys.argv[2]) if len(sys.argv) > 2 else {}
    open(sys.argv[1], 'w').write(build(opt))
```

```python
import re
TRANS = ('v_exp_', 'v_log_', 'v_rcp_', 'v_rsq_', 'v_sqrt_', 'v_sin_', 'v_cos_')

def R(kind, lo, n=1):
    return f'{kind}{lo}' if n == 1 else f'{kind}[{lo}:{lo+n-1}]'
def regs(kind, lo, n=1):
    return [(kind, lo + i) for i in range(n)]

class Reg:
    def __init__(self, kind, lo, n=1):
        self.kind, self.lo, self.n = kind, lo, n
    def __str__(self): return R(self.kind, self.lo, self.n)
    def sub(self, off, n=1):
        assert off + n <= self.n, (off, n, self.n)
        return Reg(self.kind, self.lo + off, n)
    def set(self): return regs(self.kind, self.lo, self.n)
def V(lo, n=1): return Reg('v', lo, n)
def A(lo, n=1): return Reg('a', lo, n)

class Wait:
    def __init__(self): self.lg = None; self.vm = None
    def need(self, cls, n):
        if cls == 'ds': self.lg = n if self.lg is None else min(self.lg, n)
        else: self.vm = n if self.vm is None else min(self.vm, n)
    def merge(self, o):
        if o.lg is not None: self.need('ds', o.lg)
        if o.vm is not None: self.need('vm', o.vm)
    def text(self):
        p = []
        if self.vm is not None: p.append(f'vmcnt({self.vm})')
        if self.lg is not None: p.append(f'lgkmcnt({self.lg})')
        return 's_waitcnt ' + ' '.join(p) if p else None

class Op:
    def __init__(self, text, kind, rd=(), wr=(), tag=None, waittags=()):
        self.text, self.kind, self.rd, self.wr, self.tag, self.waittags = text, kind, list(rd), list(wr), tag, list(waittags)

def mfma(d, a, b, c):
    rd = a.set() + b.set() + (c.set() if isinstance(c, Reg) else [])
    return Op(f'v_mfma_f32_16x16x32_bf16 {d}, {a}, {b}, {c}', 'mfma', rd=rd)
def valu(text, rd=()):
    r = []
    for x in rd: r += x.set()
    return Op(text, 'valu', rd=r)
def salu(text): return Op(text, 's')
def ds_tr(d, addr, off): return Op(f'ds_read_b64_tr_b16 {d}, {addr} offset:{off}', 'ds', wr=d.set())
def ds_128(d, addr, off): return Op(f'ds_read_b128 {d}, {addr} offset:{off}', 'ds', wr=d.set())
def vload(text, d=None, tag=None): return Op(text, 'vm', wr=d.set() if d is not None else (), tag=tag)
def vstore(text, rd=()):
    r = []
    for x in rd: r += x.set()
    return Op(text, 'vm', rd=r, tag='st')
def publish(lines, scope):
    o = [salu(x) for x in lines]; o[0].publishes = ('st', scope)
    return o
def barrier(tags=(), lg0=False):
    o = Op('s_barrier', 's', waittags=tags); o.lg0 = lg0
    return o

def gap_cost(ops, nwait):
    t = nwait; seenv = False; prev = None
    for o in ops:
        if o.text.endswith(':'): continue
        if o.kind == 's': t += 1
        else:
            t = max(t, 1)
            if o.kind in ('ds', 'vm') and seenv: t += 2
            if o.kind == 'vm' and prev is not None and ' m0,' in prev.text: t += 9
            t += 2 if (o.kind == 'vm' or o.text.startswith(TRANS) or o.text.startswith('v_permlane')) else 1
            if o.kind == 'ds' and prev is not None and prev.kind == 'ds': t += 1
            if o.kind == 'valu': seenv = True
        prev = o
    return t
def parse(text):
    out = []; grp = None
    for l in (text.split('\n') if isinstance(text, str) else text):
        l = l.strip()
        if not l: continue
        if l.startswith('s_cmp') or l.startswith('s_bitcmp'):
            grp = [salu(l)]; out.append(grp)
        elif l.startswith('s_cselect') or l.startswith('s_cbranch') or l.startswith('s_addc'):
            if len(grp) >= 3 and l.startswith('s_cselect'):
                grp = [grp[0]]; out.append(grp)
            grp.append(salu(l))
        else:
            out.append([salu(l) if l.startswith('s_') else valu(l)])
    return out

class Stream:
    MAXC = {'ds': 15, 'vm': 63}
    def __init__(self):
        self.items = []
        self.issued = {'ds': 0, 'vm': 0}
        self.done = {'ds': 0, 'vm': 0}
        self.pend = {}
        self.tags = {}
        self.q = []
        self.bar_vm = 0
    def raw(self, text):
        for l in text.split('\n'):
            if l.strip(): self.items.append(l.strip())
    def _needs(self, op):
        n = {'ds': 0, 'vm': 0}
        for r in op.rd + op.wr:
            if r in self.pend:
                c, s = self.pend[r]; n[c] = max(n[c], s)
        for t in op.waittags:
            n['vm'] = max(n['vm'], self.tags[t])
        if getattr(op, 'lg0', False): n['ds'] = self.issued['ds']
        if op.kind in ('ds', 'vm'): n[op.kind] = max(n[op.kind], self.issued[op.kind] + 1 - self.MAXC[op.kind])
        return n
    def _wait(self, w, n):
        for c in n:
            if n[c] > self.done[c]:
                w.need(c, min(self.issued[c] - n[c], self.MAXC[c])); self.done[c] = n[c]
    def _issue(self, op):
        self.items.append(op.text)
        if op.text == 's_barrier': self.bar_vm = self.done['vm']
        pub = getattr(op, 'publishes', None)
        if pub: assert (self.bar_vm if pub[1] == 'wg' else self.done['vm']) >= self.tags[pub[0]], ('published before complete', pub)
        if op.kind in ('ds', 'vm'):
            self.issued[op.kind] += 1
            assert self.issued[op.kind] - self.done[op.kind] <= self.MAXC[op.kind], (op.text, self.issued, self.done)
            for r in op.wr: self.pend[r] = (op.kind, self.issued[op.kind])
            if op.tag: self.tags[op.tag] = self.issued[op.kind]
    def op(self, op):
        w = Wait(); self._wait(w, self._needs(op)); self.items.append(w); self._issue(op)
    def ops(self, l):
        for o in l: self.op(o)
    def gaps(self, mf, fill, nxt=None):
        for i, m in enumerate(mf):
            w0 = Wait(); self._wait(w0, self._needs(m)); self.items.append(w0)
            self._issue(m)
            w = Wait(); self.items.append(w)
            follow = mf[i + 1] if i + 1 < len(mf) else nxt
            ops = list(fill[i])
            look = ops + ([follow] if follow is not None else [])
            for o in look: self._wait(w, self._needs(o))
            while self.q:
                g = self.q[0]
                if isinstance(g, int):
                    self.q[0] = g - 1
                    if g <= 1: self.q.pop(0)
                    break
                if any(t not in self.tags for o in g for t in o.waittags): break
                nw = 1 if (w.text() or any(self._unmet(o) for o in g)) else 0
                cand = [g + ops] if (all(o.kind == 's' for o in g) and not getattr(self, '_front', False)) else []
                cand.append(ops + g)
                base = gap_cost(ops, 1 if w.text() else 0)
                ok = [c for c in cand if gap_cost(c, nw) <= max(3, 0)]
                if not ok and not ops and base <= 1 and gap_cost(g, 0) > 2: ok = [g]
                if not ok: break
                ops = ok[0]; self.q.pop(0); self._front = True
                for o in g: self._wait(w, self._needs(o))
            self._front = False
            for o in ops:
                w2 = Wait(); self._wait(w2, self._needs(o)); self.items.append(w2)
                self._issue(o)
    def _unmet(self, op):
        n = self._needs(op)
        return any(n[c] > self.done[c] for c in n)
    def push(self, ops):
        for o in ops: self.q.append(o if isinstance(o, (list, int)) else [o])
    def flush(self):
        prev = None
        for g in self.q:
            if isinstance(g, int):
                self.raw(f's_nop {min(15, 2 * g)}'); continue
            for o in g:
                if prev is not None and ' m0,' in prev.text and o.kind == 'vm': self.raw('s_nop 0')
                self.op(o); prev = o
        self.q = []
    def wait_all(self, vm=True, ds=True):
        w = Wait()
        if vm: w.need('vm', 0); self.done['vm'] = self.issued['vm']
        if ds: w.need('ds', 0); self.done['ds'] = self.issued['ds']
        self.items.append(w)
    def mark(self): return len(self.items)
    def fork(self):
        o = Stream()
        o.bar_vm = self.bar_vm
        o.issued, o.done, o.pend, o.tags = dict(self.issued), dict(self.done), dict(self.pend), dict(self.tags)
        return o
    def fold(self, marks, label, sreg):
        trips = [self.items[marks[i]:marks[i + 1]] for i in range(len(marks) - 1)]
        body = trips[0]
        for t in trips[1:]:
            assert len(t) == len(body), (label, len(t), len(body))
            for x, y in zip(body, t):
                if isinstance(x, Wait): x.merge(y)
                else: assert x == y, (label, x, y)
        new = [f's_mov_b32 {sreg}, {-len(trips)}', '.p2align 3', f'{label}:'] + body + [f's_add_u32 {sreg}, {sreg}, 1', f's_cbranch_scc0 {label}']
        self.items[marks[0]:marks[-1]] = new
    def lines(self):
        out = []
        for it in self.items:
            if isinstance(it, Wait):
                t = it.text()
                if t: out.append(t)
            else: out.append(it)
        return out

RE_REG = re.compile(r'\b([va])(?:(\d+)\b|\[(\d+):(\d+)\])')
def _operands(text):
    m = text.split(None, 1)
    if len(m) < 2: return m[0], []
    ops = [x.strip() for x in m[1].split(',')]
    res = []
    for o in ops:
        mm = RE_REG.search(o.split()[0]) if o else None
        if mm:
            k = mm.group(1)
            lo = int(mm.group(2) if mm.group(2) is not None else mm.group(3)); hi = int(mm.group(2) if mm.group(2) is not None else mm.group(4))
            res.append({(k, i) for i in range(lo, hi + 1)})
        else: res.append(set())
    return m[0], res
def classify(text):
    op, o = _operands(text)
    U = lambda l: set().union(*l) if l else set()
    d = dict(op=op, rd=set(), wr=set(), kind='s', ab=set(), c=set(), states=1, sdata=set())
    if op == 's_nop': d['states'] = int(text.split()[1]) + 1
    elif op.startswith('v_mfma'):
        d.update(kind='mfma', wr=o[0], ab=o[1] | o[2], c=o[3], rd=o[1] | o[2] | o[3])
    elif op.startswith('v_smfmac'):
        d.update(kind='mfma', wr=o[0], ab=o[1] | o[2] | o[3], c=o[0], rd=o[0] | o[1] | o[2] | o[3])
    elif op.startswith('v_permlane'):
        d.update(kind='valu', wr=o[0] | o[1], rd=o[0] | o[1], perm=True)
    elif op.startswith('v_cmp') or op.startswith('v_readfirstlane') or op.startswith('v_readlane'):
        d.update(kind='valu', rd=U(o[1:]), lane=op.startswith('v_read'))
    elif op.startswith('v_'):
        d.update(kind='valu', wr=o[0], rd=U(o[1:]) | (o[0] if 'fmac' in op else set()), trans=op.startswith(TRANS),
                 dpp=('quad_perm' in text or 'row_' in text))
    elif op.startswith('ds_read'): d.update(kind='mem', wr=o[0], rd=o[1])
    elif op.startswith('ds_write'): d.update(kind='mem', rd=U(o))
    elif op.startswith('buffer_load') or op.startswith('global_load'):
        if text.rstrip().endswith('lds') or ' lds ' in text: d.update(kind='mem', rd=o[0], dma=True)
        else: d.update(kind='mem', wr=o[0], rd=o[1])
    elif op.startswith('buffer_store') or op.startswith('buffer_atomic'):
        d.update(kind='mem', rd=U(o), sdata=o[0] if 'x4' in op or 'x3' in op else set())
    elif op.startswith('global_store') or op.startswith('global_atomic'):
        d.update(kind='mem', rd=U(o), sdata=o[1] if 'x4' in op or 'x3' in op else set())
    d['m0w'] = bool(re.match(r's_\w+\s+m0\s*,', text))
    mm = re.match(r'v_read(?:first)?lane_b32\s+(s\d+)', text) or re.match(r'v_cmp\w*\s+(vcc|s\[\d+:\d+\])', text)
    d['sw'] = mm.group(1) if mm else None
    d['text'] = text
    return d
def hazards(lines):
    ins = []; labels = {}
    for l in lines:
        l = l.split(';')[0].strip()
        if not l or l.startswith('.'): continue
        if l.endswith(':'): labels[l[:-1]] = len(ins); continue
        ins.append(classify(l))
    errs = []
    def scan(seq):
        for i, c in enumerate(seq):
            dist = 0
            for j in range(i - 1, max(-1, i - 14), -1):
                p = seq[j]
                need = 0
                if p['kind'] == 'valu' and c['kind'] == 'mfma' and p['wr'] & c['rd']: need = 2
                if p['kind'] == 'mfma':
                    if c['kind'] == 'mfma':
                        if p['wr'] & c['ab']: need = 8
                        elif p['wr'] & c['c'] and p['wr'] != c['c']: need = 6
                        elif p['wr'] & c['wr'] and p['wr'] != c['c']: need = 6
                    elif c['kind'] in ('valu', 'mem') and p['wr'] & (c['rd'] | c['wr']): need = 8
                    if c['kind'] == 'valu' and p['c'] & c['wr']: need = max(need, 3)
                if p['kind'] == 'valu' and c['kind'] == 'valu':
                    if p.get('trans') and not c.get('trans') and p['wr'] & c['rd']: need = max(need, 1)
                    if (c.get('perm') or c.get('dpp')) and p['wr'] & c['rd']: need = max(need, 2)
                    if c.get('lane') and p['wr'] & c['rd']: need = max(need, 1)
                if p['sw']:
                    names = [p['sw']]
                    if p['sw'].startswith('s['):
                        lo = int(p['sw'][2:].split(':')[0]); names += [f's{lo}', f's{lo+1}']
                    used = any(re.search(r'(?<![\w\[])' + re.escape(n) + r'(?![\w])', c['text'].split(None, 1)[1] if ' ' in c['text'] else '') for n in names)
                    if used and c['kind'] == 'valu' and not c['sw'] == p['sw']: need = max(need, 2)
                    if used and c['kind'] == 'mem': need = max(need, 5)
                if p['m0w'] and c.get('dma'): need = max(need, 1)
                if p['sdata'] and c['kind'] in ('valu', 'mem', 'mfma') and p['sdata'] & c['wr']: need = max(need, 2)
                if need > dist: errs.append((p['text'], c['text'], dist, need))
                dist += p['states']
    scan(ins)
    for i, c in enumerate(ins):
        if c['op'].startswith('s_cbranch') or c['op'] == 's_branch':
            t = c['text'].split()[1]
            if t in labels:
                scan(ins[max(0, i - 14):i + 1] + ins[labels[t]:labels[t] + 14])
    return sorted(set(errs))

def kd(name, nv, acc, ns=96):
    return f'''.amdhsa_kernel {name}
  .amdhsa_next_free_vgpr {nv}
  .amdhsa_next_free_sgpr {ns}
  .amdhsa_accum_offset {acc}
  .amdhsa_group_segment_fixed_size 0
  .amdhsa_kernarg_size 104
  .amdhsa_user_sgpr_count 2
  .amdhsa_user_sgpr_kernarg_segment_ptr 1
  .amdhsa_system_sgpr_workgroup_id_x 1
  .amdhsa_float_denorm_mode_32 3
.end_amdhsa_kernel'''
def srd(s, base, size):
    return f's_mov_b32 s{s}, s{base}\ns_mov_b32 s{s+1}, s{base+1}\ns_mov_b32 s{s+2}, {size}\ns_mov_b32 s{s+3}, 0x20000'

STAMP_OFF = 48 << 20
class Stamps:
    def __init__(self, on, kidx, v): self.on, self.k, self.v, self.n = on, kidx, v, 0
    def stamp(self, st):
        if getattr(self, 'jit', None):
            self.c = getattr(self, 'c', 0) + 1
            seed, mask, perwave = self.jit
            k = (seed * 2654435761 + self.c * 40503) & 0x7fffffff | 1
            pw = 'v_readfirstlane_b32 s97, v0\ns_nop 3\ns_lshl_b32 s97, s97, 4\ns_add_u32 s96, s96, s97\n' if perwave else ''
            st.raw(f's_add_u32 s96, s2, {self.c * 17}\n{pw}s_mul_i32 s96, s96, {k}\ns_lshr_b32 s97, s96, 15\ns_xor_b32 s96, s96, s97\ns_mul_i32 s96, s96, 0x2c1b3c6d\ns_lshr_b32 s96, s96, 20\ns_and_b32 s96, s96, {mask}\nL_j{self.c}:\ns_sleep 8\ns_sub_u32 s96, s96, 1\ns_cbranch_scc0 L_j{self.c}')
        if not self.on or getattr(self, 'on2', False): return
        st.raw('s_memrealtime s[96:97]\ns_memtime s[98:99]')
        st.wait_all(vm=False)
        st.raw(f'v_writelane_b32 v{self.v}, s96, {self.n}\nv_writelane_b32 v{self.v+1}, s98, {self.n}')
        self.n += 1
    def flush(self, st, ws, t):
        if not self.on: return
        st.raw(f's_lshl_b32 s96, s2, 7\ns_add_u32 s96, s96, {STAMP_OFF + self.k * 65536}\nv_lshlrev_b32 v{t}, 3, v0\nv_mov_b32 v{t+1}, 0x40000000\nv_cmp_gt_u32 vcc, 16, v0\ns_nop 1\nv_cndmask_b32 v{t}, v{t+1}, v{t}, vcc')
        st.raw(f'buffer_store_dwordx2 v[{self.v}:{self.v+1}], v{t}, {ws}, s96 offen\ns_waitcnt vmcnt(0)')

def align_runs(lines, minrun=8, inloop=()):
    import subprocess, tempfile, os
    body = [l for l in lines if not l.startswith('.')]
    d = tempfile.mkdtemp()
    open(d + '/a.s', 'w').write('.amdgcn_target "amdgcn-amd-amdhsa--gfx950"\n.text\n' + '\n'.join(body) + '\n')
    subprocess.run(['clang', '-x', 'assembler', '-target', 'amdgcn-amd-amdhsa', '-mcpu=gfx950', '-c', d + '/a.s', '-o', d + '/a.o'], check=True)
    dis = subprocess.run(['llvm-objdump', '-d', '--mcpu=gfx950', d + '/a.o'], capture_output=True, text=True).stdout
    sizes = [4 * len(m.group(1).split()) for m in re.finditer(r'// [0-9A-F]+: ((?:[0-9A-F]{8} ?)+)', dis)]
    ins = [i for i, l in enumerate(lines) if not l.startswith('.') and not l.endswith(':')]
    assert len(ins) == len(sizes), (len(ins), len(sizes))
    sz = dict(zip(ins, sizes))
    out = []; pc = 0; n = 0
    for k, l in enumerate(lines):
        if l.startswith('.p2align'):
            a_ = 1 << int(l.split()[1]); pc = (pc + a_ - 1) // a_ * a_
        elif k in sz:
            if sz[k] == 8 and pc % 8:
                good = 0; par = 0; j = k
                while j < len(lines) and good < minrun:
                    if j in sz:
                        if 'mfma' in lines[j] or lines[j].startswith(('s_branch', 's_endpgm')): break
                        if sz[j] == 8:
                            if par: break
                            good += 1
                        else: par ^= 1
                    j += 1
                if good >= minrun: out.append('s_nop 0'); pc += 4; n += 1
            pc += sz[k]
        out.append(l)
    return out
```

```python
from fw import *

class Gemm:
    def __init__(self, name, nst, NA, acc, act, wr, waddr, pi, wsrd, wvoff, sW, wstride, m0base, sLds, asrd, avoff, sA,
                 swap=False, avoff2=None, NW=8, lead=4, asuf='', uni=False, winc=None, ainc=None, dist=3, aoff=0, split=False):
        self.__dict__.update(locals())
        self.chain = None; self.bar_rd = []; self.skew = False
    def hook(self, s, e, fill): return []
    def wfrag(self, G, ks): return self.wr.sub((G % 4) * 8 + ks * 4, 4)
    def afrag(self, s, ks, b): return self.act.sub(((s + self.aoff) % 4) * 8 * self.NA + (ks * self.NA + b) * 4, 4)
    def unit(self, G):
        if not self.skew or G >= 8 * self.nst: return divmod(G, self.NW)
        if G < 4: return 0, G
        if G >= 8 * self.nst - 4: return self.nst - 1, G - (8 * self.nst - 4)
        tau, p = divmod(G + 4, 8)
        return tau - 1 + (p & 1), 4 * (tau & 1) + (p >> 1)
    def trip(self, c): return (c - 1) // 4 if self.skew else c // 4
    def folded(self, s): return (1 if self.skew else 0) <= s < self.nst // 4 * 4 - (3 if self.skew else 4)
    def reads(self, G):
        s, e = self.unit(G)
        if s >= self.nst: return self.chain.reads(G - self.nst * self.NW) if self.chain else []
        o = []
        for ks in range(2):
            for tt in range(2):
                off = (s % 4) * 16384 + ks * 8192 + tt * (1024 if self.pi == 'id' else 4096)
                o.append(ds_tr(self.wfrag(G, ks).sub(2 * tt, 2), self.waddr.sub(e), off))
        return o
    def window(self, s):
        w = []
        for i in range(4):
            pre = [salu(f's_add_u32 m0, {self.sLds}, {self.m0base + (s % 4) * 16384}')] if i == 0 else []
            post = [salu(f's_add_u32 {self.sW}, {self.sW}, {self.winc[s & 1] if self.winc else 64 * self.wstride}')] if i == 3 else []
            w.append((pre, vload(f'buffer_load_dwordx4 {self.wvoff.sub(i)}, {self.wsrd}, {self.sW} offen offset:{i*1024} lds', tag=f'{self.name}{s}'), post))
        n = 2 * self.NA
        for i in range(n):
            ks, b = divmod(i, self.NA)
            if self.split: ks, b = (i >> 1) & 1, (i & 1) + 2 * (i >> 2)
            vo = self.avoff if i < 4 else self.avoff2
            post = []
            if i == n - 1: post.append(salu(f's_add_u32 {self.sA}, {self.sA}, {self.ainc[s & 1] if self.ainc else n * 1024}'))
            d = self.afrag(s, ks, b)
            w.append(([], vload(f'buffer_load_dwordx4 {d}, {vo}, {self.asrd}, {self.sA} offen offset:{(i % 4) * 1024}{self.asuf}', d), post))
        return w
    def positions(self):
        if self.uni and self.NA == 2:
            assert self.NW == 8 and self.lead == 4
            return [(1, 5, 1), (1, 6, 1), (1, 7, 1), (2, 0, 1), (1, 1, 1), (1, 2, 1), (1, 3, 1), (1, 4, 1)]
        if self.NA == 4:
            return [(0, self.NW - 1, 1), (0, self.NW - 1, 5), (1, 0, 1), (1, 0, 5), (1, 1, 1), (1, 1, 5), (1, 2, 1), (1, 2, 5), (1, 3, 1), (1, 3, 5), (1, 4, 1), (1, 4, 5)]
        if self.NW == 8:
            return [(0, 7, 1), (0, 7, 3), (1, 0, 1), (1, 1, 1), (1, 2, 1), (1, 3, 1), (1, 4, 1), (1, 5, 1)]
        assert self.NW == 6
        return [(0, 5, 1), (0, 5, 3), (1, 0, 1), (1, 0, 3), (1, 1, 1), (1, 2, 1), (1, 3, 0), (1, 3, 2)]
    def issue(self, st, elems, between=None):
        for pre, v, post in elems:
            st.ops(pre)
            if pre: st.raw('s_nop 0')
            st.op(v); st.ops(post)
            if between: between()
    def start(self, st):
        st.op(barrier([f'{self.name}0'], lg0=True))
        for G in range(self.dist): st.ops(self.reads(G))
    def mf(self, s, e):
        m = []
        if self.skew:
            G = 8 * s + e - 4
            one = G < 4 or G >= 8 * self.nst - 4
            us = [G] if one else [G & ~1, G | 1]
            for b in (range(4) if one else (2 * (G & 1), 2 * (G & 1) + 1)):
                ks = [(u, k) for u in us for k in range(2)]
                if b & 1: ks.reverse()
                for u, k in ks:
                    su, eu = self.unit(u)
                    w, x, c = self.wfrag(u, k), self.afrag(su, k, b), self.acc(eu, b)
                    m.append(mfma(c, x, w, c) if self.swap else mfma(c, w, x, c))
            return m
        for b in range(self.NA):
            for k_ in range(2):
                ks = k_ ^ (b & 1) if getattr(self, 'zig', 0) else k_
                w, x = self.wfrag(self.NW * s + e, ks), self.afrag(s, ks, b)
                c = self.acc(e, (b & ~1) + (s & 1) if getattr(self, 'fk', 0) else b)
                m.append(mfma(c, x, w, c) if self.swap else mfma(c, w, x, c))
        return m
    def run(self, st, label, sreg, tail=None, extra=None, trip_end=None):
        self.loop(st, label, sreg, extra, trip_end)
        self.last(st, tail, extra)
    def loop(self, st, label, sreg, extra=None, trip_end=None):
        o = 1 if self.skew else 0
        if o: self.stages(st, 0, 1, None, extra, None)
        marks = self.stages(st, o, self.nst // 4 * 4 - 4 + o, None, extra, trip_end)
        st.fold(marks, label, sreg)
    def last(self, st, tail=None, extra=None, last_bar=None, chain=None):
        self.chain = chain
        if chain: last_bar = [chain.name + '0']
        o = 1 if self.skew else 0
        self.stages(st, self.nst // 4 * 4 - 4 + o, self.nst + o, tail, extra, None, last_bar)
        self.chain = None
    def stages(self, st, s0, s1, tail, extra, trip_end, last_bar=None):
        ng, NW = 2 * self.NA, self.NW
        pos = self.positions()
        wins = {}
        def win(s):
            if s not in wins:
                wins[s] = self.window(s) if s < self.nst else (tail(s - self.nst) if tail else [])
            return wins[s]
        marks = []
        carry = []
        o_s = 1 if self.skew else 0
        for s in range(s0, s1):
            if s % 4 == o_s: marks.append(st.mark())
            if self.skew:
                assert NW == 8 and self.NA == 4 and self.nst % 2 == 0
                pos = self.positions()
                if s == 0 and not getattr(self, 'pre2', 0): pos = pos[:2] + [(1, 4, 1), (1, 4, 5), (1, 5, 1), (1, 5, 3), (1, 5, 5), (1, 5, 7), (1, 6, 1), (1, 6, 3), (1, 6, 5), (1, 6, 6)]
                if s == self.nst and not getattr(self.chain, 'pre2', 0): pos = []
            for e in (range(NW) if not self.skew else range(4 if s == 0 else 0, 4 if s == self.nst else 8)):
                G = NW * s + e - 4 * o_s
                fill = [[] for _ in range(ng)]
                sc = [[] for _ in range(ng + 1)]
                sc[0] += carry; carry = []
                rd = self.reads(G + self.dist) if self.uni or e < NW - 3 or e == NW - 1 else (self.reads(G + 2) + self.reads(G + 3) if e == NW - 2 else [])
                if self.NA == 2: gp = [0, 0, 2, 2] if len(rd) <= 4 else [0, 0, 1, 1, 2, 2, 3, 3]
                else: gp = [0, 2, 4, 6] if len(rd) <= 4 else list(range(8))
                if self.skew == 1 and e & 1 and 4 <= G + 2 < 8 * self.nst - 4: gp = [0, 2, 3, 4]
                if self.skew == 2 and 4 <= G + 2 < 8 * self.nst - 4 and (s or e == 7):
                    if e & 1 and s: rd, gp = rd[2:], [0, 2]
                    elif e & 1: gp = [0, 2, 3, 4]
                    else: rd, gp = rd + self.reads(G + 3)[:2], [0, 2, 3, 4, 6, 7]
                for o, g in zip(rd, gp): fill[g].append(o)
                for idx, (so, pe, pg) in enumerate(pos):
                    if pe != e: continue
                    w = win(s + self.lead - so)
                    if idx >= len(w) or w[idx] is None: continue
                    pre, v, post = w[idx]
                    assert pg > 0 or not pre
                    sc[pg - 1] += pre; fill[pg].append(v)
                    for k_, o_ in enumerate(post): sc[pg + 1 + min(k_, 1)].append(o_)
                more = self.hook(s, e, fill)
                if e == NW - ((3 if self.skew == 2 and 0 < s < self.nst - 1 else 2) if self.skew else 1 + self.dist if self.uni else 3):
                    if s + 1 < self.nst:
                        fill[ng - 1].append(barrier([f'{self.name}{s+1}'] + getattr(self, 'more_tags', {}).get(s, []), lg0=not self.uni))
                        if self.skew == 2 and s: fill[ng - 1][-1].rd = self.wfrag(G + 1, 1).set()
                    elif last_bar is not None:
                        fill[ng - 1].append(barrier(last_bar, lg0=not self.uni)); fill[ng - 1][-1].rd = list(self.bar_rd)
                if extra:
                    for g, l in extra(s, e).items(): fill[g] += l
                carry = sc[ng]
                if e == NW - 1 and (s - o_s) % 4 == 3:
                    fill[ng - 1] += carry; carry = []
                for g in range(ng): fill[g] = sc[g] + fill[g]
                if getattr(self, 'pat', 0) == 1 and len(rd) == 4 and not sc[2]: fill[2].insert(0, salu('s_nop 0'))
                nxt = None if G + 1 == NW * self.nst else self.mf(s, e + 1)[0] if e < NW - 1 else self.mf(s + 1, 0)[0]
                st.gaps(self.mf(s, e) + more, fill + [[] for _ in more], nxt)
            if (s - o_s) % 4 == 3 and trip_end: trip_end(st)
        marks.append(st.mark())
        return marks

class GemmX(Gemm):
    def xsetup(self, xbase, xvoff, xaddr, sA2, ones, idx, cs):
        self.xbase, self.xvoff, self.xaddr, self.sA2, self.ones, self.idx, self.cs = xbase, xvoff, xaddr, sA2, ones, idx, cs
    def window(self, s):
        w = Gemm.window(self, s)[:4]
        rt = getattr(self, 'rtab', None)
        step = lambda r, sh: [salu(f's_bfe_i32 vcc_lo, {rt}, {0x80000 + 8 * (s & 3)}'), salu(f's_lshl_b32 vcc_lo, vcc_lo, {sh}'), salu(f's_add_u32 {r}, {r}, vcc_lo')]
        if rt: w[3] = (w[3][0], w[3][1], step(self.sW, 19))
        for i in range(8):
            so = self.sA if i < 4 else self.sA2
            pre = [salu(f's_add_u32 m0, {self.sLds}, {self.xbase[s & 1] + (i >> 2) * 16384}')] if i % 4 == 0 else []
            post = (step(so, 7) if rt else [salu(f's_add_u32 {so}, {so}, 128')]) if i % 4 == 3 else []
            w.append((pre, vload(f'buffer_load_dwordx4 {self.xvoff.sub(i & 3)}, {self.asrd}, {so} offen offset:{(i & 3) * 1024} lds', tag=f'X{s}_{i}'), post))
        return w
    def xreads(self, s, b):
        o = []
        for ks in range(2):
            r = ds_128(self.afrag(s, ks, b), self.xaddr.sub(ks), self.xbase[s & 1] - min(self.xbase) + (b >> 1) * 16384 + (b & 1) * 2048)
            r.waittags = [f'X{s}_{2*b+1}']; o.append(r)
        return o
    def hook(self, s, e, fill):
        if self.skew == 2 and s:
            if e in (5, 7) and s + 1 < self.nst:
                for g, r in zip((3, 4, 6, 7), self.xreads(s + 1, e - 5) + self.xreads(s + 1, e - 4)): fill[g].insert(0, r)
        elif e >= 4 and s + 1 < self.nst:
            r = self.xreads(s + 1, e - 4)
            g0 = 6 if (self.skew and e & 1 and (s or e == 7)) else 3
            fill[g0].insert(0, r[0]); fill[7].insert(0, r[1])
        if self.skew:
            G = 8 * s + e - 4; k = self.unit(G)[1] - 4
            return [Op(f'v_smfmac_f32_16x16x64_bf16 {self.cs.sub(4*k,4)}, {self.ones}, {self.wr.sub((G % 4) * 8, 8)}, {self.idx}', 'mfma')] if k in (0, 1) else []
        if e < 2: return [Op(f'v_smfmac_f32_16x16x64_bf16 {self.cs.sub(4*e,4)}, {self.ones}, {self.wr.sub(((8*s+e) % 4) * 8, 8)}, {self.idx}', 'mfma')]
        return []

def waddr_setup(dst, base, pi, t):
    L = [f'v_bfe_u32 v{t}, v0, 4, 2', f'v_bfe_u32 v{t+1}, v0, 2, 2',
         f'v_and_b32 v{t+2}, 1, v{t}', f'v_lshl_or_b32 v{t+2}, v{t+2}, 2, v{t+1}',
         f'v_lshl_add_u32 v{t}, v{t}, {3 if pi == "id" else 2}, v{t+1}', f'v_lshlrev_b32 v{t}, 8, v{t}',
         f'v_and_b32 v{t+1}, 3, v0', f'v_lshl_add_u32 v{t}, v{t+1}, 3, v{t}', f'v_add_u32 v{t}, {base}, v{t}']
    for e in range(8):
        L += [f'v_xor_b32 v{t+1}, {e}, v{t+2}', f'v_lshl_add_u32 {dst.sub(e)}, v{t+1}, 5, v{t}']
    return L

def wvoff_setup(dst, sstride, pi, t, sodd=None):
    L = [f'v_bfe_u32 v{t}, v0, 4, 2', f'v_lshrrev_b32 v{t+1}, 6, v0', f'v_lshl_add_u32 v{t+1}, v{t+1}, 4, v{t}']
    for i in range(4):
        hi = 4 * (((i >> 1) & 1) if pi == 'id' else (i & 1))
        d = dst.sub(i)
        if i == 0 or sodd: L += [f'v_and_b32 v{t+3}, 15, v0']
        L += [f'v_add_u32 {d}, {4*i}, v{t+1}', f'v_mul_u32_u24 {d}, {sstride}, {d}',
              f'v_or_b32 v{t+2}, {hi}, v{t}', f'v_lshlrev_b32 v{t+2}, 1, v{t+2}', f'v_xor_b32 v{t+2}, v{t+2}, v{t+3}']
        if sodd:
            L += [f'v_cmp_gt_u32 vcc, 14, v{t+2}', f'v_add_u32 v{t+2}, {sodd}, v{t+2}', f'v_subrev_u32 v{t+3}, 14, v{t+2}', f'v_min_u32 v{t+2}, v{t+2}, v{t+3}']
        L += [f'v_lshl_add_u32 {d}, v{t+2}, 4, {d}']
        if i: L += [f'v_subrev_u32 {d}, {i * 1024}, {d}']
        if sodd: L += [f'v_mov_b32 v{t+2}, 0x40000000', f'v_cndmask_b32 {d}, v{t+2}, {d}, vcc']
    return L
```

```python
from fw import *
from gemm import *
STAT, HF, UF, OF, GB, FL, YB = 0, 4 << 20, 8 << 20, 16 << 20, 32 << 20, 40 << 20, 44 << 20
WS_SIZE = 128 << 20
SHADOW = (64 << 20) + 128
LSTR = 2112
KNAME = 'recurrent_scan__mha_block_cached__mixer_token_mlp__prompt_kernel'
import math, struct
def f2h(x): return '0x%08x' % struct.unpack('<I', struct.pack('<f', x))[0]

KBASE, VBASE, QRING, FLAG = 0, 65536, 98304, 131072
MARGIN = 102.0
sWS, sWQ, sKC, sVC, sW1, sWN, sWO, sBB = ['s[%d:%d]' % (i, i + 3) for i in range(4, 36, 4)]
sOUT = sW1
sWAVE, sLDS, sCNT, sQW, sQA, sK, sV, sGW, sGA, sO, sU, sPF, sMODE, sROT = ['s%d' % i for i in range(36, 50)]
sKV0, sGW0, sGA0, sPF0, sT, sT2 = ['s%d' % i for i in range(50, 56)]
sB = sGW
sC = 's[58:59]'
sSLOT, sIDX, sHEAD, sQ64, sST, sDT, sT3, sT4 = ['s%d' % i for i in range(60, 68)]
sX = 's[68:71]'
sQI, sQJ, sGI, sGJ = ['s72', 's73'], ['s74', 's75'], ['s76', 's77'], ['s78', 's79']
sNI, sNJ, sSI, sSJ = sQI, sQJ, sGI, sGJ
sW3, sA3, sSIG, sFO, sFU, sFW, sFG, sG, sR0, sR1, sSTR, sTG, sGRP, sP0, sROLE, sBN = ['s%d' % i for i in range(80, 96)]
sP1, sRDY = 's100', 's101'
vCO = V(251)
def pfcode(): return vload(f'global_load_dword {vDUM}, {vCO}, s[56:57]')
sDBG, sQA2 = 's[72:75]', 's3'
XSLOT, CSB = [65536, 32768], 49152

vL16 = V(1)
vWq, vWg, vKd, vVd = V(2, 4), V(6, 4), V(10, 4), V(14, 2)
vKa, vVa, vWa = V(16, 4), V(20, 8), V(28, 8)
vPF, vDUM, vTMP = V(36), V(37), 38
vZERO, vONE, vFL, vX = V(42), V(43), V(252), V(253)
vL16b = vX
Q = V(44, 64)
QACC = V(108, 128)
S, T, P, NEGM, LS, ONES, vIDX = V(108, 8), V(116, 4), V(120, 64), V(184, 16), V(200, 16), V(216, 4), V(220)
BIAS = V(236, 16)
XF, SEL, vA0, vA1 = V(44, 64), V(10, 6), V(250), V(253)
ONESQ, IDXQ, CS, vXd, vXa, vCw, vCr = V(44, 4), V(48), V(52, 8), V(60, 4), V(64, 2), V(66), V(68, 4)
O, KF, VF, GACT = A(0, 128), A(128, 32), A(160, 32), A(192, 64)

def Pf(tile, u, b, n=4): return P.sub((tile & 1) * 32 + b * 8 + u * 4, n)
def Qf(b, t): return Q.sub((b * 4 + t) * 4, 4)
def Kf(c, t): return KF.sub((c & 1) * 16 + t * 4, 4)
def Vf(e, u): return VF.sub((e & 3) * 8 + u * 4, 4)
def kread(tile, c, t): return ds_128(Kf(c, t), vKa.sub(t), (tile & 3) * 16384 + c * 4096)
def vread(tile, e, u, tt): return ds_tr(Vf(e, u).sub(2 * tt, 2), vVa.sub(e), (tile & 3) * 16384 + u * 8192 + tt * 4096)
def kdma(n):
    return [([salu(f's_add_u32 m0, {sLDS}, {KBASE + (n & 3) * 16384}')] if i == 0 else [],
             vload(f'buffer_load_dwordx4 {vKd.sub(i)}, {sKC}, {sK} offen offset:{i*1024} lds', tag=f'K{n}'),
             [salu(f's_add_u32 {sK}, {sK}, 16384')] if i == 3 else []) for i in range(4)]
def vdma(n):
    return [([salu(f's_add_u32 m0, {sLDS}, {VBASE + (n & 3) * 16384}')] if i == 0 else [],
             vload(f'buffer_load_dwordx4 {vVd.sub(i & 1)}, {sVC}, {sV} offen offset:{i*1024} lds', tag=f'V{n}'),
             [salu(f's_add_u32 {sV}, {sV}, 16384')] if i == 3 else []) for i in range(4)]
def flat(elems):
    o = []
    for pre, v, post in elems: o += pre + [v] + post
    return o
def pfw1():
    return [vload(f'buffer_load_dword {vDUM}, {vPF}, {sWQ}, {sQW} offen'), salu(f's_add_u32 {sQW}, {sQW}, {1 << 21}')]
def rowsum(j, b): return Op(f'v_smfmac_f32_16x16x64_bf16 {LS.sub(4*b,4)}, {ONES}, {Pf(j, 0, b, 8)}, {vIDX}', 'mfma')

def att_iter(st, j, gn, opt):
    a = j + 1
    qk, pv = a <= 31, j >= 0
    t_ = vTMP
    def window(w):
        k = kdma(w + 4) if w + 4 <= 31 else gn.window(w - 28)[:(4, 4, 2, 0)[w - 28]]
        v = vdma(w + 3) if w + 3 <= 31 else []
        return k, v
    kcur, vcur = window(j)
    kprev, vprev = window(j - 1) if j >= 0 else ([], [])
    dma = {11: kcur[0:1], 13: kcur[1:2], 15: kcur[2:3], 1: kprev[3:4], 3: vprev[0:1], 5: vprev[1:2], 7: vprev[2:3], 9: vprev[3:4]}
    dd = opt.get('dd', 0)
    if dd: dma = {11: kcur[0:2], 15: kcur[2:4], 3: vprev[0:2], 7: vprev[2:4]}
    if j == 31: dma = {}
    Z = P.sub(32, 4)
    mf_all, fill_all = [], []
    pend = []
    for n in range(16):
        c, b, e = n >> 2, n & 3, n >> 1
        m = [None] * 9
        f = [[] for _ in range(9)]
        sc = [[] for _ in range(9)]
        sc[0] += pend; pend = []
        Sn, Sp = S.sub((n & 1) * 4, 4), S.sub(((n + 1) & 1) * 4, 4)
        if qk:
            for t in range(4):
                t2 = 3 - t if (opt.get('qz') and n & 1) else t
                m[t] = mfma(Sn, Kf(c, t2), Qf(b, t2), NEGM.sub(4 * b, 4) if t == 0 else Sn)
        for jj in range(2):
            bb = 2 * (n & 1) + jj
            Ob = O.sub((e * 4 + ((bb & ~1) + (j & 1) if opt.get('fk', 0) & 2 else bb)) * 4, 4)
            if pv:
                for u in range(2):
                    uu = u ^ jj if opt.get('zig', 1) else u
                    m[4 + 2 * jj + u] = mfma(Ob, Pf(j, uu, bb), Vf(e, uu), Ob) if opt.get('xswap') else mfma(Ob, Vf(e, uu), Pf(j, uu, bb), Ob)
            else: m[5 + 2 * jj] = mfma(Ob, Z, Z, 0)
        if pv and opt.get('pv1'):
            for bb in range(4):
                Ob = O.sub((e * 4 + bb) * 4, 4)
                m[4 + bb] = mfma(Ob, Vf(e, n & 1), Pf(j, n & 1, bb), Ob)
        if qk and pv and opt.get('ilv'):
            m[:8] = [m[0], m[1], m[4], m[5], m[2], m[3], m[6], m[7]]
        if j == 31:
            if n == 0: m[0], m[2] = rowsum(j, 0), rowsum(j, 1)
            if n == 1: m[0], m[8] = rowsum(j, 2), rowsum(j, 3)
        elif b == 3: m[8] = rowsum(j, c) if pv else mfma(LS.sub(4 * c, 4), Z, Z, 0)
        pt, pn = (a, n - 1) if n > 0 else (j, 15)
        if 0 <= pt <= 31:
            pc, pb = pn >> 2, pn & 3
            for i in range(4): f[2 * i].append(valu(f'v_exp_f32 {T.sub(i)}, {Sp.sub(i)}'))
            f[3].append(valu(f'v_cvt_pk_bf16_f32 {Pf(pt, pc >> 1, pb).sub(2 * (pc & 1))}, {T.sub(0)}, {T.sub(1)}'))
            if not pv: f[7].append(salu('s_nop 0'))
        elif pt < 0: f[7].append(salu('s_nop 3'))
        pt, pn = (a, n - 2) if n > 1 else (j, 14 + n)
        if 0 <= pt <= 31:
            pc, pb = pn >> 2, pn & 3
            f[1].append(valu(f'v_cvt_pk_bf16_f32 {Pf(pt, pc >> 1, pb).sub(2 * (pc & 1) + 1)}, {T.sub(2)}, {T.sub(3)}'))
        if 0 <= j < 28 and 'e' in opt.get('xa', ''): f = [[] for _ in range(9)]
        kq = 16 * a + n + 5
        kt, kc, kk = kq >> 4, (kq >> 2) & 3, kq & 3
        if kt <= 31: f[5].insert(0, kread(kt, kc, kk))
        vq = 16 * j + n + 3
        vt, ve, vu = vq >> 4, (vq >> 1) & 7, vq & 1
        if 0 <= vt <= 31:
            g0, g1 = (1, 3) if (qk or n < 2) else (4, 6)
            f[g0].insert(0, vread(vt, ve, vu, 0)); f[g1].insert(0, vread(vt, ve, vu, 1))
        if 0 <= j < 28 and 'r' in opt.get('xa', ''): f = [[o for o in x if o.kind != 'ds'] for x in f]
        if 0 <= j < 28 and 'd' in opt.get('xa', ''):
            for pre, v, post in dma.get(n, []): v.text = 's_nop 0'
        for k, (pre, v, post) in enumerate(dma.get(n, [])):
            sc[6] += pre; f[7 + k].append(v)
            if n == 15: f[8] += post
            else: pend += post
        if n == 10 and j <= 30:
            f[7].append(barrier([f'V{j+1}'] + ([f'K{j+2}'] if j + 2 <= 31 else [])))
        if opt.get('pf_w', 1) and 0 <= j < 28 and n == 2 and (j & 3) == 0:
            f[7].append(vload(f'buffer_load_dword {vDUM}, {vPF}, {sWN}, {sPF} offen'))
            pend.append(salu(f's_add_u32 {sPF}, {sPF}, 4096'))
        if opt.get('pf_w1', 1) and j < 28 and n == 2 and (j & 1):
            f[7].append(pfw1()[0]); pend.append(pfw1()[1])
        if opt.get('rpf', 1) and 0 <= j < 28 and n == 2 and (j & 3) == 2: f[7].append(pfcode())
        if j == 28 and n == 0: f[7] += [valu(f'v_and_b32 v{t_}, 15, v0'), valu(f'v_lshlrev_b32 v{t_}, 1, v{t_}')]
        if j == 28 and n == 2: f[7].append(flag_load(sFW))
        if j in (28, 29) and n in (4, 6, 8, 12):
            k = (j - 28) * 4 + (4, 6, 8, 12).index(n)
            f[7].append(vload(f'buffer_load_ushort {BIAS.sub(k)}, v{t_}, {sBB}, {sBN} offen offset:{32*k}', BIAS.sub(k)))
        if j == 29 and n == 13: f[5].append(valu(f'v_readfirstlane_b32 {sT}, {vFL}', rd=[vFL]))
        if j == 29 and n == 14: f[7] += [salu(f's_cmp_lt_u32 {sT}, {sTG}'), salu('s_cbranch_scc1 L2_wn'), salu('L2_wn_r:')]
        for g in range(9):
            ops = sc[g] + f[g]
            if m[g] is not None: mf_all.append(m[g]); fill_all.append(ops)
            elif fill_all: fill_all[-1] += ops
            else: st.ops(ops)
    assert not pend
    nxt = mfma(S.sub(0, 4), Kf(0, 0), Qf(0, 0), NEGM.sub(0, 4)) if a + 1 <= 31 else None
    st.gaps(mf_all, fill_all, nxt)

def first_tile(st, opt, pre):
    a = st.raw
    SQ = [LS.sub(4 * k, 4) for k in range(4)] + [P.sub(32 + 4 * k, 4) for k in range(8)] + [V(224, 4), V(228, 4), S.sub(0, 4), S.sub(4, 4)]
    M = V(232, 4)
    def mx(n):
        x, m = SQ[n], M.sub(n & 3)
        if n < 4: return [valu(f'v_max3_f32 {m}, {x.sub(0)}, {x.sub(1)}, {x.sub(2)}'), valu(f'v_max_f32 {m}, {m}, {x.sub(3)}')]
        return [valu(f'v_max3_f32 {m}, {m}, {x.sub(0)}, {x.sub(1)}'), valu(f'v_max3_f32 {m}, {m}, {x.sub(2)}, {x.sub(3)}')]
    mf, fl = [], []
    for n in range(16):
        c, b = n >> 2, n & 3
        for t in range(4):
            mf.append(mfma(SQ[n], Kf(c, t), Qf(b, t), SQ[n] if t else 0)); fl.append([])
        if n + 5 < 16: fl[-3].append(kread(0, (n + 5) >> 2, (n + 5) & 3))
        if n >= 2: fl[-1] += mx(n - 2)
    st.push([valu(x) for x in pre] + [valu(f'v_accvgpr_write_b32 {O.sub(i)}, 0') for i in range(128)])
    st.gaps(mf, fl)
    st.flush()
    a(f's_cmp_lg_u32 {sMODE}, 0\ns_cbranch_scc1 L2_m1')
    st.ops(mx(14) + mx(15))
    negm_finish(a, M, opt.get('margin', MARGIN), T)
    a('L2_m1:')
    mem = [barrier(['V0', 'K1'])] + [kread(1, 0, t) for t in range(4)] + [kread(1, 1, 0)]
    kd_ = kdma(3)
    mem += [kd_[0][0][0], vread(0, 0, 0, 0), kd_[0][1], vread(0, 0, 0, 1), kd_[1][1], vread(0, 0, 1, 0), kd_[2][1], vread(0, 0, 1, 1), vread(0, 1, 0, 0), vread(0, 1, 0, 1)]
    if opt.get('pf_w1', 1): mem = pfw1() + mem
    for n in range(16):
        c, b = n >> 2, n & 3
        x = SQ[n]
        for h in (0, 2): a(f'v_pk_add_f32 {x.sub(h,2)}, {x.sub(h,2)}, {NEGM.sub(4*b,2)}')
        if 0 < n < 15: a(f'v_cvt_pk_bf16_f32 {Pf(0, (n-1) >> 3, (n-1) & 3).sub(2 * (((n-1) >> 2) & 1) + 1)}, {T.sub(2)}, {T.sub(3)}')
        if n < 15:
            for i in range(4): a(f'v_exp_f32 {T.sub(i)}, {x.sub(i)}')
            a(f'v_cvt_pk_bf16_f32 {Pf(0, c >> 1, b).sub(2 * (c & 1))}, {T.sub(0)}, {T.sub(1)}')
        if n < 4: a(f'v_mov_b64 {x.sub(0,2)}, 0\nv_mov_b64 {x.sub(2,2)}, 0')
        if n >= 4:
            for _ in range(2):
                if mem: st.op(mem.pop(0))
    assert not mem

def negm_finish(a, M, margin, M2=None):
    M2 = M2 or P.sub(20, 4)
    for p in ('16', '32'):
        for b in range(4): a(f'v_mov_b32 {M2.sub(b)}, {M.sub(b)}')
        for b in range(4): a(f'v_permlane{p}_swap_b32 {M2.sub(b)}, {M.sub(b)}')
        for b in range(4): a(f'v_max_f32 {M.sub(b)}, {M.sub(b)}, {M2.sub(b)}')
    for b in range(4):
        for i in range(2): a(f'v_sub_f32 {NEGM.sub(4*b+i)}, {f2h(-margin)}, {M.sub(b)}')
        a(f'v_mov_b64 {NEGM.sub(4*b+2,2)}, {NEGM.sub(4*b,2)}')

def act_store(st, NB, nt, fn, soffs, T0):
    a = st.raw
    k = 0
    for tt in range(nt):
        for b in range(NB):
            x = T0.sub((k & 1) * 8, 8); k += 1
            d = fn(x, tt, b)
            for i in range(4): a(f'v_cvt_pk_bf16_f32 {d.sub(i)}, {x.sub(2*i)}, {x.sub(2*i+1)}')
            st.op(vstore(f'buffer_store_dwordx4 {d}, {vL16}, {sWS}, {soffs[b >> 1][tt >> 1]} offen offset:{(tt & 1) * 2048 + (b & 1) * 1024} sc1'))

def signal(soff, sWS=sWS):
    return f's_mov_b64 exec, 1\nbuffer_atomic_add {vONE}, {vZERO}, {sWS}, {soff} offen sc1\ns_mov_b64 exec, -1'
def flag_load(soff, sWS=sWS):
    return vload(f'buffer_load_dword {vFL}, {vZERO}, {sWS}, {soff} offen sc1', vFL)
def spin(label, soff, target, sWS=sWS, nap=4):
    return (f's_mov_b32 {sT2}, {-(1 << 20)}\n{label}:\nbuffer_load_dword {vFL}, {vZERO}, {sWS}, {soff} offen sc1\ns_add_u32 {sT2}, {sT2}, 1\ns_cbranch_scc1 {label}_x\n'
            f's_waitcnt vmcnt(0)\nv_readfirstlane_b32 {sT}, {vFL}\ns_nop 0\ns_cmp_lt_u32 {sT}, {target}\ns_cbranch_scc1 {label}\n{label}_x:\ns_waitcnt vmcnt(0)')
def rot_setup(srot, sw, sa, swi, sai, winc, ainc):
    L = f's_cmp_lg_u32 {srot}, 0\ns_cselect_b32 {sT}, -1, 1\ns_cselect_b32 {sT2}, 3, 1\n'
    L += f's_mul_i32 {swi[0]}, {sT}, {winc}\ns_mul_i32 {swi[1]}, {sT2}, {winc}\n'
    if sai: L += f's_mul_i32 {sai[0]}, {sT}, {ainc}\ns_mul_i32 {sai[1]}, {sT2}, {ainc}\n'
    L += f's_mul_i32 {sT}, {srot}, {winc}\ns_add_u32 {sw}, {sw}, {sT}\ns_mul_i32 {sT}, {srot}, {ainc}\ns_add_u32 {sa}, {sa}, {sT}'
    return L

def halfsum(regs_, tmp):
    L = []
    for m in ('quad_perm:[1,0,3,2]', 'quad_perm:[2,3,0,1]', 'row_half_mirror', 'row_mirror'):
        L.append('s_nop 1' if len(regs_) == 1 else 's_nop 0')
        for v in regs_: L.append(f'v_add_f32_dpp {v}, {v}, {v} {m} row_mask:0xf bank_mask:0xf')
    for k, v in enumerate(regs_): L.append(f'v_mov_b32 {tmp.sub(k)}, {v}')
    L.append('s_nop 1')
    for k, v in enumerate(regs_): L.append(f'v_permlane16_swap_b32 {tmp.sub(k)}, {v}')
    for k, v in enumerate(regs_): L.append(f'v_add_f32 {v}, {v}, {tmp.sub(k)}')
    return L
def layernorm2(X, Y, SC, SV, cs):
    L = []
    M, Vv, TM, AB = SC.sub(0, 2), SC.sub(2, 2), SC.sub(4, 2), SC.sub(6, 2)
    m, mb, v, r = M.sub(0), M.sub(1), Vv.sub(0), Vv.sub(1)
    m2, v2 = TM.sub(0), TM.sub(1)
    rbf = lambda d, x: [f'v_cvt_pk_bf16_f32 {d}, {x}, {x}', f'v_lshlrev_b32 {d}, 16, {d}']
    rstd = lambda d, x, fill: rbf(d, x) + [f'v_add_f32 {d}, 0x3727c5ac, {d}'] + rbf(d, d) + [f'v_sqrt_f32 {d}, {d}', fill[0]] + rbf(d, d) + [f'v_rcp_f32 {d}, {d}', fill[1]]
    for i in range(8): L.append(f'v_pk_add_f32 {Y.sub(2*i,2)}, {X.sub(2*i,2)}, {X.sub(2*i+16,2)}')
    for w in (4, 2, 1):
        for i in range(w): L.append(f'v_pk_add_f32 {Y.sub(2*i,2)}, {Y.sub(2*i,2)}, {Y.sub(2*(i+w),2)}')
    L.append(f'v_add_f32 {m}, {Y.sub(0)}, {Y.sub(1)}')
    L += halfsum([m], TM) + [f'v_mul_f32 {m}, 0x3a800000, {m}']
    L += [f'v_pk_add_f32 {X.sub(2*i,2)}, {X.sub(2*i,2)}, {M} op_sel_hi:[1,0] neg_lo:[0,1] neg_hi:[0,1]' for i in range(16)]
    L += [f'v_pk_mul_f32 {Vv}, {X.sub(0,2)}, {X.sub(0,2)}', f'v_pk_mul_f32 {TM}, {X.sub(2,2)}, {X.sub(2,2)}']
    for i in range(2, 16): L.append(f'v_pk_fma_f32 {[Vv, TM][i & 1]}, {X.sub(2*i,2)}, {X.sub(2*i,2)}, {[Vv, TM][i & 1]}')
    L += [f'v_pk_add_f32 {Vv}, {Vv}, {TM}', f'v_add_f32 {v}, {Vv.sub(0)}, {Vv.sub(1)}']
    L += halfsum([v], TM) + [f'v_mul_f32 {v}, 0x3a800000, {v}']
    L += rstd(r, v, rbf(mb, m))
    L += [f'v_mul_f32 {SV.sub(1)}, {f2h(cs)}, {r}', f'v_sub_f32 {m}, {m}, {mb}', f'v_mul_f32_e64 {SV.sub(0)}, -{mb}, {SV.sub(1)}']
    R_ = [f'v_mul_f32 {m}, {m}, {r}', f'v_mul_f32 {v}, {v}, {r}', f'v_mul_f32 {v}, {v}, {r}']
    R_ += rstd(v2, v, rbf(m2, m))
    R_ += [f'v_sub_f32 {m}, {m}, {m2}', f'v_mul_f32 {AB.sub(0)}, {r}, {v2}', f'v_mul_f32 {AB.sub(1)}, {m}, {v2}']
    R_ += [f'v_pk_fma_f32 {X.sub(2*i,2)}, {X.sub(2*i,2)}, {AB}, {AB} op_sel:[0,0,1] op_sel_hi:[1,0,1]' for i in range(16)]
    R_ += [f'v_cvt_pk_bf16_f32 {Y.sub(i)}, {X.sub(2*i)}, {X.sub(2*i+1)}' for i in range(16)]
    return L, R_
def unpack(X, Y):
    L = []
    for i in range(Y.n): L += [f'v_lshlrev_b32 {X.sub(2*i)}, 16, {Y.sub(i)}', f'v_and_b32 {X.sub(2*i+1)}, 0xffff0000, {Y.sub(i)}']
    return L

def q_epilogue(st, SR, bias=False):
    a = st.raw
    sw = lambda d: a(f'v_permlane16_swap_b32 {d.sub(0)}, {d.sub(2)}\nv_permlane16_swap_b32 {d.sub(1)}, {d.sub(3)}')
    for tt in range(4):
        for b in range(4):
            r = SR.sub(2 * b, 2)
            for jj in range(2):
                s_ = QACC.sub(((2 * tt + jj) * 4 + b) * 4, 4)
                for h in range(2): st.op(valu(f'v_pk_mul_f32 {s_.sub(2*h,2)}, {s_.sub(2*h,2)}, {r} op_sel:[0,1] op_sel_hi:[1,1]', rd=[r]))
            for jj in range(2):
                s_ = QACC.sub(((2 * tt + jj) * 4 + b) * 4, 4); c_ = Qf(2 + jj, tt)
                for h in range(2): st.op(valu(f'v_pk_fma_f32 {s_.sub(2*h,2)}, {c_.sub(2*h,2)}, {r}, {s_.sub(2*h,2)} op_sel_hi:[1,0,1]', rd=[c_]))
        for b in range(4):
            d = Qf(b, tt)
            for jj in range(2):
                s_ = QACC.sub(((2 * tt + jj) * 4 + b) * 4, 4)
                a(f'v_cvt_pk_bf16_f32 {d.sub(2*jj)}, {s_.sub(0)}, {s_.sub(1)}\nv_cvt_pk_bf16_f32 {d.sub(2*jj+1)}, {s_.sub(2)}, {s_.sub(3)}')
        for b in range(4): sw(Qf(b, tt))
    if bias:
        for e in range(bias):
            x = QACC.sub(16 * e, 16)
            for h in range(2):
                st.op(valu(f'v_lshlrev_b32 {x.sub(2*h)}, 16, {BIAS.sub(2*e+h)}', rd=[BIAS.sub(2 * e + h)]))
                a(f'v_and_b32 {x.sub(2*h+1)}, 0xffff0000, {BIAS.sub(2*e+h)}')
            for i in range(2, 8): a(f'v_mov_b64 {x.sub(2*i,2)}, {x.sub(2*(i&1),2)}')

def gen_k2(opt):
    st = Stream(); a = st.raw
    far = []
    A1, Y1 = opt.get('a1', 3), opt.get('y1', 3)
    NY = 2 * (A1 + Y1); NSY = 2 * NY
    PW = opt.get('pw', 0); OM = 4 if PW else 1
    GW = opt.get('g2w', 8)
    opt.setdefault('pf_w1', 1 if GW == 7 else 0)
    hasg2 = lambda d: f's_cmp_lt_u32 {sIDX}, {112 // GW}\ns_cselect_b32 {d}, {sROLE}, 0'
    t = vTMP
    a(f'{KNAME}:')
    a('s_cmp_ge_u32 s2, 256\ns_cbranch_scc1 L2_end')
    sp = Stamps(opt.get('stamp'), 1, 254)
    sp.jit = opt.get('jit')
    sp.stamp(st)
    RAW, LX, SC, HT = V(108, 16), V(124, 32), V(156, 8), V(196, 16)
    vLg, vLw, vHr, vHs, vSt, vZf, SV = V(212), V(213), V(214), V(215), V(216), V(217), V(218, 2)
    DL = opt.get('dln', 0)
    if DL:
        RAW, LX, SC, HT, SV = V(6, 16), V(76, 32), V(236, 8), V(76, 16), V(244, 2)
        vLg, vLw, vHr, vHs, vSt, vZf = [V(22 + i) for i in range(6)]
    a(f"""s_load_dwordx2 s[68:69], s[0:1], 0
s_load_dwordx2 s[8:9], s[0:1], 24
v_lshrrev_b32 v{t+1}, 5, v0
v_and_b32 v{t+2}, 31, v0
v_lshlrev_b32 v{t+2}, 4, v{t+2}
v_lshl_add_u32 {vLg}, v{t+1}, 11, v{t+2}
v_lshlrev_b32 {vFL}, 7, v0
s_lshl_b32 {sT4}, s2, 14
s_lshl_b32 {sT}, s2, 15
s_mov_b32 s70, 4194304
s_mov_b32 s71, 0x20000
s_mov_b32 s10, 8388608
s_mov_b32 s11, 0x20000
s_lshl_b32 {sO}, s2, 14
s_waitcnt lgkmcnt(0)""")
    rawl = [([], vload(f'buffer_load_dwordx4 {RAW.sub(4*i,4)}, {vLg}, {sX}, {sO} offen offset:{512*i}', RAW.sub(4 * i, 4)), []) for i in range(4)]
    RP = opt.get('rpos', 0)
    if not RP: st.ops(flat(rawl))
    if opt.get('pf_wq', 0): st.op(vload(f'buffer_load_dword {vDUM}, {vFL}, {sWQ}, {sT} offen'))
    a(f"""s_load_dwordx2 s[4:5], s[0:1], 96
s_lshr_b32 {sROLE}, s2, 7
s_cmp_eq_u32 {sROLE}, 0
s_cselect_b32 {sT}, 80, 48
s_cselect_b32 {sT2}, 64, 32
s_cselect_b32 {sT3}, 72, 56
s_load_dwordx2 s[20:21], s[0:1], {sT}
s_load_dwordx2 s[24:25], s[0:1], {sT2}
s_load_dwordx2 s[32:33], s[0:1], {sT3}
s_load_dwordx2 s[12:13], s[0:1], 8
s_load_dwordx2 s[16:17], s[0:1], 16
s_load_dwordx2 s[28:29], s[0:1], 32
s_load_dwordx2 s[72:73], s[0:1], 88
s_load_dwordx2 s[58:59], s[0:1], 48
s_mov_b32 s22, 14680064
s_cselect_b32 s26, s22, 8388608
s_cselect_b32 s22, 4194304, s22
s_movk_i32 s34, 7168
s_cselect_b32 s34, 4096, s34
v_lshrrev_b32 v{t}, 6, v0
v_mul_u32_u24 {vLw}, {LSTR}, v{t+1}
v_readfirstlane_b32 {sWAVE}, v{t}
v_add_u32 {vLw}, {vLw}, v{t+2}
v_and_b32 {vL16}, 63, v0
v_lshlrev_b32 {vPF}, 6, {vL16}
s_mov_b32 {sSTR}, 8192""")
    if opt.get('pf_code', 1):
        a(f's_getpc_b64 s[56:57]\nL2_pc:\ns_lshr_b32 {sT}, s2, 3\ns_lshl_b32 {sT}, {sT}, 2\ns_add_u32 {sT}, {sT}, {sWAVE}\ns_mul_i32 {sT}, {sT}, 704\ns_min_u32 {sT}, {sT}, L2_redo-L2_pc\ns_add_u32 s56, s56, {sT}\ns_addc_u32 s57, s57, 0\nv_lshrrev_b32 {vCO}, 2, {vPF}\nv_min_u32 {vCO}, 0x2b0, {vCO}')
        st.op(pfcode())
    for s, size in ((4, WS_SIZE), (12, 16777216), (16, 16777216), (20, 0), (24, 0), (28, 8388608), (32, 0), (72, 256)):
        if size: a(f's_mov_b32 s{s+2}, {size}')
        a(f's_mov_b32 s{s+3}, 0x20000')
    a(f"""s_bfe_u32 {sIDX}, s2, 0x40003
s_and_b32 {sSLOT}, s2, 7
s_lshr_b32 {sHEAD}, {sIDX}, 3
s_lshl_b32 {sQ64}, {sSLOT}, 1
s_add_u32 {sHEAD}, {sHEAD}, {sQ64}
s_cmp_eq_u32 {sROLE}, 0
s_cselect_b32 {sT}, {A1}, {Y1}
s_cselect_b32 {sT2}, {Y1}, {A1}
s_cselect_b32 {sQ64}, {Y1}, {16 - 2 * A1}
s_cmp_ge_u32 {sHEAD}, {sT}
s_cselect_b32 {sT2}, {sT2}, 0
s_addc_u32 {sGRP}, 1, 0
s_lshl_b32 {sT}, {sT}, 1
s_cmp_ge_u32 {sHEAD}, {sT}
s_cselect_b32 {sQ64}, {sQ64}, 0
s_addc_u32 {sGRP}, {sGRP}, 0
s_mul_i32 {sGRP}, {sGRP}, {sROLE}
s_mul_i32 {sT}, {sROLE}, {A1}
s_add_u32 {sHEAD}, {sHEAD}, {sT}
s_add_u32 {sHEAD}, {sHEAD}, {sT2}
s_add_u32 {sHEAD}, {sHEAD}, {sQ64}
s_and_b32 {sQ64}, {sIDX}, 7
s_lshl_b32 {sQ64}, {sQ64}, 2
s_add_u32 {sQ64}, {sQ64}, {sWAVE}
s_lshl_b32 {sLDS}, {sWAVE}, 12
s_lshl_b32 {sQW}, {sHEAD}, 8
s_lshl_b32 {sQA}, {sQ64}, 17
s_add_u32 {sQA2}, {sQA}, 65536""")
    accq = lambda e, b: QACC.sub((e * 4 + b) * 4, 4)
    acc3 = lambda e, b: accq(e, 2 + b)
    gq = GemmX('Q', 16, 4, accq, A(128, 128), A(0, 32), vWa, 'id', sWQ, vWq, sQW, 8192, QRING, sLDS, sX, None, sQA, lead=3, uni=True, dist=2)
    gq.xsetup(XSLOT, vXd, vXa, sQA2, ONESQ, IDXQ, CS)
    gq.bar_rd = [('x', 0)]
    RQ = opt.get('rq', 0)
    if RQ:
        tabs = [sum(((((k + 1) ^ r if k < 3 else 4 + r) - (k ^ r)) & 0xff) << (8 * k) for k in range(4)) for r in range(4)]
        a(f"""s_lshr_b32 {sT}, s2, 6
s_add_u32 {sT}, {sT}, {sIDX}
s_and_b32 {sT}, {sT}, {RQ}
s_bitcmp1_b32 {sT}, 0
s_mov_b32 {sPF}, {tabs[0]}
s_cselect_b32 {sPF}, {tabs[1]}, {sPF}
s_mov_b32 {sT2}, {tabs[2]}
s_cselect_b32 {sT2}, {tabs[3]}, {sT2}
s_bitcmp1_b32 {sT}, 1
s_cselect_b32 {sPF}, {sT2}, {sPF}
s_lshl_b32 {sT2}, {sT}, 19
s_add_u32 {sQW}, {sQW}, {sT2}
s_lshl_b32 {sT2}, {sT}, 7
s_add_u32 {sQA}, {sQA}, {sT2}
s_add_u32 {sQA2}, {sQA2}, {sT2}""")
        gq.rtab = sPF
    g2 = Gemm('G', 32, 4, accq, A(128, 128), A(0, 32), vWa, 'id', sW1, vWg, sW3, 0, QRING, sLDS, sWS, vL16, sA3, avoff2=vL16b, lead=3, uni=True, winc=sGI, ainc=sGJ, dist=2, asuf=' sc1', NW=GW)
    kwn = dict(avoff2=vA1, asuf=' sc1', winc=sNI, ainc=sNJ, lead=3, uni=True, dist=2, aoff=2, split=True)
    g4 = Gemm('N', 28, 4, accq, A(128, 128), Q.sub(0, 32), vWa, 'blk', sWN, vWq, sGW, 0, KBASE, sLDS, sWS, vA0, sGA, swap=True, **kwn)
    g3y = Gemm('N', NY, 4, accq, A(128, 128), Q.sub(0, 32), vWa, 'blk', sWN, vWq, sGW, 0, KBASE, sLDS, sWS, vA0, sGA, **kwn)
    g3s = Gemm('S', 64 - NSY, 2, acc3, A(0, 64), A(64, 32), vVa, 'blk', sWO, vWg, sW3, 0, VBASE, sLDS, sWS, vL16, sA3, asuf=' sc1', winc=sSI, ainc=sSJ)
    for g_ in (gq, g2, g4, g3y, g3s): g_.zig = opt.get('zig', 1)
    for g_ in (g2, g4, g3y, g3s): g_.fk = opt.get('fk', 0) & 1
    gq.fk = opt.get('fk', 0) & 4
    for g_ in (gq, g2, g4, g3y): g_.skew = opt.get('skew', 0)
    SK = 1 if gq.skew else 0
    for g_ in (g2, g4, g3y): g_.pre2 = SK and opt.get('pre2', 1)
    g4.more_tags = g3y.more_tags = {1: ['st']}
    assert not (SK and (DL or RQ or GW != 8 or PW))
    if 'fsw' in opt:
        for g_ in (g2, g4, g3y, g3s): g_.swap = bool(opt['fsw'])
    g3s.pat = opt.get('pat', 0); g3s.uni = opt.get('uni3', 0)
    a('\n'.join(wvoff_setup(vWq, sSTR, 'id', t)))
    rest = gq.window(0) + gq.window(1) + gq.window(2)[:2]
    if RP: rest[RP:RP] = rawl
    early = opt.get('early', 12)
    a(f'v_bfe_u32 v{t}, v0, 3, 3\nv_and_b32 v{t+1}, 7, v0\nv_lshrrev_b32 v{t+2}, 1, v{t}\nv_xor_b32 v{t+1}, v{t+1}, v{t+2}\nv_lshlrev_b32 v{t+1}, 4, v{t+1}\nv_lshl_add_u32 {vXd.sub(0)}, v{t}, 11, v{t+1}')
    a(f'v_xor_b32 {vXd.sub(1)}, 64, {vXd.sub(0)}\nv_add_u32 {vXd.sub(1)}, {16384-1024}, {vXd.sub(1)}\nv_add_u32 {vXd.sub(2)}, {2*(16384-1024)}, {vXd.sub(0)}\nv_add_u32 {vXd.sub(3)}, {2*(16384-1024)}, {vXd.sub(1)}')
    gq.issue(st, rest[:early]); del rest[:early]
    a(f'v_lshlrev_b32 {vL16}, 4, {vL16}\nv_cmp_eq_u32 vcc, 3, v{t}\nv_add_u32 v{t+1}, {SHADOW}, {vL16}\ns_nop 0\nv_cndmask_b32 {vL16}, {vL16}, v{t+1}, vcc\nv_add_u32 {vL16b}, 4096, {vL16}')
    PD = opt.get('pd', 4)
    if PD:
        a(f"""s_and_b32 {sT}, {sQ64}, 31
s_lshl_b32 {sT}, {sT}, 14
v_bfe_u32 v{t}, v0, 2, 1
v_bfe_u32 v{t+1}, v0, 3, 1
v_lshlrev_b32 v{t}, 7, v{t}
v_lshl_add_u32 v{t}, v{t+1}, 13, v{t}
v_add_u32 v{t}, {sT}, v{t}
v_add_u32 v49, {PD * 524288}, v{t}
v_bfe_u32 v{t+1}, v0, 4, 2
v_min_u32 v{t+1}, {PD - 1}, v{t+1}
v_lshl_add_u32 v50, v{t+1}, 19, v{t}
s_lshl_b32 {sP1}, {sHEAD}, 8
s_add_u32 {sP1}, {sP1}, {(4 if RQ else 3) * 524288}""")
        rest.insert(opt.get('ppos', 0), ([], vload(f'buffer_load_dword {vDUM}, v50, {sWQ}, {sP1} offen'), []))
    a('\n'.join(waddr_setup(vWa, QRING, 'id', t)))
    a(f's_lshl_b32 {sROT}, {sWAVE}, 6')
    for e in range(8): a(f'v_xor_b32 {vWa.sub(e)}, {sROT}, {vWa.sub(e)}')
    a(f"""v_and_b32 v{t}, 15, v0
v_bfe_u32 v{t+1}, v0, 4, 2
v_lshrrev_b32 v{t+2}, 1, v{t}
v_xor_b32 v{t+2}, v{t+2}, v{t+1}
v_lshlrev_b32 v{t+2}, 4, v{t+2}
v_lshl_add_u32 v{t+2}, v{t}, 7, v{t+2}
s_add_u32 {sT}, {sLDS}, {min(XSLOT)}
v_add_u32 {vXa.sub(0)}, {sT}, v{t+2}
v_xor_b32 {vXa.sub(1)}, 64, {vXa.sub(0)}
s_add_u32 {sT}, {sLDS}, {CSB}
v_lshl_add_u32 {vCw}, v{t}, 2, {sT}
{f's_xor_b32 {sT}, {sT}, 0x2000' if SK else ''}
v_lshl_add_u32 {vCr.sub(0)}, v{t+1}, 4, {sT}
v_xor_b32 {vCr.sub(1)}, 0x1000, {vCr.sub(0)}
v_xor_b32 {vCr.sub(2)}, 0x2000, {vCr.sub(0)}
v_xor_b32 {vCr.sub(3)}, 0x3000, {vCr.sub(0)}
v_and_b32 {IDXQ}, 1, v0
v_sub_u32 {IDXQ}, 0, {IDXQ}
v_and_b32 {IDXQ}, 0xaaaaaaaa, {IDXQ}
v_or_b32 {IDXQ}, 0x44444444, {IDXQ}
v_mov_b32 {vZERO}, 0
v_mov_b32 {vONE}, 1
v_bfe_u32 {vHr}, v0, 2, 2
v_mul_u32_u24 {vHr}, {LSTR}, {vHr}
v_lshrrev_b32 v{t+2}, 4, v0
v_lshl_add_u32 {vHr}, v{t+2}, 5, {vHr}
v_and_b32 v{t+2}, 3, v0
v_lshl_add_u32 {vHr}, v{t+2}, 3, {vHr}
v_lshlrev_b32 {vHs}, 10, v{t+1}
v_lshl_add_u32 {vHs}, v{t}, 4, {vHs}
s_and_b32 {sT}, s2, 3
s_lshl_b32 {sT}, {sT}, 8
v_add_u32 {vHs}, {sT}, {vHs}
v_bfe_u32 v{t+2}, {vHs}, 7, 3
v_cmp_eq_u32 vcc, 3, v{t+2}
v_add_u32 v{t+3}, {SHADOW}, {vHs}
s_lshr_b32 {sT2}, s2, 2
v_cndmask_b32 {vHs}, {vHs}, v{t+3}, vcc
s_lshl_b32 {sT2}, {sT2}, 12
s_lshl_b32 {sT}, {sWAVE}, 18
s_add_u32 {sT2}, {sT2}, {sT}
s_add_u32 {sT2}, {sT2}, {HF}
v_and_b32 v{t+2}, 31, v0
v_cmp_eq_u32 vcc, 0, v{t+2}
v_lshrrev_b32 {vSt}, 2, v0
v_mov_b32 v{t+3}, 0x40000000
v_cndmask_b32 {vSt}, v{t+3}, {vSt}, vcc
v_cmp_gt_u32 vcc, 0x80, v0
v_lshlrev_b32 {vZf}, 2, v0
s_lshl_b32 {sT3}, s2, 7
v_cndmask_b32 {vZf}, v{t+3}, {vZf}, vcc
s_lshl_b32 {sT4}, s2, 9
s_add_u32 {sT4}, {sT4}, {FL}
s_bfe_u32 {sSIG}, s2, 0x20004
s_and_b32 {sSIG}, {sSIG}, {opt.get('sigsp', 3)}
s_and_b32 {sU}, {sSIG}, {opt.get('lnsp', 3)}
s_add_u32 {sU}, {sU}, {DL}
s_add_u32 {sSIG}, {sSIG}, {DL + 4 if DL else 3 - SK}
s_bfe_u32 {sFU}, s2, 0x10003
s_lshl_b32 {sFU}, {sFU}, 7
s_mov_b32 {sMODE}, 0
s_cmp_eq_u32 {sWAVE}, 0
s_cselect_b32 {sSIG}, {sSIG}, 0
s_cselect_b32 {sRDY}, 0x80, 0
s_cselect_b32 {sP0}, 0, 0x1000""")
    if opt.get('xq') == 'nopoll': a(f's_mov_b32 {sRDY}, 0\ns_mov_b32 {sP0}, 0x1000')
    if opt.get('xq') == 'nosig': a(f's_mov_b32 {sRDY}, 0\ns_mov_b32 {sP0}, 0x1000\ns_mov_b32 {sSIG}, 0')
    if SK: a('v_and_b32 v74, 1, v0\nv_lshlrev_b32 v74, 7, v74')
    assert STAT == 0
    for i in range(4): a(f'v_mov_b32 {ONESQ.sub(i)}, 0x3f803f80\nv_mov_b64 {CS.sub(2*i,2)}, 0')
    cs = math.log2(math.e) / math.sqrt(128.0)
    zq = [f'v_mov_b64 {QACC.sub(2*i,2)}, 0' for i in range(64)]
    if not DL:
        a('\n'.join(zq[28:44] + zq[56:]) + '\ns_waitcnt lgkmcnt(0)')
        st.op(valu(unpack(LX, RAW)[0], rd=[RAW]))
        sp.stamp(st)
        l1, l2 = layernorm2(LX, RAW, SC, SV, cs)
        ln = unpack(LX, RAW)[1:] + l1
        ln += [vstore(f'buffer_store_dwordx2 {SV}, {vSt}, {sWS}, {sT3} offen sc1'), vstore(f'buffer_store_dword {vZERO}, {vZf}, {sWS}, {sT4} offen sc1')]
        ln += l2
        nin = opt.get('nin', 12)
        step = len(ln) // (nin + 1)
        for k, x in enumerate(ln):
            if isinstance(x, Op): st.op(x)
            else: a(x)
            if k % step == step - 1 and nin and rest: gq.issue(st, [rest.pop(0)]); nin -= 1
        for i in range(4): st.op(Op(f'ds_write_b128 {vLw}, {RAW.sub(4*i,4)} offset:{512*i}', 'ds'))
        zz = zq[8:28]
        gq.issue(st, rest, lambda: a('\n'.join(zz.pop() for _ in range(min(2, len(zz))))))
        a('\n'.join(zz))
        st.op(barrier(['Q0'], lg0=True))
        for i in range(4):
            for tt in range(2): st.op(ds_tr(HT.sub(4 * i + 2 * tt, 2), vHr, 512 * i + 4 * LSTR * tt))
        a('\n'.join(zq[:8]))
        for i in range(4):
            st.op(vstore(f'buffer_store_dwordx4 {HT.sub(4*i,4)}, {vHs}, {sWS}, {sT2} offen sc1', rd=[HT.sub(4 * i, 4)]))
            a(f's_add_u32 {sT2}, {sT2}, {1 << 20}')
            st.ops(gq.xreads(0, i))
        st.ops(gq.reads(0))
        a('\n'.join(zq[44:56]))
        st.ops(gq.reads(1))
        sp.stamp(st)
    else:
        sp.stamp(st)
        gq.issue(st, rest, lambda: a('\n'.join(zq.pop() for _ in range(min(5, len(zq))))))
        a('\n'.join(zq) + '\ns_waitcnt lgkmcnt(0)')
        st.op(barrier(['Q0']))
        for i in range(4): st.ops(gq.xreads(0, i))
        st.ops(gq.reads(0) + gq.reads(1))
        sp.stamp(st)
        l1, l2 = layernorm2(LX, RAW, SC, SV, cs)
        b1 = unpack(LX, RAW) + l1 + [f'buffer_store_dwordx2 {SV}, {vSt}, {sWS}, {sT3} offen sc1', f'buffer_store_dword {vZERO}, {vZf}, {sWS}, {sT4} offen sc1'] + l2
        b1 += [f'ds_write_b128 {vLw}, {RAW.sub(4*i,4)} offset:{512*i}' for i in range(4)] + ['s_waitcnt lgkmcnt(0)']
        b2 = ['s_waitcnt lgkmcnt(7)'] + [ds_tr(HT.sub(4 * i + 2 * tt, 2), vHr, 512 * i + 4 * LSTR * tt).text for i in range(4) for tt in range(2)]
        for i in range(4): b2 += [f's_waitcnt lgkmcnt({6 - 2 * i})', f'buffer_store_dwordx4 {HT.sub(4*i,4)}, {vHs}, {sWS}, {sT2} offen sc1', f's_add_u32 {sT2}, {sT2}, {1 << 20}']
        ret = f's_and_b32 {sT}, {sMODE}, 3\n' + ''.join(f's_cmp_eq_u32 {sT}, {k}\ns_cbranch_scc1 L2_n{k}_r\n' for k in range(3)) + 's_branch L2_n3_r'
        far.append(f'L2_n:\ns_cmp_eq_u32 {sT}, 0\ns_cbranch_scc0 L2_nb\n' + '\n'.join(b1) + '\ns_branch L2_nr\nL2_nb:\n' + '\n'.join(b2) + '\nL2_nr:\n' + ret)
    for k in range(4): far.append(f'L2_sl{k}:\n{signal(sFU, sDBG)}\ns_branch L2_sl{k}_r')
    def qx(s, e):
        if e == 2: return {3: [salu(f's_add_u32 {sMODE}, {sMODE}, 1')], 7: (publish if s >= 2 and not DL else lambda l, _: [salu(x) for x in l])([f's_cmp_eq_u32 {sMODE}, {sSIG}', f's_cbranch_scc1 L2_sl{s % 4}', f'L2_sl{s % 4}_r:'], 'wg')}
        if DL and e == 0: return {3: [salu(f's_sub_u32 {sT}, {sMODE}, {sU}')], 7: [salu(f's_cmp_lt_u32 {sT}, 2'), salu('s_cbranch_scc1 L2_n'), salu(f'L2_n{s % 4}_r:')]}
        if e == (4 if SK and s == 0 else 5) and PD: return {(7 if e == 4 else 1): [vload(f'buffer_load_dword {vDUM}, v49, {sWQ}, {sQW} offen')]}
        if SK and s and s % 4 == 0 and e == 0: return {3: [salu(f's_cmp_eq_u32 {sCNT}, -1'), salu(f's_cselect_b32 {sT}, {sP0}, 0x1000')], 7: [vload(f'buffer_load_dword v75, v74, {sDBG}, {sT} offen sc1', V(75))]}
        return {}
    if opt.get('qdiag'):
        cntl = [0]
        def qx2(s, e):
            r = qx(s, e)
            if e == 2:
                far.append(f'L2_sx{s}:\n{signal(sFU, sDBG)}\ns_branch L2_sx{s}_r')
                r[7] = [r[7][0], salu(f's_cbranch_scc1 L2_sx{s}'), salu(f'L2_sx{s}_r:')]
            return r
        del far[-4:]
        for s_ in range(12):
            gq.stages(st, s_, s_ + 1, None, qx2, None)
            if s_ < 11: sp.stamp(st)
        sp.on2 = True
    else: gq.loop(st, 'L2_q', sCNT, extra=qx)
    a(hasg2(sT) + f'\ns_cmp_lg_u32 {sT}, 0\ns_cbranch_scc1 L2_G')
    sg = st.fork(); spg = sp.n
    def q_last_extra(s_, SR, nm):
        ld = f'buffer_load_dword v75, v74, {sDBG}, {sP0} offen sc1'
        far.append(f'{nm}:\ns_mov_b32 {sCNT}, {-(1 << 20)}\n{nm}1:\n{ld}\ns_add_u32 {sCNT}, {sCNT}, 1\ns_cbranch_scc1 {nm}_x\ns_waitcnt vmcnt(0)\n'
                   f'v_cmp_gt_u32 vcc, {sRDY}, v75\ns_nop 4\ns_cbranch_vccnz {nm}1\n{nm}_x:\ns_waitcnt vmcnt(0)\ns_branch {nm}_r')
        def f(s, e):
            if s == 12 and e == 2: return {3: [valu('v_and_b32 v74, 1, v0'), valu('v_lshlrev_b32 v74, 7, v74')], 7: [vload(ld, V(75))]}
            if s == 13 and e == 5: return {1: [valu(f'v_cmp_gt_u32 vcc, {sRDY}, v75', rd=[V(75)])], 5: [salu(f's_cbranch_vccnz {nm}'), salu(f'{nm}_r:')]}
            if s == 12 + SK and e == 0: return {3: [valu(f'v_bfe_u32 v72, v0, 3, 1'), valu(f'v_and_b32 v73, 7, v0')], 7: [valu('v_lshlrev_b32 v72, 7, v72'), valu('v_lshl_add_u32 v72, v73, 3, v72')]}
            if s == 12 + SK and e == 1: return {7: [salu(f's_lshl_b32 {sP1}, {sQ64}, 10')]}
            if s == 14 and e in (5, 6):
                return {g: [vload(f'buffer_load_dwordx2 {SR.sub(2*n,2)}, v72, {sWS}, {sP1} offen offset:{256*n} sc1', SR.sub(2 * n, 2))] for g, n in ((1, 2 * (e - 5)), (5, 2 * (e - 5) + 1))}
            if s == 15 and e == 3 + 2 * SK:
                return {3 + 2 * SK: [valu(f'v_add_f32 {CS.sub(4*k)}, {CS.sub(4*k)}, {CS.sub(4*k+1)}') for k in range(2)],
                        7: [Op(f'ds_write2_b32 {vCw}, {CS.sub(0)}, {CS.sub(4)} offset0:0 offset1:16', 'ds', wr=[('x', 0)])]}
            if s == 15 and e == 6 + SK: s_.push([ds_128(Qf(2 + (k & 1), k >> 1), vCr.sub(k >> 1), 64 * (k & 1)) for k in range(8)])
            return {}
        return f

    su_kv = f's_lshl_b32 {sKV0}, {sHEAD}, 19\ns_mov_b32 {sK}, {sKV0}\ns_mov_b32 {sV}, {sKV0}\n'
    su_kv += f'v_bfe_u32 v{t}, v0, 4, 2\nv_lshrrev_b32 v{t+1}, 6, v0\nv_lshl_add_u32 v{t+1}, v{t+1}, 4, v{t}\nv_lshlrev_b32 v{t+1}, 8, v{t+1}\nv_and_b32 v{t+2}, 15, v0\n'
    for i in range(4):
        su_kv += f'v_or_b32 v{t+3}, {4*i}, v{t}\nv_xor_b32 v{t+3}, v{t+3}, v{t+2}\nv_lshl_add_u32 {vKd.sub(i)}, v{t+3}, 4, v{t+1}\n'
    for i in range(2):
        su_kv += f'v_or_b32 v{t+3}, {4*i}, v{t}\nv_lshlrev_b32 v{t+3}, 1, v{t+3}\nv_xor_b32 v{t+3}, v{t+3}, v{t+2}\nv_lshl_add_u32 {vVd.sub(i)}, v{t+3}, 4, v{t+1}\n'
    su_kv += f'v_and_b32 v{t+1}, 1, v{t}\nv_lshlrev_b32 v{t+1}, 1, v{t+1}\nv_lshrrev_b32 v{t+3}, 1, v{t}\nv_or_b32 v{t+1}, v{t+1}, v{t+3}\n'
    su_kv += f's_lshl_b32 {sT}, {sWAVE}, 2\nv_xor_b32 v{t+1}, {sT}, v{t+1}\nv_xor_b32 v{t+1}, v{t+1}, v{t+2}\nv_lshlrev_b32 v{t+2}, 8, v{t+2}\n'
    for i in range(4):
        su_kv += f'v_xor_b32 v{t+3}, {4*i}, v{t+1}\nv_lshl_add_u32 {vKa.sub(i)}, v{t+3}, 4, v{t+2}\n'
    su_kv += '\n'.join(waddr_setup(vVa, VBASE, 'blk', t))
    su_g2 = f"""s_and_b32 {sT3}, {sSLOT}, 1
s_lshl_b32 {sT3}, {sT3}, 1
s_and_b32 {sT}, {sIDX}, 1
s_add_u32 {sT3}, {sT3}, {sT}
s_lshl_b32 {sT}, {sT3}, 8
s_add_u32 {sFU}, {sT}, {FL + 8192}
s_lshr_b32 {sT}, {sSLOT}, 1
s_mul_i32 {sT}, {sT}, {56 // GW}
s_lshr_b32 {sT4}, {sIDX}, 1
s_add_u32 {sT}, {sT}, {sT4}
s_add_u32 {sT4}, {sT4}, {sIDX}
s_and_b32 {sT4}, {sT4}, {opt.get('rotg', 1)}
s_mul_i32 {sW3}, {sT}, {32 * GW}
s_and_b32 {sR0}, {sT}, {GW & 1}
s_lshl_b32 {sB}, {sR0}, 5
s_add_u32 {sB}, {sB}, {sW3}
s_mul_i32 {sBN}, {sR0}, -224
s_add_u32 {sBN}, {sBN}, {sB}
s_mul_i32 {sU}, {sT}, {GW}
s_add_u32 {sU}, {sU}, {sR0}
s_lshl_b32 {sU}, {sU}, 10
s_mul_i32 {sQA}, {sR0}, {8 - 4 * 2048}
s_add_u32 {sQA}, {sQA}, {3 * 2048}
s_lshl_b32 {sR0}, {sR0}, 1
s_lshl_b32 {sT}, {sT3}, 2
s_add_u32 {sT}, {sT}, {sWAVE}
s_lshl_b32 {sA3}, {sT}, 18
s_add_u32 {sA3}, {sA3}, {HF}
s_mul_i32 {sT}, {sT}, {2*112*2048}
s_add_u32 {sU}, {sU}, {sT}
s_add_u32 {sU}, {sU}, {UF}
s_movk_i32 {sSTR}, 7168
""".replace(sQA + ',', sGA + ',') + rot_setup(sT4, sW3, sA3, sGI, sGJ, 64 * 7168, 8192) + '\n' + '\n'.join(wvoff_setup(vWg, sSTR, 'id', t, sR0 if GW == 7 else None))
    su_g2 += f'\nv_bfe_u32 {vFL}, v0, 4, 2\nv_lshlrev_b32 {vFL}, 3, {vFL}'
    PFSEL = ''
    if opt.get('pf_w', 1) in (2, 3): PFSEL = f's_cmp_eq_u32 {sROLE}, {opt["pf_w"] - 2}\ns_cselect_b32 {sPF0}, {sPF0}, 0x20000000'
    su_n = f"""s_lshl_b32 {sO}, {sQ64}, 19
s_lshl_b32 {sT}, {sHEAD}, 13
s_add_u32 {sO}, {sO}, {sT}
s_add_u32 {sO}, {sO}, {OF}
s_lshl_b32 {sT2}, {sGRP}, 3
s_and_b32 {sT}, {sIDX}, 7
s_add_u32 {sT}, {sT}, {sT2}
s_lshl_b32 {sT}, {sT}, 8
s_add_u32 {sFO}, {sT}, {FL}
s_and_b32 {sST}, {sSLOT}, 3
s_lshl_b32 {sST}, {sST}, 2
s_and_b32 {sT}, {sIDX}, 3
s_add_u32 {sST}, {sST}, {sT}
s_and_b32 {sDT}, {sSLOT}, 4
s_lshr_b32 {sT}, {sIDX}, 2
s_add_u32 {sDT}, {sDT}, {sT}
s_lshl_b32 {sT}, {sST}, 3
s_add_u32 {sT}, {sT}, {sDT}
s_lshl_b32 {sT}, {sT}, 2
s_add_u32 {sT}, {sT}, {sWAVE}
s_mov_b32 {sG}, {sT}
s_lshl_b32 {sT}, {sIDX}, 3
s_add_u32 {sT}, {sT}, {sSLOT}
s_lshl_b32 {sT}, {sT}, 2
s_add_u32 {sT}, {sT}, {sWAVE}
s_mul_i32 {sPF0}, {sT}, 28672
{PFSEL}
s_mov_b32 {sMODE}, 0
s_lshl_b32 {sT2}, {sST}, 2
s_add_u32 {sT2}, {sT2}, {sWAVE}
s_lshl_b32 {sR0}, {sT2}, 16
s_lshl_b32 {sT3}, {sDT}, 8
s_add_u32 {sR0}, {sR0}, {sT3}
s_add_u32 {sR1}, {sR0}, 32768
s_andn2_b32 {sT2}, {sT2}, 4
s_lshl_b32 {sT2}, {sT2}, 18
s_add_u32 {sT2}, {sT2}, {OF}
s_and_b32 {sT}, {sST}, 1
s_mul_i32 {sT4}, {sT}, {NY * 4096}
s_add_u32 {sT2}, {sT2}, {sT4}
s_mul_i32 {sT4}, {sT}, {NY * 64 * 2048}
s_add_u32 {sT3}, {sT3}, {sT4}
s_andn2_b32 {sT}, {sDT}, 1
s_lshl_b32 {sT}, {sT}, 2
s_add_u32 {sT}, {sT}, {sWAVE}
s_mul_i32 {sGA0}, {sT}, {112*2048}
s_add_u32 {sGA0}, {sGA0}, {UF}
s_and_b32 {sT}, {sDT}, 1
s_mul_i32 {sT4}, {sT}, {28 * 4096}
s_add_u32 {sGA0}, {sGA0}, {sT4}
s_mul_i32 {sGW0}, {sT}, {28 * 64 * 4096}
s_lshl_b32 {sT4}, {sST}, 8
s_add_u32 {sGW0}, {sGW0}, {sT4}
s_lshr_b32 {sFW}, {sDT}, 1
s_add_u32 {sROT}, {sFW}, {sST}
s_add_u32 {sFW}, {sFW}, 32
s_lshr_b32 {sTG}, {sST}, 1
s_add_u32 {sT}, {sTG}, {sDT}
s_cmp_eq_u32 {sROLE}, 0
s_cselect_b32 {sGA0}, {sGA0}, {sT2}
s_cselect_b32 {sGW0}, {sGW0}, {sT3}
s_cselect_b32 {sROT}, {sROT}, {sT}
s_cselect_b32 {sBN}, {sT4}, 0x10000
s_cselect_b32 {sFW}, {sFW}, {sTG}
s_cselect_b32 {sTG}, {224 // GW}, {16 * OM}
s_lshl_b32 {sFW}, {sFW}, 8
s_add_u32 {sFW}, {sFW}, {FL}
{hasg2(sSIG)}
s_cmp_eq_u32 {sWAVE}, 0
s_cselect_b32 {sSIG}, {sSIG}, 0
s_mul_i32 {sSIG}, {sSIG}, -7
s_lshr_b32 {sSTR}, 4096, {sROLE}
s_lshl_b32 {sT3}, {sSTR}, 6
s_and_b32 {sROT}, {sROT}, {opt.get('rot', 1)}
"""
    su_n2 = rot_setup(sROT, sGW0, sGA0, sNI, sNJ, sT3, 4096) + '\n' + '\n'.join(wvoff_setup(vWq, sSTR, 'blk', t))
    su_n2 += f'\nv_mov_b32 v{t+1}, {FLAG}'
    pre_kv = kdma(0) + kdma(1) + vdma(0) + vdma(1) + kdma(2)
    kvtail = lambda i: pre_kv[i * 12:(i + 1) * 12]
    def last_before_att(g, s_, pre, more=None):
        n = g.nst
        def ex(s, e):
            if s == n - 4 + SK and e == 0: s_.push(parse(su_kv) + parse(pre) + parse(su_n))
            if s == n - 3 and e == g.NW - 2: assert len(s_.q) <= len(parse(su_n)) + 40, len(s_.q)
            if s == n - 2 and e == 0: s_.push(parse(su_n2))
            if s == n - 1 and e == g.NW - 2 + SK: assert not s_.q, len(s_.q)
            r = more(s, e) if more else {}
            if s == n - 1 and e == g.NW - 2 + SK:
                s_.push([kread(0, 0, tt) for tt in range(4)] + [kread(0, 1, 0), Op(f'ds_write_b32 v{t+1}, {vZERO}', 'ds')])
            if (s, e) == ((n, 2) if SK else (n - 1, g.NW - 2)):
                s_.push([valu(f'v_subrev_u32 {vWa.sub(e_)}, {VBASE - KBASE}, {vVa.sub(e_)}') for e_ in range(8)])
            return r
        g.last(s_, kvtail, ex, last_bar=['K0'])
        s_.flush()
    qa = q_last_extra(st, BIAS.sub(0, 8), 'L2_wa')
    def qs(s, e):
        if s == 13 and e == 1:
            st.push(parse(f's_mov_b32 s8, s58\ns_mov_b32 s9, s59\ns_cmp_eq_u32 {sROLE}, 0\ns_cselect_b32 s10, 14680064, 0\ns_lshl_b32 {sQW}, s2, 2\ns_add_u32 {sQW}, {sQW}, {sWAVE}\ns_lshl_b32 {sQW}, {sQW}, 12'))
        if (s, e) in [tuple(x) for x in opt.get('pfpos', [(15, 7)])] and opt.get('pf_w1', 1): st.push(pfw1())
        return qa(s, e)
    last_before_att(gq, st, '', qs)
    sp.stamp(st)
    q_epilogue(st, BIAS.sub(0, 8))
    sp.stamp(st); sp.stamp(st)
    a('L2_join:')
    st.tags['st'] = st.issued['vm'] + 1
    pre = [f'v_mov_b32 {ONES.sub(i)}, 0x3f803f80' for i in range(4)]
    pre += f'v_and_b32 {vIDX}, 1, v0\nv_sub_u32 {vIDX}, 0, {vIDX}\nv_and_b32 {vIDX}, 0xaaaaaaaa, {vIDX}\nv_or_b32 {vIDX}, 0x44444444, {vIDX}'.split('\n')
    M = P.sub(16, 4)
    mx = lambda b: [valu(f'v_max3_f32 {M.sub(b)}, {P.sub(4*b)}, {P.sub(4*b+1)}, {P.sub(4*b+2)}'), valu(f'v_max_f32 {M.sub(b)}, {M.sub(b)}, {P.sub(4*b+3)}')]
    mf = [mfma(P.sub(4 * b, 4), Kf(0, tt), Qf(b, tt), P.sub(4 * b, 4) if tt else 0) for b in range(4) for tt in range(4)]
    fl = [[] for _ in mf]
    for i in range(4): fl[4 + i] = [valu(x) for x in pre[2 * i:2 * i + 2]]
    fl[8] = mx(0); fl[15] = mx(1) + [salu('s_nop 1')] + mx(2) + [salu('s_nop 1')] + mx(3)
    a('s_nop 0')
    FT = opt.get('ft', 1)
    if not FT:
        st.gaps(mf, fl)
        negm_finish(a, M, opt.get('margin', MARGIN))
    RC, PA = opt.get('rc', [1]), opt.get('pa', 1)
    sRCM, sRCF = sQA, sQA2
    a(f's_mov_b32 {sRCM}, {sum(1 << ((k - 7) & 31) for k in RC)}\ns_mov_b32 {sRCF}, 0')
    sp.stamp(st)
    a('L2_att:')
    if not FT: a(f'v_mov_b64 {P.sub(32,2)}, 0\nv_mov_b64 {P.sub(34,2)}, 0')
    a(f's_mov_b32 {sGW}, {sGW0}\ns_mov_b32 {sGA}, {sGA0}\ns_mov_b32 {sPF}, {sPF0}')
    def sig_end(name, soff, pre=''):
        far.append(f'{name}:\n{pre}{signal(soff)}\ns_mov_b32 {sSIG}, 0\ns_branch {name}_r')
        return f's_cmp_eq_u32 {sCNT}, {sSIG}\ns_cbranch_scc1 {name}\n{name}_r:'
    usig = sig_end('L2_su', sFU)
    far.append(f'L2_wn:\n{spin("L2_wn1", sFW, sTG)}\ns_branch L2_wn_r')
    far.append(f'L2_bad:\nds_write_b32 v{t+1}, {vONE}\ns_waitcnt lgkmcnt(0)\ns_branch L2_bad_r')
    su_s = f's_lshl_b32 {sW3}, {sDT}, 8\ns_add_u32 {sW3}, {sW3}, {NSY*64*2048}\ns_lshl_b32 {sT}, {sST}, 2\ns_add_u32 {sT}, {sT}, {sWAVE}\ns_lshl_b32 {sA3}, {sT}, 18\ns_add_u32 {sA3}, {sA3}, {OF + NSY*4096}\n'
    su_s += f's_add_u32 {sT3}, {sST}, {sDT}\ns_and_b32 {sT3}, {sT3}, {opt.get("rot", 1)}\n' + rot_setup(sT3, sW3, sA3, sSI, sSJ, 64 * 2048, 4096)
    su_s += f'\nv_bfe_u32 v{t+2}, v0, 4, 2\nv_lshrrev_b32 v{t+3}, 6, v0\nv_lshl_add_u32 v{t+2}, v{t+3}, 4, v{t+2}\nv_lshlrev_b32 v{t+2}, 11, v{t+2}'
    for i in range(4): su_s += f'\nv_sub_u32 {vWg.sub(i)}, {vWq.sub(i)}, v{t+2}' + (f'\nv_subrev_u32 {vWg.sub(i)}, {4*i*2048}, {vWg.sub(i)}' if i else '')
    su_a = f's_and_b32 {sT3}, {sDT}, 1\ns_mov_b32 {sT2}, {1 << 20}\ns_cmp_eq_u32 {sROLE}, 0\ns_cselect_b32 {sT2}, {4*112*2048}, {sT2}\ns_cselect_b32 {sT3}, {sT3}, 0\n'
    su_a += f's_mul_i32 {sT3}, {sT3}, {sT2}\ns_sub_u32 {sT2}, {sT2}, {sT3}\nv_add_u32 {vA0}, {sT3}, {vL16}\nv_add_u32 {vA1}, {sT2}, {vL16}'
    FR, TR = V(222, 8), V(230, 4)
    mg = int(opt.get('margin', MARGIN))
    ra = f'L2_ra:\ns_mov_b32 {sRCF}, 1\ns_nop 7\n'
    for b in range(4): ra += f'v_add_f32 {TR.sub(b)}, {LS.sub(4*b)}, {LS.sub(4*b+1)}\n'
    for b in range(4): ra += f'v_frexp_exp_i32_f32 {TR.sub(b)}, {TR.sub(b)}\n'
    for b in range(4): ra += f'v_sub_u32 {TR.sub(b)}, {1 - mg}, {TR.sub(b)}\n'
    for b in range(4): ra += f'v_ldexp_f32 {FR.sub(2*b)}, 1.0, {TR.sub(b)}\nv_cvt_f32_i32 {TR.sub(b)}, {TR.sub(b)}\n'
    for b in range(4):
        for i in range(4): ra += f'v_add_f32 {NEGM.sub(4*b+i)}, {NEGM.sub(4*b+i)}, {TR.sub(b)}\n'
    rb = f'L2_rb:\ns_mov_b32 {sRCF}, 0\nv_mov_b32 {TR.sub(1)}, 0x7f800000\ns_nop 7\n'
    for b in range(4):
        rb += f'v_add_f32 {TR.sub(0)}, {LS.sub(4*b)}, {LS.sub(4*b+1)}\nv_cmp_ge_f32 vcc, 0x47800000, {TR.sub(0)}\ns_nop 1\nv_cndmask_b32 {FR.sub(2*b)}, {TR.sub(1)}, {FR.sub(2*b)}, vcc\n'
        rb += f'v_pk_mul_f32 {LS.sub(4*b,2)}, {LS.sub(4*b,2)}, {FR.sub(2*b,2)} op_sel_hi:[1,0]\n'
    for k in range(32):
        for i in range(4): rb += f'v_accvgpr_read_b32 {TR.sub(i)}, {O.sub(4*k+i)}\n'
        for h in (0, 2): rb += f'v_pk_mul_f32 {TR.sub(h,2)}, {TR.sub(h,2)}, {FR.sub(2*(k & 3),2)} op_sel_hi:[1,0]\n'
        for i in range(4): rb += f'v_accvgpr_write_b32 {O.sub(4*k+i)}, {TR.sub(i)}\n'
    if RC: far += [ra + 's_branch L2_ra_r', rb + 's_branch L2_rb_r']
    marks = []
    for j in range(-1, 31):
        if 0 <= j <= 28 and j % 4 == 0: marks.append(st.mark())
        if j == 28: st.push(parse(su_a) + (parse(su_s) if g4.pre2 else []))
        if j == 30: st.push(flat(g4.window(0)[4:]) + (flat(g4.window(1)[4:8]) if g4.pre2 else parse(su_s)))
        if j < 0 and FT: first_tile(st, opt, pre)
        else: att_iter(st, j, g4, opt)
        assert not st.q
        if RC and 0 <= j < 28 and j % 4 == PA: a(f's_bitcmp1_b32 {sRCM}, {sCNT}\ns_cbranch_scc1 L2_ra\nL2_ra_r:')
        if RC and 0 <= j < 28 and j % 4 == (PA + 1) % 4: a(f's_cmp_lg_u32 {sRCF}, 0\ns_cbranch_scc1 L2_rb\nL2_rb_r:')
        if 0 <= j < 28 and j % 4 == 3: st.ops(publish(usig.split('\n'), 'wg'))
    st.fold(marks, 'L2_loop', sCNT)
    w1_ = flat(g4.window(1)[4:])
    if g4.pre2: w1_ = w1_[4:] + flat(g4.window(2)[2:10])
    st.push([10] + w1_[:5])
    st.push([valu(f'v_add_f32 {LS.sub(4*b)}, {LS.sub(4*b)}, {LS.sub(4*b+1)}') for b in range(4)])
    st.push(parse(f'v_add_f32 v{t+2}, {LS.sub(0)}, {LS.sub(4)}\nv_add_f32 v{t+3}, {LS.sub(8)}, {LS.sub(12)}\nv_add_f32 v{t+2}, v{t+2}, v{t+3}\nv_cmp_nge_f32 vcc, 0x47800000, v{t+2}'))
    st.push([valu(f'v_rcp_f32 {LS.sub(4*b)}, {LS.sub(4*b)}') for b in range(2)])
    st.push([[salu('s_cbranch_vccnz L2_bad'), salu('L2_bad_r:')], barrier(['N0']), Op(f'ds_read_b32 v{t}, v{t+1}', 'ds', wr=V(t).set())])
    st.push([valu(f'v_rcp_f32 {LS.sub(4*b)}, {LS.sub(4*b)}') for b in range(2, 4)])
    st.push(w1_[5:])
    st.push([valu(f'v_readfirstlane_b32 {sT}, v{t}', rd=[V(t)])])
    st.push([valu(f'v_mov_b32 {LS.sub(4*b+1)}, {LS.sub(4*b)}') for b in range(4)])
    st.push([[salu(f's_cmp_gt_u32 {sT}, {sMODE}'), salu('s_cbranch_scc1 L2_redo')]])
    st.push(parse(f's_add_u32 {sT}, {sO}, 4096\ns_add_u32 {sT2}, {sO}, {128*2048}\ns_add_u32 {sT3}, {sT2}, 4096'))
    st.push(parse(f's_lshr_b32 {sFW}, {sST}, 1\ns_lshl_b32 {sFW}, {sFW}, 8\ns_add_u32 {sFW}, {sFW}, {FL}'))
    def ini(e):
        x = QACC.sub(16 * e, 16)
        o = [valu(f'v_lshlrev_b32 {x.sub(i)}, 16, {BIAS.sub(e)}', rd=[BIAS.sub(e)]) for i in range(2)]
        return o + [valu(f'v_mov_b64 {x.sub(2*i,2)}, {x.sub(0,2) if i < 4 else 0}') for i in range(1, 8)]
    rd = g4.reads(0) + g4.reads(1)
    early_ = ini(0) + ini(1) + ini(7)
    for r in rd: st.push([r, early_.pop(0)])
    st.push(early_)
    att_iter(st, 31, g4, opt)
    st.flush()
    sp.stamp(st)
    kk = [0]
    def onorm(x, tt, b):
        for jj in range(2):
            for i in range(4): a(f'v_accvgpr_read_b32 {x.sub(4*jj+i)}, {O.sub(((2*tt+jj)*4+b)*4+i)}')
        for i in range(4): a(f'v_pk_mul_f32 {x.sub(2*i,2)}, {x.sub(2*i,2)}, {LS.sub(4*b,2)}')
        kk[0] += 1
        return Q.sub(32 + 4 * (kk[0] & 7), 4)
    act_store(st, 4, 4, onorm, [[sO, sT], [sT2, sT3]], NEGM)
    for e in range(2, 7): st.ops(ini(e))
    sp.stamp(st)
    a(f's_cmp_lg_u32 {sROLE}, 0\ns_cbranch_scc1 L2_Y')
    sy = st.fork(); spn = sp.n
    def hooks(g, name, events, sig=None, sigpos=2, code=False):
        pos = {c % 4 for c in events}; assert len(pos) == 1; pos = pos.pop()
        nf = g.nst // 4 - 1
        inl = {c: x for c, x in events.items() if g.folded(c)}
        out = [c for c in events if not g.folded(c)]
        txt = f'{name}:\n'
        for c, x in inl.items(): txt += f's_cmp_lg_u32 {sCNT}, {g.trip(c) - nf}\ns_cbranch_scc1 {name}_{c}\n{x}\n{name}_{c}:\n'
        if inl: far.append(txt + f's_branch {name}_r')
        mask = sum(1 << ((g.trip(c) - nf) & 31) for c in inl)
        def f(s, e):
            fold = g.folded(s)
            want = lambda d: ((s + d) % 4 == pos and (inl or any(g.folded(c - d) for c in out))) if fold else (s + d) in events
            if fold and sig and g.skew and (s % 4, e) == (1, 7):
                return {6: publish(sig.split('\n'), 'wg'), 3: [valu(f'v_readfirstlane_b32 {sT}, {vFL}', rd=[vFL])] if want(1) else []}
            if g.NA == 4 and e == 0 and want(1): return {3: [flag_load(sFW)]}
            if g.NA == 2 and e == 0 and want(2): return {3: [flag_load(sFW)]}
            if e == 7 and want(1): return {3: [valu(f'v_readfirstlane_b32 {sT}, {vFL}', rd=[vFL])]}
            if e == 0 and fold and inl and s % 4 == pos: return {3: [salu(f's_bitcmp1_b32 {mask}, {sCNT}'), salu(f's_cbranch_scc1 {name}'), salu(f'{name}_r:')]}
            if e == 0 and s in out:
                far.append(f'{name}o:\n{events[s]}\ns_branch {name}o_r')
                return {3: [salu(f's_branch {name}o'), salu(f'{name}o_r:')]}
            if fold and sig and not g.skew and (s % 4, e) == sigpos: return {(1 if g.NA == 4 else 3): publish(sig.split('\n'), 'wg')}
            if e == 2 and fold and code and s % 4 == 0 and opt.get('rpf', 1): return {3: [pfcode()]}
            return {}
        return f
    def need(name, target): return f's_cmp_ge_u32 {sT}, {target}\ns_cbranch_scc1 {name}_k\n{spin(name, sFW, target)}\n{name}_k:'
    def pack_store(x, y, so, off, zero=False):
        o = [valu(f'v_cvt_pk_bf16_f32 {x.sub(h)}, {(x, y)[h >> 1].sub(2*(h & 1))}, {(x, y)[h >> 1].sub(2*(h & 1)+1)}') for h in range(4)]
        o.append(vstore(f'buffer_store_dwordx4 {x}, {vL16}, {sWS}, {so} offen offset:{off} sc1'))
        if zero: o += [valu(f'v_mov_b64 {r.sub(h,2)}, 0') for r in (y, x) for h in (0, 2)]
        return o

    opre, opos = (f's_waitcnt vmcnt({10 + opt.get("rpf", 1)})\n', (0, opt.get('pe', 6))) if PW else ('', (1, 6))
    a(f's_mov_b32 {sSIG}, -6' if PW else f's_cmp_eq_u32 {sWAVE}, 0\ns_cselect_b32 {sSIG}, -6, 0')
    h4 = hooks(g4, 'L2_h4', {25: need('L2_c0', 16 * OM)}, sig_end('L2_so', sFO, opre), opos, True)
    g4.loop(st, 'L2_y', sCNT, extra=h4)
    n3 = g3s.nst
    l2e = f2h(-math.log2(math.e))
    su4 = f"""s_mov_b32 s58, {l2e}
s_mov_b32 s59, {l2e}
s_xor_b32 {sT3}, {sG}, 4
s_lshl_b32 {sP0}, {sT3}, 13
s_add_u32 {sP0}, {sP0}, {YB}
s_add_u32 {sP1}, {sP0}, 4096
s_lshl_b32 {sT3}, {sT3}, 7
s_add_u32 {sFO}, {sT3}, {FL + 16384 + 64}
s_lshl_b32 {sT3}, {sG}, 7
s_add_u32 {sFG}, {sT3}, {FL + 16384}
s_add_u32 {sFU}, {sFW}, {3 * 2048}
s_add_u32 {sFW}, {sFG}, 64
s_mov_b32 {sSIG}, {1 - n3 // 4}
s_lshl_b32 {sT3}, {sWAVE}, 14
s_lshl_b32 {sT4}, {sWAVE}, 11
v_and_b32 v{t+1}, 63, v0
v_lshlrev_b32 v{t+1}, 4, v{t+1}
v_add_u32 v{t}, {sT4}, v{t+1}
v_add_u32 v{t+1}, {sT3}, v{t+1}
v_bfe_u32 v{t+2}, v0, 4, 2
v_and_b32 v{t+3}, 15, v0
v_lshlrev_b32 v{t+2}, 2, v{t+2}
v_sub_u32 v{t+2}, v{t+3}, v{t+2}
v_and_b32 v{t+3}, 1, v0
v_lshlrev_b32 v{t+3}, 4, v{t+3}
v_mov_b32 {SEL.sub(0)}, 0x3f80
v_lshlrev_b32 v{t+3}, v{t+3}, {SEL.sub(0)}
v_lshrrev_b32 v{t+2}, 1, v{t+2}
v_cmp_eq_u32 vcc, 0, v{t+2}
v_mov_b32 {SEL.sub(0)}, 0
v_mov_b32 {SEL.sub(1)}, 0
v_cndmask_b32 {SEL.sub(2)}, 0, v{t+3}, vcc
v_cmp_eq_u32 vcc, 1, v{t+2}
v_mov_b32 {SEL.sub(4)}, 0
v_mov_b32 {SEL.sub(5)}, 0
v_cndmask_b32 {SEL.sub(3)}, 0, v{t+3}, vcc"""
    HP = opt.get('hp', 0)
    vHP = V(16)
    if HP:
        su4 += f"""
s_and_b32 {sT3}, {sST}, 3
s_lshl_b32 {sT3}, {sT3}, 1
s_bfe_u32 {sT4}, {sDT}, 0x10001
s_add_u32 {sT3}, {sT3}, {sT4}
s_lshl_b32 {sT3}, {sT3}, 2
s_add_u32 {sT3}, {sT3}, {sWAVE}
s_lshl_b32 {sT3}, {sT3}, 14
s_lshl_b32 {sT4}, {sT4}, 9
s_sub_u32 {sT3}, {sT3}, {sT4}
s_add_u32 {sT4}, {sST}, {sDT}
s_and_b32 {sT4}, {sT4}, {opt.get('rot', 1)}
s_lshl_b32 {sT4}, {sT4}, 17
s_sub_u32 {sT3}, {sT3}, {sT4}
s_add_u32 {sT3}, {sT3}, {opt.get('hd', 4) * 131072 + 256 + (128 if HP == 1 else 0)}
s_bitcmp1_b32 {sDT}, 0
s_cselect_b32 {sT3}, 0x20000000, {sT3}
v_bfe_u32 {vHP}, v0, 3, 3
v_lshlrev_b32 {vHP}, 11, {vHP}
v_bfe_u32 v{t+2}, v0, 2, {HP - 1}
v_lshl_add_u32 {vHP}, v{t+2}, 7, {vHP}
v_add_u32 {vHP}, {sT3}, {vHP}"""
    ysend = lambda e: pack_store(accq(e, 2), accq(e, 3), [sP0, sP1][e >> 2], 1024 * (e & 3), True)
    def g4x(s, e):
        if s == 25 and e == 1: st.push(parse(su4))
        if s == 27 and e == 2: assert not st.q
        if SK: k = {(27, 3): 4, (27, 5): 5, (27, 7): 6, (28, 1): 7, (28, 2): 0, (28, 3): 1}.get((s, e))
        else: k = e - 2 if (s == 27 and e >= 2) else None
        if k is not None: st.push(ysend(k))
        return h4(s, e)
    pre3 = g3s.window(0) + g3s.window(1) + g3s.window(2) + g3s.window(3)[:2]
    if g3s.uni: pre3 = g3s.window(0) + g3s.window(1) + g3s.window(2)[4:] + g3s.window(2)[:3]
    g4.last(st, lambda i: pre3[12 * i:12 * i + 12], g4x, chain=g3s)
    st.ops(g3s.reads(2))
    st.flush()
    sp.stamp(st)
    st.ops(ysend(2) + ysend(3) if SK else ysend(6) + ysend(7))
    sp.stamp(st)
    YR, PR = A(96, 32), A(128, 64)
    ev1 = need('L2_cy', 1) + f'\ns_lshl_b32 {sP0}, {sG}, 13\ns_add_u32 {sP0}, {sP0}, {YB}\ns_add_u32 {sP1}, {sP0}, 4096\ns_mov_b32 {sFW}, {sFU}\n'
    ev1 += '\n'.join(f'buffer_load_dwordx4 {YR.sub(4*e,4)}, {vL16}, {sWS}, {[sP0, sP1][e >> 2]} offen offset:{1024*(e & 3)} sc1' for e in range(8))
    ev2 = [mfma(accq(e, b), SEL.sub(2 - 2 * b, 4), YR.sub(4 * e, 4), accq(e, b)).text for e in range(8) for b in range(2)]
    for e in range(8):
        x = BIAS.sub((e & 1) * 8, 8); y = QACC.sub(16 * e, 8)
        ev2 += [f'v_pk_mul_f32 {x.sub(2*i,2)}, {y.sub(2*i,2)}, {sC}' for i in range(4)]
        ev2 += [f'v_exp_f32 {x.sub(i)}, {x.sub(i)}' for i in range(8)]
        ev2 += [f'v_pk_add_f32 {x.sub(2*i,2)}, {x.sub(2*i,2)}, 1.0 op_sel_hi:[1,0]' for i in range(4)]
        ev2 += [f'v_rcp_f32 {x.sub(i)}, {x.sub(i)}' for i in range(8)]
        ev2 += [f'v_pk_mul_f32 {y.sub(2*i,2)}, {x.sub(2*i,2)}, {y.sub(2*i,2)}' for i in range(4)]
        if e in (0, 4): ev2.append('s_waitcnt lgkmcnt(0)')
        ev2 += [f'ds_write_b128 v{t}, {y.sub(4*b,4)} offset:{8192*e + 1024*b}' for b in range(2)]
    ev2 = '\n'.join(ev2) + '\ns_waitcnt lgkmcnt(0)'
    c2 = 2 * (16 - 2 * A1) - 3
    ev = {9: ev1, 13: ev2}
    LT = opt.get('late', 0); tg2 = (16 - 2 * Y1) * OM
    if LT:
        ev[c2] = (ev[c2] + '\n' if c2 in ev else '') + f's_cmp_lt_u32 {sT}, {tg2}\ns_cselect_b32 {sRDY}, {(c2 + 3) // 4 - n3 // 4}, 0\ns_cselect_b32 {sT}, 0x40000000, 0\ns_mov_b32 {sP0}, {sA3}\ns_add_u32 {sA3}, {sA3}, {sT}'
        rl = '\n'.join(o.text for k in range(3) for o in flat(g3s.window(c2 + 3 + k)[4:]))
        far.append(f'L2_lt:\n{spin("L2_lt1", sFW, tg2, nap=1)}\ns_mov_b32 {sA3}, {sP0}\n{rl}\ns_waitcnt vmcnt(0)\ns_branch L2_lt_r')
        a(f's_mov_b32 {sRDY}, 0')
    else: ev[c2] = (ev[c2] + '\n' if c2 in ev else '') + need('L2_c2', tg2)
    assert c2 >= 13 and c2 < n3 - 4
    h3 = hooks(g3s, 'L2_h3', ev, sig_end('L2_sy1', sFO), (3, 1))
    g3s.loop(st, 'L2_s', sCNT, extra=lambda s, e: {3: [vload(f'buffer_load_dword {vDUM}, {vHP}, {sWO}, {sW3} offen')]} if (HP and s % 4 == 0 and e == 3) else h3(s, e),
             trip_end=(lambda s_: s_.raw(f's_cmp_eq_u32 {sCNT}, {sRDY}\ns_cbranch_scc1 L2_lt\nL2_lt_r:')) if LT else None)
    GFb = lambda k: accq(k >> 1, k & 1)
    pl = lambda so: [vload(f'buffer_load_dwordx4 {PR.sub(4*n,4)}, {vL16}, {sWS}, {so[n >> 2]} offen offset:{1024*(n & 3)} sc1', PR.sub(4 * n, 4)) for n in range(16)]
    PS = [sP0, sP1, sT4, sFU]
    pset = f's_add_u32 {sP1}, {sP0}, 4096\ns_add_u32 {sT4}, {sP0}, 8192\ns_add_u32 {sFU}, {sP0}, 12288'
    XT = 131072
    vXo, vXe = vWq, vWa
    su_x = f'v_bfe_u32 v{t+2}, v0, 4, 2\nv_and_b32 v{t+3}, 15, v0\nv_xor_b32 {vXo.sub(0)}, v{t+2}, v{t+3}\nv_lshlrev_b32 {vXo.sub(0)}, 4, {vXo.sub(0)}\nv_lshl_add_u32 {vXo.sub(0)}, v{t+2}, 11, {vXo.sub(0)}\n'
    for k in range(1, 4): su_x += f'v_xor_b32 {vXo.sub(k)}, {64*k}, {vXo.sub(0)}\nv_add_u32 {vXo.sub(k)}, {k*(8192-1024)}, {vXo.sub(k)}\n'
    su_x += f's_lshl_b32 {sT3}, {sWAVE}, 13\ns_add_u32 {sT3}, {sT3}, {XT}\ns_lshl_b32 {sG}, {sG}, 14\ns_add_u32 {sG}, {sG}, {GB}'
    su_e = f'v_lshrrev_b32 v{t}, 1, v{t+2}\nv_xor_b32 v{t}, v{t}, v{t+3}\nv_lshlrev_b32 v{t}, 4, v{t}\nv_lshl_add_u32 v{t}, v{t+3}, 8, v{t}\nv_and_b32 {vX}, 1, v{t+2}\nv_lshl_add_u32 v{t}, {vX}, 3, v{t}\nv_add_u32 {vXe.sub(0)}, {sT3}, v{t}\n'
    for k in range(1, 8): su_e += f'v_xor_b32 {vXe.sub(k)}, {32*k}, {vXe.sub(0)}\n'
    su_e += f'v_and_b32 {vX}, 63, v0\nv_lshl_add_u32 {vX}, {vX}, 4, {sT3}'
    a(su_x)
    def xwin(i_):
        if i_: return []
        r_ = xw()
        return r_[4:] + r_[:4] if g3s.uni else r_
    def xw():
        return [([salu(f's_add_u32 m0, {sT3}, {4096 * (n >> 2)}')] if n % 4 == 0 else [],
                 vload(f'buffer_load_dwordx4 {vXo.sub(n & 3)}, {sX}, {[sR0, sR1][n >> 2]} offen offset:{1024*(n & 3)} lds', tag=f'x{n}'), []) for n in range(8)]
    FE = opt.get('fe', 8)
    def s3x(s, e):
        if s == n3 - 4 and e == 0:
            v_ = parse(su_e)
            for k in range(16): st.push([ds_128(GFb(k), V(t + 1), 8192 * (k & 1) + 1024 * (k >> 1)), v_.pop(0)])
            un = v_
            for k in range(16):
                b, e_ = k >> 3, k & 7
                x = XF.sub((e_ * 2 + b) * 4, 4)
                st.push([Op(f'ds_read_b64 {x.sub(2,2)}, {vXe.sub(e_)} offset:{4096*b}', 'ds', wr=x.sub(2, 2).set(), waittags=[f'x{4*b+3}'])])
                if k >= 4: st.push([un.pop(0)])
                un += [valu(f'v_lshlrev_b32 {x.sub(0)}, 16, {x.sub(2)}', rd=[x]), valu(f'v_and_b32 {x.sub(1)}, 0xffff0000, {x.sub(2)}'),
                       valu(f'v_lshlrev_b32 {x.sub(2)}, 16, {x.sub(3)}'), valu(f'v_and_b32 {x.sub(3)}, 0xffff0000, {x.sub(3)}')]
            st.push(un)
        if 8 * (s - n3 + 4) + e == FE: return {3: [flag_load(sFG)]}
        if 8 * (s - n3 + 3) + e == FE:
            old = st.q; st.q = []
            st.push([valu(f'v_readfirstlane_b32 {sRDY}, {vFL}', rd=[vFL]), 1])
            st.push(parse(f's_cmp_ge_u32 {sRDY}, 2\ns_cselect_b32 {sP0}, {sG}, 0x40000000\n' + pset))
            st.push(pl(PS))
            st.q += old
        return {}
    g3s.last(st, xwin, s3x)
    sp.stamp(st)
    far.append(f'L2_wg:\n{spin("L2_wg1", sFG, 2, nap=0)}\ns_mov_b32 {sP0}, {sG}\n{pset}\n' + '\n'.join(o.text for o in pl(PS)) + '\ns_branch L2_wg_r')
    KP = opt.get('keep', 32)
    keep = st.q[-KP:]; st.q = st.q[:-KP]
    assert all(g[0].kind == 'valu' for g in keep)
    st.flush(); st.q = keep
    assert st.pend[('a', 128)][1] == st.issued['vm'] - 15 and st.done['vm'] < st.issued['vm'] - 15
    a(f's_cmp_lt_u32 {sRDY}, 2\ns_cbranch_scc1 L2_wg\nL2_wg_r:')
    sp.stamp(st)
    mf = [mfma(acc3(e, b), SEL.sub(2 - 2 * (e & 1), 4), PR.sub((j * 8 + b * 4 + (e >> 1)) * 4, 4), acc3(e, b)) for j in range(2) for b in range(2) for e in range(8)]
    st.gaps(mf, [[] for _ in mf])
    st.flush()
    OD = lambda n: accq(n, 0)
    ost = lambda n: st.op(vstore(f'buffer_store_dwordx4 {OD(n)}, {vXo.sub(n & 3)}, {sOUT}, {[sR0, sR1][n >> 2]} offen offset:{1024*(n & 3)}' + opt.get('osuf', ''), rd=[OD(n)]))
    for b in range(2):
        for e in range(8):
            k = (e * 2 + b) * 4
            for h in (0, 2): st.op(valu(f'v_pk_fma_f32 {XF.sub(k+h,2)}, {acc3(e, b).sub(h,2)}, {accq(e, b).sub(h,2)}, {XF.sub(k+h,2)}', rd=[accq(e, b)]))
            for h in (0, 2): a(f'v_cvt_pk_bf16_f32 {XF.sub(k + h // 2)}, {XF.sub(k+h)}, {XF.sub(k+h+1)}')
            st.op(Op(f'ds_write_b64 {vXe.sub(e)}, {XF.sub(k,2)} offset:{4096*b}', 'ds'))
            if b == 1 and e >= 4: ost(e - 4)
        for n in range(4 * b, 4 * b + 4): st.op(ds_128(OD(n), vX, 1024 * n))
    for n in range(4, 8): ost(n)
    if sp.on: a('s_waitcnt vmcnt(0)')
    sp.stamp(st)
    sp.flush(st, sWS, t)
    a('L2_end:\ns_endpgm')

    a = sy.raw; sp.n = spn
    a('L2_Y:')
    assert (2 * A1 - 3) % 4 != 0
    a(f"""s_cmp_eq_u32 {sWAVE}, {sWAVE if PW else 0}
s_cselect_b32 {sSIG}, {1 - NY // 4}, 0
s_and_b32 {sT3}, {sST}, 1
s_lshl_b32 {sT4}, {sT3}, 11
s_add_u32 {sFW}, {sFW}, {sT4}
s_add_u32 {sFW}, {sFW}, 2048
s_andn2_b32 {sG}, {sG}, 32
s_lshl_b32 {sFG}, {sG}, 7
s_add_u32 {sFG}, {sFG}, {FL + 16384}
s_lshl_b32 {sG}, {sG}, 14
s_lshl_b32 {sT3}, {sT3}, 13
s_add_u32 {sG}, {sG}, {sT3}
s_add_u32 {sG}, {sG}, {GB}
s_add_u32 {sP0}, {sG}, 4096
s_add_u32 {sR0}, {sG}, {32 << 14}
s_add_u32 {sR1}, {sR0}, 4096""")
    hy = hooks(g3y, 'L2_hy', {2 * A1 - 2: need('L2_c1', Y1 * OM)}, sig_end('L2_yo', sFO, opre), opos, True)
    g3y.loop(sy, 'L2_sy', sCNT, extra=hy)
    def pstore(p):
        o = []
        for b in range(4): o += pack_store(accq(2 * p, b), accq(2 * p + 1, b), [sG, sP0, sR0, sR1][b], 1024 * p)
        return o
    def yx(s, e):
        if SK: k = {(NY - 1, 5): 2, (NY, 1): 3, (NY, 3): 0}.get((s, e))
        else: k = e // 2 - 1 if (s == NY - 1 and e in (3, 5, 7)) else None
        if k is not None: sy.push(pstore(k))
        return hy(s, e)
    g3y.last(sy, None, yx)
    sy.flush()
    sp.stamp(sy); sp.stamp(sy); sp.stamp(sy)
    sy.ops(pstore(1 if SK else 3))
    a(f'v_and_b32 v{t}, 1, v0\nv_lshlrev_b32 v{t}, 12, v{t}\ns_waitcnt vmcnt(0)')
    sp.stamp(sy)
    a(f's_mov_b64 exec, 3\nbuffer_atomic_add {vONE}, v{t}, {sWS}, {sFG} offen sc1\ns_mov_b64 exec, -1\ns_waitcnt vmcnt(0)')
    sp.stamp(sy)
    sp.flush(sy, sWS, t)
    a('s_endpgm')

    a = sg.raw; sp.n = spg
    a('L2_G:')
    qm = q_last_extra(sg, V(10, 8), 'L2_wb')
    def gx(s, e):
        if s == 12 + SK and e == 0:
            sg.push(parse(su_g2))
        ux = lambda r: [valu(f'v_xor_b32 {vWa.sub(k)}, {sROT}, {vWa.sub(k)}') for k in r]
        if not SK and s == 15 and e in (2, 6): sg.push(ux(range(2) if e == 2 else range(2, 8)))
        if SK and (s, e) == (16, 0): return {3: ux(range(2))}
        if SK and (s, e) == (16, 2): sg.push(ux(range(2, 8)))
        if s == 13 and e == (7 if SK else 4): assert len(sg.q) <= 2 * SK, len(sg.q)
        if s == 13 and e == 6 + SK:
            sg.push([vload(f'buffer_load_dwordx2 {BIAS.sub(2*n,2)}, {vFL}, {sBB}, {sB if n < 6 else sBN} offen offset:{32*n}', BIAS.sub(2 * n, 2)) for n in range(GW)])
        return qm(s, e)
    gq.last(sg, g2.window, gx, chain=g2)
    sg.flush()
    sp.stamp(sg)
    q_epilogue(sg, V(10, 8), GW)
    a(f'v_lshrrev_b32 {vCO}, 2, {vPF}\nv_min_u32 {vCO}, 0x2b0, {vCO}')
    sp.stamp(sg)
    g2.loop(sg, 'L2_g', sCNT, extra=lambda s, e: {1: [pfcode()]} if (opt.get('rpf', 1) and s % 4 == 2 and e == 5) else {})
    k0 = 2.0 * math.sqrt(2.0 / math.pi) * math.log2(math.e)
    last_before_att(g2, sg, f's_mov_b32 s10, 0\ns_mov_b32 s58, {f2h(-k0*0.044715)}\ns_mov_b32 s59, {f2h(-k0*0.044715)}')
    sp.stamp(sg)
    C1 = V(t + 2, 2)
    a(f'v_mov_b32 {C1.sub(0)}, {f2h(-k0)}\nv_mov_b32 {C1.sub(1)}, {f2h(-k0)}')
    a(f's_add_u32 {sT}, {sU}, 4096\ns_add_u32 {sT2}, {sU}, {112*2048}\ns_add_u32 {sT3}, {sT2}, 4096')
    def gelu(x, tt, b):
        u = [(accq(2 * tt + (i >> 1), b) if tt < GW // 2 else accq(6, b + (i >> 1))).sub(2 * (i & 1), 2) for i in range(4)]
        for i in range(4): a(f'v_pk_mul_f32 {x.sub(2*i,2)}, {u[i]}, {u[i]}')
        for i in range(4): a(f'v_pk_fma_f32 {x.sub(2*i,2)}, {x.sub(2*i,2)}, {sC}, {C1}')
        for i in range(4): a(f'v_pk_mul_f32 {x.sub(2*i,2)}, {x.sub(2*i,2)}, {u[i]}')
        for i in range(8): a(f'v_exp_f32 {x.sub(i)}, {x.sub(i)}')
        for i in range(4): a(f'v_pk_add_f32 {x.sub(2*i,2)}, {x.sub(2*i,2)}, 1.0 op_sel_hi:[1,0]')
        for i in range(8): a(f'v_rcp_f32 {x.sub(i)}, {x.sub(i)}')
        for i in range(4): a(f'v_pk_mul_f32 {x.sub(2*i,2)}, {x.sub(2*i,2)}, {u[i]}')
        return accq(2 * tt, b)
    act_store(sg, 4, GW // 2, gelu, [[sU, sT], [sT2, sT3]], BIAS)
    a(f's_add_u32 {sT}, {sU}, {sGA}\ns_add_u32 {sT2}, {sT2}, {sGA}')
    for b in ((0, 2) if GW == 7 else ()):
        x = BIAS.sub(4 * b, 8); d = gelu(x, 3, b)
        for i in range(4): a(f'v_cvt_pk_bf16_f32 {d.sub(i)}, {x.sub(2*i)}, {x.sub(2*i+1)}')
        for h in range(2): sg.op(vstore(f'buffer_store_dwordx2 {d.sub(2*h,2)}, {vL16}, {sWS}, {[sT, sT2][b >> 1]} offen offset:{1024*h} sc1'))
    a(f'v_lshrrev_b32 {vCO}, 2, {vPF}\nv_min_u32 {vCO}, 0x2b0, {vCO}')
    jn = Op('s_branch L2_join', 's', waittags=['K0', 'K1', 'K2', 'V0', 'V1']); jn.lg0 = True
    sg.op(jn)
    for x in far: a(x)

    a('L2_redo:')
    if opt.get('cntredo'): a(f's_mov_b32 {sT}, {56 << 20}\n' + signal(sT))
    a(f's_mov_b32 {sMODE}, 1\ns_mov_b32 {sRCM}, 0\ns_mov_b32 {sK}, {sKV0}\ns_mov_b32 {sCNT}, -32')
    for b in range(4): a(f'v_mov_b32 {M.sub(b)}, 0xff800000')
    a('L2_mx:\ns_waitcnt vmcnt(0) lgkmcnt(0)\ns_barrier')
    for pre, v, post in kdma(0):
        for o in pre: a(o.text + '\ns_nop 0')
        a(v.text)
        for o in post: a(o.text)
    a('s_waitcnt vmcnt(0)\ns_barrier')
    for c in range(4):
        for tt in range(4): a(kread(0, c, tt).text)
        a('s_waitcnt lgkmcnt(0)')
        for b in range(4):
            for tt in range(4): a(mfma(P.sub(4 * b, 4), Kf(c, tt), Qf(b, tt), P.sub(4 * b, 4) if tt else 0).text)
        a('s_nop 7')
        for b in range(4):
            x = P.sub(4 * b, 4)
            a(f'v_max3_f32 {M.sub(b)}, {M.sub(b)}, {x.sub(0)}, {x.sub(1)}\nv_max3_f32 {M.sub(b)}, {M.sub(b)}, {x.sub(2)}, {x.sub(3)}')
    a(f's_add_u32 {sCNT}, {sCNT}, 1\ns_cbranch_scc0 L2_mx')
    negm_finish(a, M, 0.0)
    a(f's_mov_b32 {sK}, {sKV0}\ns_mov_b32 {sV}, {sKV0}\ns_barrier')
    for pre, v, post in pre_kv:
        for o in pre: a(o.text + '\ns_nop 0')
        a(v.text)
        for o in post: a(o.text)
    a('s_waitcnt vmcnt(0)\ns_barrier')
    for tt in range(4): a(kread(0, 0, tt).text)
    a(kread(0, 1, 0).text)
    a('s_waitcnt lgkmcnt(0)\ns_branch L2_att')
    return st.lines() + sy.lines() + sg.lines(), kd(KNAME, 512, 256, 102), '; @launch ' + (f'kernel={KNAME} ' if opt.get('aslist') or 'probe' in opt else '') + 'grid=(256,1,1) block=(256,1,1) lds=163840'
```

```python
import sys, json
from fw import *
HEADER = """
"""
def build(opt):
    parts = []
    import k2; parts.append(k2.gen_k2(opt))
    if 'probe' in opt:
        import probe; parts.append(probe.gen_probe(opt))
    out = [p[2] for p in parts]
    out.append(HEADER.strip())
    out.append('.amdgcn_target "amdgcn-amd-amdhsa--gfx950"\n.text')
    for p in parts:
        name = p[0][0][:-1]
        if opt.get('dsuf'): p[0][:] = [l[:-4] + opt['dsuf'] + ' lds' if l.endswith(' lds') else l for l in p[0]]
        if 'asuf' in opt: p[0][:] = [l[:-4] + opt['asuf'] if (l.startswith('buffer_load_dwordx4 a') and l.endswith(' sc1')) else l for l in p[0]]
        if opt.get('perm'):
            on = False; o = []
            for l in p[0]:
                if l == 'L2_att:': on = True; o.append(l); l = 's_mov_b32 s99, 0x07060302'
                if l == 'L2_bad_r:': on = False
                w = l.split()
                if on and w[0] == 'v_cvt_pk_bf16_f32': l = f'v_perm_b32 {w[1]} {w[3]}, {w[2]} s99'
                o.append(l)
            p[0][:] = o
        if opt.get('nobar'):
            inl = None; o = []
            for l in p[0]:
                if l[:-1] in opt['nobar'] and l.endswith(':'): inl = l[:-1]
                if inl and l == 's_cbranch_scc0 ' + inl: inl = None
                o.append('s_nop 0' if (inl and l == 's_barrier') else l)
            p[0][:] = o
        if opt.get('align', 1): p[0][:] = align_runs(p[0])
        errs = hazards(p[0])
        for e in errs: print('HAZARD', name, e, file=sys.stderr)
        out.append(f'.globl {name}\n.p2align 8\n.type {name},@function')
        out += p[0]
    out.append('.section .rodata,"a"')
    for p in parts: out.append('.p2align 6\n' + p[1])
    return '\n'.join(out) + '\n'
if __name__ == '__main__':
    opt = json.loads(sys.argv[2]) if len(sys.argv) > 2 else {}
    open(sys.argv[1], 'w').write(build(opt))
```

```python
from fw import *
from gemm import *
STAT, HF, UF, OF, GB, FL, YB = 0, 4 << 20, 8 << 20, 16 << 20, 32 << 20, 40 << 20, 44 << 20
WS_SIZE = 128 << 20
SHADOW = (64 << 20) + 128
LSTR = 2112
KNAME = 'recurrent_scan__mha_block_cached__mixer_token_mlp__prompt_kernel'
import math, struct
def f2h(x): return '0x%08x' % struct.unpack('<I', struct.pack('<f', x))[0]

KBASE, VBASE, QRING, FLAG = 0, 65536, 98304, 131072
MARGIN = 102.0
sWS, sWQ, sKC, sVC, sW1, sWN, sWO, sBB = ['s[%d:%d]' % (i, i + 3) for i in range(4, 36, 4)]
sOUT = sW1
sWAVE, sLDS, sCNT, sQW, sQA, sK, sV, sGW, sGA, sO, sU, sPF, sMODE, sROT = ['s%d' % i for i in range(36, 50)]
sKV0, sGW0, sGA0, sPF0, sT, sT2 = ['s%d' % i for i in range(50, 56)]
sB = sGW
sC = 's[58:59]'
sSLOT, sIDX, sHEAD, sQ64, sST, sDT, sT3, sT4 = ['s%d' % i for i in range(60, 68)]
sX = 's[68:71]'
sQI, sQJ, sGI, sGJ = ['s72', 's73'], ['s74', 's75'], ['s76', 's77'], ['s78', 's79']
sNI, sNJ, sSI, sSJ = sQI, sQJ, sGI, sGJ
sW3, sA3, sSIG, sFO, sFU, sFW, sFG, sG, sR0, sR1, sSTR, sTG, sGRP, sP0, sROLE, sBN = ['s%d' % i for i in range(80, 96)]
sP1, sRDY = 's100', 's101'
vCO = V(251)
def pfcode(): return vload(f'global_load_dword {vDUM}, {vCO}, s[56:57]')
sDBG, sQA2 = 's[72:75]', 's3'
XSLOT, CSB = [65536, 32768], 49152

vL16 = V(1)
vWq, vWg, vKd, vVd = V(2, 4), V(6, 4), V(10, 4), V(14, 2)
vKa, vVa, vWa = V(16, 4), V(20, 8), V(28, 8)
vPF, vDUM, vTMP = V(36), V(37), 38
vZERO, vONE, vFL, vX = V(42), V(43), V(252), V(253)
vL16b = vX
Q = V(44, 64)
QACC = V(108, 128)
S, T, P, NEGM, LS, ONES, vIDX = V(108, 8), V(116, 4), V(120, 64), V(184, 16), V(200, 16), V(216, 4), V(220)
BIAS = V(236, 16)
XF, SEL, vA0, vA1 = V(44, 64), V(10, 6), V(250), V(253)
ONESQ, IDXQ, CS, vXd, vXa, vCw, vCr = V(44, 4), V(48), V(52, 8), V(60, 4), V(64, 2), V(66), V(68, 4)
O, KF, VF, GACT = A(0, 128), A(128, 32), A(160, 32), A(192, 64)

def Pf(tile, u, b, n=4): return P.sub((tile & 1) * 32 + b * 8 + u * 4, n)
def Qf(b, t): return Q.sub((b * 4 + t) * 4, 4)
def Kf(c, t): return KF.sub((c & 1) * 16 + t * 4, 4)
def Vf(e, u): return VF.sub((e & 3) * 8 + u * 4, 4)
def kread(tile, c, t): return ds_128(Kf(c, t), vKa.sub(t), (tile & 3) * 16384 + c * 4096)
def vread(tile, e, u, tt): return ds_tr(Vf(e, u).sub(2 * tt, 2), vVa.sub(e), (tile & 3) * 16384 + u * 8192 + tt * 4096)
def kdma(n):
    return [([salu(f's_add_u32 m0, {sLDS}, {KBASE + (n & 3) * 16384}')] if i == 0 else [],
             vload(f'buffer_load_dwordx4 {vKd.sub(i)}, {sKC}, {sK} offen offset:{i*1024} lds', tag=f'K{n}'),
             [salu(f's_add_u32 {sK}, {sK}, 16384')] if i == 3 else []) for i in range(4)]
def vdma(n):
    return [([salu(f's_add_u32 m0, {sLDS}, {VBASE + (n & 3) * 16384}')] if i == 0 else [],
             vload(f'buffer_load_dwordx4 {vVd.sub(i & 1)}, {sVC}, {sV} offen offset:{i*1024} lds', tag=f'V{n}'),
             [salu(f's_add_u32 {sV}, {sV}, 16384')] if i == 3 else []) for i in range(4)]
def flat(elems):
    o = []
    for pre, v, post in elems: o += pre + [v] + post
    return o
def pfw1():
    return [vload(f'buffer_load_dword {vDUM}, {vPF}, {sWQ}, {sQW} offen'), salu(f's_add_u32 {sQW}, {sQW}, {1 << 21}')]
def rowsum(j, b): return Op(f'v_smfmac_f32_16x16x64_bf16 {LS.sub(4*b,4)}, {ONES}, {Pf(j, 0, b, 8)}, {vIDX}', 'mfma')

def att_iter(st, j, gn, opt):
    a = j + 1
    qk, pv = a <= 31, j >= 0
    t_ = vTMP
    def window(w):
        k = kdma(w + 4) if w + 4 <= 31 else gn.window(w - 28)[:(4, 4, 2, 0)[w - 28]]
        v = vdma(w + 3) if w + 3 <= 31 else []
        return k, v
    kcur, vcur = window(j)
    kprev, vprev = window(j - 1) if j >= 0 else ([], [])
    dma = {11: kcur[0:1], 13: kcur[1:2], 15: kcur[2:3], 1: kprev[3:4], 3: vprev[0:1], 5: vprev[1:2], 7: vprev[2:3], 9: vprev[3:4]}
    dd = opt.get('dd', 0)
    if dd: dma = {11: kcur[0:2], 15: kcur[2:4], 3: vprev[0:2], 7: vprev[2:4]}
    if j == 31: dma = {}
    Z = P.sub(32, 4)
    mf_all, fill_all = [], []
    pend = []
    for n in range(16):
        c, b, e = n >> 2, n & 3, n >> 1
        m = [None] * 9
        f = [[] for _ in range(9)]
        sc = [[] for _ in range(9)]
        sc[0] += pend; pend = []
        Sn, Sp = S.sub((n & 1) * 4, 4), S.sub(((n + 1) & 1) * 4, 4)
        if qk:
            for t in range(4):
                t2 = 3 - t if (opt.get('qz') and n & 1) else t
                m[t] = mfma(Sn, Kf(c, t2), Qf(b, t2), NEGM.sub(4 * b, 4) if t == 0 else Sn)
        for jj in range(2):
            bb = 2 * (n & 1) + jj
            Ob = O.sub((e * 4 + ((bb & ~1) + (j & 1) if opt.get('fk', 0) & 2 else bb)) * 4, 4)
            if pv:
                for u in range(2):
                    uu = u ^ jj if opt.get('zig', 1) else u
                    m[4 + 2 * jj + u] = mfma(Ob, Pf(j, uu, bb), Vf(e, uu), Ob) if opt.get('xswap') else mfma(Ob, Vf(e, uu), Pf(j, uu, bb), Ob)
            else: m[5 + 2 * jj] = mfma(Ob, Z, Z, 0)
        if pv and opt.get('pv1'):
            for bb in range(4):
                Ob = O.sub((e * 4 + bb) * 4, 4)
                m[4 + bb] = mfma(Ob, Vf(e, n & 1), Pf(j, n & 1, bb), Ob)
        if qk and pv and opt.get('ilv'):
            m[:8] = [m[0], m[1], m[4], m[5], m[2], m[3], m[6], m[7]]
        if j == 31:
            if n == 0: m[0], m[2] = rowsum(j, 0), rowsum(j, 1)
            if n == 1: m[0], m[8] = rowsum(j, 2), rowsum(j, 3)
        elif b == 3: m[8] = rowsum(j, c) if pv else mfma(LS.sub(4 * c, 4), Z, Z, 0)
        pt, pn = (a, n - 1) if n > 0 else (j, 15)
        if 0 <= pt <= 31:
            pc, pb = pn >> 2, pn & 3
            for i in range(4): f[2 * i].append(valu(f'v_exp_f32 {T.sub(i)}, {Sp.sub(i)}'))
            f[3].append(valu(f'v_cvt_pk_bf16_f32 {Pf(pt, pc >> 1, pb).sub(2 * (pc & 1))}, {T.sub(0)}, {T.sub(1)}'))
            if not pv: f[7].append(salu('s_nop 0'))
        elif pt < 0: f[7].append(salu('s_nop 3'))
        pt, pn = (a, n - 2) if n > 1 else (j, 14 + n)
        if 0 <= pt <= 31:
            pc, pb = pn >> 2, pn & 3
            f[1].append(valu(f'v_cvt_pk_bf16_f32 {Pf(pt, pc >> 1, pb).sub(2 * (pc & 1) + 1)}, {T.sub(2)}, {T.sub(3)}'))
        if 0 <= j < 28 and 'e' in opt.get('xa', ''): f = [[] for _ in range(9)]
        kq = 16 * a + n + 5
        kt, kc, kk = kq >> 4, (kq >> 2) & 3, kq & 3
        if kt <= 31: f[5].insert(0, kread(kt, kc, kk))
        vq = 16 * j + n + 3
        vt, ve, vu = vq >> 4, (vq >> 1) & 7, vq & 1
        if 0 <= vt <= 31:
            g0, g1 = (1, 3) if (qk or n < 2) else (4, 6)
            f[g0].insert(0, vread(vt, ve, vu, 0)); f[g1].insert(0, vread(vt, ve, vu, 1))
        if 0 <= j < 28 and 'r' in opt.get('xa', ''): f = [[o for o in x if o.kind != 'ds'] for x in f]
        if 0 <= j < 28 and 'd' in opt.get('xa', ''):
            for pre, v, post in dma.get(n, []): v.text = 's_nop 0'
        for k, (pre, v, post) in enumerate(dma.get(n, [])):
            sc[6] += pre; f[7 + k].append(v)
            if n == 15: f[8] += post
            else: pend += post
        if n == 10 and j <= 30:
            f[7].append(barrier([f'V{j+1}'] + ([f'K{j+2}'] if j + 2 <= 31 else [])))
        if opt.get('pf_w', 1) and 0 <= j < 28 and n == 2 and (j & 3) == 0:
            f[7].append(vload(f'buffer_load_dword {vDUM}, {vPF}, {sWN}, {sPF} offen'))
            pend.append(salu(f's_add_u32 {sPF}, {sPF}, 4096'))
        if opt.get('pf_w1', 1) and j < 28 and n == 2 and (j & 1):
            f[7].append(pfw1()[0]); pend.append(pfw1()[1])
        if opt.get('rpf', 1) and 0 <= j < 28 and n == 2 and (j & 3) == 2: f[7].append(pfcode())
        if j == 28 and n == 0: f[7] += [valu(f'v_and_b32 v{t_}, 15, v0'), valu(f'v_lshlrev_b32 v{t_}, 1, v{t_}')]
        if j == 28 and n == 2: f[7].append(flag_load(sFW))
        if j in (28, 29) and n in (4, 6, 8, 12):
            k = (j - 28) * 4 + (4, 6, 8, 12).index(n)
            f[7].append(vload(f'buffer_load_ushort {BIAS.sub(k)}, v{t_}, {sBB}, {sBN} offen offset:{32*k}', BIAS.sub(k)))
        if j == 29 and n == 13: f[5].append(valu(f'v_readfirstlane_b32 {sT}, {vFL}', rd=[vFL]))
        if j == 29 and n == 14: f[7] += [salu(f's_cmp_lt_u32 {sT}, {sTG}'), salu('s_cbranch_scc1 L2_wn'), salu('L2_wn_r:')]
        for g in range(9):
            ops = sc[g] + f[g]
            if m[g] is not None: mf_all.append(m[g]); fill_all.append(ops)
            elif fill_all: fill_all[-1] += ops
            else: st.ops(ops)
    assert not pend
    nxt = mfma(S.sub(0, 4), Kf(0, 0), Qf(0, 0), NEGM.sub(0, 4)) if a + 1 <= 31 else None
    st.gaps(mf_all, fill_all, nxt)

def first_tile(st, opt, pre):
    a = st.raw
    SQ = [LS.sub(4 * k, 4) for k in range(4)] + [P.sub(32 + 4 * k, 4) for k in range(8)] + [V(224, 4), V(228, 4), S.sub(0, 4), S.sub(4, 4)]
    M = V(232, 4)
    def mx(n):
        x, m = SQ[n], M.sub(n & 3)
        if n < 4: return [valu(f'v_max3_f32 {m}, {x.sub(0)}, {x.sub(1)}, {x.sub(2)}'), valu(f'v_max_f32 {m}, {m}, {x.sub(3)}')]
        return [valu(f'v_max3_f32 {m}, {m}, {x.sub(0)}, {x.sub(1)}'), valu(f'v_max3_f32 {m}, {m}, {x.sub(2)}, {x.sub(3)}')]
    mf, fl = [], []
    for n in range(16):
        c, b = n >> 2, n & 3
        for t in range(4):
            mf.append(mfma(SQ[n], Kf(c, t), Qf(b, t), SQ[n] if t else 0)); fl.append([])
        if n + 5 < 16: fl[-3].append(kread(0, (n + 5) >> 2, (n + 5) & 3))
        if n >= 2: fl[-1] += mx(n - 2)
    st.push([valu(x) for x in pre] + [valu(f'v_accvgpr_write_b32 {O.sub(i)}, 0') for i in range(128)])
    st.gaps(mf, fl)
    st.flush()
    a(f's_cmp_lg_u32 {sMODE}, 0\ns_cbranch_scc1 L2_m1')
    st.ops(mx(14) + mx(15))
    negm_finish(a, M, opt.get('margin', MARGIN), T)
    a('L2_m1:')
    mem = [barrier(['V0', 'K1'])] + [kread(1, 0, t) for t in range(4)] + [kread(1, 1, 0)]
    kd_ = kdma(3)
    mem += [kd_[0][0][0], vread(0, 0, 0, 0), kd_[0][1], vread(0, 0, 0, 1), kd_[1][1], vread(0, 0, 1, 0), kd_[2][1], vread(0, 0, 1, 1), vread(0, 1, 0, 0), vread(0, 1, 0, 1)]
    if opt.get('pf_w1', 1): mem = pfw1() + mem
    for n in range(16):
        c, b = n >> 2, n & 3
        x = SQ[n]
        for h in (0, 2): a(f'v_pk_add_f32 {x.sub(h,2)}, {x.sub(h,2)}, {NEGM.sub(4*b,2)}')
        if 0 < n < 15: a(f'v_cvt_pk_bf16_f32 {Pf(0, (n-1) >> 3, (n-1) & 3).sub(2 * (((n-1) >> 2) & 1) + 1)}, {T.sub(2)}, {T.sub(3)}')
        if n < 15:
            for i in range(4): a(f'v_exp_f32 {T.sub(i)}, {x.sub(i)}')
            a(f'v_cvt_pk_bf16_f32 {Pf(0, c >> 1, b).sub(2 * (c & 1))}, {T.sub(0)}, {T.sub(1)}')
        if n < 4: a(f'v_mov_b64 {x.sub(0,2)}, 0\nv_mov_b64 {x.sub(2,2)}, 0')
        if n >= 4:
            for _ in range(2):
                if mem: st.op(mem.pop(0))
    assert not mem

def negm_finish(a, M, margin, M2=None):
    M2 = M2 or P.sub(20, 4)
    for p in ('16', '32'):
        for b in range(4): a(f'v_mov_b32 {M2.sub(b)}, {M.sub(b)}')
        for b in range(4): a(f'v_permlane{p}_swap_b32 {M2.sub(b)}, {M.sub(b)}')
        for b in range(4): a(f'v_max_f32 {M.sub(b)}, {M.sub(b)}, {M2.sub(b)}')
    for b in range(4):
        for i in range(2): a(f'v_sub_f32 {NEGM.sub(4*b+i)}, {f2h(-margin)}, {M.sub(b)}')
        a(f'v_mov_b64 {NEGM.sub(4*b+2,2)}, {NEGM.sub(4*b,2)}')

def act_store(st, NB, nt, fn, soffs, T0):
    a = st.raw
    k = 0
    for tt in range(nt):
        for b in range(NB):
            x = T0.sub((k & 1) * 8, 8); k += 1
            d = fn(x, tt, b)
            for i in range(4): a(f'v_cvt_pk_bf16_f32 {d.sub(i)}, {x.sub(2*i)}, {x.sub(2*i+1)}')
            st.op(vstore(f'buffer_store_dwordx4 {d}, {vL16}, {sWS}, {soffs[b >> 1][tt >> 1]} offen offset:{(tt & 1) * 2048 + (b & 1) * 1024} sc1'))

def signal(soff, sWS=sWS):
    return f's_mov_b64 exec, 1\nbuffer_atomic_add {vONE}, {vZERO}, {sWS}, {soff} offen sc1\ns_mov_b64 exec, -1'
def flag_load(soff, sWS=sWS):
    return vload(f'buffer_load_dword {vFL}, {vZERO}, {sWS}, {soff} offen sc1', vFL)
def spin(label, soff, target, sWS=sWS, nap=4):
    return (f's_mov_b32 {sT2}, {-(1 << 20)}\n{label}:\nbuffer_load_dword {vFL}, {vZERO}, {sWS}, {soff} offen sc1\ns_add_u32 {sT2}, {sT2}, 1\ns_cbranch_scc1 {label}_x\n'
            f's_waitcnt vmcnt(0)\nv_readfirstlane_b32 {sT}, {vFL}\ns_nop 0\ns_cmp_lt_u32 {sT}, {target}\ns_cbranch_scc1 {label}\n{label}_x:\ns_waitcnt vmcnt(0)')
def rot_setup(srot, sw, sa, swi, sai, winc, ainc):
    L = f's_cmp_lg_u32 {srot}, 0\ns_cselect_b32 {sT}, -1, 1\ns_cselect_b32 {sT2}, 3, 1\n'
    L += f's_mul_i32 {swi[0]}, {sT}, {winc}\ns_mul_i32 {swi[1]}, {sT2}, {winc}\n'
    if sai: L += f's_mul_i32 {sai[0]}, {sT}, {ainc}\ns_mul_i32 {sai[1]}, {sT2}, {ainc}\n'
    L += f's_mul_i32 {sT}, {srot}, {winc}\ns_add_u32 {sw}, {sw}, {sT}\ns_mul_i32 {sT}, {srot}, {ainc}\ns_add_u32 {sa}, {sa}, {sT}'
    return L

def halfsum(regs_, tmp):
    L = []
    for m in ('quad_perm:[1,0,3,2]', 'quad_perm:[2,3,0,1]', 'row_half_mirror', 'row_mirror'):
        L.append('s_nop 1' if len(regs_) == 1 else 's_nop 0')
        for v in regs_: L.append(f'v_add_f32_dpp {v}, {v}, {v} {m} row_mask:0xf bank_mask:0xf')
    for k, v in enumerate(regs_): L.append(f'v_mov_b32 {tmp.sub(k)}, {v}')
    L.append('s_nop 1')
    for k, v in enumerate(regs_): L.append(f'v_permlane16_swap_b32 {tmp.sub(k)}, {v}')
    for k, v in enumerate(regs_): L.append(f'v_add_f32 {v}, {v}, {tmp.sub(k)}')
    return L
def layernorm2(X, Y, SC, SV, cs):
    L = []
    M, Vv, TM, AB = SC.sub(0, 2), SC.sub(2, 2), SC.sub(4, 2), SC.sub(6, 2)
    m, mb, v, r = M.sub(0), M.sub(1), Vv.sub(0), Vv.sub(1)
    m2, v2 = TM.sub(0), TM.sub(1)
    rbf = lambda d, x: [f'v_cvt_pk_bf16_f32 {d}, {x}, {x}', f'v_lshlrev_b32 {d}, 16, {d}']
    rstd = lambda d, x, fill: rbf(d, x) + [f'v_add_f32 {d}, 0x3727c5ac, {d}'] + rbf(d, d) + [f'v_sqrt_f32 {d}, {d}', fill[0]] + rbf(d, d) + [f'v_rcp_f32 {d}, {d}', fill[1]]
    for i in range(8): L.append(f'v_pk_add_f32 {Y.sub(2*i,2)}, {X.sub(2*i,2)}, {X.sub(2*i+16,2)}')
    for w in (4, 2, 1):
        for i in range(w): L.append(f'v_pk_add_f32 {Y.sub(2*i,2)}, {Y.sub(2*i,2)}, {Y.sub(2*(i+w),2)}')
    L.append(f'v_add_f32 {m}, {Y.sub(0)}, {Y.sub(1)}')
    L += halfsum([m], TM) + [f'v_mul_f32 {m}, 0x3a800000, {m}']
    L += [f'v_pk_add_f32 {X.sub(2*i,2)}, {X.sub(2*i,2)}, {M} op_sel_hi:[1,0] neg_lo:[0,1] neg_hi:[0,1]' for i in range(16)]
    L += [f'v_pk_mul_f32 {Vv}, {X.sub(0,2)}, {X.sub(0,2)}', f'v_pk_mul_f32 {TM}, {X.sub(2,2)}, {X.sub(2,2)}']
    for i in range(2, 16): L.append(f'v_pk_fma_f32 {[Vv, TM][i & 1]}, {X.sub(2*i,2)}, {X.sub(2*i,2)}, {[Vv, TM][i & 1]}')
    L += [f'v_pk_add_f32 {Vv}, {Vv}, {TM}', f'v_add_f32 {v}, {Vv.sub(0)}, {Vv.sub(1)}']
    L += halfsum([v], TM) + [f'v_mul_f32 {v}, 0x3a800000, {v}']
    L += rstd(r, v, rbf(mb, m))
    L += [f'v_mul_f32 {SV.sub(1)}, {f2h(cs)}, {r}', f'v_sub_f32 {m}, {m}, {mb}', f'v_mul_f32_e64 {SV.sub(0)}, -{mb}, {SV.sub(1)}']
    R_ = [f'v_mul_f32 {m}, {m}, {r}', f'v_mul_f32 {v}, {v}, {r}', f'v_mul_f32 {v}, {v}, {r}']
    R_ += rstd(v2, v, rbf(m2, m))
    R_ += [f'v_sub_f32 {m}, {m}, {m2}', f'v_mul_f32 {AB.sub(0)}, {r}, {v2}', f'v_mul_f32 {AB.sub(1)}, {m}, {v2}']
    R_ += [f'v_pk_fma_f32 {X.sub(2*i,2)}, {X.sub(2*i,2)}, {AB}, {AB} op_sel:[0,0,1] op_sel_hi:[1,0,1]' for i in range(16)]
    R_ += [f'v_cvt_pk_bf16_f32 {Y.sub(i)}, {X.sub(2*i)}, {X.sub(2*i+1)}' for i in range(16)]
    return L, R_
def unpack(X, Y):
    L = []
    for i in range(Y.n): L += [f'v_lshlrev_b32 {X.sub(2*i)}, 16, {Y.sub(i)}', f'v_and_b32 {X.sub(2*i+1)}, 0xffff0000, {Y.sub(i)}']
    return L

def q_epilogue(st, SR, bias=False):
    a = st.raw
    sw = lambda d: a(f'v_permlane16_swap_b32 {d.sub(0)}, {d.sub(2)}\nv_permlane16_swap_b32 {d.sub(1)}, {d.sub(3)}')
    for tt in range(4):
        for b in range(4):
            r = SR.sub(2 * b, 2)
            for jj in range(2):
                s_ = QACC.sub(((2 * tt + jj) * 4 + b) * 4, 4)
                for h in range(2): st.op(valu(f'v_pk_mul_f32 {s_.sub(2*h,2)}, {s_.sub(2*h,2)}, {r} op_sel:[0,1] op_sel_hi:[1,1]', rd=[r]))
            for jj in range(2):
                s_ = QACC.sub(((2 * tt + jj) * 4 + b) * 4, 4); c_ = Qf(2 + jj, tt)
                for h in range(2): st.op(valu(f'v_pk_fma_f32 {s_.sub(2*h,2)}, {c_.sub(2*h,2)}, {r}, {s_.sub(2*h,2)} op_sel_hi:[1,0,1]', rd=[c_]))
        for b in range(4):
            d = Qf(b, tt)
            for jj in range(2):
                s_ = QACC.sub(((2 * tt + jj) * 4 + b) * 4, 4)
                a(f'v_cvt_pk_bf16_f32 {d.sub(2*jj)}, {s_.sub(0)}, {s_.sub(1)}\nv_cvt_pk_bf16_f32 {d.sub(2*jj+1)}, {s_.sub(2)}, {s_.sub(3)}')
        for b in range(4): sw(Qf(b, tt))
    if bias:
        for e in range(bias):
            x = QACC.sub(16 * e, 16)
            for h in range(2):
                st.op(valu(f'v_lshlrev_b32 {x.sub(2*h)}, 16, {BIAS.sub(2*e+h)}', rd=[BIAS.sub(2 * e + h)]))
                a(f'v_and_b32 {x.sub(2*h+1)}, 0xffff0000, {BIAS.sub(2*e+h)}')
            for i in range(2, 8): a(f'v_mov_b64 {x.sub(2*i,2)}, {x.sub(2*(i&1),2)}')

def gen_k2(opt):
    st = Stream(); a = st.raw
    far = []
    A1, Y1 = opt.get('a1', 3), opt.get('y1', 3)
    NY = 2 * (A1 + Y1); NSY = 2 * NY
    PW = opt.get('pw', 0); OM = 4 if PW else 1
    GW = opt.get('g2w', 8)
    opt.setdefault('pf_w1', 1 if GW == 7 else 0)
    hasg2 = lambda d: f's_cmp_lt_u32 {sIDX}, {112 // GW}\ns_cselect_b32 {d}, {sROLE}, 0'
    G2N = opt.get('g2n')
    if G2N:
        assert sum(G2N) == 112 and max(G2N) <= 16
        nlit = sum((n - 1) << (4 * k) for k, n in enumerate(G2N))
        hasg2 = lambda d: f's_lshl_b32 {d}, {sSLOT}, 2\ns_lshr_b32 {d}, {nlit}, {d}\ns_and_b32 {d}, {d}, 15\ns_cmp_le_u32 {sIDX}, {d}\ns_cselect_b32 {d}, {sROLE}, 0'
    t = vTMP
    a(f'{KNAME}:')
    a('s_cmp_ge_u32 s2, 256\ns_cbranch_scc1 L2_end')
    sp = Stamps(opt.get('stamp'), 1, 254)
    sp.jit = opt.get('jit')
    sp.stamp(st)
    RAW, LX, SC, HT = V(108, 16), V(124, 32), V(156, 8), V(196, 16)
    vLg, vLw, vHr, vHs, vSt, vZf, SV = V(212), V(213), V(214), V(215), V(216), V(217), V(218, 2)
    DL = opt.get('dln', 0)
    if DL:
        RAW, LX, SC, HT, SV = V(6, 16), V(76, 32), V(236, 8), V(76, 16), V(244, 2)
        vLg, vLw, vHr, vHs, vSt, vZf = [V(22 + i) for i in range(6)]
    a(f"""s_load_dwordx2 s[68:69], s[0:1], 0
s_load_dwordx2 s[8:9], s[0:1], 24
v_lshrrev_b32 v{t+1}, 5, v0
v_and_b32 v{t+2}, 31, v0
v_lshlrev_b32 v{t+2}, 4, v{t+2}
v_lshl_add_u32 {vLg}, v{t+1}, 11, v{t+2}
v_lshlrev_b32 {vFL}, 7, v0
s_lshl_b32 {sT4}, s2, 14
s_lshl_b32 {sT}, s2, 15
s_mov_b32 s70, 4194304
s_mov_b32 s71, 0x20000
s_mov_b32 s10, 8388608
s_mov_b32 s11, 0x20000
s_lshl_b32 {sO}, s2, 14
s_waitcnt lgkmcnt(0)""")
    rawl = [([], vload(f'buffer_load_dwordx4 {RAW.sub(4*i,4)}, {vLg}, {sX}, {sO} offen offset:{512*i}', RAW.sub(4 * i, 4)), []) for i in range(4)]
    RP = opt.get('rpos', 0)
    if not RP: st.ops(flat(rawl))
    if opt.get('pf_wq', 0): st.op(vload(f'buffer_load_dword {vDUM}, {vFL}, {sWQ}, {sT} offen'))
    a(f"""s_load_dwordx2 s[4:5], s[0:1], 96
s_lshr_b32 {sROLE}, s2, 7
s_cmp_eq_u32 {sROLE}, 0
s_cselect_b32 {sT}, 80, 48
s_cselect_b32 {sT2}, 64, 32
s_cselect_b32 {sT3}, 72, 56
s_load_dwordx2 s[20:21], s[0:1], {sT}
s_load_dwordx2 s[24:25], s[0:1], {sT2}
s_load_dwordx2 s[32:33], s[0:1], {sT3}
s_load_dwordx2 s[12:13], s[0:1], 8
s_load_dwordx2 s[16:17], s[0:1], 16
s_load_dwordx2 s[28:29], s[0:1], 32
s_load_dwordx2 s[72:73], s[0:1], 88
s_load_dwordx2 s[58:59], s[0:1], 48
s_mov_b32 s22, 14680064
s_cselect_b32 s26, s22, 8388608
s_cselect_b32 s22, 4194304, s22
s_movk_i32 s34, 7168
s_cselect_b32 s34, 4096, s34
v_lshrrev_b32 v{t}, 6, v0
v_mul_u32_u24 {vLw}, {LSTR}, v{t+1}
v_readfirstlane_b32 {sWAVE}, v{t}
v_add_u32 {vLw}, {vLw}, v{t+2}
v_and_b32 {vL16}, 63, v0
v_lshlrev_b32 {vPF}, 6, {vL16}
s_mov_b32 {sSTR}, 8192""")
    if opt.get('pf_code', 1):
        a(f's_getpc_b64 s[56:57]\nL2_pc:\ns_lshr_b32 {sT}, s2, 3\ns_lshl_b32 {sT}, {sT}, 2\ns_add_u32 {sT}, {sT}, {sWAVE}\ns_mul_i32 {sT}, {sT}, 704\ns_min_u32 {sT}, {sT}, L2_redo-L2_pc\ns_add_u32 s56, s56, {sT}\ns_addc_u32 s57, s57, 0\nv_lshrrev_b32 {vCO}, 2, {vPF}\nv_min_u32 {vCO}, 0x2b0, {vCO}')
        st.op(pfcode())
    for s, size in ((4, WS_SIZE), (12, 16777216), (16, 16777216), (20, 0), (24, 0), (28, 8388608), (32, 0), (72, 256)):
        if size: a(f's_mov_b32 s{s+2}, {size}')
        a(f's_mov_b32 s{s+3}, 0x20000')
    a(f"""s_bfe_u32 {sIDX}, s2, 0x40003
s_and_b32 {sSLOT}, s2, 7
s_lshr_b32 {sHEAD}, {sIDX}, 3
s_lshl_b32 {sQ64}, {sSLOT}, 1
s_add_u32 {sHEAD}, {sHEAD}, {sQ64}
s_cmp_eq_u32 {sROLE}, 0
s_cselect_b32 {sT}, {A1}, {Y1}
s_cselect_b32 {sT2}, {Y1}, {A1}
s_cselect_b32 {sQ64}, {Y1}, {16 - 2 * A1}
s_cmp_ge_u32 {sHEAD}, {sT}
s_cselect_b32 {sT2}, {sT2}, 0
s_addc_u32 {sGRP}, 1, 0
s_lshl_b32 {sT}, {sT}, 1
s_cmp_ge_u32 {sHEAD}, {sT}
s_cselect_b32 {sQ64}, {sQ64}, 0
s_addc_u32 {sGRP}, {sGRP}, 0
s_mul_i32 {sGRP}, {sGRP}, {sROLE}
s_mul_i32 {sT}, {sROLE}, {A1}
s_add_u32 {sHEAD}, {sHEAD}, {sT}
s_add_u32 {sHEAD}, {sHEAD}, {sT2}
s_add_u32 {sHEAD}, {sHEAD}, {sQ64}
s_and_b32 {sQ64}, {sIDX}, 7
s_lshl_b32 {sQ64}, {sQ64}, 2
s_add_u32 {sQ64}, {sQ64}, {sWAVE}
s_lshl_b32 {sLDS}, {sWAVE}, 12
s_lshl_b32 {sQW}, {sHEAD}, 8
s_lshl_b32 {sQA}, {sQ64}, 17
s_add_u32 {sQA2}, {sQA}, 65536""")
    accq = lambda e, b: QACC.sub((e * 4 + b) * 4, 4)
    acc3 = lambda e, b: accq(e, 2 + b)
    gq = GemmX('Q', 16, 4, accq, A(128, 128), A(0, 32), vWa, 'id', sWQ, vWq, sQW, 8192, QRING, sLDS, sX, None, sQA, lead=3, uni=True, dist=2)
    gq.xsetup(XSLOT, vXd, vXa, sQA2, ONESQ, IDXQ, CS)
    gq.bar_rd = [('x', 0)]
    RQ = opt.get('rq', 0)
    if RQ:
        tabs = [sum(((((k + 1) ^ r if k < 3 else 4 + r) - (k ^ r)) & 0xff) << (8 * k) for k in range(4)) for r in range(4)]
        a(f"""s_lshr_b32 {sT}, s2, 6
s_add_u32 {sT}, {sT}, {sIDX}
s_and_b32 {sT}, {sT}, {RQ}
s_bitcmp1_b32 {sT}, 0
s_mov_b32 {sPF}, {tabs[0]}
s_cselect_b32 {sPF}, {tabs[1]}, {sPF}
s_mov_b32 {sT2}, {tabs[2]}
s_cselect_b32 {sT2}, {tabs[3]}, {sT2}
s_bitcmp1_b32 {sT}, 1
s_cselect_b32 {sPF}, {sT2}, {sPF}
s_lshl_b32 {sT2}, {sT}, 19
s_add_u32 {sQW}, {sQW}, {sT2}
s_lshl_b32 {sT2}, {sT}, 7
s_add_u32 {sQA}, {sQA}, {sT2}
s_add_u32 {sQA2}, {sQA2}, {sT2}""")
        gq.rtab = sPF
    g2 = Gemm('G', 32, 4, accq, A(128, 128), A(0, 32), vWa, 'id', sW1, vWg, sW3, 0, QRING, sLDS, sWS, vL16, sA3, avoff2=vL16b, lead=3, uni=True, winc=sGI, ainc=sGJ, dist=2, asuf=' sc1', NW=GW)
    kwn = dict(avoff2=vA1, asuf=' sc1', winc=sNI, ainc=sNJ, lead=3, uni=True, dist=2, aoff=2, split=True)
    g4 = Gemm('N', 28, 4, accq, A(128, 128), Q.sub(0, 32), vWa, 'blk', sWN, vWq, sGW, 0, KBASE, sLDS, sWS, vA0, sGA, swap=True, **kwn)
    g3y = Gemm('N', NY, 4, accq, A(128, 128), Q.sub(0, 32), vWa, 'blk', sWN, vWq, sGW, 0, KBASE, sLDS, sWS, vA0, sGA, **kwn)
    g3s = Gemm('S', 64 - NSY, 2, acc3, A(0, 64), A(64, 32), vVa, 'blk', sWO, vWg, sW3, 0, VBASE, sLDS, sWS, vL16, sA3, asuf=' sc1', winc=sSI, ainc=sSJ)
    for g_ in (gq, g2, g4, g3y, g3s): g_.zig = opt.get('zig', 1)
    for g_ in (g2, g4, g3y, g3s): g_.fk = opt.get('fk', 0) & 1
    gq.fk = opt.get('fk', 0) & 4
    for g_ in (gq, g2, g4, g3y): g_.skew = opt.get('skew', 0)
    SK = 1 if gq.skew else 0
    for g_ in (g2, g4, g3y): g_.pre2 = SK and opt.get('pre2', 1)
    g4.more_tags = g3y.more_tags = {1: ['st']}
    assert not (SK and (DL or RQ or GW != 8 or PW))
    if 'fsw' in opt:
        for g_ in (g2, g4, g3y, g3s): g_.swap = bool(opt['fsw'])
    g3s.pat = opt.get('pat', 0); g3s.uni = opt.get('uni3', 0)
    a('\n'.join(wvoff_setup(vWq, sSTR, 'id', t)))
    rest = gq.window(0) + gq.window(1) + gq.window(2)[:2]
    if RP: rest[RP:RP] = rawl
    early = opt.get('early', 12)
    a(f'v_bfe_u32 v{t}, v0, 3, 3\nv_and_b32 v{t+1}, 7, v0\nv_lshrrev_b32 v{t+2}, 1, v{t}\nv_xor_b32 v{t+1}, v{t+1}, v{t+2}\nv_lshlrev_b32 v{t+1}, 4, v{t+1}\nv_lshl_add_u32 {vXd.sub(0)}, v{t}, 11, v{t+1}')
    a(f'v_xor_b32 {vXd.sub(1)}, 64, {vXd.sub(0)}\nv_add_u32 {vXd.sub(1)}, {16384-1024}, {vXd.sub(1)}\nv_add_u32 {vXd.sub(2)}, {2*(16384-1024)}, {vXd.sub(0)}\nv_add_u32 {vXd.sub(3)}, {2*(16384-1024)}, {vXd.sub(1)}')
    gq.issue(st, rest[:early]); del rest[:early]
    a(f'v_lshlrev_b32 {vL16}, 4, {vL16}\nv_cmp_eq_u32 vcc, 3, v{t}\nv_add_u32 v{t+1}, {SHADOW}, {vL16}\ns_nop 0\nv_cndmask_b32 {vL16}, {vL16}, v{t+1}, vcc\nv_add_u32 {vL16b}, 4096, {vL16}')
    PD = opt.get('pd', 4)
    if PD:
        a(f"""s_and_b32 {sT}, {sQ64}, 31
s_lshl_b32 {sT}, {sT}, 14
v_bfe_u32 v{t}, v0, 2, 1
v_bfe_u32 v{t+1}, v0, 3, 1
v_lshlrev_b32 v{t}, 7, v{t}
v_lshl_add_u32 v{t}, v{t+1}, 13, v{t}
v_add_u32 v{t}, {sT}, v{t}
v_add_u32 v49, {PD * 524288}, v{t}
v_bfe_u32 v{t+1}, v0, 4, 2
v_min_u32 v{t+1}, {PD - 1}, v{t+1}
v_lshl_add_u32 v50, v{t+1}, 19, v{t}
s_lshl_b32 {sP1}, {sHEAD}, 8
s_add_u32 {sP1}, {sP1}, {(4 if RQ else 3) * 524288}""")
        rest.insert(opt.get('ppos', 0), ([], vload(f'buffer_load_dword {vDUM}, v50, {sWQ}, {sP1} offen'), []))
    a('\n'.join(waddr_setup(vWa, QRING, 'id', t)))
    a(f's_lshl_b32 {sROT}, {sWAVE}, 6')
    for e in range(8): a(f'v_xor_b32 {vWa.sub(e)}, {sROT}, {vWa.sub(e)}')
    a(f"""v_and_b32 v{t}, 15, v0
v_bfe_u32 v{t+1}, v0, 4, 2
v_lshrrev_b32 v{t+2}, 1, v{t}
v_xor_b32 v{t+2}, v{t+2}, v{t+1}
v_lshlrev_b32 v{t+2}, 4, v{t+2}
v_lshl_add_u32 v{t+2}, v{t}, 7, v{t+2}
s_add_u32 {sT}, {sLDS}, {min(XSLOT)}
v_add_u32 {vXa.sub(0)}, {sT}, v{t+2}
v_xor_b32 {vXa.sub(1)}, 64, {vXa.sub(0)}
s_add_u32 {sT}, {sLDS}, {CSB}
v_lshl_add_u32 {vCw}, v{t}, 2, {sT}
{f's_xor_b32 {sT}, {sT}, 0x2000' if SK else ''}
v_lshl_add_u32 {vCr.sub(0)}, v{t+1}, 4, {sT}
v_xor_b32 {vCr.sub(1)}, 0x1000, {vCr.sub(0)}
v_xor_b32 {vCr.sub(2)}, 0x2000, {vCr.sub(0)}
v_xor_b32 {vCr.sub(3)}, 0x3000, {vCr.sub(0)}
v_and_b32 {IDXQ}, 1, v0
v_sub_u32 {IDXQ}, 0, {IDXQ}
v_and_b32 {IDXQ}, 0xaaaaaaaa, {IDXQ}
v_or_b32 {IDXQ}, 0x44444444, {IDXQ}
v_mov_b32 {vZERO}, 0
v_mov_b32 {vONE}, 1
v_bfe_u32 {vHr}, v0, 2, 2
v_mul_u32_u24 {vHr}, {LSTR}, {vHr}
v_lshrrev_b32 v{t+2}, 4, v0
v_lshl_add_u32 {vHr}, v{t+2}, 5, {vHr}
v_and_b32 v{t+2}, 3, v0
v_lshl_add_u32 {vHr}, v{t+2}, 3, {vHr}
v_lshlrev_b32 {vHs}, 10, v{t+1}
v_lshl_add_u32 {vHs}, v{t}, 4, {vHs}
s_and_b32 {sT}, s2, 3
s_lshl_b32 {sT}, {sT}, 8
v_add_u32 {vHs}, {sT}, {vHs}
v_bfe_u32 v{t+2}, {vHs}, 7, 3
v_cmp_eq_u32 vcc, 3, v{t+2}
v_add_u32 v{t+3}, {SHADOW}, {vHs}
s_lshr_b32 {sT2}, s2, 2
v_cndmask_b32 {vHs}, {vHs}, v{t+3}, vcc
s_lshl_b32 {sT2}, {sT2}, 12
s_lshl_b32 {sT}, {sWAVE}, 18
s_add_u32 {sT2}, {sT2}, {sT}
s_add_u32 {sT2}, {sT2}, {HF}
v_and_b32 v{t+2}, 31, v0
v_cmp_eq_u32 vcc, 0, v{t+2}
v_lshrrev_b32 {vSt}, 2, v0
v_mov_b32 v{t+3}, 0x40000000
v_cndmask_b32 {vSt}, v{t+3}, {vSt}, vcc
v_cmp_gt_u32 vcc, 0x80, v0
v_lshlrev_b32 {vZf}, 2, v0
s_lshl_b32 {sT3}, s2, 7
v_cndmask_b32 {vZf}, v{t+3}, {vZf}, vcc
s_lshl_b32 {sT4}, s2, 9
s_add_u32 {sT4}, {sT4}, {FL}
s_bfe_u32 {sSIG}, s2, 0x20004
s_and_b32 {sSIG}, {sSIG}, {opt.get('sigsp', 3)}
s_and_b32 {sU}, {sSIG}, {opt.get('lnsp', 3)}
s_add_u32 {sU}, {sU}, {DL}
s_add_u32 {sSIG}, {sSIG}, {DL + 4 if DL else 3 - SK}
s_bfe_u32 {sFU}, s2, 0x10003
s_lshl_b32 {sFU}, {sFU}, 7
s_mov_b32 {sMODE}, 0
s_cmp_eq_u32 {sWAVE}, 0
s_cselect_b32 {sSIG}, {sSIG}, 0
s_cselect_b32 {sRDY}, 0x80, 0
s_cselect_b32 {sP0}, 0, 0x1000""")
    if opt.get('xq') == 'nopoll': a(f's_mov_b32 {sRDY}, 0\ns_mov_b32 {sP0}, 0x1000')
    if opt.get('xq') == 'nosig': a(f's_mov_b32 {sRDY}, 0\ns_mov_b32 {sP0}, 0x1000\ns_mov_b32 {sSIG}, 0')
    if SK: a('v_and_b32 v74, 1, v0\nv_lshlrev_b32 v74, 7, v74')
    assert STAT == 0
    for i in range(4): a(f'v_mov_b32 {ONESQ.sub(i)}, 0x3f803f80\nv_mov_b64 {CS.sub(2*i,2)}, 0')
    cs = math.log2(math.e) / math.sqrt(128.0)
    zq = [f'v_mov_b64 {QACC.sub(2*i,2)}, 0' for i in range(64)]
    if not DL:
        a('\n'.join(zq[28:44] + zq[56:]) + '\ns_waitcnt lgkmcnt(0)')
        st.op(valu(unpack(LX, RAW)[0], rd=[RAW]))
        sp.stamp(st)
        l1, l2 = layernorm2(LX, RAW, SC, SV, cs)
        ln = unpack(LX, RAW)[1:] + l1
        ln += [vstore(f'buffer_store_dwordx2 {SV}, {vSt}, {sWS}, {sT3} offen sc1'), vstore(f'buffer_store_dword {vZERO}, {vZf}, {sWS}, {sT4} offen sc1')]
        ln += l2
        nin = opt.get('nin', 12)
        step = len(ln) // (nin + 1)
        for k, x in enumerate(ln):
            if isinstance(x, Op): st.op(x)
            else: a(x)
            if k % step == step - 1 and nin and rest: gq.issue(st, [rest.pop(0)]); nin -= 1
        for i in range(4): st.op(Op(f'ds_write_b128 {vLw}, {RAW.sub(4*i,4)} offset:{512*i}', 'ds'))
        zz = zq[8:28]
        gq.issue(st, rest, lambda: a('\n'.join(zz.pop() for _ in range(min(2, len(zz))))))
        a('\n'.join(zz))
        st.op(barrier(['Q0'], lg0=True))
        for i in range(4):
            for tt in range(2): st.op(ds_tr(HT.sub(4 * i + 2 * tt, 2), vHr, 512 * i + 4 * LSTR * tt))
        a('\n'.join(zq[:8]))
        for i in range(4):
            st.op(vstore(f'buffer_store_dwordx4 {HT.sub(4*i,4)}, {vHs}, {sWS}, {sT2} offen sc1', rd=[HT.sub(4 * i, 4)]))
            a(f's_add_u32 {sT2}, {sT2}, {1 << 20}')
            st.ops(gq.xreads(0, i))
        st.ops(gq.reads(0))
        a('\n'.join(zq[44:56]))
        st.ops(gq.reads(1))
        sp.stamp(st)
    else:
        sp.stamp(st)
        gq.issue(st, rest, lambda: a('\n'.join(zq.pop() for _ in range(min(5, len(zq))))))
        a('\n'.join(zq) + '\ns_waitcnt lgkmcnt(0)')
        st.op(barrier(['Q0']))
        for i in range(4): st.ops(gq.xreads(0, i))
        st.ops(gq.reads(0) + gq.reads(1))
        sp.stamp(st)
        l1, l2 = layernorm2(LX, RAW, SC, SV, cs)
        b1 = unpack(LX, RAW) + l1 + [f'buffer_store_dwordx2 {SV}, {vSt}, {sWS}, {sT3} offen sc1', f'buffer_store_dword {vZERO}, {vZf}, {sWS}, {sT4} offen sc1'] + l2
        b1 += [f'ds_write_b128 {vLw}, {RAW.sub(4*i,4)} offset:{512*i}' for i in range(4)] + ['s_waitcnt lgkmcnt(0)']
        b2 = ['s_waitcnt lgkmcnt(7)'] + [ds_tr(HT.sub(4 * i + 2 * tt, 2), vHr, 512 * i + 4 * LSTR * tt).text for i in range(4) for tt in range(2)]
        for i in range(4): b2 += [f's_waitcnt lgkmcnt({6 - 2 * i})', f'buffer_store_dwordx4 {HT.sub(4*i,4)}, {vHs}, {sWS}, {sT2} offen sc1', f's_add_u32 {sT2}, {sT2}, {1 << 20}']
        ret = f's_and_b32 {sT}, {sMODE}, 3\n' + ''.join(f's_cmp_eq_u32 {sT}, {k}\ns_cbranch_scc1 L2_n{k}_r\n' for k in range(3)) + 's_branch L2_n3_r'
        far.append(f'L2_n:\ns_cmp_eq_u32 {sT}, 0\ns_cbranch_scc0 L2_nb\n' + '\n'.join(b1) + '\ns_branch L2_nr\nL2_nb:\n' + '\n'.join(b2) + '\nL2_nr:\n' + ret)
    for k in range(4): far.append(f'L2_sl{k}:\n{signal(sFU, sDBG)}\ns_branch L2_sl{k}_r')
    def qx(s, e):
        if e == 2: return {3: [salu(f's_add_u32 {sMODE}, {sMODE}, 1')], 7: (publish if s >= 2 and not DL else lambda l, _: [salu(x) for x in l])([f's_cmp_eq_u32 {sMODE}, {sSIG}', f's_cbranch_scc1 L2_sl{s % 4}', f'L2_sl{s % 4}_r:'], 'wg')}
        if DL and e == 0: return {3: [salu(f's_sub_u32 {sT}, {sMODE}, {sU}')], 7: [salu(f's_cmp_lt_u32 {sT}, 2'), salu('s_cbranch_scc1 L2_n'), salu(f'L2_n{s % 4}_r:')]}
        if e == (4 if SK and s == 0 else 5) and PD: return {(7 if e == 4 else 1): [vload(f'buffer_load_dword {vDUM}, v49, {sWQ}, {sQW} offen')]}
        if SK and s and s % 4 == 0 and e == 0: return {3: [salu(f's_cmp_eq_u32 {sCNT}, -1'), salu(f's_cselect_b32 {sT}, {sP0}, 0x1000')], 7: [vload(f'buffer_load_dword v75, v74, {sDBG}, {sT} offen sc1', V(75))]}
        return {}
    if opt.get('qdiag'):
        cntl = [0]
        def qx2(s, e):
            r = qx(s, e)
            if e == 2:
                far.append(f'L2_sx{s}:\n{signal(sFU, sDBG)}\ns_branch L2_sx{s}_r')
                r[7] = [r[7][0], salu(f's_cbranch_scc1 L2_sx{s}'), salu(f'L2_sx{s}_r:')]
            return r
        del far[-4:]
        for s_ in range(12):
            gq.stages(st, s_, s_ + 1, None, qx2, None)
            if s_ < 11: sp.stamp(st)
        sp.on2 = True
    else: gq.loop(st, 'L2_q', sCNT, extra=qx)
    a(hasg2(sT) + f'\ns_cmp_lg_u32 {sT}, 0\ns_cbranch_scc1 L2_G')
    sg = st.fork(); spg = sp.n
    def q_last_extra(s_, SR, nm):
        ld = f'buffer_load_dword v75, v74, {sDBG}, {sP0} offen sc1'
        far.append(f'{nm}:\ns_mov_b32 {sCNT}, {-(1 << 20)}\n{nm}1:\n{ld}\ns_add_u32 {sCNT}, {sCNT}, 1\ns_cbranch_scc1 {nm}_x\ns_waitcnt vmcnt(0)\n'
                   f'v_cmp_gt_u32 vcc, {sRDY}, v75\ns_nop 4\ns_cbranch_vccnz {nm}1\n{nm}_x:\ns_waitcnt vmcnt(0)\ns_branch {nm}_r')
        def f(s, e):
            if s == 12 and e == 2: return {3: [valu('v_and_b32 v74, 1, v0'), valu('v_lshlrev_b32 v74, 7, v74')], 7: [vload(ld, V(75))]}
            if s == 13 and e == 5: return {1: [valu(f'v_cmp_gt_u32 vcc, {sRDY}, v75', rd=[V(75)])], 5: [salu(f's_cbranch_vccnz {nm}'), salu(f'{nm}_r:')]}
            if s == 12 + SK and e == 0: return {3: [valu(f'v_bfe_u32 v72, v0, 3, 1'), valu(f'v_and_b32 v73, 7, v0')], 7: [valu('v_lshlrev_b32 v72, 7, v72'), valu('v_lshl_add_u32 v72, v73, 3, v72')]}
            if s == 12 + SK and e == 1: return {7: [salu(f's_lshl_b32 {sP1}, {sQ64}, 10')]}
            if s == 14 and e in (5, 6):
                return {g: [vload(f'buffer_load_dwordx2 {SR.sub(2*n,2)}, v72, {sWS}, {sP1} offen offset:{256*n} sc1', SR.sub(2 * n, 2))] for g, n in ((1, 2 * (e - 5)), (5, 2 * (e - 5) + 1))}
            if s == 15 and e == 3 + 2 * SK:
                return {3 + 2 * SK: [valu(f'v_add_f32 {CS.sub(4*k)}, {CS.sub(4*k)}, {CS.sub(4*k+1)}') for k in range(2)],
                        7: [Op(f'ds_write2_b32 {vCw}, {CS.sub(0)}, {CS.sub(4)} offset0:0 offset1:16', 'ds', wr=[('x', 0)])]}
            if s == 15 and e == 6 + SK: s_.push([ds_128(Qf(2 + (k & 1), k >> 1), vCr.sub(k >> 1), 64 * (k & 1)) for k in range(8)])
            return {}
        return f

    su_kv = f's_lshl_b32 {sKV0}, {sHEAD}, 19\ns_mov_b32 {sK}, {sKV0}\ns_mov_b32 {sV}, {sKV0}\n'
    su_kv += f'v_bfe_u32 v{t}, v0, 4, 2\nv_lshrrev_b32 v{t+1}, 6, v0\nv_lshl_add_u32 v{t+1}, v{t+1}, 4, v{t}\nv_lshlrev_b32 v{t+1}, 8, v{t+1}\nv_and_b32 v{t+2}, 15, v0\n'
    for i in range(4):
        su_kv += f'v_or_b32 v{t+3}, {4*i}, v{t}\nv_xor_b32 v{t+3}, v{t+3}, v{t+2}\nv_lshl_add_u32 {vKd.sub(i)}, v{t+3}, 4, v{t+1}\n'
    for i in range(2):
        su_kv += f'v_or_b32 v{t+3}, {4*i}, v{t}\nv_lshlrev_b32 v{t+3}, 1, v{t+3}\nv_xor_b32 v{t+3}, v{t+3}, v{t+2}\nv_lshl_add_u32 {vVd.sub(i)}, v{t+3}, 4, v{t+1}\n'
    su_kv += f'v_and_b32 v{t+1}, 1, v{t}\nv_lshlrev_b32 v{t+1}, 1, v{t+1}\nv_lshrrev_b32 v{t+3}, 1, v{t}\nv_or_b32 v{t+1}, v{t+1}, v{t+3}\n'
    su_kv += f's_lshl_b32 {sT}, {sWAVE}, 2\nv_xor_b32 v{t+1}, {sT}, v{t+1}\nv_xor_b32 v{t+1}, v{t+1}, v{t+2}\nv_lshlrev_b32 v{t+2}, 8, v{t+2}\n'
    for i in range(4):
        su_kv += f'v_xor_b32 v{t+3}, {4*i}, v{t+1}\nv_lshl_add_u32 {vKa.sub(i)}, v{t+3}, 4, v{t+2}\n'
    su_kv += '\n'.join(waddr_setup(vVa, VBASE, 'blk', t))
    g2head = f"""s_and_b32 {sT3}, {sSLOT}, 1
s_lshl_b32 {sT3}, {sT3}, 1
s_and_b32 {sT}, {sIDX}, 1
s_add_u32 {sT3}, {sT3}, {sT}
s_lshl_b32 {sT}, {sT3}, 8
s_add_u32 {sFU}, {sT}, {FL + 8192}
s_lshr_b32 {sT}, {sSLOT}, 1
s_mul_i32 {sT}, {sT}, {56 // GW}
s_lshr_b32 {sT4}, {sIDX}, 1
s_add_u32 {sT}, {sT}, {sT4}
s_add_u32 {sT4}, {sT4}, {sIDX}
"""
    if G2N:
        pre_ = [sum(G2N[:k]) for k in range(8)]
        g2head = f"""s_mov_b32 {sT}, {sum(p << (8 * k) for k, p in enumerate(pre_[4:]))}
s_cmp_lt_u32 {sSLOT}, 4
s_cselect_b32 {sT}, {sum(p << (8 * k) for k, p in enumerate(pre_[:4]))}, {sT}
s_lshl_b32 {sT4}, {sSLOT}, 3
s_lshr_b32 {sT}, {sT}, {sT4}
s_and_b32 {sT}, {sT}, 0xff
s_add_u32 {sT}, {sT}, {sIDX}
s_cmp_ge_u32 {sT}, 56
s_cselect_b32 {sT3}, 2, 0
s_cselect_b32 {sT4}, 56, 0
s_sub_u32 {sT}, {sT}, {sT4}
s_and_b32 {sT4}, {sT}, 1
s_add_u32 {sT3}, {sT3}, {sT4}
s_lshl_b32 {sFU}, {sT3}, 8
s_add_u32 {sFU}, {sFU}, {FL + 8192}
s_lshr_b32 {sT}, {sT}, 1
s_add_u32 {sT4}, {sT4}, {sT}
"""
    su_g2 = g2head + f"""s_and_b32 {sT4}, {sT4}, {opt.get('rotg', 1)}
s_mul_i32 {sW3}, {sT}, {32 * GW}
s_and_b32 {sR0}, {sT}, {GW & 1}
s_lshl_b32 {sB}, {sR0}, 5
s_add_u32 {sB}, {sB}, {sW3}
s_mul_i32 {sBN}, {sR0}, -224
s_add_u32 {sBN}, {sBN}, {sB}
s_mul_i32 {sU}, {sT}, {GW}
s_add_u32 {sU}, {sU}, {sR0}
s_lshl_b32 {sU}, {sU}, 10
s_mul_i32 {sQA}, {sR0}, {8 - 4 * 2048}
s_add_u32 {sQA}, {sQA}, {3 * 2048}
s_lshl_b32 {sR0}, {sR0}, 1
s_lshl_b32 {sT}, {sT3}, 2
s_add_u32 {sT}, {sT}, {sWAVE}
s_lshl_b32 {sA3}, {sT}, 18
s_add_u32 {sA3}, {sA3}, {HF}
s_mul_i32 {sT}, {sT}, {2*112*2048}
s_add_u32 {sU}, {sU}, {sT}
s_add_u32 {sU}, {sU}, {UF}
s_movk_i32 {sSTR}, 7168
""".replace(sQA + ',', sGA + ',') + rot_setup(sT4, sW3, sA3, sGI, sGJ, 64 * 7168, 8192) + '\n' + '\n'.join(wvoff_setup(vWg, sSTR, 'id', t, sR0 if GW == 7 else None))
    su_g2 += f'\nv_bfe_u32 {vFL}, v0, 4, 2\nv_lshlrev_b32 {vFL}, 3, {vFL}'
    PFSEL = ''
    if opt.get('pf_w', 1) in (2, 3): PFSEL = f's_cmp_eq_u32 {sROLE}, {opt["pf_w"] - 2}\ns_cselect_b32 {sPF0}, {sPF0}, 0x20000000'
    su_n = f"""s_lshl_b32 {sO}, {sQ64}, 19
s_lshl_b32 {sT}, {sHEAD}, 13
s_add_u32 {sO}, {sO}, {sT}
s_add_u32 {sO}, {sO}, {OF}
s_lshl_b32 {sT2}, {sGRP}, 3
s_and_b32 {sT}, {sIDX}, 7
s_add_u32 {sT}, {sT}, {sT2}
s_lshl_b32 {sT}, {sT}, 8
s_add_u32 {sFO}, {sT}, {FL}
s_and_b32 {sST}, {sSLOT}, 3
s_lshl_b32 {sST}, {sST}, 2
s_and_b32 {sT}, {sIDX}, 3
s_add_u32 {sST}, {sST}, {sT}
s_and_b32 {sDT}, {sSLOT}, 4
s_lshr_b32 {sT}, {sIDX}, 2
s_add_u32 {sDT}, {sDT}, {sT}
s_lshl_b32 {sT}, {sST}, 3
s_add_u32 {sT}, {sT}, {sDT}
s_lshl_b32 {sT}, {sT}, 2
s_add_u32 {sT}, {sT}, {sWAVE}
s_mov_b32 {sG}, {sT}
s_lshl_b32 {sT}, {sIDX}, 3
s_add_u32 {sT}, {sT}, {sSLOT}
s_lshl_b32 {sT}, {sT}, 2
s_add_u32 {sT}, {sT}, {sWAVE}
s_mul_i32 {sPF0}, {sT}, 28672
{PFSEL}
s_mov_b32 {sMODE}, 0
s_lshl_b32 {sT2}, {sST}, 2
s_add_u32 {sT2}, {sT2}, {sWAVE}
s_lshl_b32 {sR0}, {sT2}, 16
s_lshl_b32 {sT3}, {sDT}, 8
s_add_u32 {sR0}, {sR0}, {sT3}
s_add_u32 {sR1}, {sR0}, 32768
s_andn2_b32 {sT2}, {sT2}, 4
s_lshl_b32 {sT2}, {sT2}, 18
s_add_u32 {sT2}, {sT2}, {OF}
s_and_b32 {sT}, {sST}, 1
s_mul_i32 {sT4}, {sT}, {NY * 4096}
s_add_u32 {sT2}, {sT2}, {sT4}
s_mul_i32 {sT4}, {sT}, {NY * 64 * 2048}
s_add_u32 {sT3}, {sT3}, {sT4}
s_andn2_b32 {sT}, {sDT}, 1
s_lshl_b32 {sT}, {sT}, 2
s_add_u32 {sT}, {sT}, {sWAVE}
s_mul_i32 {sGA0}, {sT}, {112*2048}
s_add_u32 {sGA0}, {sGA0}, {UF}
s_and_b32 {sT}, {sDT}, 1
s_mul_i32 {sT4}, {sT}, {28 * 4096}
s_add_u32 {sGA0}, {sGA0}, {sT4}
s_mul_i32 {sGW0}, {sT}, {28 * 64 * 4096}
s_lshl_b32 {sT4}, {sST}, 8
s_add_u32 {sGW0}, {sGW0}, {sT4}
s_lshr_b32 {sFW}, {sDT}, 1
s_add_u32 {sROT}, {sFW}, {sST}
s_add_u32 {sFW}, {sFW}, 32
s_lshr_b32 {sTG}, {sST}, 1
s_add_u32 {sT}, {sTG}, {sDT}
s_cmp_eq_u32 {sROLE}, 0
s_cselect_b32 {sGA0}, {sGA0}, {sT2}
s_cselect_b32 {sGW0}, {sGW0}, {sT3}
s_cselect_b32 {sROT}, {sROT}, {sT}
s_cselect_b32 {sBN}, {sT4}, 0x10000
s_cselect_b32 {sFW}, {sFW}, {sTG}
s_cselect_b32 {sTG}, {224 // GW}, {16 * OM}
s_lshl_b32 {sFW}, {sFW}, 8
s_add_u32 {sFW}, {sFW}, {FL}
{hasg2(sSIG)}
s_cmp_eq_u32 {sWAVE}, 0
s_cselect_b32 {sSIG}, {sSIG}, 0
s_mul_i32 {sSIG}, {sSIG}, -7
s_lshr_b32 {sSTR}, 4096, {sROLE}
s_lshl_b32 {sT3}, {sSTR}, 6
s_and_b32 {sROT}, {sROT}, {opt.get('rot', 1)}
"""
    su_n2 = rot_setup(sROT, sGW0, sGA0, sNI, sNJ, sT3, 4096) + '\n' + '\n'.join(wvoff_setup(vWq, sSTR, 'blk', t))
    su_n2 += f'\nv_mov_b32 v{t+1}, {FLAG}'
    pre_kv = kdma(0) + kdma(1) + vdma(0) + vdma(1) + kdma(2)
    kvtail = lambda i: pre_kv[i * 12:(i + 1) * 12]
    def last_before_att(g, s_, pre, more=None):
        n = g.nst
        def ex(s, e):
            if s == n - 4 + SK and e == 0: s_.push(parse(su_kv) + parse(pre) + parse(su_n))
            if s == n - 3 and e == g.NW - 2: assert len(s_.q) <= len(parse(su_n)) + 40, len(s_.q)
            if s == n - 2 and e == 0: s_.push(parse(su_n2))
            if s == n - 1 and e == g.NW - 2 + SK: assert not s_.q, len(s_.q)
            r = more(s, e) if more else {}
            if s == n - 1 and e == g.NW - 2 + SK:
                s_.push([kread(0, 0, tt) for tt in range(4)] + [kread(0, 1, 0), Op(f'ds_write_b32 v{t+1}, {vZERO}', 'ds')])
            if (s, e) == ((n, 2) if SK else (n - 1, g.NW - 2)):
                s_.push([valu(f'v_subrev_u32 {vWa.sub(e_)}, {VBASE - KBASE}, {vVa.sub(e_)}') for e_ in range(8)])
            return r
        g.last(s_, kvtail, ex, last_bar=['K0'])
        s_.flush()
    qa = q_last_extra(st, BIAS.sub(0, 8), 'L2_wa')
    def qs(s, e):
        if s == 13 and e == 1:
            st.push(parse(f's_mov_b32 s8, s58\ns_mov_b32 s9, s59\ns_cmp_eq_u32 {sROLE}, 0\ns_cselect_b32 s10, 14680064, 0\ns_lshl_b32 {sQW}, s2, 2\ns_add_u32 {sQW}, {sQW}, {sWAVE}\ns_lshl_b32 {sQW}, {sQW}, 12'))
        if (s, e) in [tuple(x) for x in opt.get('pfpos', [(15, 7)])] and opt.get('pf_w1', 1): st.push(pfw1())
        return qa(s, e)
    last_before_att(gq, st, '', qs)
    sp.stamp(st)
    q_epilogue(st, BIAS.sub(0, 8))
    sp.stamp(st); sp.stamp(st)
    a('L2_join:')
    st.tags['st'] = st.issued['vm'] + 1
    pre = [f'v_mov_b32 {ONES.sub(i)}, 0x3f803f80' for i in range(4)]
    pre += f'v_and_b32 {vIDX}, 1, v0\nv_sub_u32 {vIDX}, 0, {vIDX}\nv_and_b32 {vIDX}, 0xaaaaaaaa, {vIDX}\nv_or_b32 {vIDX}, 0x44444444, {vIDX}'.split('\n')
    M = P.sub(16, 4)
    mx = lambda b: [valu(f'v_max3_f32 {M.sub(b)}, {P.sub(4*b)}, {P.sub(4*b+1)}, {P.sub(4*b+2)}'), valu(f'v_max_f32 {M.sub(b)}, {M.sub(b)}, {P.sub(4*b+3)}')]
    mf = [mfma(P.sub(4 * b, 4), Kf(0, tt), Qf(b, tt), P.sub(4 * b, 4) if tt else 0) for b in range(4) for tt in range(4)]
    fl = [[] for _ in mf]
    for i in range(4): fl[4 + i] = [valu(x) for x in pre[2 * i:2 * i + 2]]
    fl[8] = mx(0); fl[15] = mx(1) + [salu('s_nop 1')] + mx(2) + [salu('s_nop 1')] + mx(3)
    a('s_nop 0')
    FT = opt.get('ft', 1)
    if not FT:
        st.gaps(mf, fl)
        negm_finish(a, M, opt.get('margin', MARGIN))
    RC, PA = opt.get('rc', [1]), opt.get('pa', 1)
    sRCM, sRCF = sQA, sQA2
    a(f's_mov_b32 {sRCM}, {sum(1 << ((k - 7) & 31) for k in RC)}\ns_mov_b32 {sRCF}, 0')
    sp.stamp(st)
    a('L2_att:')
    if not FT: a(f'v_mov_b64 {P.sub(32,2)}, 0\nv_mov_b64 {P.sub(34,2)}, 0')
    a(f's_mov_b32 {sGW}, {sGW0}\ns_mov_b32 {sGA}, {sGA0}\ns_mov_b32 {sPF}, {sPF0}')
    def sig_end(name, soff, pre=''):
        far.append(f'{name}:\n{pre}{signal(soff)}\ns_mov_b32 {sSIG}, 0\ns_branch {name}_r')
        return f's_cmp_eq_u32 {sCNT}, {sSIG}\ns_cbranch_scc1 {name}\n{name}_r:'
    usig = sig_end('L2_su', sFU)
    far.append(f'L2_wn:\n{spin("L2_wn1", sFW, sTG)}\ns_branch L2_wn_r')
    far.append(f'L2_bad:\nds_write_b32 v{t+1}, {vONE}\ns_waitcnt lgkmcnt(0)\ns_branch L2_bad_r')
    su_s = f's_lshl_b32 {sW3}, {sDT}, 8\ns_add_u32 {sW3}, {sW3}, {NSY*64*2048}\ns_lshl_b32 {sT}, {sST}, 2\ns_add_u32 {sT}, {sT}, {sWAVE}\ns_lshl_b32 {sA3}, {sT}, 18\ns_add_u32 {sA3}, {sA3}, {OF + NSY*4096}\n'
    su_s += f's_add_u32 {sT3}, {sST}, {sDT}\ns_and_b32 {sT3}, {sT3}, {opt.get("rot", 1)}\n' + rot_setup(sT3, sW3, sA3, sSI, sSJ, 64 * 2048, 4096)
    su_s += f'\nv_bfe_u32 v{t+2}, v0, 4, 2\nv_lshrrev_b32 v{t+3}, 6, v0\nv_lshl_add_u32 v{t+2}, v{t+3}, 4, v{t+2}\nv_lshlrev_b32 v{t+2}, 11, v{t+2}'
    for i in range(4): su_s += f'\nv_sub_u32 {vWg.sub(i)}, {vWq.sub(i)}, v{t+2}' + (f'\nv_subrev_u32 {vWg.sub(i)}, {4*i*2048}, {vWg.sub(i)}' if i else '')
    su_a = f's_and_b32 {sT3}, {sDT}, 1\ns_mov_b32 {sT2}, {1 << 20}\ns_cmp_eq_u32 {sROLE}, 0\ns_cselect_b32 {sT2}, {4*112*2048}, {sT2}\ns_cselect_b32 {sT3}, {sT3}, 0\n'
    su_a += f's_mul_i32 {sT3}, {sT3}, {sT2}\ns_sub_u32 {sT2}, {sT2}, {sT3}\nv_add_u32 {vA0}, {sT3}, {vL16}\nv_add_u32 {vA1}, {sT2}, {vL16}'
    FR, TR = V(222, 8), V(230, 4)
    mg = int(opt.get('margin', MARGIN))
    ra = f'L2_ra:\ns_mov_b32 {sRCF}, 1\ns_nop 7\n'
    for b in range(4): ra += f'v_add_f32 {TR.sub(b)}, {LS.sub(4*b)}, {LS.sub(4*b+1)}\n'
    for b in range(4): ra += f'v_frexp_exp_i32_f32 {TR.sub(b)}, {TR.sub(b)}\n'
    for b in range(4): ra += f'v_sub_u32 {TR.sub(b)}, {1 - mg}, {TR.sub(b)}\n'
    for b in range(4): ra += f'v_ldexp_f32 {FR.sub(2*b)}, 1.0, {TR.sub(b)}\nv_cvt_f32_i32 {TR.sub(b)}, {TR.sub(b)}\n'
    for b in range(4):
        for i in range(4): ra += f'v_add_f32 {NEGM.sub(4*b+i)}, {NEGM.sub(4*b+i)}, {TR.sub(b)}\n'
    rb = f'L2_rb:\ns_mov_b32 {sRCF}, 0\nv_mov_b32 {TR.sub(1)}, 0x7f800000\ns_nop 7\n'
    for b in range(4):
        rb += f'v_add_f32 {TR.sub(0)}, {LS.sub(4*b)}, {LS.sub(4*b+1)}\nv_cmp_ge_f32 vcc, 0x47800000, {TR.sub(0)}\ns_nop 1\nv_cndmask_b32 {FR.sub(2*b)}, {TR.sub(1)}, {FR.sub(2*b)}, vcc\n'
        rb += f'v_pk_mul_f32 {LS.sub(4*b,2)}, {LS.sub(4*b,2)}, {FR.sub(2*b,2)} op_sel_hi:[1,0]\n'
    for k in range(32):
        for i in range(4): rb += f'v_accvgpr_read_b32 {TR.sub(i)}, {O.sub(4*k+i)}\n'
        for h in (0, 2): rb += f'v_pk_mul_f32 {TR.sub(h,2)}, {TR.sub(h,2)}, {FR.sub(2*(k & 3),2)} op_sel_hi:[1,0]\n'
        for i in range(4): rb += f'v_accvgpr_write_b32 {O.sub(4*k+i)}, {TR.sub(i)}\n'
    if RC: far += [ra + 's_branch L2_ra_r', rb + 's_branch L2_rb_r']
    marks = []
    for j in range(-1, 31):
        if 0 <= j <= 28 and j % 4 == 0: marks.append(st.mark())
        if j == 28: st.push(parse(su_a) + (parse(su_s) if g4.pre2 else []))
        if j == 30: st.push(flat(g4.window(0)[4:]) + (flat(g4.window(1)[4:8]) if g4.pre2 else parse(su_s)))
        if j < 0 and FT: first_tile(st, opt, pre)
        else: att_iter(st, j, g4, opt)
        assert not st.q
        if RC and 0 <= j < 28 and j % 4 == PA: a(f's_bitcmp1_b32 {sRCM}, {sCNT}\ns_cbranch_scc1 L2_ra\nL2_ra_r:')
        if RC and 0 <= j < 28 and j % 4 == (PA + 1) % 4: a(f's_cmp_lg_u32 {sRCF}, 0\ns_cbranch_scc1 L2_rb\nL2_rb_r:')
        if 0 <= j < 28 and j % 4 == 3: st.ops(publish(usig.split('\n'), 'wg'))
    st.fold(marks, 'L2_loop', sCNT)
    w1_ = flat(g4.window(1)[4:])
    if g4.pre2: w1_ = w1_[4:] + flat(g4.window(2)[2:10])
    st.push([10] + w1_[:5])
    st.push([valu(f'v_add_f32 {LS.sub(4*b)}, {LS.sub(4*b)}, {LS.sub(4*b+1)}') for b in range(4)])
    st.push(parse(f'v_add_f32 v{t+2}, {LS.sub(0)}, {LS.sub(4)}\nv_add_f32 v{t+3}, {LS.sub(8)}, {LS.sub(12)}\nv_add_f32 v{t+2}, v{t+2}, v{t+3}\nv_cmp_nge_f32 vcc, 0x47800000, v{t+2}'))
    st.push([valu(f'v_rcp_f32 {LS.sub(4*b)}, {LS.sub(4*b)}') for b in range(2)])
    st.push([[salu('s_cbranch_vccnz L2_bad'), salu('L2_bad_r:')], barrier(['N0']), Op(f'ds_read_b32 v{t}, v{t+1}', 'ds', wr=V(t).set())])
    st.push([valu(f'v_rcp_f32 {LS.sub(4*b)}, {LS.sub(4*b)}') for b in range(2, 4)])
    st.push(w1_[5:])
    st.push([valu(f'v_readfirstlane_b32 {sT}, v{t}', rd=[V(t)])])
    st.push([valu(f'v_mov_b32 {LS.sub(4*b+1)}, {LS.sub(4*b)}') for b in range(4)])
    st.push([[salu(f's_cmp_gt_u32 {sT}, {sMODE}'), salu('s_cbranch_scc1 L2_redo')]])
    st.push(parse(f's_add_u32 {sT}, {sO}, 4096\ns_add_u32 {sT2}, {sO}, {128*2048}\ns_add_u32 {sT3}, {sT2}, 4096'))
    st.push(parse(f's_lshr_b32 {sFW}, {sST}, 1\ns_lshl_b32 {sFW}, {sFW}, 8\ns_add_u32 {sFW}, {sFW}, {FL}'))
    def ini(e):
        x = QACC.sub(16 * e, 16)
        o = [valu(f'v_lshlrev_b32 {x.sub(i)}, 16, {BIAS.sub(e)}', rd=[BIAS.sub(e)]) for i in range(2)]
        return o + [valu(f'v_mov_b64 {x.sub(2*i,2)}, {x.sub(0,2) if i < 4 else 0}') for i in range(1, 8)]
    rd = g4.reads(0) + g4.reads(1)
    early_ = ini(0) + ini(1) + ini(7)
    for r in rd: st.push([r, early_.pop(0)])
    st.push(early_)
    att_iter(st, 31, g4, opt)
    st.flush()
    sp.stamp(st)
    kk = [0]
    def onorm(x, tt, b):
        for jj in range(2):
            for i in range(4): a(f'v_accvgpr_read_b32 {x.sub(4*jj+i)}, {O.sub(((2*tt+jj)*4+b)*4+i)}')
        for i in range(4): a(f'v_pk_mul_f32 {x.sub(2*i,2)}, {x.sub(2*i,2)}, {LS.sub(4*b,2)}')
        kk[0] += 1
        return Q.sub(32 + 4 * (kk[0] & 7), 4)
    act_store(st, 4, 4, onorm, [[sO, sT], [sT2, sT3]], NEGM)
    for e in range(2, 7): st.ops(ini(e))
    sp.stamp(st)
    a(f's_cmp_lg_u32 {sROLE}, 0\ns_cbranch_scc1 L2_Y')
    sy = st.fork(); spn = sp.n
    def hooks(g, name, events, sig=None, sigpos=2, code=False):
        pos = {c % 4 for c in events}; assert len(pos) == 1; pos = pos.pop()
        nf = g.nst // 4 - 1
        inl = {c: x for c, x in events.items() if g.folded(c)}
        out = [c for c in events if not g.folded(c)]
        txt = f'{name}:\n'
        for c, x in inl.items(): txt += f's_cmp_lg_u32 {sCNT}, {g.trip(c) - nf}\ns_cbranch_scc1 {name}_{c}\n{x}\n{name}_{c}:\n'
        if inl: far.append(txt + f's_branch {name}_r')
        mask = sum(1 << ((g.trip(c) - nf) & 31) for c in inl)
        def f(s, e):
            fold = g.folded(s)
            want = lambda d: ((s + d) % 4 == pos and (inl or any(g.folded(c - d) for c in out))) if fold else (s + d) in events
            if fold and sig and g.skew and (s % 4, e) == (1, 7):
                return {6: publish(sig.split('\n'), 'wg'), 3: [valu(f'v_readfirstlane_b32 {sT}, {vFL}', rd=[vFL])] if want(1) else []}
            if g.NA == 4 and e == 0 and want(1): return {3: [flag_load(sFW)]}
            if g.NA == 2 and e == 0 and want(2): return {3: [flag_load(sFW)]}
            if e == 7 and want(1): return {3: [valu(f'v_readfirstlane_b32 {sT}, {vFL}', rd=[vFL])]}
            if e == 0 and fold and inl and s % 4 == pos: return {3: [salu(f's_bitcmp1_b32 {mask}, {sCNT}'), salu(f's_cbranch_scc1 {name}'), salu(f'{name}_r:')]}
            if e == 0 and s in out:
                far.append(f'{name}o:\n{events[s]}\ns_branch {name}o_r')
                return {3: [salu(f's_branch {name}o'), salu(f'{name}o_r:')]}
            if fold and sig and not g.skew and (s % 4, e) == sigpos: return {(1 if g.NA == 4 else 3): publish(sig.split('\n'), 'wg')}
            if e == 2 and fold and code and s % 4 == 0 and opt.get('rpf', 1): return {3: [pfcode()]}
            return {}
        return f
    def need(name, target): return f's_cmp_ge_u32 {sT}, {target}\ns_cbranch_scc1 {name}_k\n{spin(name, sFW, target)}\n{name}_k:'
    def pack_store(x, y, so, off, zero=False):
        o = [valu(f'v_cvt_pk_bf16_f32 {x.sub(h)}, {(x, y)[h >> 1].sub(2*(h & 1))}, {(x, y)[h >> 1].sub(2*(h & 1)+1)}') for h in range(4)]
        o.append(vstore(f'buffer_store_dwordx4 {x}, {vL16}, {sWS}, {so} offen offset:{off} sc1'))
        if zero: o += [valu(f'v_mov_b64 {r.sub(h,2)}, 0') for r in (y, x) for h in (0, 2)]
        return o

    opre, opos = (f's_waitcnt vmcnt({10 + opt.get("rpf", 1)})\n', (0, opt.get('pe', 6))) if PW else ('', (1, 6))
    a(f's_mov_b32 {sSIG}, -6' if PW else f's_cmp_eq_u32 {sWAVE}, 0\ns_cselect_b32 {sSIG}, -6, 0')
    h4 = hooks(g4, 'L2_h4', {25: need('L2_c0', 16 * OM)}, sig_end('L2_so', sFO, opre), opos, True)
    g4.loop(st, 'L2_y', sCNT, extra=h4)
    n3 = g3s.nst
    l2e = f2h(-math.log2(math.e))
    su4 = f"""s_mov_b32 s58, {l2e}
s_mov_b32 s59, {l2e}
s_xor_b32 {sT3}, {sG}, 4
s_lshl_b32 {sP0}, {sT3}, 13
s_add_u32 {sP0}, {sP0}, {YB}
s_add_u32 {sP1}, {sP0}, 4096
s_lshl_b32 {sT3}, {sT3}, 7
s_add_u32 {sFO}, {sT3}, {FL + 16384 + 64}
s_lshl_b32 {sT3}, {sG}, 7
s_add_u32 {sFG}, {sT3}, {FL + 16384}
s_add_u32 {sFU}, {sFW}, {3 * 2048}
s_add_u32 {sFW}, {sFG}, 64
s_mov_b32 {sSIG}, {1 - n3 // 4}
s_lshl_b32 {sT3}, {sWAVE}, 14
s_lshl_b32 {sT4}, {sWAVE}, 11
v_and_b32 v{t+1}, 63, v0
v_lshlrev_b32 v{t+1}, 4, v{t+1}
v_add_u32 v{t}, {sT4}, v{t+1}
v_add_u32 v{t+1}, {sT3}, v{t+1}
v_bfe_u32 v{t+2}, v0, 4, 2
v_and_b32 v{t+3}, 15, v0
v_lshlrev_b32 v{t+2}, 2, v{t+2}
v_sub_u32 v{t+2}, v{t+3}, v{t+2}
v_and_b32 v{t+3}, 1, v0
v_lshlrev_b32 v{t+3}, 4, v{t+3}
v_mov_b32 {SEL.sub(0)}, 0x3f80
v_lshlrev_b32 v{t+3}, v{t+3}, {SEL.sub(0)}
v_lshrrev_b32 v{t+2}, 1, v{t+2}
v_cmp_eq_u32 vcc, 0, v{t+2}
v_mov_b32 {SEL.sub(0)}, 0
v_mov_b32 {SEL.sub(1)}, 0
v_cndmask_b32 {SEL.sub(2)}, 0, v{t+3}, vcc
v_cmp_eq_u32 vcc, 1, v{t+2}
v_mov_b32 {SEL.sub(4)}, 0
v_mov_b32 {SEL.sub(5)}, 0
v_cndmask_b32 {SEL.sub(3)}, 0, v{t+3}, vcc"""
    HP = opt.get('hp', 0)
    vHP = V(16)
    if HP:
        su4 += f"""
s_and_b32 {sT3}, {sST}, 3
s_lshl_b32 {sT3}, {sT3}, 1
s_bfe_u32 {sT4}, {sDT}, 0x10001
s_add_u32 {sT3}, {sT3}, {sT4}
s_lshl_b32 {sT3}, {sT3}, 2
s_add_u32 {sT3}, {sT3}, {sWAVE}
s_lshl_b32 {sT3}, {sT3}, 14
s_lshl_b32 {sT4}, {sT4}, 9
s_sub_u32 {sT3}, {sT3}, {sT4}
s_add_u32 {sT4}, {sST}, {sDT}
s_and_b32 {sT4}, {sT4}, {opt.get('rot', 1)}
s_lshl_b32 {sT4}, {sT4}, 17
s_sub_u32 {sT3}, {sT3}, {sT4}
s_add_u32 {sT3}, {sT3}, {opt.get('hd', 4) * 131072 + 256 + (128 if HP == 1 else 0)}
s_bitcmp1_b32 {sDT}, 0
s_cselect_b32 {sT3}, 0x20000000, {sT3}
v_bfe_u32 {vHP}, v0, 3, 3
v_lshlrev_b32 {vHP}, 11, {vHP}
v_bfe_u32 v{t+2}, v0, 2, {HP - 1}
v_lshl_add_u32 {vHP}, v{t+2}, 7, {vHP}
v_add_u32 {vHP}, {sT3}, {vHP}"""
    ysend = lambda e: pack_store(accq(e, 2), accq(e, 3), [sP0, sP1][e >> 2], 1024 * (e & 3), True)
    def g4x(s, e):
        if s == 25 and e == 1: st.push(parse(su4))
        if s == 27 and e == 2: assert not st.q
        if SK: k = {(27, 3): 4, (27, 5): 5, (27, 7): 6, (28, 1): 7, (28, 2): 0, (28, 3): 1}.get((s, e))
        else: k = e - 2 if (s == 27 and e >= 2) else None
        if k is not None: st.push(ysend(k))
        return h4(s, e)
    pre3 = g3s.window(0) + g3s.window(1) + g3s.window(2) + g3s.window(3)[:2]
    if g3s.uni: pre3 = g3s.window(0) + g3s.window(1) + g3s.window(2)[4:] + g3s.window(2)[:3]
    g4.last(st, lambda i: pre3[12 * i:12 * i + 12], g4x, chain=g3s)
    st.ops(g3s.reads(2))
    st.flush()
    sp.stamp(st)
    st.ops(ysend(2) + ysend(3) if SK else ysend(6) + ysend(7))
    sp.stamp(st)
    YR, PR = A(96, 32), A(128, 64)
    ev1 = need('L2_cy', 1) + f'\ns_lshl_b32 {sP0}, {sG}, 13\ns_add_u32 {sP0}, {sP0}, {YB}\ns_add_u32 {sP1}, {sP0}, 4096\ns_mov_b32 {sFW}, {sFU}\n'
    ev1 += '\n'.join(f'buffer_load_dwordx4 {YR.sub(4*e,4)}, {vL16}, {sWS}, {[sP0, sP1][e >> 2]} offen offset:{1024*(e & 3)} sc1' for e in range(8))
    ev2 = [mfma(accq(e, b), SEL.sub(2 - 2 * b, 4), YR.sub(4 * e, 4), accq(e, b)).text for e in range(8) for b in range(2)]
    for e in range(8):
        x = BIAS.sub((e & 1) * 8, 8); y = QACC.sub(16 * e, 8)
        ev2 += [f'v_pk_mul_f32 {x.sub(2*i,2)}, {y.sub(2*i,2)}, {sC}' for i in range(4)]
        ev2 += [f'v_exp_f32 {x.sub(i)}, {x.sub(i)}' for i in range(8)]
        ev2 += [f'v_pk_add_f32 {x.sub(2*i,2)}, {x.sub(2*i,2)}, 1.0 op_sel_hi:[1,0]' for i in range(4)]
        ev2 += [f'v_rcp_f32 {x.sub(i)}, {x.sub(i)}' for i in range(8)]
        ev2 += [f'v_pk_mul_f32 {y.sub(2*i,2)}, {x.sub(2*i,2)}, {y.sub(2*i,2)}' for i in range(4)]
        if e in (0, 4): ev2.append('s_waitcnt lgkmcnt(0)')
        ev2 += [f'ds_write_b128 v{t}, {y.sub(4*b,4)} offset:{8192*e + 1024*b}' for b in range(2)]
    ev2 = '\n'.join(ev2) + '\ns_waitcnt lgkmcnt(0)'
    c2 = 2 * (16 - 2 * A1) - 3
    ev = {9: ev1, 13: ev2}
    LT = opt.get('late', 0); tg2 = (16 - 2 * Y1) * OM
    if LT:
        ev[c2] = (ev[c2] + '\n' if c2 in ev else '') + f's_cmp_lt_u32 {sT}, {tg2}\ns_cselect_b32 {sRDY}, {(c2 + 3) // 4 - n3 // 4}, 0\ns_cselect_b32 {sT}, 0x40000000, 0\ns_mov_b32 {sP0}, {sA3}\ns_add_u32 {sA3}, {sA3}, {sT}'
        rl = '\n'.join(o.text for k in range(3) for o in flat(g3s.window(c2 + 3 + k)[4:]))
        far.append(f'L2_lt:\n{spin("L2_lt1", sFW, tg2, nap=1)}\ns_mov_b32 {sA3}, {sP0}\n{rl}\ns_waitcnt vmcnt(0)\ns_branch L2_lt_r')
        a(f's_mov_b32 {sRDY}, 0')
    else: ev[c2] = (ev[c2] + '\n' if c2 in ev else '') + need('L2_c2', tg2)
    assert c2 >= 13 and c2 < n3 - 4
    h3 = hooks(g3s, 'L2_h3', ev, sig_end('L2_sy1', sFO), (3, 1))
    g3s.loop(st, 'L2_s', sCNT, extra=lambda s, e: {3: [vload(f'buffer_load_dword {vDUM}, {vHP}, {sWO}, {sW3} offen')]} if (HP and s % 4 == 0 and e == 3) else h3(s, e),
             trip_end=(lambda s_: s_.raw(f's_cmp_eq_u32 {sCNT}, {sRDY}\ns_cbranch_scc1 L2_lt\nL2_lt_r:')) if LT else None)
    GFb = lambda k: accq(k >> 1, k & 1)
    pl = lambda so: [vload(f'buffer_load_dwordx4 {PR.sub(4*n,4)}, {vL16}, {sWS}, {so[n >> 2]} offen offset:{1024*(n & 3)} sc1', PR.sub(4 * n, 4)) for n in range(16)]
    PS = [sP0, sP1, sT4, sFU]
    pset = f's_add_u32 {sP1}, {sP0}, 4096\ns_add_u32 {sT4}, {sP0}, 8192\ns_add_u32 {sFU}, {sP0}, 12288'
    XT = 131072
    vXo, vXe = vWq, vWa
    su_x = f'v_bfe_u32 v{t+2}, v0, 4, 2\nv_and_b32 v{t+3}, 15, v0\nv_xor_b32 {vXo.sub(0)}, v{t+2}, v{t+3}\nv_lshlrev_b32 {vXo.sub(0)}, 4, {vXo.sub(0)}\nv_lshl_add_u32 {vXo.sub(0)}, v{t+2}, 11, {vXo.sub(0)}\n'
    for k in range(1, 4): su_x += f'v_xor_b32 {vXo.sub(k)}, {64*k}, {vXo.sub(0)}\nv_add_u32 {vXo.sub(k)}, {k*(8192-1024)}, {vXo.sub(k)}\n'
    su_x += f's_lshl_b32 {sT3}, {sWAVE}, 13\ns_add_u32 {sT3}, {sT3}, {XT}\ns_lshl_b32 {sG}, {sG}, 14\ns_add_u32 {sG}, {sG}, {GB}'
    su_e = f'v_lshrrev_b32 v{t}, 1, v{t+2}\nv_xor_b32 v{t}, v{t}, v{t+3}\nv_lshlrev_b32 v{t}, 4, v{t}\nv_lshl_add_u32 v{t}, v{t+3}, 8, v{t}\nv_and_b32 {vX}, 1, v{t+2}\nv_lshl_add_u32 v{t}, {vX}, 3, v{t}\nv_add_u32 {vXe.sub(0)}, {sT3}, v{t}\n'
    for k in range(1, 8): su_e += f'v_xor_b32 {vXe.sub(k)}, {32*k}, {vXe.sub(0)}\n'
    su_e += f'v_and_b32 {vX}, 63, v0\nv_lshl_add_u32 {vX}, {vX}, 4, {sT3}'
    a(su_x)
    def xwin(i_):
        if i_: return []
        r_ = xw()
        return r_[4:] + r_[:4] if g3s.uni else r_
    def xw():
        return [([salu(f's_add_u32 m0, {sT3}, {4096 * (n >> 2)}')] if n % 4 == 0 else [],
                 vload(f'buffer_load_dwordx4 {vXo.sub(n & 3)}, {sX}, {[sR0, sR1][n >> 2]} offen offset:{1024*(n & 3)} lds', tag=f'x{n}'), []) for n in range(8)]
    FE = opt.get('fe', 8)
    def s3x(s, e):
        if s == n3 - 4 and e == 0:
            v_ = parse(su_e)
            for k in range(16): st.push([ds_128(GFb(k), V(t + 1), 8192 * (k & 1) + 1024 * (k >> 1)), v_.pop(0)])
            un = v_
            for k in range(16):
                b, e_ = k >> 3, k & 7
                x = XF.sub((e_ * 2 + b) * 4, 4)
                st.push([Op(f'ds_read_b64 {x.sub(2,2)}, {vXe.sub(e_)} offset:{4096*b}', 'ds', wr=x.sub(2, 2).set(), waittags=[f'x{4*b+3}'])])
                if k >= 4: st.push([un.pop(0)])
                un += [valu(f'v_lshlrev_b32 {x.sub(0)}, 16, {x.sub(2)}', rd=[x]), valu(f'v_and_b32 {x.sub(1)}, 0xffff0000, {x.sub(2)}'),
                       valu(f'v_lshlrev_b32 {x.sub(2)}, 16, {x.sub(3)}'), valu(f'v_and_b32 {x.sub(3)}, 0xffff0000, {x.sub(3)}')]
            st.push(un)
        if 8 * (s - n3 + 4) + e == FE: return {3: [flag_load(sFG)]}
        if 8 * (s - n3 + 3) + e == FE:
            old = st.q; st.q = []
            st.push([valu(f'v_readfirstlane_b32 {sRDY}, {vFL}', rd=[vFL]), 1])
            st.push(parse(f's_cmp_ge_u32 {sRDY}, 2\ns_cselect_b32 {sP0}, {sG}, 0x40000000\n' + pset))
            st.push(pl(PS))
            st.q += old
        return {}
    g3s.last(st, xwin, s3x)
    sp.stamp(st)
    far.append(f'L2_wg:\n{spin("L2_wg1", sFG, 2, nap=0)}\ns_mov_b32 {sP0}, {sG}\n{pset}\n' + '\n'.join(o.text for o in pl(PS)) + '\ns_branch L2_wg_r')
    KP = opt.get('keep', 32)
    keep = st.q[-KP:]; st.q = st.q[:-KP]
    assert all(g[0].kind == 'valu' for g in keep)
    st.flush(); st.q = keep
    assert st.pend[('a', 128)][1] == st.issued['vm'] - 15 and st.done['vm'] < st.issued['vm'] - 15
    a(f's_cmp_lt_u32 {sRDY}, 2\ns_cbranch_scc1 L2_wg\nL2_wg_r:')
    sp.stamp(st)
    mf = [mfma(acc3(e, b), SEL.sub(2 - 2 * (e & 1), 4), PR.sub((j * 8 + b * 4 + (e >> 1)) * 4, 4), acc3(e, b)) for j in range(2) for b in range(2) for e in range(8)]
    st.gaps(mf, [[] for _ in mf])
    st.flush()
    OD = lambda n: accq(n, 0)
    ost = lambda n: st.op(vstore(f'buffer_store_dwordx4 {OD(n)}, {vXo.sub(n & 3)}, {sOUT}, {[sR0, sR1][n >> 2]} offen offset:{1024*(n & 3)}' + opt.get('osuf', ''), rd=[OD(n)]))
    for b in range(2):
        for e in range(8):
            k = (e * 2 + b) * 4
            for h in (0, 2): st.op(valu(f'v_pk_fma_f32 {XF.sub(k+h,2)}, {acc3(e, b).sub(h,2)}, {accq(e, b).sub(h,2)}, {XF.sub(k+h,2)}', rd=[accq(e, b)]))
            for h in (0, 2): a(f'v_cvt_pk_bf16_f32 {XF.sub(k + h // 2)}, {XF.sub(k+h)}, {XF.sub(k+h+1)}')
            st.op(Op(f'ds_write_b64 {vXe.sub(e)}, {XF.sub(k,2)} offset:{4096*b}', 'ds'))
            if b == 1 and e >= 4: ost(e - 4)
        for n in range(4 * b, 4 * b + 4): st.op(ds_128(OD(n), vX, 1024 * n))
    for n in range(4, 8): ost(n)
    if sp.on: a('s_waitcnt vmcnt(0)')
    sp.stamp(st)
    sp.flush(st, sWS, t)
    a('L2_end:\ns_endpgm')

    a = sy.raw; sp.n = spn
    a('L2_Y:')
    assert (2 * A1 - 3) % 4 != 0
    a(f"""s_cmp_eq_u32 {sWAVE}, {sWAVE if PW else 0}
s_cselect_b32 {sSIG}, {1 - NY // 4}, 0
s_and_b32 {sT3}, {sST}, 1
s_lshl_b32 {sT4}, {sT3}, 11
s_add_u32 {sFW}, {sFW}, {sT4}
s_add_u32 {sFW}, {sFW}, 2048
s_andn2_b32 {sG}, {sG}, 32
s_lshl_b32 {sFG}, {sG}, 7
s_add_u32 {sFG}, {sFG}, {FL + 16384}
s_lshl_b32 {sG}, {sG}, 14
s_lshl_b32 {sT3}, {sT3}, 13
s_add_u32 {sG}, {sG}, {sT3}
s_add_u32 {sG}, {sG}, {GB}
s_add_u32 {sP0}, {sG}, 4096
s_add_u32 {sR0}, {sG}, {32 << 14}
s_add_u32 {sR1}, {sR0}, 4096""")
    hy = hooks(g3y, 'L2_hy', {2 * A1 - 2: need('L2_c1', Y1 * OM)}, sig_end('L2_yo', sFO, opre), opos, True)
    g3y.loop(sy, 'L2_sy', sCNT, extra=hy)
    def pstore(p):
        o = []
        for b in range(4): o += pack_store(accq(2 * p, b), accq(2 * p + 1, b), [sG, sP0, sR0, sR1][b], 1024 * p)
        return o
    def yx(s, e):
        if SK: k = {(NY - 1, 5): 2, (NY, 1): 3, (NY, 3): 0}.get((s, e))
        else: k = e // 2 - 1 if (s == NY - 1 and e in (3, 5, 7)) else None
        if k is not None: sy.push(pstore(k))
        return hy(s, e)
    g3y.last(sy, None, yx)
    sy.flush()
    sp.stamp(sy); sp.stamp(sy); sp.stamp(sy)
    sy.ops(pstore(1 if SK else 3))
    a(f'v_and_b32 v{t}, 1, v0\nv_lshlrev_b32 v{t}, 12, v{t}\ns_waitcnt vmcnt(0)')
    sp.stamp(sy)
    a(f's_mov_b64 exec, 3\nbuffer_atomic_add {vONE}, v{t}, {sWS}, {sFG} offen sc1\ns_mov_b64 exec, -1\ns_waitcnt vmcnt(0)')
    sp.stamp(sy)
    sp.flush(sy, sWS, t)
    a('s_endpgm')

    a = sg.raw; sp.n = spg
    a('L2_G:')
    qm = q_last_extra(sg, V(10, 8), 'L2_wb')
    def gx(s, e):
        if s == 12 + SK and e == 0:
            sg.push(parse(su_g2))
        ux = lambda r: [valu(f'v_xor_b32 {vWa.sub(k)}, {sROT}, {vWa.sub(k)}') for k in r]
        if not SK and s == 15 and e in (2, 6): sg.push(ux(range(2) if e == 2 else range(2, 8)))
        if SK and (s, e) == (16, 0): return {3: ux(range(2))}
        if SK and (s, e) == (16, 2): sg.push(ux(range(2, 8)))
        if s == 13 and e == (7 if SK else 4): assert len(sg.q) <= 2 * SK, len(sg.q)
        if s == 13 and e == 6 + SK:
            sg.push([vload(f'buffer_load_dwordx2 {BIAS.sub(2*n,2)}, {vFL}, {sBB}, {sB if n < 6 else sBN} offen offset:{32*n}', BIAS.sub(2 * n, 2)) for n in range(GW)])
        return qm(s, e)
    gq.last(sg, g2.window, gx, chain=g2)
    sg.flush()
    sp.stamp(sg)
    q_epilogue(sg, V(10, 8), GW)
    a(f'v_lshrrev_b32 {vCO}, 2, {vPF}\nv_min_u32 {vCO}, 0x2b0, {vCO}')
    sp.stamp(sg)
    g2.loop(sg, 'L2_g', sCNT, extra=lambda s, e: {1: [pfcode()]} if (opt.get('rpf', 1) and s % 4 == 2 and e == 5) else {})
    k0 = 2.0 * math.sqrt(2.0 / math.pi) * math.log2(math.e)
    last_before_att(g2, sg, f's_mov_b32 s10, 0\ns_mov_b32 s58, {f2h(-k0*0.044715)}\ns_mov_b32 s59, {f2h(-k0*0.044715)}')
    sp.stamp(sg)
    C1 = V(t + 2, 2)
    a(f'v_mov_b32 {C1.sub(0)}, {f2h(-k0)}\nv_mov_b32 {C1.sub(1)}, {f2h(-k0)}')
    a(f's_add_u32 {sT}, {sU}, 4096\ns_add_u32 {sT2}, {sU}, {112*2048}\ns_add_u32 {sT3}, {sT2}, 4096')
    def gelu(x, tt, b):
        u = [(accq(2 * tt + (i >> 1), b) if tt < GW // 2 else accq(6, b + (i >> 1))).sub(2 * (i & 1), 2) for i in range(4)]
        for i in range(4): a(f'v_pk_mul_f32 {x.sub(2*i,2)}, {u[i]}, {u[i]}')
        for i in range(4): a(f'v_pk_fma_f32 {x.sub(2*i,2)}, {x.sub(2*i,2)}, {sC}, {C1}')
        for i in range(4): a(f'v_pk_mul_f32 {x.sub(2*i,2)}, {x.sub(2*i,2)}, {u[i]}')
        for i in range(8): a(f'v_exp_f32 {x.sub(i)}, {x.sub(i)}')
        for i in range(4): a(f'v_pk_add_f32 {x.sub(2*i,2)}, {x.sub(2*i,2)}, 1.0 op_sel_hi:[1,0]')
        for i in range(8): a(f'v_rcp_f32 {x.sub(i)}, {x.sub(i)}')
        for i in range(4): a(f'v_pk_mul_f32 {x.sub(2*i,2)}, {x.sub(2*i,2)}, {u[i]}')
        return accq(2 * tt, b)
    act_store(sg, 4, GW // 2, gelu, [[sU, sT], [sT2, sT3]], BIAS)
    a(f's_add_u32 {sT}, {sU}, {sGA}\ns_add_u32 {sT2}, {sT2}, {sGA}')
    for b in ((0, 2) if GW == 7 else ()):
        x = BIAS.sub(4 * b, 8); d = gelu(x, 3, b)
        for i in range(4): a(f'v_cvt_pk_bf16_f32 {d.sub(i)}, {x.sub(2*i)}, {x.sub(2*i+1)}')
        for h in range(2): sg.op(vstore(f'buffer_store_dwordx2 {d.sub(2*h,2)}, {vL16}, {sWS}, {[sT, sT2][b >> 1]} offen offset:{1024*h} sc1'))
    a(f'v_lshrrev_b32 {vCO}, 2, {vPF}\nv_min_u32 {vCO}, 0x2b0, {vCO}')
    jn = Op('s_branch L2_join', 's', waittags=['K0', 'K1', 'K2', 'V0', 'V1']); jn.lg0 = True
    sg.op(jn)
    for x in far: a(x)

    a('L2_redo:')
    if opt.get('cntredo'): a(f's_mov_b32 {sT}, {56 << 20}\n' + signal(sT))
    a(f's_mov_b32 {sMODE}, 1\ns_mov_b32 {sRCM}, 0\ns_mov_b32 {sK}, {sKV0}\ns_mov_b32 {sCNT}, -32')
    for b in range(4): a(f'v_mov_b32 {M.sub(b)}, 0xff800000')
    a('L2_mx:\ns_waitcnt vmcnt(0) lgkmcnt(0)\ns_barrier')
    for pre, v, post in kdma(0):
        for o in pre: a(o.text + '\ns_nop 0')
        a(v.text)
        for o in post: a(o.text)
    a('s_waitcnt vmcnt(0)\ns_barrier')
    for c in range(4):
        for tt in range(4): a(kread(0, c, tt).text)
        a('s_waitcnt lgkmcnt(0)')
        for b in range(4):
            for tt in range(4): a(mfma(P.sub(4 * b, 4), Kf(c, tt), Qf(b, tt), P.sub(4 * b, 4) if tt else 0).text)
        a('s_nop 7')
        for b in range(4):
            x = P.sub(4 * b, 4)
            a(f'v_max3_f32 {M.sub(b)}, {M.sub(b)}, {x.sub(0)}, {x.sub(1)}\nv_max3_f32 {M.sub(b)}, {M.sub(b)}, {x.sub(2)}, {x.sub(3)}')
    a(f's_add_u32 {sCNT}, {sCNT}, 1\ns_cbranch_scc0 L2_mx')
    negm_finish(a, M, 0.0)
    a(f's_mov_b32 {sK}, {sKV0}\ns_mov_b32 {sV}, {sKV0}\ns_barrier')
    for pre, v, post in pre_kv:
        for o in pre: a(o.text + '\ns_nop 0')
        a(v.text)
        for o in post: a(o.text)
    a('s_waitcnt vmcnt(0)\ns_barrier')
    for tt in range(4): a(kread(0, 0, tt).text)
    a(kread(0, 1, 0).text)
    a('s_waitcnt lgkmcnt(0)\ns_branch L2_att')
    return st.lines() + sy.lines() + sg.lines(), kd(KNAME, 512, 256, 102), '; @launch ' + (f'kernel={KNAME} ' if opt.get('aslist') or 'probe' in opt else '') + 'grid=(256,1,1) block=(256,1,1) lds=163840'
```

```python
from fw import *
from gemm import *
STAT, HF, UF, OF, GB, FL, YB = 0, 4 << 20, 8 << 20, 16 << 20, 32 << 20, 40 << 20, 44 << 20
WS_SIZE = 128 << 20
SHADOW = (64 << 20) + 128
LSTR = 2112
KNAME = 'recurrent_scan__mha_block_cached__mixer_token_mlp__prompt_kernel'
import math, struct
def f2h(x): return '0x%08x' % struct.unpack('<I', struct.pack('<f', x))[0]

KBASE, VBASE, QRING, FLAG = 0, 65536, 98304, 131072
MARGIN = 102.0
sWS, sWQ, sKC, sVC, sW1, sWN, sWO, sBB = ['s[%d:%d]' % (i, i + 3) for i in range(4, 36, 4)]
sOUT = sW1
sWAVE, sLDS, sCNT, sQW, sQA, sK, sV, sGW, sGA, sO, sU, sPF, sMODE, sROT = ['s%d' % i for i in range(36, 50)]
sKV0, sGW0, sGA0, sPF0, sT, sT2 = ['s%d' % i for i in range(50, 56)]
sB = sGW
sC = 's[58:59]'
sSLOT, sIDX, sHEAD, sQ64, sST, sDT, sT3, sT4 = ['s%d' % i for i in range(60, 68)]
sX = 's[68:71]'
sQI, sQJ, sGI, sGJ = ['s72', 's73'], ['s74', 's75'], ['s76', 's77'], ['s78', 's79']
sNI, sNJ, sSI, sSJ = sQI, sQJ, sGI, sGJ
sW3, sA3, sSIG, sFO, sFU, sFW, sFG, sG, sR0, sR1, sSTR, sTG, sGRP, sP0, sROLE, sBN = ['s%d' % i for i in range(80, 96)]
sP1, sRDY = 's100', 's101'
vCO = V(42)
def pfcode(): return vload(f'global_load_dword {vDUM}, {vCO}, s[56:57]')
sDBG, sQA2 = 's[72:75]', 's3'
XSLOT, CSB = [65536, 32768], 49152

vL16 = V(1)
vWq, vWg, vKd, vVd = V(2, 4), V(6, 4), V(10, 4), V(14, 2)
vKa, vVa, vWa = V(16, 4), V(20, 8), V(28, 8)
vPF, vDUM, vTMP = V(36), A(60), 38
vZERO, vONE, vFL, vX = V(37), V(43), V(252), V(253)
vL16b = vX
Q = V(44, 64)
QACC = V(108, 128)
S, T, P, NEGM, LS, ONES, vIDX = V(28, 8), V(6, 4), V(44, 64), V(236, 16), A(32, 16), A(48, 4), V(37)
QA, BA = A(64, 64), A(52, 8)
BIAS = V(236, 16)
XF, SEL, vA0, vA1 = V(44, 64), V(10, 6), V(36), V(253)
ONESQ, IDXQ, CS, vXd, vXa, vCw, vCr = V(44, 4), V(48), V(52, 8), V(60, 4), V(64, 2), V(66), V(68, 4)
O, KF, VF, GACT = V(108, 128), A(128, 32), A(160, 32), A(192, 64)

def Pf(tile, u, b, n=4): return P.sub((tile & 1) * 32 + b * 8 + u * 4, n)
def Qf(b, t): return Q.sub((b * 4 + t) * 4, 4)
def Qa(b, t): return QA.sub((b * 4 + t) * 4, 4)
def Kf(c, t): return KF.sub((c & 1) * 16 + t * 4, 4)
def Vf(e, u): return VF.sub((e & 3) * 8 + u * 4, 4)
def kread(tile, c, t): return ds_128(Kf(c, t), vKa.sub(t), (tile & 3) * 16384 + c * 4096)
def vread(tile, e, u, tt): return ds_tr(Vf(e, u).sub(2 * tt, 2), vVa.sub(e), (tile & 3) * 16384 + u * 8192 + tt * 4096)
def kdma(n):
    return [([salu(f's_add_u32 m0, {sLDS}, {KBASE + (n & 3) * 16384}')] if i == 0 else [],
             vload(f'buffer_load_dwordx4 {vKd.sub(i)}, {sKC}, {sK} offen offset:{i*1024} lds', tag=f'K{n}'),
             [salu(f's_add_u32 {sK}, {sK}, 16384')] if i == 3 else []) for i in range(4)]
def vdma(n):
    return [([salu(f's_add_u32 m0, {sLDS}, {VBASE + (n & 3) * 16384}')] if i == 0 else [],
             vload(f'buffer_load_dwordx4 {vVd.sub(i & 1)}, {sVC}, {sV} offen offset:{i*1024} lds', tag=f'V{n}'),
             [salu(f's_add_u32 {sV}, {sV}, 16384')] if i == 3 else []) for i in range(4)]
def flat(elems):
    o = []
    for pre, v, post in elems: o += pre + [v] + post
    return o
def pfw1():
    return [vload(f'buffer_load_dword {vDUM}, {vPF}, {sWQ}, {sQW} offen'), salu(f's_add_u32 {sQW}, {sQW}, {1 << 21}')]
def rowsum(j, b): return Op(f'v_smfmac_f32_16x16x64_bf16 {LS.sub(4*b,4)}, {ONES}, {Pf(j, 0, b, 8)}, {vIDX}', 'mfma')

def att_iter(st, j, gn, opt):
    a = j + 1
    qk, pv = a <= 31, j >= 0
    t_ = vTMP
    def window(w):
        k = kdma(w + 4) if w + 4 <= 31 else gn.window(w - 28)[:(4, 4, 2, 0)[w - 28]]
        v = vdma(w + 3) if w + 3 <= 31 else []
        return k, v
    kcur, vcur = window(j)
    kprev, vprev = window(j - 1) if j >= 0 else ([], [])
    dma = {11: kcur[0:1], 13: kcur[1:2], 15: kcur[2:3], 1: kprev[3:4], 3: vprev[0:1], 5: vprev[1:2], 7: vprev[2:3], 9: vprev[3:4]}
    dd = opt.get('dd', 0)
    if dd: dma = {11: kcur[0:2], 15: kcur[2:4], 3: vprev[0:2], 7: vprev[2:4]}
    if j == 31: dma = {}
    Z = P.sub(32, 4)
    mf_all, fill_all = [], []
    pend = []
    for n in range(16):
        c, b, e = n >> 2, n & 3, n >> 1
        m = [None] * 9
        f = [[] for _ in range(9)]
        sc = [[] for _ in range(9)]
        sc[0] += pend; pend = []
        Sn, Sp = S.sub((n & 1) * 4, 4), S.sub(((n + 1) & 1) * 4, 4)
        if qk:
            for t in range(4):
                t2 = 3 - t if (opt.get('qz') and n & 1) else t
                m[t] = mfma(Sn, Kf(c, t2), Qa(b, t2), NEGM.sub(4 * b, 4) if t == 0 else Sn)
        for jj in range(2):
            bb = 2 * (n & 1) + jj
            Ob = O.sub((e * 4 + ((bb & ~1) + (j & 1) if opt.get('fk', 0) & 2 else bb)) * 4, 4)
            if pv:
                for u in range(2):
                    uu = u ^ jj if opt.get('zig', 1) else u
                    m[4 + 2 * jj + u] = mfma(Ob, Pf(j, uu, bb), Vf(e, uu), Ob) if opt.get('xswap') else mfma(Ob, Vf(e, uu), Pf(j, uu, bb), Ob)
            else: m[5 + 2 * jj] = mfma(Ob, Z, Z, 0)
        if pv and opt.get('pv1'):
            for bb in range(4):
                Ob = O.sub((e * 4 + bb) * 4, 4)
                m[4 + bb] = mfma(Ob, Vf(e, n & 1), Pf(j, n & 1, bb), Ob)
        if qk and pv and opt.get('ilv'):
            m[:8] = [m[0], m[1], m[4], m[5], m[2], m[3], m[6], m[7]]
        if j == 31:
            if n == 0: m[0], m[2] = rowsum(j, 0), rowsum(j, 1)
            if n == 1: m[0], m[8] = rowsum(j, 2), rowsum(j, 3)
        elif b == 3: m[8] = rowsum(j, c) if pv else mfma(LS.sub(4 * c, 4), Z, Z, 0)
        pt, pn = (a, n - 1) if n > 0 else (j, 15)
        if 0 <= pt <= 31:
            pc, pb = pn >> 2, pn & 3
            for i in range(4): f[2 * i].append(valu(f'v_exp_f32 {T.sub(i)}, {Sp.sub(i)}'))
            f[3].append(valu(f'v_cvt_pk_bf16_f32 {Pf(pt, pc >> 1, pb).sub(2 * (pc & 1))}, {T.sub(0)}, {T.sub(1)}'))
            if not pv: f[7].append(salu('s_nop 0'))
        elif pt < 0: f[7].append(salu('s_nop 3'))
        pt, pn = (a, n - 2) if n > 1 else (j, 14 + n)
        if 0 <= pt <= 31:
            pc, pb = pn >> 2, pn & 3
            f[1].append(valu(f'v_cvt_pk_bf16_f32 {Pf(pt, pc >> 1, pb).sub(2 * (pc & 1) + 1)}, {T.sub(2)}, {T.sub(3)}'))
        if 0 <= j < 28 and 'e' in opt.get('xa', ''): f = [[] for _ in range(9)]
        kq = 16 * a + n + 5
        kt, kc, kk = kq >> 4, (kq >> 2) & 3, kq & 3
        if kt <= 31: f[5].insert(0, kread(kt, kc, kk))
        vq = 16 * j + n + 3
        vt, ve, vu = vq >> 4, (vq >> 1) & 7, vq & 1
        if 0 <= vt <= 31:
            g0, g1 = (1, 3) if (qk or n < 2) else (4, 6)
            f[g0].insert(0, vread(vt, ve, vu, 0)); f[g1].insert(0, vread(vt, ve, vu, 1))
        if 0 <= j < 28 and 'r' in opt.get('xa', ''): f = [[o for o in x if o.kind != 'ds'] for x in f]
        if 0 <= j < 28 and 'd' in opt.get('xa', ''):
            for pre, v, post in dma.get(n, []): v.text = 's_nop 0'
        for k, (pre, v, post) in enumerate(dma.get(n, [])):
            sc[6] += pre; f[7 + k].append(v)
            if n == 15: f[8] += post
            else: pend += post
        if n == 10 and j <= 30:
            f[7].append(barrier([f'V{j+1}'] + ([f'K{j+2}'] if j + 2 <= 31 else [])))
        if opt.get('pf_w', 1) and 0 <= j < 28 and n == 2 and (j & 3) == 0:
            f[7].append(vload(f'buffer_load_dword {vDUM}, {vPF}, {sWN}, {sPF} offen'))
            pend.append(salu(f's_add_u32 {sPF}, {sPF}, 4096'))
        if opt.get('pf_w1', 1) and j < 28 and n == 2 and (j & 1):
            f[7].append(pfw1()[0]); pend.append(pfw1()[1])
        if opt.get('rpf', 1) and 0 <= j < 28 and n == 2 and (j & 3) == 2: f[7].append(pfcode())
        if j == 28 and n == 0: f[7] += [valu(f'v_and_b32 v{t_}, 15, v0'), valu(f'v_lshlrev_b32 v{t_}, 1, v{t_}')]
        if j == 28 and n == 2: f[7].append(flag_load(sFW))
        if j in (28, 29) and n in (4, 6, 8, 12):
            k = (j - 28) * 4 + (4, 6, 8, 12).index(n)
            f[7].append(vload(f'buffer_load_ushort {BA.sub(k)}, v{t_}, {sBB}, {sBN} offen offset:{32*k}', BA.sub(k)))
        if j == 29 and n == 13: f[5].append(valu(f'v_readfirstlane_b32 {sT}, {vFL}', rd=[vFL]))
        if j == 29 and n == 14: f[7] += [salu(f's_cmp_lt_u32 {sT}, {sTG}'), salu('s_cbranch_scc1 L2_wn'), salu('L2_wn_r:')]
        for g in range(9):
            ops = sc[g] + f[g]
            if m[g] is not None: mf_all.append(m[g]); fill_all.append(ops)
            elif fill_all: fill_all[-1] += ops
            else: st.ops(ops)
    assert not pend
    nxt = mfma(S.sub(0, 4), Kf(0, 0), Qa(0, 0), NEGM.sub(0, 4)) if a + 1 <= 31 else None
    st.gaps(mf_all, fill_all, nxt)

def first_tile(st, opt, pre):
    a = st.raw
    SQ = [O.sub(4 * k, 4) for k in range(15)] + [S.sub(4, 4)]
    M = T
    def mx(n):
        x, m = SQ[n], M.sub(n & 3)
        if n < 4: return [valu(f'v_max3_f32 {m}, {x.sub(0)}, {x.sub(1)}, {x.sub(2)}'), valu(f'v_max_f32 {m}, {m}, {x.sub(3)}')]
        return [valu(f'v_max3_f32 {m}, {m}, {x.sub(0)}, {x.sub(1)}'), valu(f'v_max3_f32 {m}, {m}, {x.sub(2)}, {x.sub(3)}')]
    mf, fl = [], []
    for n in range(16):
        c, b = n >> 2, n & 3
        for t in range(4):
            mf.append(mfma(SQ[n], Kf(c, t), Qf(b, t), SQ[n] if t else 0)); fl.append([])
        if n + 5 < 16: fl[-3].append(kread(0, (n + 5) >> 2, (n + 5) & 3))
        if n >= 2: fl[-1] += mx(n - 2)
    pre = [valu(x) for x in pre]; pre[0].rd = [('z', 0)]
    st.push(pre + [valu(f'v_accvgpr_write_b32 {QA.sub(i)}, {Q.sub(i)}') for i in range(64)] + [valu(f'v_mov_b64 {O.sub(i,2)}, 0') for i in range(60, 128, 2)])
    st.gaps(mf, fl)
    st.flush()
    a(f's_cmp_lg_u32 {sMODE}, 0\ns_cbranch_scc1 L2_m1')
    st.ops(mx(14) + mx(15))
    negm_finish(a, M, opt.get('margin', MARGIN), S.sub(0, 4))
    a('L2_m1:')
    mem = [barrier(['V0', 'K1'])] + [kread(1, 0, t) for t in range(4)] + [kread(1, 1, 0)]
    kd_ = kdma(3)
    mem += [kd_[0][0][0], vread(0, 0, 0, 0), kd_[0][1], vread(0, 0, 0, 1), kd_[1][1], vread(0, 0, 1, 0), kd_[2][1], vread(0, 0, 1, 1), vread(0, 1, 0, 0), vread(0, 1, 0, 1)]
    if opt.get('pf_w1', 1): mem = pfw1() + mem
    for n in range(16):
        c, b = n >> 2, n & 3
        x = SQ[n]
        for h in (0, 2): a(f'v_pk_add_f32 {x.sub(h,2)}, {x.sub(h,2)}, {NEGM.sub(4*b,2)}')
        if 0 < n < 15: a(f'v_cvt_pk_bf16_f32 {Pf(0, (n-1) >> 3, (n-1) & 3).sub(2 * (((n-1) >> 2) & 1) + 1)}, {T.sub(2)}, {T.sub(3)}')
        if n < 15:
            for i in range(4): a(f'v_exp_f32 {T.sub(i)}, {x.sub(i)}')
            a(f'v_cvt_pk_bf16_f32 {Pf(0, c >> 1, b).sub(2 * (c & 1))}, {T.sub(0)}, {T.sub(1)}')
        if n < 15: a(f'v_mov_b64 {x.sub(0,2)}, 0\nv_mov_b64 {x.sub(2,2)}, 0')
        if n >= 4:
            for _ in range(2):
                if mem: st.op(mem.pop(0))
    assert not mem

def negm_finish(a, M, margin, M2=None):
    M2 = M2 or P.sub(20, 4)
    for p in ('16', '32'):
        for b in range(4): a(f'v_mov_b32 {M2.sub(b)}, {M.sub(b)}')
        for b in range(4): a(f'v_permlane{p}_swap_b32 {M2.sub(b)}, {M.sub(b)}')
        for b in range(4): a(f'v_max_f32 {M.sub(b)}, {M.sub(b)}, {M2.sub(b)}')
    for b in range(4):
        for i in range(2): a(f'v_sub_f32 {NEGM.sub(4*b+i)}, {f2h(-margin)}, {M.sub(b)}')
        a(f'v_mov_b64 {NEGM.sub(4*b+2,2)}, {NEGM.sub(4*b,2)}')

def act_store(st, NB, nt, fn, soffs, T0):
    a = st.raw
    k = 0
    for tt in range(nt):
        for b in range(NB):
            x = T0.sub((k & 1) * 8, 8); k += 1
            d = fn(x, tt, b)
            for i in range(4): a(f'v_cvt_pk_bf16_f32 {d.sub(i)}, {x.sub(2*i)}, {x.sub(2*i+1)}')
            st.op(vstore(f'buffer_store_dwordx4 {d}, {vL16}, {sWS}, {soffs[b >> 1][tt >> 1]} offen offset:{(tt & 1) * 2048 + (b & 1) * 1024} sc1'))

def signal(soff, sWS=sWS):
    return f's_mov_b64 exec, 1\nbuffer_atomic_add {vONE}, off, {sWS}, {soff} sc1\ns_mov_b64 exec, -1'
def flag_load(soff, sWS=sWS):
    return vload(f'buffer_load_dword {vFL}, off, {sWS}, {soff} sc1', vFL)
def spin(label, soff, target, sWS=sWS, nap=4):
    return (f's_mov_b32 {sT2}, {-(1 << 20)}\n{label}:\nbuffer_load_dword {vFL}, off, {sWS}, {soff} sc1\ns_add_u32 {sT2}, {sT2}, 1\ns_cbranch_scc1 {label}_x\n'
            f's_waitcnt vmcnt(0)\nv_readfirstlane_b32 {sT}, {vFL}\ns_nop 0\ns_cmp_lt_u32 {sT}, {target}\ns_cbranch_scc1 {label}\n{label}_x:\ns_waitcnt vmcnt(0)')
def rot_setup(srot, sw, sa, swi, sai, winc, ainc):
    L = f's_cmp_lg_u32 {srot}, 0\ns_cselect_b32 {sT}, -1, 1\ns_cselect_b32 {sT2}, 3, 1\n'
    L += f's_mul_i32 {swi[0]}, {sT}, {winc}\ns_mul_i32 {swi[1]}, {sT2}, {winc}\n'
    if sai: L += f's_mul_i32 {sai[0]}, {sT}, {ainc}\ns_mul_i32 {sai[1]}, {sT2}, {ainc}\n'
    L += f's_mul_i32 {sT}, {srot}, {winc}\ns_add_u32 {sw}, {sw}, {sT}\ns_mul_i32 {sT}, {srot}, {ainc}\ns_add_u32 {sa}, {sa}, {sT}'
    return L

def halfsum(regs_, tmp):
    L = []
    for m in ('quad_perm:[1,0,3,2]', 'quad_perm:[2,3,0,1]', 'row_half_mirror', 'row_mirror'):
        L.append('s_nop 1' if len(regs_) == 1 else 's_nop 0')
        for v in regs_: L.append(f'v_add_f32_dpp {v}, {v}, {v} {m} row_mask:0xf bank_mask:0xf')
    for k, v in enumerate(regs_): L.append(f'v_mov_b32 {tmp.sub(k)}, {v}')
    L.append('s_nop 1')
    for k, v in enumerate(regs_): L.append(f'v_permlane16_swap_b32 {tmp.sub(k)}, {v}')
    for k, v in enumerate(regs_): L.append(f'v_add_f32 {v}, {v}, {tmp.sub(k)}')
    return L
def layernorm2(X, Y, SC, SV, cs):
    L = []
    M, Vv, TM, AB = SC.sub(0, 2), SC.sub(2, 2), SC.sub(4, 2), SC.sub(6, 2)
    m, mb, v, r = M.sub(0), M.sub(1), Vv.sub(0), Vv.sub(1)
    m2, v2 = TM.sub(0), TM.sub(1)
    rbf = lambda d, x: [f'v_cvt_pk_bf16_f32 {d}, {x}, {x}', f'v_lshlrev_b32 {d}, 16, {d}']
    rstd = lambda d, x, fill: rbf(d, x) + [f'v_add_f32 {d}, 0x3727c5ac, {d}'] + rbf(d, d) + [f'v_sqrt_f32 {d}, {d}', fill[0]] + rbf(d, d) + [f'v_rcp_f32 {d}, {d}', fill[1]]
    for i in range(8): L.append(f'v_pk_add_f32 {Y.sub(2*i,2)}, {X.sub(2*i,2)}, {X.sub(2*i+16,2)}')
    for w in (4, 2, 1):
        for i in range(w): L.append(f'v_pk_add_f32 {Y.sub(2*i,2)}, {Y.sub(2*i,2)}, {Y.sub(2*(i+w),2)}')
    L.append(f'v_add_f32 {m}, {Y.sub(0)}, {Y.sub(1)}')
    L += halfsum([m], TM) + [f'v_mul_f32 {m}, 0x3a800000, {m}']
    L += [f'v_pk_add_f32 {X.sub(2*i,2)}, {X.sub(2*i,2)}, {M} op_sel_hi:[1,0] neg_lo:[0,1] neg_hi:[0,1]' for i in range(16)]
    L += [f'v_pk_mul_f32 {Vv}, {X.sub(0,2)}, {X.sub(0,2)}', f'v_pk_mul_f32 {TM}, {X.sub(2,2)}, {X.sub(2,2)}']
    for i in range(2, 16): L.append(f'v_pk_fma_f32 {[Vv, TM][i & 1]}, {X.sub(2*i,2)}, {X.sub(2*i,2)}, {[Vv, TM][i & 1]}')
    L += [f'v_pk_add_f32 {Vv}, {Vv}, {TM}', f'v_add_f32 {v}, {Vv.sub(0)}, {Vv.sub(1)}']
    L += halfsum([v], TM) + [f'v_mul_f32 {v}, 0x3a800000, {v}']
    L += rstd(r, v, rbf(mb, m))
    L += [f'v_mul_f32 {SV.sub(1)}, {f2h(cs)}, {r}', f'v_sub_f32 {m}, {m}, {mb}', f'v_mul_f32_e64 {SV.sub(0)}, -{mb}, {SV.sub(1)}']
    R_ = [f'v_mul_f32 {m}, {m}, {r}', f'v_mul_f32 {v}, {v}, {r}', f'v_mul_f32 {v}, {v}, {r}']
    R_ += rstd(v2, v, rbf(m2, m))
    R_ += [f'v_sub_f32 {m}, {m}, {m2}', f'v_mul_f32 {AB.sub(0)}, {r}, {v2}', f'v_mul_f32 {AB.sub(1)}, {m}, {v2}']
    R_ += [f'v_pk_fma_f32 {X.sub(2*i,2)}, {X.sub(2*i,2)}, {AB}, {AB} op_sel:[0,0,1] op_sel_hi:[1,0,1]' for i in range(16)]
    R_ += [f'v_cvt_pk_bf16_f32 {Y.sub(i)}, {X.sub(2*i)}, {X.sub(2*i+1)}' for i in range(16)]
    return L, R_
def unpack(X, Y):
    L = []
    for i in range(Y.n): L += [f'v_lshlrev_b32 {X.sub(2*i)}, 16, {Y.sub(i)}', f'v_and_b32 {X.sub(2*i+1)}, 0xffff0000, {Y.sub(i)}']
    return L

def q_epilogue(st, SR, bias=False):
    a = st.raw
    sw = lambda d: a(f'v_permlane16_swap_b32 {d.sub(0)}, {d.sub(2)}\nv_permlane16_swap_b32 {d.sub(1)}, {d.sub(3)}')
    for tt in range(4):
        for b in range(4):
            r = SR.sub(2 * b, 2)
            for jj in range(2):
                s_ = QACC.sub(((2 * tt + jj) * 4 + b) * 4, 4)
                for h in range(2): st.op(valu(f'v_pk_mul_f32 {s_.sub(2*h,2)}, {s_.sub(2*h,2)}, {r} op_sel:[0,1] op_sel_hi:[1,1]', rd=[r]))
            for jj in range(2):
                s_ = QACC.sub(((2 * tt + jj) * 4 + b) * 4, 4); c_ = Qf(2 + jj, tt)
                for h in range(2): st.op(valu(f'v_pk_fma_f32 {s_.sub(2*h,2)}, {c_.sub(2*h,2)}, {r}, {s_.sub(2*h,2)} op_sel_hi:[1,0,1]', rd=[c_]))
        for b in range(4):
            d = Qf(b, tt)
            for jj in range(2):
                s_ = QACC.sub(((2 * tt + jj) * 4 + b) * 4, 4)
                a(f'v_cvt_pk_bf16_f32 {d.sub(2*jj)}, {s_.sub(0)}, {s_.sub(1)}\nv_cvt_pk_bf16_f32 {d.sub(2*jj+1)}, {s_.sub(2)}, {s_.sub(3)}')
        for b in range(4): sw(Qf(b, tt))
    if bias:
        for e in range(bias):
            x = QACC.sub(16 * e, 16)
            for h in range(2):
                st.op(valu(f'v_lshlrev_b32 {x.sub(2*h)}, 16, {BIAS.sub(2*e+h)}', rd=[BIAS.sub(2 * e + h)]))
                a(f'v_and_b32 {x.sub(2*h+1)}, 0xffff0000, {BIAS.sub(2*e+h)}')
            for i in range(2, 8): a(f'v_mov_b64 {x.sub(2*i,2)}, {x.sub(2*(i&1),2)}')

def gen_k2(opt):
    st = Stream(); a = st.raw
    far = []
    A1, Y1 = opt.get('a1', 3), opt.get('y1', 3)
    NY = 2 * (A1 + Y1); NSY = 2 * NY
    PW = opt.get('pw', 0); OM = 4 if PW else 1
    GW = opt.get('g2w', 8)
    opt.setdefault('pf_w1', 1 if GW == 7 else 0)
    hasg2 = lambda d: f's_cmp_lt_u32 {sIDX}, {112 // GW}\ns_cselect_b32 {d}, {sROLE}, 0'
    G2N = opt.get('g2n')
    if G2N:
        assert sum(G2N) == 112 and max(G2N) <= 16
        nlit = sum((n - 1) << (4 * k) for k, n in enumerate(G2N))
        hasg2 = lambda d: f's_lshl_b32 {d}, {sSLOT}, 2\ns_lshr_b32 {d}, {nlit}, {d}\ns_and_b32 {d}, {d}, 15\ns_cmp_le_u32 {sIDX}, {d}\ns_cselect_b32 {d}, {sROLE}, 0'
    t = vTMP
    a(f'{KNAME}:')
    a('s_cmp_ge_u32 s2, 256\ns_cbranch_scc1 L2_end')
    sp = Stamps(opt.get('stamp'), 1, 254)
    sp.jit = opt.get('jit')
    sp.stamp(st)
    RAW, LX, SC, HT = V(108, 16), V(124, 32), V(156, 8), V(196, 16)
    vLg, vLw, vHr, vHs, vSt, vZf, SV = V(212), V(213), V(214), V(215), V(216), V(217), V(218, 2)
    DL = opt.get('dln', 0)
    if DL:
        RAW, LX, SC, HT, SV = V(6, 16), V(76, 32), V(236, 8), V(76, 16), V(244, 2)
        vLg, vLw, vHr, vHs, vSt, vZf = [V(22 + i) for i in range(6)]
    a(f"""s_load_dwordx2 s[68:69], s[0:1], 0
s_load_dwordx2 s[8:9], s[0:1], 24
v_lshrrev_b32 v{t+1}, 5, v0
v_and_b32 v{t+2}, 31, v0
v_lshlrev_b32 v{t+2}, 4, v{t+2}
v_lshl_add_u32 {vLg}, v{t+1}, 11, v{t+2}
v_lshlrev_b32 {vFL}, 7, v0
s_lshl_b32 {sT4}, s2, 14
s_lshl_b32 {sT}, s2, 15
s_mov_b32 s70, 4194304
s_mov_b32 s71, 0x20000
s_mov_b32 s10, 8388608
s_mov_b32 s11, 0x20000
s_lshl_b32 {sO}, s2, 14
s_waitcnt lgkmcnt(0)""")
    rawl = [([], vload(f'buffer_load_dwordx4 {RAW.sub(4*i,4)}, {vLg}, {sX}, {sO} offen offset:{512*i}', RAW.sub(4 * i, 4)), []) for i in range(4)]
    RP = opt.get('rpos', 0)
    if not RP: st.ops(flat(rawl))
    if opt.get('pf_wq', 0): st.op(vload(f'buffer_load_dword {vDUM}, {vFL}, {sWQ}, {sT} offen'))
    a(f"""s_load_dwordx2 s[4:5], s[0:1], 96
s_lshr_b32 {sROLE}, s2, 7
s_cmp_eq_u32 {sROLE}, 0
s_cselect_b32 {sT}, 80, 48
s_cselect_b32 {sT2}, 64, 32
s_cselect_b32 {sT3}, 72, 56
s_load_dwordx2 s[20:21], s[0:1], {sT}
s_load_dwordx2 s[24:25], s[0:1], {sT2}
s_load_dwordx2 s[32:33], s[0:1], {sT3}
s_load_dwordx2 s[12:13], s[0:1], 8
s_load_dwordx2 s[16:17], s[0:1], 16
s_load_dwordx2 s[28:29], s[0:1], 32
s_load_dwordx2 s[72:73], s[0:1], 88
s_load_dwordx2 s[58:59], s[0:1], 48
s_mov_b32 s22, 14680064
s_cselect_b32 s26, s22, 8388608
s_cselect_b32 s22, 4194304, s22
s_movk_i32 s34, 7168
s_cselect_b32 s34, 4096, s34
v_lshrrev_b32 v{t}, 6, v0
v_mul_u32_u24 {vLw}, {LSTR}, v{t+1}
v_readfirstlane_b32 {sWAVE}, v{t}
v_add_u32 {vLw}, {vLw}, v{t+2}
v_and_b32 {vL16}, 63, v0
v_lshlrev_b32 {vPF}, 6, {vL16}
s_mov_b32 {sSTR}, 8192""")
    if opt.get('pf_code', 1):
        a(f's_getpc_b64 s[56:57]\nL2_pc:\ns_lshr_b32 {sT}, s2, 3\ns_lshl_b32 {sT}, {sT}, 2\ns_add_u32 {sT}, {sT}, {sWAVE}\ns_mul_i32 {sT}, {sT}, 704\ns_min_u32 {sT}, {sT}, L2_redo-L2_pc\ns_add_u32 s56, s56, {sT}\ns_addc_u32 s57, s57, 0\nv_lshrrev_b32 {vCO}, 2, {vPF}\nv_min_u32 {vCO}, 0x2b0, {vCO}')
        st.op(pfcode())
    for s, size in ((4, WS_SIZE), (12, 16777216), (16, 16777216), (20, 0), (24, 0), (28, 8388608), (32, 0), (72, 256)):
        if size: a(f's_mov_b32 s{s+2}, {size}')
        a(f's_mov_b32 s{s+3}, 0x20000')
    a(f"""s_bfe_u32 {sIDX}, s2, 0x40003
s_and_b32 {sSLOT}, s2, 7
s_lshr_b32 {sHEAD}, {sIDX}, 3
s_lshl_b32 {sQ64}, {sSLOT}, 1
s_add_u32 {sHEAD}, {sHEAD}, {sQ64}
s_cmp_eq_u32 {sROLE}, 0
s_cselect_b32 {sT}, {A1}, {Y1}
s_cselect_b32 {sT2}, {Y1}, {A1}
s_cselect_b32 {sQ64}, {Y1}, {16 - 2 * A1}
s_cmp_ge_u32 {sHEAD}, {sT}
s_cselect_b32 {sT2}, {sT2}, 0
s_addc_u32 {sGRP}, 1, 0
s_lshl_b32 {sT}, {sT}, 1
s_cmp_ge_u32 {sHEAD}, {sT}
s_cselect_b32 {sQ64}, {sQ64}, 0
s_addc_u32 {sGRP}, {sGRP}, 0
s_mul_i32 {sGRP}, {sGRP}, {sROLE}
s_mul_i32 {sT}, {sROLE}, {A1}
s_add_u32 {sHEAD}, {sHEAD}, {sT}
s_add_u32 {sHEAD}, {sHEAD}, {sT2}
s_add_u32 {sHEAD}, {sHEAD}, {sQ64}
s_and_b32 {sQ64}, {sIDX}, 7
s_lshl_b32 {sQ64}, {sQ64}, 2
s_add_u32 {sQ64}, {sQ64}, {sWAVE}
s_lshl_b32 {sLDS}, {sWAVE}, 12
s_lshl_b32 {sQW}, {sHEAD}, 8
s_lshl_b32 {sQA}, {sQ64}, 17
s_add_u32 {sQA2}, {sQA}, 65536""")
    accq = lambda e, b: QACC.sub((e * 4 + b) * 4, 4)
    acc3 = lambda e, b: accq(e, 2 + b)
    gq = GemmX('Q', 16, 4, accq, A(128, 128), A(0, 32), vWa, 'id', sWQ, vWq, sQW, 8192, QRING, sLDS, sX, None, sQA, lead=3, uni=True, dist=2)
    gq.xsetup(XSLOT, vXd, vXa, sQA2, ONESQ, IDXQ, CS)
    gq.bar_rd = [('x', 0)]
    RQ = opt.get('rq', 0)
    if RQ:
        tabs = [sum(((((k + 1) ^ r if k < 3 else 4 + r) - (k ^ r)) & 0xff) << (8 * k) for k in range(4)) for r in range(4)]
        a(f"""s_lshr_b32 {sT}, s2, 6
s_add_u32 {sT}, {sT}, {sIDX}
s_and_b32 {sT}, {sT}, {RQ}
s_bitcmp1_b32 {sT}, 0
s_mov_b32 {sPF}, {tabs[0]}
s_cselect_b32 {sPF}, {tabs[1]}, {sPF}
s_mov_b32 {sT2}, {tabs[2]}
s_cselect_b32 {sT2}, {tabs[3]}, {sT2}
s_bitcmp1_b32 {sT}, 1
s_cselect_b32 {sPF}, {sT2}, {sPF}
s_lshl_b32 {sT2}, {sT}, 19
s_add_u32 {sQW}, {sQW}, {sT2}
s_lshl_b32 {sT2}, {sT}, 7
s_add_u32 {sQA}, {sQA}, {sT2}
s_add_u32 {sQA2}, {sQA2}, {sT2}""")
        gq.rtab = sPF
    g2 = Gemm('G', 32, 4, accq, A(128, 128), A(0, 32), vWa, 'id', sW1, vWg, sW3, 0, QRING, sLDS, sWS, vL16, sA3, avoff2=vL16b, lead=3, uni=True, winc=sGI, ainc=sGJ, dist=2, asuf=' sc1', NW=GW)
    kwn = dict(avoff2=vA1, asuf=' sc1', winc=sNI, ainc=sNJ, lead=3, uni=True, dist=2, aoff=2, split=True)
    g4 = Gemm('N', 28, 4, accq, A(128, 128), Q.sub(0, 32), vWa, 'blk', sWN, vWq, sGW, 0, KBASE, sLDS, sWS, vA0, sGA, swap=True, **kwn)
    g3y = Gemm('N', NY, 4, accq, A(128, 128), Q.sub(0, 32), vWa, 'blk', sWN, vWq, sGW, 0, KBASE, sLDS, sWS, vA0, sGA, **kwn)
    g3s = Gemm('S', 64 - NSY, 2, acc3, A(0, 64), A(64, 32), vVa, 'blk', sWO, vWg, sW3, 0, VBASE, sLDS, sWS, vL16, sA3, asuf=' sc1', winc=sSI, ainc=sSJ)
    for g_ in (gq, g2, g4, g3y, g3s): g_.zig = opt.get('zig', 1)
    for g_ in (g2, g4, g3y, g3s): g_.fk = opt.get('fk', 0) & 1
    gq.fk = opt.get('fk', 0) & 4
    for g_ in (gq, g2, g4, g3y): g_.skew = opt.get('skew', 1)
    SK = 1 if gq.skew else 0
    for g_ in (g2, g4, g3y): g_.pre2 = SK and opt.get('pre2', 1)
    g4.more_tags = g3y.more_tags = {1: ['st']}
    assert not (SK and (DL or RQ or GW != 8 or PW))
    if 'fsw' in opt:
        for g_ in (g2, g4, g3y, g3s): g_.swap = bool(opt['fsw'])
    g3s.pat = opt.get('pat', 0); g3s.uni = opt.get('uni3', 0)
    a('\n'.join(wvoff_setup(vWq, sSTR, 'id', t)))
    rest = gq.window(0) + gq.window(1) + gq.window(2)[:2]
    if RP: rest[RP:RP] = rawl
    early = opt.get('early', 12)
    a(f'v_bfe_u32 v{t}, v0, 3, 3\nv_and_b32 v{t+1}, 7, v0\nv_lshrrev_b32 v{t+2}, 1, v{t}\nv_xor_b32 v{t+1}, v{t+1}, v{t+2}\nv_lshlrev_b32 v{t+1}, 4, v{t+1}\nv_lshl_add_u32 {vXd.sub(0)}, v{t}, 11, v{t+1}')
    a(f'v_xor_b32 {vXd.sub(1)}, 64, {vXd.sub(0)}\nv_add_u32 {vXd.sub(1)}, {16384-1024}, {vXd.sub(1)}\nv_add_u32 {vXd.sub(2)}, {2*(16384-1024)}, {vXd.sub(0)}\nv_add_u32 {vXd.sub(3)}, {2*(16384-1024)}, {vXd.sub(1)}')
    gq.issue(st, rest[:early]); del rest[:early]
    a(f'v_lshlrev_b32 {vL16}, 4, {vL16}\nv_cmp_eq_u32 vcc, 3, v{t}\nv_add_u32 v{t+1}, {SHADOW}, {vL16}\ns_nop 0\nv_cndmask_b32 {vL16}, {vL16}, v{t+1}, vcc\nv_add_u32 {vL16b}, 4096, {vL16}')
    PD = opt.get('pd', 4)
    if PD:
        a(f"""s_and_b32 {sT}, {sQ64}, 31
s_lshl_b32 {sT}, {sT}, 14
v_bfe_u32 v{t}, v0, 2, 1
v_bfe_u32 v{t+1}, v0, 3, 1
v_lshlrev_b32 v{t}, 7, v{t}
v_lshl_add_u32 v{t}, v{t+1}, 13, v{t}
v_add_u32 v{t}, {sT}, v{t}
v_add_u32 v49, {PD * 524288}, v{t}
v_bfe_u32 v{t+1}, v0, 4, 2
v_min_u32 v{t+1}, {PD - 1}, v{t+1}
v_lshl_add_u32 v50, v{t+1}, 19, v{t}
s_lshl_b32 {sP1}, {sHEAD}, 8
s_add_u32 {sP1}, {sP1}, {(4 if RQ else 3) * 524288}""")
        rest.insert(opt.get('ppos', 0), ([], vload(f'buffer_load_dword {vDUM}, v50, {sWQ}, {sP1} offen'), []))
    a('\n'.join(waddr_setup(vWa, QRING, 'id', t)))
    a(f's_lshl_b32 {sROT}, {sWAVE}, 6')
    for e in range(8): a(f'v_xor_b32 {vWa.sub(e)}, {sROT}, {vWa.sub(e)}')
    a(f"""v_and_b32 v{t}, 15, v0
v_bfe_u32 v{t+1}, v0, 4, 2
v_lshrrev_b32 v{t+2}, 1, v{t}
v_xor_b32 v{t+2}, v{t+2}, v{t+1}
v_lshlrev_b32 v{t+2}, 4, v{t+2}
v_lshl_add_u32 v{t+2}, v{t}, 7, v{t+2}
s_add_u32 {sT}, {sLDS}, {min(XSLOT)}
v_add_u32 {vXa.sub(0)}, {sT}, v{t+2}
v_xor_b32 {vXa.sub(1)}, 64, {vXa.sub(0)}
s_add_u32 {sT}, {sLDS}, {CSB}
v_lshl_add_u32 {vCw}, v{t}, 2, {sT}
{f's_xor_b32 {sT}, {sT}, 0x2000' if SK else ''}
v_lshl_add_u32 {vCr.sub(0)}, v{t+1}, 4, {sT}
v_xor_b32 {vCr.sub(1)}, 0x1000, {vCr.sub(0)}
v_xor_b32 {vCr.sub(2)}, 0x2000, {vCr.sub(0)}
v_xor_b32 {vCr.sub(3)}, 0x3000, {vCr.sub(0)}
v_and_b32 {IDXQ}, 1, v0
v_sub_u32 {IDXQ}, 0, {IDXQ}
v_and_b32 {IDXQ}, 0xaaaaaaaa, {IDXQ}
v_or_b32 {IDXQ}, 0x44444444, {IDXQ}
v_mov_b32 {vZERO}, 0
v_mov_b32 {vONE}, 1
v_bfe_u32 {vHr}, v0, 2, 2
v_mul_u32_u24 {vHr}, {LSTR}, {vHr}
v_lshrrev_b32 v{t+2}, 4, v0
v_lshl_add_u32 {vHr}, v{t+2}, 5, {vHr}
v_and_b32 v{t+2}, 3, v0
v_lshl_add_u32 {vHr}, v{t+2}, 3, {vHr}
v_lshlrev_b32 {vHs}, 10, v{t+1}
v_lshl_add_u32 {vHs}, v{t}, 4, {vHs}
s_and_b32 {sT}, s2, 3
s_lshl_b32 {sT}, {sT}, 8
v_add_u32 {vHs}, {sT}, {vHs}
v_bfe_u32 v{t+2}, {vHs}, 7, 3
v_cmp_eq_u32 vcc, 3, v{t+2}
v_add_u32 v{t+3}, {SHADOW}, {vHs}
s_lshr_b32 {sT2}, s2, 2
v_cndmask_b32 {vHs}, {vHs}, v{t+3}, vcc
s_lshl_b32 {sT2}, {sT2}, 12
s_lshl_b32 {sT}, {sWAVE}, 18
s_add_u32 {sT2}, {sT2}, {sT}
s_add_u32 {sT2}, {sT2}, {HF}
v_and_b32 v{t+2}, 31, v0
v_cmp_eq_u32 vcc, 0, v{t+2}
v_lshrrev_b32 {vSt}, 2, v0
v_mov_b32 v{t+3}, 0x40000000
v_cndmask_b32 {vSt}, v{t+3}, {vSt}, vcc
v_cmp_gt_u32 vcc, 0x80, v0
v_lshlrev_b32 {vZf}, 2, v0
s_lshl_b32 {sT3}, s2, 7
v_cndmask_b32 {vZf}, v{t+3}, {vZf}, vcc
s_lshl_b32 {sT4}, s2, 9
s_add_u32 {sT4}, {sT4}, {FL}
s_bfe_u32 {sSIG}, s2, 0x20004
s_and_b32 {sSIG}, {sSIG}, {opt.get('sigsp', 3)}
s_and_b32 {sU}, {sSIG}, {opt.get('lnsp', 3)}
s_add_u32 {sU}, {sU}, {DL}
s_add_u32 {sSIG}, {sSIG}, {DL + 4 if DL else 3 - SK}
s_bfe_u32 {sFU}, s2, 0x10003
s_lshl_b32 {sFU}, {sFU}, 7
s_mov_b32 {sMODE}, 0
s_cmp_eq_u32 {sWAVE}, 0
s_cselect_b32 {sSIG}, {sSIG}, 0
s_cselect_b32 {sRDY}, 0x80, 0
s_cselect_b32 {sP0}, 0, 0x1000""")
    if opt.get('xq') == 'nopoll': a(f's_mov_b32 {sRDY}, 0\ns_mov_b32 {sP0}, 0x1000')
    if opt.get('xq') == 'nosig': a(f's_mov_b32 {sRDY}, 0\ns_mov_b32 {sP0}, 0x1000\ns_mov_b32 {sSIG}, 0')
    if SK: a('v_and_b32 v74, 1, v0\nv_lshlrev_b32 v74, 7, v74')
    assert STAT == 0
    for i in range(4): a(f'v_mov_b32 {ONESQ.sub(i)}, 0x3f803f80\nv_mov_b64 {CS.sub(2*i,2)}, 0')
    cs = math.log2(math.e) / math.sqrt(128.0)
    zq = [f'v_mov_b64 {QACC.sub(2*i,2)}, 0' for i in range(64)]
    if not DL:
        a('\n'.join(zq[28:44] + zq[56:]) + '\ns_waitcnt lgkmcnt(0)')
        st.op(valu(unpack(LX, RAW)[0], rd=[RAW]))
        sp.stamp(st)
        l1, l2 = layernorm2(LX, RAW, SC, SV, cs)
        ln = unpack(LX, RAW)[1:] + l1
        ln += [vstore(f'buffer_store_dwordx2 {SV}, {vSt}, {sWS}, {sT3} offen sc1'), vstore(f'buffer_store_dword {vZERO}, {vZf}, {sWS}, {sT4} offen sc1')]
        ln += l2
        nin = opt.get('nin', 12)
        step = len(ln) // (nin + 1)
        for k, x in enumerate(ln):
            if isinstance(x, Op): st.op(x)
            else: a(x)
            if k % step == step - 1 and nin and rest: gq.issue(st, [rest.pop(0)]); nin -= 1
        for i in range(4): st.op(Op(f'ds_write_b128 {vLw}, {RAW.sub(4*i,4)} offset:{512*i}', 'ds'))
        zz = zq[8:28]
        gq.issue(st, rest, lambda: a('\n'.join(zz.pop() for _ in range(min(2, len(zz))))))
        a('\n'.join(zz))
        st.op(barrier(['Q0'], lg0=True))
        for i in range(4):
            for tt in range(2): st.op(ds_tr(HT.sub(4 * i + 2 * tt, 2), vHr, 512 * i + 4 * LSTR * tt))
        a('\n'.join(zq[:8]))
        for i in range(4):
            st.op(vstore(f'buffer_store_dwordx4 {HT.sub(4*i,4)}, {vHs}, {sWS}, {sT2} offen sc1', rd=[HT.sub(4 * i, 4)]))
            a(f's_add_u32 {sT2}, {sT2}, {1 << 20}')
            st.ops(gq.xreads(0, i))
        st.ops(gq.reads(0))
        a('\n'.join(zq[44:56]))
        st.ops(gq.reads(1))
        sp.stamp(st)
    else:
        sp.stamp(st)
        gq.issue(st, rest, lambda: a('\n'.join(zq.pop() for _ in range(min(5, len(zq))))))
        a('\n'.join(zq) + '\ns_waitcnt lgkmcnt(0)')
        st.op(barrier(['Q0']))
        for i in range(4): st.ops(gq.xreads(0, i))
        st.ops(gq.reads(0) + gq.reads(1))
        sp.stamp(st)
        l1, l2 = layernorm2(LX, RAW, SC, SV, cs)
        b1 = unpack(LX, RAW) + l1 + [f'buffer_store_dwordx2 {SV}, {vSt}, {sWS}, {sT3} offen sc1', f'buffer_store_dword {vZERO}, {vZf}, {sWS}, {sT4} offen sc1'] + l2
        b1 += [f'ds_write_b128 {vLw}, {RAW.sub(4*i,4)} offset:{512*i}' for i in range(4)] + ['s_waitcnt lgkmcnt(0)']
        b2 = ['s_waitcnt lgkmcnt(7)'] + [ds_tr(HT.sub(4 * i + 2 * tt, 2), vHr, 512 * i + 4 * LSTR * tt).text for i in range(4) for tt in range(2)]
        for i in range(4): b2 += [f's_waitcnt lgkmcnt({6 - 2 * i})', f'buffer_store_dwordx4 {HT.sub(4*i,4)}, {vHs}, {sWS}, {sT2} offen sc1', f's_add_u32 {sT2}, {sT2}, {1 << 20}']
        ret = f's_and_b32 {sT}, {sMODE}, 3\n' + ''.join(f's_cmp_eq_u32 {sT}, {k}\ns_cbranch_scc1 L2_n{k}_r\n' for k in range(3)) + 's_branch L2_n3_r'
        far.append(f'L2_n:\ns_cmp_eq_u32 {sT}, 0\ns_cbranch_scc0 L2_nb\n' + '\n'.join(b1) + '\ns_branch L2_nr\nL2_nb:\n' + '\n'.join(b2) + '\nL2_nr:\n' + ret)
    for k in range(4): far.append(f'L2_sl{k}:\n{signal(sFU, sDBG)}\ns_branch L2_sl{k}_r')
    def qx(s, e):
        if e == 2: return {3: [salu(f's_add_u32 {sMODE}, {sMODE}, 1')], 7: (publish if s >= 2 and not DL else lambda l, _: [salu(x) for x in l])([f's_cmp_eq_u32 {sMODE}, {sSIG}', f's_cbranch_scc1 L2_sl{s % 4}', f'L2_sl{s % 4}_r:'], 'wg')}
        if DL and e == 0: return {3: [salu(f's_sub_u32 {sT}, {sMODE}, {sU}')], 7: [salu(f's_cmp_lt_u32 {sT}, 2'), salu('s_cbranch_scc1 L2_n'), salu(f'L2_n{s % 4}_r:')]}
        if e == (4 if SK and s == 0 else 5) and PD: return {(7 if e == 4 else 1): [vload(f'buffer_load_dword {vDUM}, v49, {sWQ}, {sQW} offen')]}
        if SK and s and s % 4 == 0 and e == 0: return {3: [salu(f's_cmp_eq_u32 {sCNT}, -1'), salu(f's_cselect_b32 {sT}, {sP0}, 0x1000')], 7: [vload(f'buffer_load_dword v75, v74, {sDBG}, {sT} offen sc1', V(75))]}
        return {}
    if opt.get('qdiag'):
        cntl = [0]
        def qx2(s, e):
            r = qx(s, e)
            if e == 2:
                far.append(f'L2_sx{s}:\n{signal(sFU, sDBG)}\ns_branch L2_sx{s}_r')
                r[7] = [r[7][0], salu(f's_cbranch_scc1 L2_sx{s}'), salu(f'L2_sx{s}_r:')]
            return r
        del far[-4:]
        for s_ in range(12):
            gq.stages(st, s_, s_ + 1, None, qx2, None)
            if s_ < 11: sp.stamp(st)
        sp.on2 = True
    else: gq.loop(st, 'L2_q', sCNT, extra=qx)
    a(hasg2(sT) + f'\ns_cmp_lg_u32 {sT}, 0\ns_cbranch_scc1 L2_G')
    sg = st.fork(); spg = sp.n
    def q_last_extra(s_, SR, nm):
        ld = f'buffer_load_dword v75, v74, {sDBG}, {sP0} offen sc1'
        far.append(f'{nm}:\ns_mov_b32 {sCNT}, {-(1 << 20)}\n{nm}1:\n{ld}\ns_add_u32 {sCNT}, {sCNT}, 1\ns_cbranch_scc1 {nm}_x\ns_waitcnt vmcnt(0)\n'
                   f'v_cmp_gt_u32 vcc, {sRDY}, v75\ns_nop 4\ns_cbranch_vccnz {nm}1\n{nm}_x:\ns_waitcnt vmcnt(0)\ns_branch {nm}_r')
        def f(s, e):
            if s == 12 and e == 2: return {3: [valu('v_and_b32 v74, 1, v0'), valu('v_lshlrev_b32 v74, 7, v74')], 7: [vload(ld, V(75))]}
            if s == 13 and e == 5: return {1: [valu(f'v_cmp_gt_u32 vcc, {sRDY}, v75', rd=[V(75)])], 5: [salu(f's_cbranch_vccnz {nm}'), salu(f'{nm}_r:')]}
            if s == 12 + SK and e == 0: return {3: [valu(f'v_bfe_u32 v72, v0, 3, 1'), valu(f'v_and_b32 v73, 7, v0')], 7: [valu('v_lshlrev_b32 v72, 7, v72'), valu('v_lshl_add_u32 v72, v73, 3, v72')]}
            if s == 12 + SK and e == 1: return {7: [salu(f's_lshl_b32 {sP1}, {sQ64}, 10')]}
            if s == 14 and e in (5, 6):
                return {g: [vload(f'buffer_load_dwordx2 {SR.sub(2*n,2)}, v72, {sWS}, {sP1} offen offset:{256*n} sc1', SR.sub(2 * n, 2))] for g, n in ((1, 2 * (e - 5)), (5, 2 * (e - 5) + 1))}
            if s == 15 and e == 3 + 2 * SK:
                return {3 + 2 * SK: [valu(f'v_add_f32 {CS.sub(4*k)}, {CS.sub(4*k)}, {CS.sub(4*k+1)}') for k in range(2)],
                        7: [Op(f'ds_write2_b32 {vCw}, {CS.sub(0)}, {CS.sub(4)} offset0:0 offset1:16', 'ds', wr=[('x', 0)])]}
            if s == 15 and e == 6 + SK: s_.push([ds_128(Qf(2 + (k & 1), k >> 1), vCr.sub(k >> 1), 64 * (k & 1)) for k in range(8)])
            return {}
        return f

    su_kv = f's_lshl_b32 {sKV0}, {sHEAD}, 19\ns_mov_b32 {sK}, {sKV0}\ns_mov_b32 {sV}, {sKV0}\n'
    su_kv += f'v_bfe_u32 v{t}, v0, 4, 2\nv_lshrrev_b32 v{t+1}, 6, v0\nv_lshl_add_u32 v{t+1}, v{t+1}, 4, v{t}\nv_lshlrev_b32 v{t+1}, 8, v{t+1}\nv_and_b32 v{t+2}, 15, v0\n'
    for i in range(4):
        su_kv += f'v_or_b32 v{t+3}, {4*i}, v{t}\nv_xor_b32 v{t+3}, v{t+3}, v{t+2}\nv_lshl_add_u32 {vKd.sub(i)}, v{t+3}, 4, v{t+1}\n'
    for i in range(2):
        su_kv += f'v_or_b32 v{t+3}, {4*i}, v{t}\nv_lshlrev_b32 v{t+3}, 1, v{t+3}\nv_xor_b32 v{t+3}, v{t+3}, v{t+2}\nv_lshl_add_u32 {vVd.sub(i)}, v{t+3}, 4, v{t+1}\n'
    su_kv += f'v_and_b32 v{t+1}, 1, v{t}\nv_lshlrev_b32 v{t+1}, 1, v{t+1}\nv_lshrrev_b32 v{t+3}, 1, v{t}\nv_or_b32 v{t+1}, v{t+1}, v{t+3}\n'
    su_kv += f's_lshl_b32 {sT}, {sWAVE}, 2\nv_xor_b32 v{t+1}, {sT}, v{t+1}\nv_xor_b32 v{t+1}, v{t+1}, v{t+2}\nv_lshlrev_b32 v{t+2}, 8, v{t+2}\n'
    for i in range(4):
        su_kv += f'v_xor_b32 v{t+3}, {4*i}, v{t+1}\nv_lshl_add_u32 {vKa.sub(i)}, v{t+3}, 4, v{t+2}\n'
    su_kv += '\n'.join(waddr_setup(vVa, VBASE, 'blk', t))
    g2head = f"""s_and_b32 {sT3}, {sSLOT}, 1
s_lshl_b32 {sT3}, {sT3}, 1
s_and_b32 {sT}, {sIDX}, 1
s_add_u32 {sT3}, {sT3}, {sT}
s_lshl_b32 {sT}, {sT3}, 8
s_add_u32 {sFU}, {sT}, {FL + 8192}
s_lshr_b32 {sT}, {sSLOT}, 1
s_mul_i32 {sT}, {sT}, {56 // GW}
s_lshr_b32 {sT4}, {sIDX}, 1
s_add_u32 {sT}, {sT}, {sT4}
s_add_u32 {sT4}, {sT4}, {sIDX}
"""
    if G2N:
        pre_ = [sum(G2N[:k]) for k in range(8)]
        g2head = f"""s_mov_b32 {sT}, {sum(p << (8 * k) for k, p in enumerate(pre_[4:]))}
s_cmp_lt_u32 {sSLOT}, 4
s_cselect_b32 {sT}, {sum(p << (8 * k) for k, p in enumerate(pre_[:4]))}, {sT}
s_lshl_b32 {sT4}, {sSLOT}, 3
s_lshr_b32 {sT}, {sT}, {sT4}
s_and_b32 {sT}, {sT}, 0xff
s_add_u32 {sT}, {sT}, {sIDX}
s_cmp_ge_u32 {sT}, 56
s_cselect_b32 {sT3}, 2, 0
s_cselect_b32 {sT4}, 56, 0
s_sub_u32 {sT}, {sT}, {sT4}
s_and_b32 {sT4}, {sT}, 1
s_add_u32 {sT3}, {sT3}, {sT4}
s_lshl_b32 {sFU}, {sT3}, 8
s_add_u32 {sFU}, {sFU}, {FL + 8192}
s_lshr_b32 {sT}, {sT}, 1
s_add_u32 {sT4}, {sT4}, {sT}
"""
    su_g2 = g2head + f"""s_and_b32 {sT4}, {sT4}, {opt.get('rotg', 1)}
s_mul_i32 {sW3}, {sT}, {32 * GW}
s_and_b32 {sR0}, {sT}, {GW & 1}
s_lshl_b32 {sB}, {sR0}, 5
s_add_u32 {sB}, {sB}, {sW3}
s_mul_i32 {sBN}, {sR0}, -224
s_add_u32 {sBN}, {sBN}, {sB}
s_mul_i32 {sU}, {sT}, {GW}
s_add_u32 {sU}, {sU}, {sR0}
s_lshl_b32 {sU}, {sU}, 10
s_mul_i32 {sQA}, {sR0}, {8 - 4 * 2048}
s_add_u32 {sQA}, {sQA}, {3 * 2048}
s_lshl_b32 {sR0}, {sR0}, 1
s_lshl_b32 {sT}, {sT3}, 2
s_add_u32 {sT}, {sT}, {sWAVE}
s_lshl_b32 {sA3}, {sT}, 18
s_add_u32 {sA3}, {sA3}, {HF}
s_mul_i32 {sT}, {sT}, {2*112*2048}
s_add_u32 {sU}, {sU}, {sT}
s_add_u32 {sU}, {sU}, {UF}
s_movk_i32 {sSTR}, 7168
""".replace(sQA + ',', sGA + ',') + rot_setup(sT4, sW3, sA3, sGI, sGJ, 64 * 7168, 8192) + '\n' + '\n'.join(wvoff_setup(vWg, sSTR, 'id', t, sR0 if GW == 7 else None))
    su_g2 += f'\nv_bfe_u32 {vFL}, v0, 4, 2\nv_lshlrev_b32 {vFL}, 3, {vFL}'
    PFSEL = ''
    if opt.get('pf_w', 1) in (2, 3): PFSEL = f's_cmp_eq_u32 {sROLE}, {opt["pf_w"] - 2}\ns_cselect_b32 {sPF0}, {sPF0}, 0x20000000'
    su_n = f"""s_lshl_b32 {sO}, {sQ64}, 19
s_lshl_b32 {sT}, {sHEAD}, 13
s_add_u32 {sO}, {sO}, {sT}
s_add_u32 {sO}, {sO}, {OF}
s_lshl_b32 {sT2}, {sGRP}, 3
s_and_b32 {sT}, {sIDX}, 7
s_add_u32 {sT}, {sT}, {sT2}
s_lshl_b32 {sT}, {sT}, 8
s_add_u32 {sFO}, {sT}, {FL}
s_and_b32 {sST}, {sSLOT}, 3
s_lshl_b32 {sST}, {sST}, 2
s_and_b32 {sT}, {sIDX}, 3
s_add_u32 {sST}, {sST}, {sT}
s_and_b32 {sDT}, {sSLOT}, 4
s_lshr_b32 {sT}, {sIDX}, 2
s_add_u32 {sDT}, {sDT}, {sT}
s_lshl_b32 {sT}, {sST}, 3
s_add_u32 {sT}, {sT}, {sDT}
s_lshl_b32 {sT}, {sT}, 2
s_add_u32 {sT}, {sT}, {sWAVE}
s_mov_b32 {sG}, {sT}
s_lshl_b32 {sT}, {sIDX}, 3
s_add_u32 {sT}, {sT}, {sSLOT}
s_lshl_b32 {sT}, {sT}, 2
s_add_u32 {sT}, {sT}, {sWAVE}
s_mul_i32 {sPF0}, {sT}, 28672
{PFSEL}
s_mov_b32 {sMODE}, 0
s_lshl_b32 {sT2}, {sST}, 2
s_add_u32 {sT2}, {sT2}, {sWAVE}
s_lshl_b32 {sR0}, {sT2}, 16
s_lshl_b32 {sT3}, {sDT}, 8
s_add_u32 {sR0}, {sR0}, {sT3}
s_add_u32 {sR1}, {sR0}, 32768
s_andn2_b32 {sT2}, {sT2}, 4
s_lshl_b32 {sT2}, {sT2}, 18
s_add_u32 {sT2}, {sT2}, {OF}
s_and_b32 {sT}, {sST}, 1
s_mul_i32 {sT4}, {sT}, {NY * 4096}
s_add_u32 {sT2}, {sT2}, {sT4}
s_mul_i32 {sT4}, {sT}, {NY * 64 * 2048}
s_add_u32 {sT3}, {sT3}, {sT4}
s_andn2_b32 {sT}, {sDT}, 1
s_lshl_b32 {sT}, {sT}, 2
s_add_u32 {sT}, {sT}, {sWAVE}
s_mul_i32 {sGA0}, {sT}, {112*2048}
s_add_u32 {sGA0}, {sGA0}, {UF}
s_and_b32 {sT}, {sDT}, 1
s_mul_i32 {sT4}, {sT}, {28 * 4096}
s_add_u32 {sGA0}, {sGA0}, {sT4}
s_mul_i32 {sGW0}, {sT}, {28 * 64 * 4096}
s_lshl_b32 {sT4}, {sST}, 8
s_add_u32 {sGW0}, {sGW0}, {sT4}
s_lshr_b32 {sFW}, {sDT}, 1
s_add_u32 {sROT}, {sFW}, {sST}
s_add_u32 {sFW}, {sFW}, 32
s_lshr_b32 {sTG}, {sST}, 1
s_add_u32 {sT}, {sTG}, {sDT}
s_cmp_eq_u32 {sROLE}, 0
s_cselect_b32 {sGA0}, {sGA0}, {sT2}
s_cselect_b32 {sGW0}, {sGW0}, {sT3}
s_cselect_b32 {sROT}, {sROT}, {sT}
s_cselect_b32 {sBN}, {sT4}, 0x10000
s_cselect_b32 {sFW}, {sFW}, {sTG}
s_cselect_b32 {sTG}, {224 // GW}, {16 * OM}
s_lshl_b32 {sFW}, {sFW}, 8
s_add_u32 {sFW}, {sFW}, {FL}
{hasg2(sSIG)}
s_cmp_eq_u32 {sWAVE}, 0
s_cselect_b32 {sSIG}, {sSIG}, 0
s_mul_i32 {sSIG}, {sSIG}, -7
s_lshr_b32 {sSTR}, 4096, {sROLE}
s_lshl_b32 {sT3}, {sSTR}, 6
s_and_b32 {sROT}, {sROT}, {opt.get('rot', 1)}
"""
    su_n2 = rot_setup(sROT, sGW0, sGA0, sNI, sNJ, sT3, 4096) + '\n' + '\n'.join(wvoff_setup(vWq, sSTR, 'blk', t))
    su_n2 += f'\nv_mov_b32 v{t+1}, {FLAG}'
    pre_kv = kdma(0) + kdma(1) + vdma(0) + vdma(1) + kdma(2)
    kvtail = lambda i: pre_kv[i * 12:(i + 1) * 12]
    def last_before_att(g, s_, pre, more=None):
        n = g.nst
        def ex(s, e):
            if s == n - 4 + SK and e == 0: s_.push(parse(su_kv) + parse(pre) + parse(su_n))
            if s == n - 3 and e == g.NW - 2: assert len(s_.q) <= len(parse(su_n)) + 40, len(s_.q)
            if s == n - 2 and e == 0: s_.push(parse(su_n2))
            if s == n - 1 and e == g.NW - 2 + SK: assert not s_.q, len(s_.q)
            r = more(s, e) if more else {}
            if s == n - 1 and e == g.NW - 2 + SK:
                s_.push([kread(0, 0, tt) for tt in range(4)] + [kread(0, 1, 0), Op(f'ds_write_b32 v{t+1}, {vZERO}', 'ds', wr=[('z', 0)])])
            return r
        g.last(s_, kvtail, ex, last_bar=['K0'])
        s_.flush()
    qa = q_last_extra(st, BIAS.sub(0, 8), 'L2_wa')
    def qs(s, e):
        if s == 13 and e == 1:
            st.push(parse(f's_mov_b32 s8, s58\ns_mov_b32 s9, s59\ns_cmp_eq_u32 {sROLE}, 0\ns_cselect_b32 s10, 14680064, 0\ns_lshl_b32 {sQW}, s2, 2\ns_add_u32 {sQW}, {sQW}, {sWAVE}\ns_lshl_b32 {sQW}, {sQW}, 12'))
        if (s, e) in [tuple(x) for x in opt.get('pfpos', [(15, 7)])] and opt.get('pf_w1', 1): st.push(pfw1())
        return qa(s, e)
    last_before_att(gq, st, '', qs)
    sp.stamp(st)
    q_epilogue(st, BIAS.sub(0, 8))
    sp.stamp(st); sp.stamp(st)
    a('L2_join:')
    st.tags['st'] = st.issued['vm'] + 1
    pre = [f'v_mov_b32 {vIDX}, 0x3f803f80'] + [f'v_accvgpr_write_b32 {ONES.sub(i)}, {vIDX}' for i in range(4)]
    pre += f'v_and_b32 {vIDX}, 1, v0\nv_sub_u32 {vIDX}, 0, {vIDX}\nv_and_b32 {vIDX}, 0xaaaaaaaa, {vIDX}\nv_or_b32 {vIDX}, 0x44444444, {vIDX}'.split('\n')
    pre += [f'v_accvgpr_write_b32 {LS.sub(i)}, 0' for i in range(16) if (i & 3) < 2]
    M = T
    a('s_nop 0')
    FT = 1
    RC, PA = opt.get('rc', [1]), opt.get('pa', 1)
    sRCM, sRCF = sQA, sQA2
    a(f's_mov_b32 {sRCM}, {sum(1 << ((k - 7) & 31) for k in RC)}\ns_mov_b32 {sRCF}, 0')
    sp.stamp(st)
    a('L2_att:')
    if not FT: a(f'v_mov_b64 {P.sub(32,2)}, 0\nv_mov_b64 {P.sub(34,2)}, 0')
    a(f's_mov_b32 {sGW}, {sGW0}\ns_mov_b32 {sGA}, {sGA0}\ns_mov_b32 {sPF}, {sPF0}')
    def sig_end(name, soff, pre=''):
        far.append(f'{name}:\n{pre}{signal(soff)}\ns_mov_b32 {sSIG}, 0\ns_branch {name}_r')
        return f's_cmp_eq_u32 {sCNT}, {sSIG}\ns_cbranch_scc1 {name}\n{name}_r:'
    usig = sig_end('L2_su', sFU)
    far.append(f'L2_wn:\n{spin("L2_wn1", sFW, sTG)}\ns_branch L2_wn_r')
    far.append(f'L2_bad:\nds_write_b32 v{t+1}, {vONE}\ns_waitcnt lgkmcnt(0)\ns_branch L2_bad_r')
    su_s = f's_lshl_b32 {sW3}, {sDT}, 8\ns_add_u32 {sW3}, {sW3}, {NSY*64*2048}\ns_lshl_b32 {sT}, {sST}, 2\ns_add_u32 {sT}, {sT}, {sWAVE}\ns_lshl_b32 {sA3}, {sT}, 18\ns_add_u32 {sA3}, {sA3}, {OF + NSY*4096}\n'
    su_s += f's_add_u32 {sT3}, {sST}, {sDT}\ns_and_b32 {sT3}, {sT3}, {opt.get("rot", 1)}\n' + rot_setup(sT3, sW3, sA3, sSI, sSJ, 64 * 2048, 4096)
    su_s += f'\nv_bfe_u32 v{t+2}, v0, 4, 2\nv_lshrrev_b32 v{t+3}, 6, v0\nv_lshl_add_u32 v{t+2}, v{t+3}, 4, v{t+2}\nv_lshlrev_b32 v{t+2}, 11, v{t+2}'
    for i in range(4): su_s += f'\nv_sub_u32 {vWg.sub(i)}, {vWq.sub(i)}, v{t+2}' + (f'\nv_subrev_u32 {vWg.sub(i)}, {4*i*2048}, {vWg.sub(i)}' if i else '')
    su_a = f's_and_b32 {sT3}, {sDT}, 1\ns_mov_b32 {sT2}, {1 << 20}\ns_cmp_eq_u32 {sROLE}, 0\ns_cselect_b32 {sT2}, {4*112*2048}, {sT2}\ns_cselect_b32 {sT3}, {sT3}, 0\n'
    su_a += f's_mul_i32 {sT3}, {sT3}, {sT2}\ns_sub_u32 {sT2}, {sT2}, {sT3}\nv_add_u32 {vA0}, {sT3}, {vL16}\nv_add_u32 {vA1}, {sT2}, {vL16}'
    FRr = [V(38), V(40), V(41), V(252)]
    FRp = [(V(38, 2), 0), (V(40, 2), 0), (V(40, 2), 1), (V(252, 2), 0)]
    TR = S.sub(0, 4)
    mg = int(opt.get('margin', MARGIN))
    ra = f'L2_ra:\ns_mov_b32 {sRCF}, 1\ns_nop 7\n'
    for b in range(4): ra += f'v_accvgpr_read_b32 {TR.sub(b)}, {LS.sub(4*b)}\nv_accvgpr_read_b32 {FRr[b]}, {LS.sub(4*b+1)}\n'
    for b in range(4): ra += f'v_add_f32 {TR.sub(b)}, {TR.sub(b)}, {FRr[b]}\n'
    for b in range(4): ra += f'v_frexp_exp_i32_f32 {TR.sub(b)}, {TR.sub(b)}\n'
    for b in range(4): ra += f'v_sub_u32 {TR.sub(b)}, {1 - mg}, {TR.sub(b)}\n'
    for b in range(4): ra += f'v_ldexp_f32 {FRr[b]}, 1.0, {TR.sub(b)}\nv_cvt_f32_i32 {TR.sub(b)}, {TR.sub(b)}\n'
    for b in range(4):
        for i in range(4): ra += f'v_add_f32 {NEGM.sub(4*b+i)}, {NEGM.sub(4*b+i)}, {TR.sub(b)}\n'
    rb = f'L2_rb:\ns_mov_b32 {sRCF}, 0\nv_mov_b32 {TR.sub(3)}, 0x7f800000\ns_nop 7\n'
    scale = lambda x, b: f'v_pk_mul_f32 {x}, {x}, {FRp[b][0]} op_sel:[0,{FRp[b][1]}] op_sel_hi:[1,{FRp[b][1]}]\n'
    for b in range(4):
        rb += f'v_accvgpr_read_b32 {TR.sub(0)}, {LS.sub(4*b)}\nv_accvgpr_read_b32 {TR.sub(1)}, {LS.sub(4*b+1)}\n'
        rb += f'v_add_f32 {TR.sub(2)}, {TR.sub(0)}, {TR.sub(1)}\nv_cmp_ge_f32 vcc, 0x47800000, {TR.sub(2)}\ns_nop 1\nv_cndmask_b32 {FRr[b]}, {TR.sub(3)}, {FRr[b]}, vcc\n'
        rb += scale(TR.sub(0, 2), b) + f'v_accvgpr_write_b32 {LS.sub(4*b)}, {TR.sub(0)}\nv_accvgpr_write_b32 {LS.sub(4*b+1)}, {TR.sub(1)}\n'
    for k in range(64): rb += scale(O.sub(2 * k, 2), (k >> 1) & 3)
    if RC: far += [ra + 's_branch L2_ra_r', rb + 's_branch L2_rb_r']
    marks = []
    for j in range(-1, 31):
        if 0 <= j <= 28 and j % 4 == 0: marks.append(st.mark())
        if j == 28: st.push(parse(su_a))
        if j == 30: st.push(flat(g4.window(0)[4:]) + flat(g4.window(1)[4:8]))
        if j < 0 and FT: first_tile(st, opt, pre)
        else: att_iter(st, j, g4, opt)
        assert not st.q
        if RC and 0 <= j < 28 and j % 4 == PA: a(f's_bitcmp1_b32 {sRCM}, {sCNT}\ns_cbranch_scc1 L2_ra\nL2_ra_r:')
        if RC and 0 <= j < 28 and j % 4 == (PA + 1) % 4: a(f's_cmp_lg_u32 {sRCF}, 0\ns_cbranch_scc1 L2_rb\nL2_rb_r:')
        if 0 <= j < 28 and j % 4 == 3: st.ops(publish(usig.split('\n'), 'wg'))
    st.fold(marks, 'L2_loop', sCNT)
    w1_ = flat(g4.window(1)[8:]) + (flat(g4.window(2)[2:10]) if g4.pre2 else [])
    LV = NEGM.sub(0, 8)
    st.push([10] + w1_[:5])
    st.push([valu(f'v_accvgpr_read_b32 {LV.sub(k)}, {LS.sub(4*(k >> 1) + (k & 1))}') for k in range(8)])
    st.push([valu(f'v_add_f32 {LV.sub(2*b)}, {LV.sub(2*b)}, {LV.sub(2*b+1)}') for b in range(4)])
    st.push(parse(f'v_add_f32 v{t+2}, {LV.sub(0)}, {LV.sub(2)}\nv_add_f32 v{t+3}, {LV.sub(4)}, {LV.sub(6)}\nv_add_f32 v{t+2}, v{t+2}, v{t+3}\nv_cmp_nge_f32 vcc, 0x47800000, v{t+2}'))
    st.push([valu(f'v_rcp_f32 {LV.sub(2*b)}, {LV.sub(2*b)}') for b in range(2)])
    st.push([[salu('s_cbranch_vccnz L2_bad'), salu('L2_bad_r:')], barrier(['N0']), Op(f'ds_read_b32 v{t}, v{t+1}', 'ds', wr=V(t).set())])
    st.push([valu(f'v_rcp_f32 {LV.sub(2*b)}, {LV.sub(2*b)}') for b in range(2, 4)])
    st.push(w1_[5:])
    st.push([valu(f'v_subrev_u32 {vWa.sub(e)}, {VBASE - KBASE}, {vVa.sub(e)}') for e in range(4)])
    st.push([valu(f'v_readfirstlane_b32 {sT}, v{t}', rd=[V(t)])])
    st.push([valu(f'v_subrev_u32 {vWa.sub(e)}, {VBASE - KBASE}, {vVa.sub(e)}') for e in range(4, 8)])
    st.push([[salu(f's_cmp_gt_u32 {sT}, {sMODE}'), salu('s_cbranch_scc1 L2_redo')]])
    st.push(parse(f's_add_u32 {sT}, {sO}, 4096\ns_add_u32 {sT2}, {sO}, {128*2048}\ns_add_u32 {sT3}, {sT2}, 4096'))
    st.push(parse(f's_lshr_b32 {sFW}, {sST}, 1\ns_lshl_b32 {sFW}, {sFW}, 8\ns_add_u32 {sFW}, {sFW}, {FL}'))
    BV = NEGM.sub(8, 8)
    bv = [valu(f'v_accvgpr_read_b32 {BV.sub(e)}, {BA.sub(e)}', rd=[BA.sub(e)]) for e in range(8)]
    for r in g4.reads(0) + g4.reads(1): st.push([r, bv.pop(0)])
    att_iter(st, 31, g4, opt)
    st.flush()
    sp.stamp(st)
    for tt in range(4):
        for b in range(4):
            x, y = accq(2 * tt, b), accq(2 * tt + 1, b)
            for r in (x, y):
                for h in (0, 2): a(f'v_pk_mul_f32 {r.sub(h,2)}, {r.sub(h,2)}, {LV.sub(2*b,2)} op_sel_hi:[1,0]')
            for h in range(4): a(f'v_cvt_pk_bf16_f32 {x.sub(h)}, {(x, y)[h >> 1].sub(2*(h & 1))}, {(x, y)[h >> 1].sub(2*(h & 1)+1)}')
            st.op(vstore(f'buffer_store_dwordx4 {x}, {vL16}, {sWS}, {[[sO, sT], [sT2, sT3]][b >> 1][tt >> 1]} offen offset:{(tt & 1) * 2048 + (b & 1) * 1024} sc1'))
        for e in (2 * tt + 1, 2 * tt):
            x = QACC.sub(16 * e, 16)
            for i in range(2): a(f'v_lshlrev_b32 {x.sub(i)}, 16, {BV.sub(e)}')
            for i in range(1, 8): a(f'v_mov_b64 {x.sub(2*i,2)}, {x.sub(0,2) if i < 4 else 0}')
    sp.stamp(st)
    a(f's_cmp_lg_u32 {sROLE}, 0\ns_cbranch_scc1 L2_Y')
    sy = st.fork(); spn = sp.n
    def hooks(g, name, events, sig=None, sigpos=2, code=False):
        pos = {c % 4 for c in events}; assert len(pos) == 1; pos = pos.pop()
        nf = g.nst // 4 - 1
        inl = {c: x for c, x in events.items() if g.folded(c)}
        out = [c for c in events if not g.folded(c)]
        txt = f'{name}:\n'
        for c, x in inl.items(): txt += f's_cmp_lg_u32 {sCNT}, {g.trip(c) - nf}\ns_cbranch_scc1 {name}_{c}\n{x}\n{name}_{c}:\n'
        if inl: far.append(txt + f's_branch {name}_r')
        mask = sum(1 << ((g.trip(c) - nf) & 31) for c in inl)
        def f(s, e):
            fold = g.folded(s)
            want = lambda d: ((s + d) % 4 == pos and (inl or any(g.folded(c - d) for c in out))) if fold else (s + d) in events
            if fold and sig and g.skew and (s % 4, e) == (1, 7):
                return {6: publish(sig.split('\n'), 'wg'), 3: [valu(f'v_readfirstlane_b32 {sT}, {vFL}', rd=[vFL])] if want(1) else []}
            if g.NA == 4 and e == 0 and want(1): return {3: [flag_load(sFW)]}
            if g.NA == 2 and e == 0 and want(2): return {3: [flag_load(sFW)]}
            if e == 7 and want(1): return {3: [valu(f'v_readfirstlane_b32 {sT}, {vFL}', rd=[vFL])]}
            if e == 0 and fold and inl and s % 4 == pos: return {3: [salu(f's_bitcmp1_b32 {mask}, {sCNT}'), salu(f's_cbranch_scc1 {name}'), salu(f'{name}_r:')]}
            if e == 0 and s in out:
                far.append(f'{name}o:\n{events[s]}\ns_branch {name}o_r')
                return {3: [salu(f's_branch {name}o'), salu(f'{name}o_r:')]}
            if fold and sig and not g.skew and (s % 4, e) == sigpos: return {(1 if g.NA == 4 else 3): publish(sig.split('\n'), 'wg')}
            if e == 2 and fold and code and s % 4 == 0 and opt.get('rpf', 1): return {3: [pfcode()]}
            return {}
        return f
    def need(name, target): return f's_cmp_ge_u32 {sT}, {target}\ns_cbranch_scc1 {name}_k\n{spin(name, sFW, target)}\n{name}_k:'
    def pack_store(x, y, so, off, zero=False):
        o = [valu(f'v_cvt_pk_bf16_f32 {x.sub(h)}, {(x, y)[h >> 1].sub(2*(h & 1))}, {(x, y)[h >> 1].sub(2*(h & 1)+1)}') for h in range(4)]
        o.append(vstore(f'buffer_store_dwordx4 {x}, {vL16}, {sWS}, {so} offen offset:{off} sc1'))
        if zero: o += [valu(f'v_mov_b64 {r.sub(h,2)}, 0') for r in (y, x) for h in (0, 2)]
        return o

    opre, opos = (f's_waitcnt vmcnt({10 + opt.get("rpf", 1)})\n', (0, opt.get('pe', 6))) if PW else ('', (1, 6))
    a(f's_mov_b32 {sSIG}, -6' if PW else f's_cmp_eq_u32 {sWAVE}, 0\ns_cselect_b32 {sSIG}, -6, 0')
    h4 = hooks(g4, 'L2_h4', {25: need('L2_c0', 16 * OM)}, sig_end('L2_so', sFO, opre), opos, True)
    g4.loop(st, 'L2_y', sCNT, extra=h4)
    n3 = g3s.nst
    l2e = f2h(-math.log2(math.e))
    su4 = f"""s_mov_b32 s58, {l2e}
s_mov_b32 s59, {l2e}
s_xor_b32 {sT3}, {sG}, 4
s_lshl_b32 {sP0}, {sT3}, 13
s_add_u32 {sP0}, {sP0}, {YB}
s_add_u32 {sP1}, {sP0}, 4096
s_lshl_b32 {sT3}, {sT3}, 7
s_add_u32 {sFO}, {sT3}, {FL + 16384 + 64}
s_lshl_b32 {sT3}, {sG}, 7
s_add_u32 {sFG}, {sT3}, {FL + 16384}
s_add_u32 {sFU}, {sFW}, {3 * 2048}
s_add_u32 {sFW}, {sFG}, 64
s_mov_b32 {sSIG}, {1 - n3 // 4}
s_lshl_b32 {sT3}, {sWAVE}, 14
s_lshl_b32 {sT4}, {sWAVE}, 11
v_and_b32 v{t+1}, 63, v0
v_lshlrev_b32 v{t+1}, 4, v{t+1}
v_add_u32 v{t}, {sT4}, v{t+1}
v_add_u32 v{t+1}, {sT3}, v{t+1}
v_bfe_u32 v{t+2}, v0, 4, 2
v_and_b32 v{t+3}, 15, v0
v_lshlrev_b32 v{t+2}, 2, v{t+2}
v_sub_u32 v{t+2}, v{t+3}, v{t+2}
v_and_b32 v{t+3}, 1, v0
v_lshlrev_b32 v{t+3}, 4, v{t+3}
v_mov_b32 {SEL.sub(0)}, 0x3f80
v_lshlrev_b32 v{t+3}, v{t+3}, {SEL.sub(0)}
v_lshrrev_b32 v{t+2}, 1, v{t+2}
v_cmp_eq_u32 vcc, 0, v{t+2}
v_mov_b32 {SEL.sub(0)}, 0
v_mov_b32 {SEL.sub(1)}, 0
v_cndmask_b32 {SEL.sub(2)}, 0, v{t+3}, vcc
v_cmp_eq_u32 vcc, 1, v{t+2}
v_mov_b32 {SEL.sub(4)}, 0
v_mov_b32 {SEL.sub(5)}, 0
v_cndmask_b32 {SEL.sub(3)}, 0, v{t+3}, vcc"""
    HP = opt.get('hp', 0)
    vHP = V(16)
    if HP:
        su4 += f"""
s_and_b32 {sT3}, {sST}, 3
s_lshl_b32 {sT3}, {sT3}, 1
s_bfe_u32 {sT4}, {sDT}, 0x10001
s_add_u32 {sT3}, {sT3}, {sT4}
s_lshl_b32 {sT3}, {sT3}, 2
s_add_u32 {sT3}, {sT3}, {sWAVE}
s_lshl_b32 {sT3}, {sT3}, 14
s_lshl_b32 {sT4}, {sT4}, 9
s_sub_u32 {sT3}, {sT3}, {sT4}
s_add_u32 {sT4}, {sST}, {sDT}
s_and_b32 {sT4}, {sT4}, {opt.get('rot', 1)}
s_lshl_b32 {sT4}, {sT4}, 17
s_sub_u32 {sT3}, {sT3}, {sT4}
s_add_u32 {sT3}, {sT3}, {opt.get('hd', 4) * 131072 + 256 + (128 if HP == 1 else 0)}
s_bitcmp1_b32 {sDT}, 0
s_cselect_b32 {sT3}, 0x20000000, {sT3}
v_bfe_u32 {vHP}, v0, 3, 3
v_lshlrev_b32 {vHP}, 11, {vHP}
v_bfe_u32 v{t+2}, v0, 2, {HP - 1}
v_lshl_add_u32 {vHP}, v{t+2}, 7, {vHP}
v_add_u32 {vHP}, {sT3}, {vHP}"""
    ysend = lambda e: pack_store(accq(e, 2), accq(e, 3), [sP0, sP1][e >> 2], 1024 * (e & 3), True)
    def g4x(s, e):
        if s == 24 + SK and e == 1: st.push(parse(su_s.replace(sT + ',', sT4 + ',').replace(', ' + sT + '\n', ', ' + sT4 + '\n')))
        if s == 25 and e == 0: assert not st.q
        if s == 25 and e == 1: st.push(parse(su4))
        if s == 25 and e == 6: assert len(st.q) <= len(parse(su4))
        if s == 27 and e == 2: assert not st.q
        if SK: k = {(27, 3): 4, (27, 5): 5, (27, 7): 6, (28, 1): 7, (28, 2): 0, (28, 3): 1}.get((s, e))
        else: k = e - 2 if (s == 27 and e >= 2) else None
        if k is not None: st.push(ysend(k))
        return h4(s, e)
    pre3 = g3s.window(0) + g3s.window(1) + g3s.window(2) + g3s.window(3)[:2]
    if g3s.uni: pre3 = g3s.window(0) + g3s.window(1) + g3s.window(2)[4:] + g3s.window(2)[:3]
    g4.last(st, lambda i: pre3[12 * i:12 * i + 12], g4x, chain=g3s)
    st.ops(g3s.reads(2))
    st.flush()
    sp.stamp(st)
    st.ops(ysend(2) + ysend(3) if SK else ysend(6) + ysend(7))
    sp.stamp(st)
    YR, PR = A(96, 32), A(128, 64)
    ev1 = need('L2_cy', 1) + f'\ns_lshl_b32 {sP0}, {sG}, 13\ns_add_u32 {sP0}, {sP0}, {YB}\ns_add_u32 {sP1}, {sP0}, 4096\ns_mov_b32 {sFW}, {sFU}\n'
    ev1 += '\n'.join(f'buffer_load_dwordx4 {YR.sub(4*e,4)}, {vL16}, {sWS}, {[sP0, sP1][e >> 2]} offen offset:{1024*(e & 3)} sc1' for e in range(8))
    ev2 = [mfma(accq(e, b), SEL.sub(2 - 2 * b, 4), YR.sub(4 * e, 4), accq(e, b)).text for e in range(8) for b in range(2)]
    for e in range(8):
        x = BIAS.sub((e & 1) * 8, 8); y = QACC.sub(16 * e, 8)
        ev2 += [f'v_pk_mul_f32 {x.sub(2*i,2)}, {y.sub(2*i,2)}, {sC}' for i in range(4)]
        ev2 += [f'v_exp_f32 {x.sub(i)}, {x.sub(i)}' for i in range(8)]
        ev2 += [f'v_pk_add_f32 {x.sub(2*i,2)}, {x.sub(2*i,2)}, 1.0 op_sel_hi:[1,0]' for i in range(4)]
        ev2 += [f'v_rcp_f32 {x.sub(i)}, {x.sub(i)}' for i in range(8)]
        ev2 += [f'v_pk_mul_f32 {y.sub(2*i,2)}, {x.sub(2*i,2)}, {y.sub(2*i,2)}' for i in range(4)]
        if e in (0, 4): ev2.append('s_waitcnt lgkmcnt(0)')
        ev2 += [f'ds_write_b128 v{t}, {y.sub(4*b,4)} offset:{8192*e + 1024*b}' for b in range(2)]
    ev2 = '\n'.join(ev2) + '\ns_waitcnt lgkmcnt(0)'
    c2 = 2 * (16 - 2 * A1) - 3
    ev = {9: ev1, 13: ev2}
    LT = opt.get('late', 0); tg2 = (16 - 2 * Y1) * OM
    if LT:
        ev[c2] = (ev[c2] + '\n' if c2 in ev else '') + f's_cmp_lt_u32 {sT}, {tg2}\ns_cselect_b32 {sRDY}, {(c2 + 3) // 4 - n3 // 4}, 0\ns_cselect_b32 {sT}, 0x40000000, 0\ns_mov_b32 {sP0}, {sA3}\ns_add_u32 {sA3}, {sA3}, {sT}'
        rl = '\n'.join(o.text for k in range(3) for o in flat(g3s.window(c2 + 3 + k)[4:]))
        far.append(f'L2_lt:\n{spin("L2_lt1", sFW, tg2, nap=1)}\ns_mov_b32 {sA3}, {sP0}\n{rl}\ns_waitcnt vmcnt(0)\ns_branch L2_lt_r')
        a(f's_mov_b32 {sRDY}, 0')
    else: ev[c2] = (ev[c2] + '\n' if c2 in ev else '') + need('L2_c2', tg2)
    assert c2 >= 13 and c2 < n3 - 4
    h3 = hooks(g3s, 'L2_h3', ev, sig_end('L2_sy1', sFO), (3, 1))
    g3s.loop(st, 'L2_s', sCNT, extra=lambda s, e: {3: [vload(f'buffer_load_dword {vDUM}, {vHP}, {sWO}, {sW3} offen')]} if (HP and s % 4 == 0 and e == 3) else h3(s, e),
             trip_end=(lambda s_: s_.raw(f's_cmp_eq_u32 {sCNT}, {sRDY}\ns_cbranch_scc1 L2_lt\nL2_lt_r:')) if LT else None)
    GFb = lambda k: accq(k >> 1, k & 1)
    pl = lambda so: [vload(f'buffer_load_dwordx4 {PR.sub(4*n,4)}, {vL16}, {sWS}, {so[n >> 2]} offen offset:{1024*(n & 3)} sc1', PR.sub(4 * n, 4)) for n in range(16)]
    PS = [sP0, sP1, sT4, sFU]
    pset = f's_add_u32 {sP1}, {sP0}, 4096\ns_add_u32 {sT4}, {sP0}, 8192\ns_add_u32 {sFU}, {sP0}, 12288'
    XT = 131072
    vXo, vXe = vWq, vWa
    su_x = f'v_bfe_u32 v{t+2}, v0, 4, 2\nv_and_b32 v{t+3}, 15, v0\nv_xor_b32 {vXo.sub(0)}, v{t+2}, v{t+3}\nv_lshlrev_b32 {vXo.sub(0)}, 4, {vXo.sub(0)}\nv_lshl_add_u32 {vXo.sub(0)}, v{t+2}, 11, {vXo.sub(0)}\n'
    for k in range(1, 4): su_x += f'v_xor_b32 {vXo.sub(k)}, {64*k}, {vXo.sub(0)}\nv_add_u32 {vXo.sub(k)}, {k*(8192-1024)}, {vXo.sub(k)}\n'
    su_x += f's_lshl_b32 {sT3}, {sWAVE}, 13\ns_add_u32 {sT3}, {sT3}, {XT}\ns_lshl_b32 {sG}, {sG}, 14\ns_add_u32 {sG}, {sG}, {GB}'
    su_e = f'v_lshrrev_b32 v{t}, 1, v{t+2}\nv_xor_b32 v{t}, v{t}, v{t+3}\nv_lshlrev_b32 v{t}, 4, v{t}\nv_lshl_add_u32 v{t}, v{t+3}, 8, v{t}\nv_and_b32 {vX}, 1, v{t+2}\nv_lshl_add_u32 v{t}, {vX}, 3, v{t}\nv_add_u32 {vXe.sub(0)}, {sT3}, v{t}\n'
    for k in range(1, 8): su_e += f'v_xor_b32 {vXe.sub(k)}, {32*k}, {vXe.sub(0)}\n'
    su_e += f'v_and_b32 {vX}, 63, v0\nv_lshl_add_u32 {vX}, {vX}, 4, {sT3}'
    a(su_x)
    def xwin(i_):
        if i_: return []
        r_ = xw()
        return r_[4:] + r_[:4] if g3s.uni else r_
    def xw():
        return [([salu(f's_add_u32 m0, {sT3}, {4096 * (n >> 2)}')] if n % 4 == 0 else [],
                 vload(f'buffer_load_dwordx4 {vXo.sub(n & 3)}, {sX}, {[sR0, sR1][n >> 2]} offen offset:{1024*(n & 3)} lds', tag=f'x{n}'), []) for n in range(8)]
    FE = opt.get('fe', 8)
    def s3x(s, e):
        if s == n3 - 4 and e == 0:
            v_ = parse(su_e)
            for k in range(16): st.push([ds_128(GFb(k), V(t + 1), 8192 * (k & 1) + 1024 * (k >> 1)), v_.pop(0)])
            un = v_
            for k in range(16):
                b, e_ = k >> 3, k & 7
                x = XF.sub((e_ * 2 + b) * 4, 4)
                st.push([Op(f'ds_read_b64 {x.sub(2,2)}, {vXe.sub(e_)} offset:{4096*b}', 'ds', wr=x.sub(2, 2).set(), waittags=[f'x{4*b+3}'])])
                if k >= 4: st.push([un.pop(0)])
                un += [valu(f'v_lshlrev_b32 {x.sub(0)}, 16, {x.sub(2)}', rd=[x]), valu(f'v_and_b32 {x.sub(1)}, 0xffff0000, {x.sub(2)}'),
                       valu(f'v_lshlrev_b32 {x.sub(2)}, 16, {x.sub(3)}'), valu(f'v_and_b32 {x.sub(3)}, 0xffff0000, {x.sub(3)}')]
            st.push(un)
        if 8 * (s - n3 + 4) + e == FE: return {3: [flag_load(sFG)]}
        if 8 * (s - n3 + 3) + e == FE:
            old = st.q; st.q = []
            st.push([valu(f'v_readfirstlane_b32 {sRDY}, {vFL}', rd=[vFL]), 1])
            st.push(parse(f's_cmp_ge_u32 {sRDY}, 2\ns_cselect_b32 {sP0}, {sG}, 0x40000000\n' + pset))
            st.push(pl(PS))
            st.q += old
        return {}
    g3s.last(st, xwin, s3x)
    sp.stamp(st)
    far.append(f'L2_wg:\n{spin("L2_wg1", sFG, 2, nap=0)}\ns_mov_b32 {sP0}, {sG}\n{pset}\n' + '\n'.join(o.text for o in pl(PS)) + '\ns_branch L2_wg_r')
    KP = opt.get('keep', 32)
    keep = st.q[-KP:]; st.q = st.q[:-KP]
    assert all(g[0].kind == 'valu' for g in keep)
    st.flush(); st.q = keep
    assert st.pend[('a', 128)][1] == st.issued['vm'] - 15 and st.done['vm'] < st.issued['vm'] - 15
    a(f's_cmp_lt_u32 {sRDY}, 2\ns_cbranch_scc1 L2_wg\nL2_wg_r:')
    sp.stamp(st)
    mf = [mfma(acc3(e, b), SEL.sub(2 - 2 * (e & 1), 4), PR.sub((j * 8 + b * 4 + (e >> 1)) * 4, 4), acc3(e, b)) for j in range(2) for b in range(2) for e in range(8)]
    st.gaps(mf, [[] for _ in mf])
    st.flush()
    OD = lambda n: accq(n, 0)
    ost = lambda n: st.op(vstore(f'buffer_store_dwordx4 {OD(n)}, {vXo.sub(n & 3)}, {sOUT}, {[sR0, sR1][n >> 2]} offen offset:{1024*(n & 3)}' + opt.get('osuf', ''), rd=[OD(n)]))
    for b in range(2):
        for e in range(8):
            k = (e * 2 + b) * 4
            for h in (0, 2): st.op(valu(f'v_pk_fma_f32 {XF.sub(k+h,2)}, {acc3(e, b).sub(h,2)}, {accq(e, b).sub(h,2)}, {XF.sub(k+h,2)}', rd=[accq(e, b)]))
            for h in (0, 2): a(f'v_cvt_pk_bf16_f32 {XF.sub(k + h // 2)}, {XF.sub(k+h)}, {XF.sub(k+h+1)}')
            st.op(Op(f'ds_write_b64 {vXe.sub(e)}, {XF.sub(k,2)} offset:{4096*b}', 'ds'))
            if b == 1 and e >= 4: ost(e - 4)
        for n in range(4 * b, 4 * b + 4): st.op(ds_128(OD(n), vX, 1024 * n))
    for n in range(4, 8): ost(n)
    if sp.on: a('s_waitcnt vmcnt(0)')
    sp.stamp(st)
    sp.flush(st, sWS, t)
    a('L2_end:\ns_endpgm')

    a = sy.raw; sp.n = spn
    a('L2_Y:')
    assert (2 * A1 - 3) % 4 != 0
    a(f"""s_cmp_eq_u32 {sWAVE}, {sWAVE if PW else 0}
s_cselect_b32 {sSIG}, {1 - NY // 4}, 0
s_and_b32 {sT3}, {sST}, 1
s_lshl_b32 {sT4}, {sT3}, 11
s_add_u32 {sFW}, {sFW}, {sT4}
s_add_u32 {sFW}, {sFW}, 2048
s_andn2_b32 {sG}, {sG}, 32
s_lshl_b32 {sFG}, {sG}, 7
s_add_u32 {sFG}, {sFG}, {FL + 16384}
s_lshl_b32 {sG}, {sG}, 14
s_lshl_b32 {sT3}, {sT3}, 13
s_add_u32 {sG}, {sG}, {sT3}
s_add_u32 {sG}, {sG}, {GB}
s_add_u32 {sP0}, {sG}, 4096
s_add_u32 {sR0}, {sG}, {32 << 14}
s_add_u32 {sR1}, {sR0}, 4096""")
    hy = hooks(g3y, 'L2_hy', {2 * A1 - 2: need('L2_c1', Y1 * OM)}, sig_end('L2_yo', sFO, opre), opos, True)
    g3y.loop(sy, 'L2_sy', sCNT, extra=hy)
    def pstore(p):
        o = []
        for b in range(4): o += pack_store(accq(2 * p, b), accq(2 * p + 1, b), [sG, sP0, sR0, sR1][b], 1024 * p)
        return o
    def yx(s, e):
        if SK: k = {(NY - 1, 5): 2, (NY, 1): 3, (NY, 3): 0}.get((s, e))
        else: k = e // 2 - 1 if (s == NY - 1 and e in (3, 5, 7)) else None
        if k is not None: sy.push(pstore(k))
        return hy(s, e)
    g3y.last(sy, None, yx)
    sy.flush()
    sp.stamp(sy); sp.stamp(sy); sp.stamp(sy)
    sy.ops(pstore(1 if SK else 3))
    a(f'v_and_b32 v{t}, 1, v0\nv_lshlrev_b32 v{t}, 12, v{t}\ns_waitcnt vmcnt(0)')
    sp.stamp(sy)
    a(f's_mov_b64 exec, 3\nbuffer_atomic_add {vONE}, v{t}, {sWS}, {sFG} offen sc1\ns_mov_b64 exec, -1\ns_waitcnt vmcnt(0)')
    sp.stamp(sy)
    sp.flush(sy, sWS, t)
    a('s_endpgm')

    a = sg.raw; sp.n = spg
    a('L2_G:')
    qm = q_last_extra(sg, V(10, 8), 'L2_wb')
    def gx(s, e):
        if s == 12 + SK and e == 0:
            sg.push(parse(su_g2))
        ux = lambda r: [valu(f'v_xor_b32 {vWa.sub(k)}, {sROT}, {vWa.sub(k)}') for k in r]
        if not SK and s == 15 and e in (2, 6): sg.push(ux(range(2) if e == 2 else range(2, 8)))
        if SK and (s, e) == (16, 0): return {3: ux(range(2))}
        if SK and (s, e) == (16, 2): sg.push(ux(range(2, 8)))
        if s == 13 and e == (7 if SK else 4): assert len(sg.q) <= 2 * SK, len(sg.q)
        if s == 13 and e == 6 + SK:
            sg.push([vload(f'buffer_load_dwordx2 {BIAS.sub(2*n,2)}, {vFL}, {sBB}, {sB if n < 6 else sBN} offen offset:{32*n}', BIAS.sub(2 * n, 2)) for n in range(GW)])
        return qm(s, e)
    gq.last(sg, g2.window, gx, chain=g2)
    sg.flush()
    sp.stamp(sg)
    q_epilogue(sg, V(10, 8), GW)
    sp.stamp(sg)
    g2.loop(sg, 'L2_g', sCNT, extra=lambda s, e: {1: [pfcode()]} if (opt.get('rpf', 1) and s % 4 == 2 and e == 5) else {})
    k0 = 2.0 * math.sqrt(2.0 / math.pi) * math.log2(math.e)
    last_before_att(g2, sg, f's_mov_b32 s10, 0\ns_mov_b32 s58, {f2h(-k0*0.044715)}\ns_mov_b32 s59, {f2h(-k0*0.044715)}')
    sp.stamp(sg)
    C1 = V(t + 2, 2)
    a(f'v_mov_b32 {C1.sub(0)}, {f2h(-k0)}\nv_mov_b32 {C1.sub(1)}, {f2h(-k0)}')
    a(f's_add_u32 {sT}, {sU}, 4096\ns_add_u32 {sT2}, {sU}, {112*2048}\ns_add_u32 {sT3}, {sT2}, 4096')
    def gelu(x, tt, b):
        u = [(accq(2 * tt + (i >> 1), b) if tt < GW // 2 else accq(6, b + (i >> 1))).sub(2 * (i & 1), 2) for i in range(4)]
        for i in range(4): a(f'v_pk_mul_f32 {x.sub(2*i,2)}, {u[i]}, {u[i]}')
        for i in range(4): a(f'v_pk_fma_f32 {x.sub(2*i,2)}, {x.sub(2*i,2)}, {sC}, {C1}')
        for i in range(4): a(f'v_pk_mul_f32 {x.sub(2*i,2)}, {x.sub(2*i,2)}, {u[i]}')
        for i in range(8): a(f'v_exp_f32 {x.sub(i)}, {x.sub(i)}')
        for i in range(4): a(f'v_pk_add_f32 {x.sub(2*i,2)}, {x.sub(2*i,2)}, 1.0 op_sel_hi:[1,0]')
        for i in range(8): a(f'v_rcp_f32 {x.sub(i)}, {x.sub(i)}')
        for i in range(4): a(f'v_pk_mul_f32 {x.sub(2*i,2)}, {x.sub(2*i,2)}, {u[i]}')
        return accq(2 * tt, b)
    act_store(sg, 4, GW // 2, gelu, [[sU, sT], [sT2, sT3]], BIAS)
    a(f's_add_u32 {sT}, {sU}, {sGA}\ns_add_u32 {sT2}, {sT2}, {sGA}')
    for b in ((0, 2) if GW == 7 else ()):
        x = BIAS.sub(4 * b, 8); d = gelu(x, 3, b)
        for i in range(4): a(f'v_cvt_pk_bf16_f32 {d.sub(i)}, {x.sub(2*i)}, {x.sub(2*i+1)}')
        for h in range(2): sg.op(vstore(f'buffer_store_dwordx2 {d.sub(2*h,2)}, {vL16}, {sWS}, {[sT, sT2][b >> 1]} offen offset:{1024*h} sc1'))
    jn = Op('s_branch L2_join', 's', waittags=['K0', 'K1', 'K2', 'V0', 'V1']); jn.lg0 = True
    sg.op(jn)
    for x in far: a(x)

    a('L2_redo:')
    if opt.get('cntredo'): a(f's_mov_b32 {sT}, {56 << 20}\n' + signal(sT))
    a(f's_mov_b32 {sMODE}, 1\ns_mov_b32 {sRCM}, 0\ns_mov_b32 {sK}, {sKV0}\ns_mov_b32 {sCNT}, -32')
    a(f'v_and_b32 {vPF}, 63, v0\nv_lshlrev_b32 {vPF}, 6, {vPF}')
    for i in range(64): a(f'v_accvgpr_read_b32 {Q.sub(i)}, {QA.sub(i)}')
    for b in range(4): a(f'v_mov_b32 {M.sub(b)}, 0xff800000')
    a('L2_mx:\ns_waitcnt vmcnt(0) lgkmcnt(0)\ns_barrier')
    for pre, v, post in kdma(0):
        for o in pre: a(o.text + '\ns_nop 0')
        a(v.text)
        for o in post: a(o.text)
    a('s_waitcnt vmcnt(0)\ns_barrier')
    for c in range(4):
        for tt in range(4): a(kread(0, c, tt).text)
        a('s_waitcnt lgkmcnt(0)')
        for b in range(4):
            for tt in range(4): a(mfma(O.sub(4 * b, 4), Kf(c, tt), Qf(b, tt), O.sub(4 * b, 4) if tt else 0).text)
        a('s_nop 7')
        for b in range(4):
            x = O.sub(4 * b, 4)
            a(f'v_max3_f32 {M.sub(b)}, {M.sub(b)}, {x.sub(0)}, {x.sub(1)}\nv_max3_f32 {M.sub(b)}, {M.sub(b)}, {x.sub(2)}, {x.sub(3)}')
    a(f's_add_u32 {sCNT}, {sCNT}, 1\ns_cbranch_scc0 L2_mx')
    negm_finish(a, M, 0.0, S.sub(0, 4))
    a(f's_mov_b32 {sK}, {sKV0}\ns_mov_b32 {sV}, {sKV0}\ns_barrier')
    for pre, v, post in pre_kv:
        for o in pre: a(o.text + '\ns_nop 0')
        a(v.text)
        for o in post: a(o.text)
    a('s_waitcnt vmcnt(0)\ns_barrier')
    for tt in range(4): a(kread(0, 0, tt).text)
    a(kread(0, 1, 0).text)
    a('s_waitcnt lgkmcnt(0)\ns_branch L2_att')
    return st.lines() + sy.lines() + sg.lines(), kd(KNAME, 512, 256, 102), '; @launch ' + (f'kernel={KNAME} ' if opt.get('aslist') or 'probe' in opt else '') + 'grid=(256,1,1) block=(256,1,1) lds=163840'
```

```python
import sys, json
from fw import *
HEADER = """
"""
def build(opt):
    parts = []
    import k2; parts.append(k2.gen_k2(opt))
    if 'probe' in opt:
        import probe; parts.append(probe.gen_probe(opt))
    out = [p[2] for p in parts]
    out.append(HEADER.strip())
    out.append('.amdgcn_target "amdgcn-amd-amdhsa--gfx950"\n.text')
    for p in parts:
        name = p[0][0][:-1]
        if opt.get('dsuf'): p[0][:] = [l[:-4] + opt['dsuf'] + ' lds' if l.endswith(' lds') else l for l in p[0]]
        if 'asuf' in opt: p[0][:] = [l[:-4] + opt['asuf'] if (l.startswith('buffer_load_dwordx4 a') and l.endswith(' sc1')) else l for l in p[0]]
        if opt.get('perm'):
            on = False; o = []
            for l in p[0]:
                if l == 'L2_att:': on = True; o.append(l); l = 's_mov_b32 s99, 0x07060302'
                if l == 'L2_bad_r:': on = False
                w = l.split()
                if on and w[0] == 'v_cvt_pk_bf16_f32': l = f'v_perm_b32 {w[1]} {w[3]}, {w[2]} s99'
                o.append(l)
            p[0][:] = o
        if opt.get('abl'):
            import re
            loops, pat = opt['abl']
            inl = None; o = []
            for l in p[0]:
                if l[:-1] in loops and l.endswith(':'): inl = l[:-1]
                if inl and l == 's_cbranch_scc0 ' + inl: inl = None
                if l == 's_cbranch_scc1 L2_redo': l = 's_nop 0'
                o.append('s_nop 0' if (inl and re.search(pat, l)) else l)
            p[0][:] = o
        if opt.get('nobar'):
            inl = None; o = []
            for l in p[0]:
                if l[:-1] in opt['nobar'] and l.endswith(':'): inl = l[:-1]
                if inl and l == 's_cbranch_scc0 ' + inl: inl = None
                o.append('s_nop 0' if (inl and l == 's_barrier') else l)
            p[0][:] = o
        if opt.get('align', 1): p[0][:] = align_runs(p[0])
        errs = hazards(p[0])
        for e in errs: print('HAZARD', name, e, file=sys.stderr)
        out.append(f'.globl {name}\n.p2align 8\n.type {name},@function')
        out += p[0]
    out.append('.section .rodata,"a"')
    for p in parts: out.append('.p2align 6\n' + p[1])
    return '\n'.join(out) + '\n'
if __name__ == '__main__':
    opt = json.loads(sys.argv[2]) if len(sys.argv) > 2 else {}
    open(sys.argv[1], 'w').write(build(opt))
```

```python
import sys, json
from fw import *
HEADER = """
"""
def build(opt):
    parts = []
    import k2; parts.append(k2.gen_k2(opt))
    if 'probe' in opt:
        import probe; parts.append(probe.gen_probe(opt))
    out = [p[2] for p in parts]
    out.append(HEADER.strip())
    out.append('.amdgcn_target "amdgcn-amd-amdhsa--gfx950"\n.text')
    for p in parts:
        name = p[0][0][:-1]
        if opt.get('dsuf'): p[0][:] = [l[:-4] + opt['dsuf'] + ' lds' if l.endswith(' lds') else l for l in p[0]]
        if 'asuf' in opt: p[0][:] = [l[:-4] + opt['asuf'] if (l.startswith('buffer_load_dwordx4 a') and l.endswith(' sc1')) else l for l in p[0]]
        if opt.get('perm'):
            on = False; o = []
            for l in p[0]:
                if l == 'L2_att:': on = True; o.append(l); l = 's_mov_b32 s99, 0x07060302'
                if l == 'L2_bad_r:': on = False
                w = l.split()
                if on and w[0] == 'v_cvt_pk_bf16_f32': l = f'v_perm_b32 {w[1]} {w[3]}, {w[2]} s99'
                o.append(l)
            p[0][:] = o
        if opt.get('abl'):
            import re
            loops, pat = opt['abl']
            inl = None; o = []
            for l in p[0]:
                if l[:-1] in loops and l.endswith(':'): inl = l[:-1]
                if inl and l == 's_cbranch_scc0 ' + inl: inl = None
                if l == 's_cbranch_scc1 L2_redo': l = 's_nop 0'
                o.append('s_nop 0' if (inl and re.search(pat, l)) else l)
            p[0][:] = o
        if opt.get('jitbar'):
            seed, mask, where = opt['jitbar']
            o = []; n = 0
            for l in p[0]:
                if l == 's_barrier':
                    n += 1
                    d = ['s_mul_i32 s96, s96, 0x41c64e6d', 's_add_u32 s96, s96, 12345', 's_lshr_b32 s97, s96, 16', f's_and_b32 s97, s97, {mask}', f'L_jb{n}:', 's_sleep 2', 's_sub_u32 s97, s97, 1', f's_cbranch_scc0 L_jb{n}']
                    o += (d + [l]) if where == 0 else ([l] + d)
                else: o.append(l)
                if l == 's_cbranch_scc1 L2_end': o += ['v_readfirstlane_b32 s96, v0', 's_nop 3', 's_lshl_b32 s96, s96, 8', 's_add_u32 s96, s96, s2', f's_mul_i32 s96, s96, {seed * 7919 + 2654435761 & 0x7fffffff | 1}']
            p[0][:] = o
        if opt.get('nobar'):
            inl = None; o = []
            for l in p[0]:
                if l[:-1] in opt['nobar'] and l.endswith(':'): inl = l[:-1]
                if inl and l == 's_cbranch_scc0 ' + inl: inl = None
                o.append('s_nop 0' if (inl and l == 's_barrier') else l)
            p[0][:] = o
        if opt.get('align', 1): p[0][:] = align_runs(p[0])
        errs = hazards(p[0])
        for e in errs: print('HAZARD', name, e, file=sys.stderr)
        out.append(f'.globl {name}\n.p2align 8\n.type {name},@function')
        out += p[0]
    out.append('.section .rodata,"a"')
    for p in parts: out.append('.p2align 6\n' + p[1])
    return '\n'.join(out) + '\n'
if __name__ == '__main__':
    opt = json.loads(sys.argv[2]) if len(sys.argv) > 2 else {}
    open(sys.argv[1], 'w').write(build(opt))
```

```python
from fw import *
from gemm import *
STAT, HF, UF, OF, GB, FL, YB = 0, 4 << 20, 8 << 20, 16 << 20, 32 << 20, 40 << 20, 44 << 20
WS_SIZE = 128 << 20
SHADOW = (64 << 20) + 128
LSTR = 2112
KNAME = 'recurrent_scan__mha_block_cached__mixer_token_mlp__prompt_kernel'
import math, struct
def f2h(x): return '0x%08x' % struct.unpack('<I', struct.pack('<f', x))[0]

KBASE, VBASE, QRING, FLAG = 0, 65536, 98304, 131072
MARGIN = 102.0
sWS, sWQ, sKC, sVC, sW1, sWN, sWO, sBB = ['s[%d:%d]' % (i, i + 3) for i in range(4, 36, 4)]
sOUT = sW1
sWAVE, sLDS, sCNT, sQW, sQA, sK, sV, sGW, sGA, sO, sU, sPF, sMODE, sROT = ['s%d' % i for i in range(36, 50)]
sKV0, sGW0, sGA0, sPF0, sT, sT2 = ['s%d' % i for i in range(50, 56)]
sB = sGW
sC = 's[58:59]'
sSLOT, sIDX, sHEAD, sQ64, sST, sDT, sT3, sT4 = ['s%d' % i for i in range(60, 68)]
sX = 's[68:71]'
sQI, sQJ, sGI, sGJ = ['s72', 's73'], ['s74', 's75'], ['s76', 's77'], ['s78', 's79']
sNI, sNJ, sSI, sSJ = sQI, sQJ, sGI, sGJ
sW3, sA3, sSIG, sFO, sFU, sFW, sFG, sG, sR0, sR1, sSTR, sTG, sGRP, sP0, sROLE, sBN = ['s%d' % i for i in range(80, 96)]
sP1, sRDY = 's100', 's101'
vCO = V(42)
def pfcode(): return vload(f'global_load_dword {vDUM}, {vCO}, s[56:57]')
sDBG, sQA2 = 's[72:75]', 's3'
XSLOT, CSB = [65536, 32768], 49152

vL16 = V(1)
vWq, vWg, vKd, vVd = V(2, 4), V(6, 4), V(10, 4), V(14, 2)
vKa, vVa, vWa = V(16, 4), V(20, 8), V(28, 8)
vPF, vDUM, vTMP = V(36), A(60), 38
vZERO, vONE, vFL, vX = V(37), V(43), V(252), V(253)
vL16b = vX
Q = V(44, 64)
QACC = V(108, 128)
S, T, P, NEGM, LS, ONES, vIDX = V(28, 8), V(6, 4), V(44, 64), V(236, 16), A(32, 16), A(48, 4), V(37)
QA, BA = A(64, 64), A(52, 8)
BIAS = V(236, 16)
XF, SEL, vA0, vA1 = V(44, 64), V(10, 6), V(36), V(253)
ONESQ, IDXQ, CS, vXd, vXa, vCw, vCr = V(44, 4), V(48), V(52, 8), V(60, 4), V(64, 2), V(66), V(68, 4)
O, KF, VF, GACT = V(108, 128), A(128, 32), A(160, 32), A(192, 64)

def Pf(tile, u, b, n=4): return P.sub((tile & 1) * 32 + b * 8 + u * 4, n)
def Qf(b, t): return Q.sub((b * 4 + t) * 4, 4)
def Qa(b, t): return QA.sub((b * 4 + t) * 4, 4)
def Kf(c, t): return KF.sub((c & 1) * 16 + t * 4, 4)
def Vf(e, u): return VF.sub((e & 3) * 8 + u * 4, 4)
def kread(tile, c, t): return ds_128(Kf(c, t), vKa.sub(t), (tile & 3) * 16384 + c * 4096)
def vread(tile, e, u, tt): return ds_tr(Vf(e, u).sub(2 * tt, 2), vVa.sub(e), (tile & 3) * 16384 + u * 8192 + tt * 4096)
def kdma(n):
    return [([salu(f's_add_u32 m0, {sLDS}, {KBASE + (n & 3) * 16384}')] if i == 0 else [],
             vload(f'buffer_load_dwordx4 {vKd.sub(i)}, {sKC}, {sK} offen offset:{i*1024} lds', tag=f'K{n}'),
             [salu(f's_add_u32 {sK}, {sK}, 16384')] if i == 3 else []) for i in range(4)]
def vdma(n):
    return [([salu(f's_add_u32 m0, {sLDS}, {VBASE + (n & 3) * 16384}')] if i == 0 else [],
             vload(f'buffer_load_dwordx4 {vVd.sub(i & 1)}, {sVC}, {sV} offen offset:{i*1024} lds', tag=f'V{n}'),
             [salu(f's_add_u32 {sV}, {sV}, 16384')] if i == 3 else []) for i in range(4)]
def flat(elems):
    o = []
    for pre, v, post in elems: o += pre + [v] + post
    return o
def pfw1():
    return [vload(f'buffer_load_dword {vDUM}, {vPF}, {sWQ}, {sQW} offen'), salu(f's_add_u32 {sQW}, {sQW}, {1 << 21}')]
def rowsum(j, b): return Op(f'v_smfmac_f32_16x16x64_bf16 {LS.sub(4*b,4)}, {ONES}, {Pf(j, 0, b, 8)}, {vIDX}', 'mfma')

def att_iter(st, j, gn, opt):
    a = j + 1
    qk, pv = a <= 31, j >= 0
    t_ = vTMP
    def window(w):
        k = kdma(w + 4) if w + 4 <= 31 else gn.window(w - 28)[:(4, 4, 2, 0)[w - 28]]
        v = vdma(w + 3) if w + 3 <= 31 else []
        return k, v
    kcur, vcur = window(j)
    kprev, vprev = window(j - 1) if j >= 0 else ([], [])
    dma = {11: kcur[0:1], 13: kcur[1:2], 15: kcur[2:3], 1: kprev[3:4], 3: vprev[0:1], 5: vprev[1:2], 7: vprev[2:3], 9: vprev[3:4]}
    dd = opt.get('dd', 0)
    if dd: dma = {11: kcur[0:2], 15: kcur[2:4], 3: vprev[0:2], 7: vprev[2:4]}
    if j == 31: dma = {}
    Z = P.sub(32, 4)
    mf_all, fill_all = [], []
    pend = []
    for n in range(16):
        c, b, e = n >> 2, n & 3, n >> 1
        m = [None] * 9
        f = [[] for _ in range(9)]
        sc = [[] for _ in range(9)]
        sc[0] += pend; pend = []
        Sn, Sp = S.sub((n & 1) * 4, 4), S.sub(((n + 1) & 1) * 4, 4)
        if qk:
            for t in range(4):
                t2 = 3 - t if (opt.get('qz') and n & 1) else t
                m[t] = mfma(Sn, Kf(c, t2), Qa(b, t2), NEGM.sub(4 * b, 4) if t == 0 else Sn)
        for jj in range(2):
            bb = 2 * (n & 1) + jj
            Ob = O.sub((e * 4 + ((bb & ~1) + (j & 1) if opt.get('fk', 0) & 2 else bb)) * 4, 4)
            if pv:
                for u in range(2):
                    uu = u ^ jj if opt.get('zig', 1) else u
                    m[4 + 2 * jj + u] = mfma(Ob, Pf(j, uu, bb), Vf(e, uu), Ob) if opt.get('xswap') else mfma(Ob, Vf(e, uu), Pf(j, uu, bb), Ob)
            else: m[5 + 2 * jj] = mfma(Ob, Z, Z, 0)
        if pv and opt.get('pv1'):
            for bb in range(4):
                Ob = O.sub((e * 4 + bb) * 4, 4)
                m[4 + bb] = mfma(Ob, Vf(e, n & 1), Pf(j, n & 1, bb), Ob)
        if qk and pv and opt.get('ilv'):
            m[:8] = [m[0], m[1], m[4], m[5], m[2], m[3], m[6], m[7]]
        if j == 31:
            if n == 0: m[0], m[2] = rowsum(j, 0), rowsum(j, 1)
            if n == 1: m[0], m[8] = rowsum(j, 2), rowsum(j, 3)
        elif b == 3: m[8] = rowsum(j, c) if pv else mfma(LS.sub(4 * c, 4), Z, Z, 0)
        if opt.get('xs') and 0 <= j < 28 and n in (5, 13): m[8] = Op(f'v_smfmac_f32_16x16x64_bf16 a[0:3], {ONES}, {Pf(j, 0, c, 8)}, {vIDX}', 'mfma')
        if opt.get('xw') and 0 <= j < 28:
            for g in (5, 7, 6, 2)[:opt['xw']]:
                if (g, n & 3) not in ((7, 3), (6, 3), (2, 0)) and (g, n) != (7, 10): sc[g].append(salu('s_waitcnt lgkmcnt(15)'))
        if opt.get('xadd') and 0 <= j < 28:
            f[5].append(valu(f'v_add_f32 v{254 + ((n >> 1) & 1)}, v{254 + ((n >> 1) & 1)}, {T.sub(3 if n & 1 else 0)}'))
            if not n & 1 and n not in (2, 10): f[7] += [valu(f'v_add_f32 v{254 + ((n >> 1) & 1)}, v{254 + ((n >> 1) & 1)}, {T.sub(i)}') for i in (1, 2)]
        pt, pn = (a, n - 1) if n > 0 else (j, 15)
        if 0 <= pt <= 31:
            pc, pb = pn >> 2, pn & 3
            for i in range(4): f[2 * i].append(valu(f'v_exp_f32 {T.sub(i)}, {Sp.sub(i)}'))
            f[3].append(valu(f'v_cvt_pk_bf16_f32 {Pf(pt, pc >> 1, pb).sub(2 * (pc & 1))}, {T.sub(0)}, {T.sub(1)}'))
            if not pv: f[7].append(salu('s_nop 0'))
        elif pt < 0: f[7].append(salu('s_nop 3'))
        pt, pn = (a, n - 2) if n > 1 else (j, 14 + n)
        if 0 <= pt <= 31:
            pc, pb = pn >> 2, pn & 3
            f[1].append(valu(f'v_cvt_pk_bf16_f32 {Pf(pt, pc >> 1, pb).sub(2 * (pc & 1) + 1)}, {T.sub(2)}, {T.sub(3)}'))
        if 0 <= j < 28 and 'e' in opt.get('xa', ''): f = [[] for _ in range(9)]
        kq = 16 * a + n + 5
        kt, kc, kk = kq >> 4, (kq >> 2) & 3, kq & 3
        if kt <= 31: f[5].insert(0, kread(kt, kc, kk))
        vq = 16 * j + n + 3
        vt, ve, vu = vq >> 4, (vq >> 1) & 7, vq & 1
        if 0 <= vt <= 31:
            g0, g1 = (1, 3) if (qk or n < 2) else (4, 6)
            f[g0].insert(0, vread(vt, ve, vu, 0)); f[g1].insert(0, vread(vt, ve, vu, 1))
        if 0 <= j < 28 and 'r' in opt.get('xa', ''): f = [[o for o in x if o.kind != 'ds'] for x in f]
        if 0 <= j < 28 and 'd' in opt.get('xa', ''):
            for pre, v, post in dma.get(n, []): v.text = 's_nop 0'
        for k, (pre, v, post) in enumerate(dma.get(n, [])):
            sc[6] += pre; f[7 + k].append(v)
            if n == 15: f[8] += post
            else: pend += post
        if n == 10 and j <= 30:
            f[7].append(barrier([f'V{j+1}'] + ([f'K{j+2}'] if j + 2 <= 31 else [])))
        if opt.get('pf_w', 1) and 0 <= j < 28 and n == 2 and (j & 3) == 0:
            f[7].append(vload(f'buffer_load_dword {vDUM}, {vPF}, {sWN}, {sPF} offen'))
            pend.append(salu(f's_add_u32 {sPF}, {sPF}, 4096'))
        if opt.get('pf_w1', 1) and j < 28 and n == 2 and (j & 1):
            f[7].append(pfw1()[0]); pend.append(pfw1()[1])
        if opt.get('rpf', 1) and 0 <= j < 28 and n == 2 and (j & 3) == 2: f[7].append(pfcode())
        if j == 28 and n == 0: f[7] += [valu(f'v_and_b32 v{t_}, 15, v0'), valu(f'v_lshlrev_b32 v{t_}, 1, v{t_}')]
        if j == 28 and n == 2: f[7].append(flag_load(sFW))
        if j in (28, 29) and n in (4, 6, 8, 12):
            k = (j - 28) * 4 + (4, 6, 8, 12).index(n)
            f[7].append(vload(f'buffer_load_ushort {BA.sub(k)}, v{t_}, {sBB}, {sBN} offen offset:{32*k}', BA.sub(k)))
        if j == 29 and n == 13: f[5].append(valu(f'v_readfirstlane_b32 {sT}, {vFL}', rd=[vFL]))
        if j == 29 and n == 14: f[7] += [salu(f's_cmp_lt_u32 {sT}, {sTG}'), salu('s_cbranch_scc1 L2_wn'), salu('L2_wn_r:')]
        for g in range(9):
            ops = sc[g] + f[g]
            if m[g] is not None: mf_all.append(m[g]); fill_all.append(ops)
            elif fill_all: fill_all[-1] += ops
            else: st.ops(ops)
    assert not pend
    nxt = mfma(S.sub(0, 4), Kf(0, 0), Qa(0, 0), NEGM.sub(0, 4)) if a + 1 <= 31 else None
    st.gaps(mf_all, fill_all, nxt)

def first_tile(st, opt, pre):
    a = st.raw
    SQ = [O.sub(4 * k, 4) for k in range(15)] + [S.sub(4, 4)]
    M = T
    def mx(n):
        x, m = SQ[n], M.sub(n & 3)
        if n < 4: return [valu(f'v_max3_f32 {m}, {x.sub(0)}, {x.sub(1)}, {x.sub(2)}'), valu(f'v_max_f32 {m}, {m}, {x.sub(3)}')]
        return [valu(f'v_max3_f32 {m}, {m}, {x.sub(0)}, {x.sub(1)}'), valu(f'v_max3_f32 {m}, {m}, {x.sub(2)}, {x.sub(3)}')]
    mf, fl = [], []
    for n in range(16):
        c, b = n >> 2, n & 3
        for t in range(4):
            mf.append(mfma(SQ[n], Kf(c, t), Qf(b, t), SQ[n] if t else 0)); fl.append([])
        if n + 5 < 16: fl[-3].append(kread(0, (n + 5) >> 2, (n + 5) & 3))
        if n >= 2: fl[-1] += mx(n - 2)
    pre = [valu(x) for x in pre]; pre[0].rd = [('z', 0)]
    st.push(pre + [valu(f'v_accvgpr_write_b32 {QA.sub(i)}, {Q.sub(i)}') for i in range(64)] + [valu(f'v_mov_b64 {O.sub(i,2)}, 0') for i in range(60, 128, 2)])
    st.gaps(mf, fl)
    st.flush()
    a(f's_cmp_lg_u32 {sMODE}, 0\ns_cbranch_scc1 L2_m1')
    st.ops(mx(14) + mx(15))
    negm_finish(a, M, opt.get('margin', MARGIN), S.sub(0, 4))
    a('L2_m1:')
    mem = [barrier(['V0', 'K1'])] + [kread(1, 0, t) for t in range(4)] + [kread(1, 1, 0)]
    kd_ = kdma(3)
    mem += [kd_[0][0][0], vread(0, 0, 0, 0), kd_[0][1], vread(0, 0, 0, 1), kd_[1][1], vread(0, 0, 1, 0), kd_[2][1], vread(0, 0, 1, 1), vread(0, 1, 0, 0), vread(0, 1, 0, 1)]
    if opt.get('pf_w1', 1): mem = pfw1() + mem
    for n in range(16):
        c, b = n >> 2, n & 3
        x = SQ[n]
        for h in (0, 2): a(f'v_pk_add_f32 {x.sub(h,2)}, {x.sub(h,2)}, {NEGM.sub(4*b,2)}')
        if 0 < n < 15: a(f'v_cvt_pk_bf16_f32 {Pf(0, (n-1) >> 3, (n-1) & 3).sub(2 * (((n-1) >> 2) & 1) + 1)}, {T.sub(2)}, {T.sub(3)}')
        if n < 15:
            for i in range(4): a(f'v_exp_f32 {T.sub(i)}, {x.sub(i)}')
            a(f'v_cvt_pk_bf16_f32 {Pf(0, c >> 1, b).sub(2 * (c & 1))}, {T.sub(0)}, {T.sub(1)}')
        if n < 15: a(f'v_mov_b64 {x.sub(0,2)}, 0\nv_mov_b64 {x.sub(2,2)}, 0')
        if n >= 4:
            for _ in range(2):
                if mem: st.op(mem.pop(0))
    assert not mem

def negm_finish(a, M, margin, M2=None):
    M2 = M2 or P.sub(20, 4)
    for p in ('16', '32'):
        for b in range(4): a(f'v_mov_b32 {M2.sub(b)}, {M.sub(b)}')
        for b in range(4): a(f'v_permlane{p}_swap_b32 {M2.sub(b)}, {M.sub(b)}')
        for b in range(4): a(f'v_max_f32 {M.sub(b)}, {M.sub(b)}, {M2.sub(b)}')
    for b in range(4):
        for i in range(2): a(f'v_sub_f32 {NEGM.sub(4*b+i)}, {f2h(-margin)}, {M.sub(b)}')
        a(f'v_mov_b64 {NEGM.sub(4*b+2,2)}, {NEGM.sub(4*b,2)}')

def act_store(st, NB, nt, fn, soffs, T0):
    a = st.raw
    k = 0
    for tt in range(nt):
        for b in range(NB):
            x = T0.sub((k & 1) * 8, 8); k += 1
            d = fn(x, tt, b)
            for i in range(4): a(f'v_cvt_pk_bf16_f32 {d.sub(i)}, {x.sub(2*i)}, {x.sub(2*i+1)}')
            st.op(vstore(f'buffer_store_dwordx4 {d}, {vL16}, {sWS}, {soffs[b >> 1][tt >> 1]} offen offset:{(tt & 1) * 2048 + (b & 1) * 1024} sc1'))

def signal(soff, sWS=sWS):
    return f's_mov_b64 exec, 1\nbuffer_atomic_add {vONE}, off, {sWS}, {soff} sc1\ns_mov_b64 exec, -1'
def flag_load(soff, sWS=sWS):
    return vload(f'buffer_load_dword {vFL}, off, {sWS}, {soff} sc1', vFL)
def spin(label, soff, target, sWS=sWS, nap=4):
    return (f's_mov_b32 {sT2}, {-(1 << 20)}\n{label}:\nbuffer_load_dword {vFL}, off, {sWS}, {soff} sc1\ns_add_u32 {sT2}, {sT2}, 1\ns_cbranch_scc1 {label}_x\n'
            f's_waitcnt vmcnt(0)\nv_readfirstlane_b32 {sT}, {vFL}\ns_nop 0\ns_cmp_lt_u32 {sT}, {target}\ns_cbranch_scc1 {label}\n{label}_x:\ns_waitcnt vmcnt(0)')
def rot_setup(srot, sw, sa, swi, sai, winc, ainc):
    L = f's_cmp_lg_u32 {srot}, 0\ns_cselect_b32 {sT}, -1, 1\ns_cselect_b32 {sT2}, 3, 1\n'
    L += f's_mul_i32 {swi[0]}, {sT}, {winc}\ns_mul_i32 {swi[1]}, {sT2}, {winc}\n'
    if sai: L += f's_mul_i32 {sai[0]}, {sT}, {ainc}\ns_mul_i32 {sai[1]}, {sT2}, {ainc}\n'
    L += f's_mul_i32 {sT}, {srot}, {winc}\ns_add_u32 {sw}, {sw}, {sT}\ns_mul_i32 {sT}, {srot}, {ainc}\ns_add_u32 {sa}, {sa}, {sT}'
    return L

def halfsum(regs_, tmp):
    L = []
    for m in ('quad_perm:[1,0,3,2]', 'quad_perm:[2,3,0,1]', 'row_half_mirror', 'row_mirror'):
        L.append('s_nop 1' if len(regs_) == 1 else 's_nop 0')
        for v in regs_: L.append(f'v_add_f32_dpp {v}, {v}, {v} {m} row_mask:0xf bank_mask:0xf')
    for k, v in enumerate(regs_): L.append(f'v_mov_b32 {tmp.sub(k)}, {v}')
    L.append('s_nop 1')
    for k, v in enumerate(regs_): L.append(f'v_permlane16_swap_b32 {tmp.sub(k)}, {v}')
    for k, v in enumerate(regs_): L.append(f'v_add_f32 {v}, {v}, {tmp.sub(k)}')
    return L
def layernorm2(X, Y, SC, SV, cs):
    L = []
    M, Vv, TM, AB = SC.sub(0, 2), SC.sub(2, 2), SC.sub(4, 2), SC.sub(6, 2)
    m, mb, v, r = M.sub(0), M.sub(1), Vv.sub(0), Vv.sub(1)
    m2, v2 = TM.sub(0), TM.sub(1)
    rbf = lambda d, x: [f'v_cvt_pk_bf16_f32 {d}, {x}, {x}', f'v_lshlrev_b32 {d}, 16, {d}']
    rstd = lambda d, x, fill: rbf(d, x) + [f'v_add_f32 {d}, 0x3727c5ac, {d}'] + rbf(d, d) + [f'v_sqrt_f32 {d}, {d}', fill[0]] + rbf(d, d) + [f'v_rcp_f32 {d}, {d}', fill[1]]
    for i in range(8): L.append(f'v_pk_add_f32 {Y.sub(2*i,2)}, {X.sub(2*i,2)}, {X.sub(2*i+16,2)}')
    for w in (4, 2, 1):
        for i in range(w): L.append(f'v_pk_add_f32 {Y.sub(2*i,2)}, {Y.sub(2*i,2)}, {Y.sub(2*(i+w),2)}')
    L.append(f'v_add_f32 {m}, {Y.sub(0)}, {Y.sub(1)}')
    L += halfsum([m], TM) + [f'v_mul_f32 {m}, 0x3a800000, {m}']
    L += [f'v_pk_add_f32 {X.sub(2*i,2)}, {X.sub(2*i,2)}, {M} op_sel_hi:[1,0] neg_lo:[0,1] neg_hi:[0,1]' for i in range(16)]
    L += [f'v_pk_mul_f32 {Vv}, {X.sub(0,2)}, {X.sub(0,2)}', f'v_pk_mul_f32 {TM}, {X.sub(2,2)}, {X.sub(2,2)}']
    for i in range(2, 16): L.append(f'v_pk_fma_f32 {[Vv, TM][i & 1]}, {X.sub(2*i,2)}, {X.sub(2*i,2)}, {[Vv, TM][i & 1]}')
    L += [f'v_pk_add_f32 {Vv}, {Vv}, {TM}', f'v_add_f32 {v}, {Vv.sub(0)}, {Vv.sub(1)}']
    L += halfsum([v], TM) + [f'v_mul_f32 {v}, 0x3a800000, {v}']
    L += rstd(r, v, rbf(mb, m))
    L += [f'v_mul_f32 {SV.sub(1)}, {f2h(cs)}, {r}', f'v_sub_f32 {m}, {m}, {mb}', f'v_mul_f32_e64 {SV.sub(0)}, -{mb}, {SV.sub(1)}']
    R_ = [f'v_mul_f32 {m}, {m}, {r}', f'v_mul_f32 {v}, {v}, {r}', f'v_mul_f32 {v}, {v}, {r}']
    R_ += rstd(v2, v, rbf(m2, m))
    R_ += [f'v_sub_f32 {m}, {m}, {m2}', f'v_mul_f32 {AB.sub(0)}, {r}, {v2}', f'v_mul_f32 {AB.sub(1)}, {m}, {v2}']
    R_ += [f'v_pk_fma_f32 {X.sub(2*i,2)}, {X.sub(2*i,2)}, {AB}, {AB} op_sel:[0,0,1] op_sel_hi:[1,0,1]' for i in range(16)]
    R_ += [f'v_cvt_pk_bf16_f32 {Y.sub(i)}, {X.sub(2*i)}, {X.sub(2*i+1)}' for i in range(16)]
    return L, R_
def unpack(X, Y):
    L = []
    for i in range(Y.n): L += [f'v_lshlrev_b32 {X.sub(2*i)}, 16, {Y.sub(i)}', f'v_and_b32 {X.sub(2*i+1)}, 0xffff0000, {Y.sub(i)}']
    return L

def q_epilogue(st, SR, bias=False):
    a = st.raw
    sw = lambda d: a(f'v_permlane16_swap_b32 {d.sub(0)}, {d.sub(2)}\nv_permlane16_swap_b32 {d.sub(1)}, {d.sub(3)}')
    for tt in range(4):
        for b in range(4):
            r = SR.sub(2 * b, 2)
            for jj in range(2):
                s_ = QACC.sub(((2 * tt + jj) * 4 + b) * 4, 4)
                for h in range(2): st.op(valu(f'v_pk_mul_f32 {s_.sub(2*h,2)}, {s_.sub(2*h,2)}, {r} op_sel:[0,1] op_sel_hi:[1,1]', rd=[r]))
            for jj in range(2):
                s_ = QACC.sub(((2 * tt + jj) * 4 + b) * 4, 4); c_ = Qf(2 + jj, tt)
                for h in range(2): st.op(valu(f'v_pk_fma_f32 {s_.sub(2*h,2)}, {c_.sub(2*h,2)}, {r}, {s_.sub(2*h,2)} op_sel_hi:[1,0,1]', rd=[c_]))
        for b in range(4):
            d = Qf(b, tt)
            for jj in range(2):
                s_ = QACC.sub(((2 * tt + jj) * 4 + b) * 4, 4)
                a(f'v_cvt_pk_bf16_f32 {d.sub(2*jj)}, {s_.sub(0)}, {s_.sub(1)}\nv_cvt_pk_bf16_f32 {d.sub(2*jj+1)}, {s_.sub(2)}, {s_.sub(3)}')
        for b in range(4): sw(Qf(b, tt))
    if bias:
        for e in range(bias):
            x = QACC.sub(16 * e, 16)
            for h in range(2):
                st.op(valu(f'v_lshlrev_b32 {x.sub(2*h)}, 16, {BIAS.sub(2*e+h)}', rd=[BIAS.sub(2 * e + h)]))
                a(f'v_and_b32 {x.sub(2*h+1)}, 0xffff0000, {BIAS.sub(2*e+h)}')
            for i in range(2, 8): a(f'v_mov_b64 {x.sub(2*i,2)}, {x.sub(2*(i&1),2)}')

def gen_k2(opt):
    st = Stream(); a = st.raw
    far = []
    A1, Y1 = opt.get('a1', 3), opt.get('y1', 3)
    NY = 2 * (A1 + Y1); NSY = 2 * NY
    PW = opt.get('pw', 0); OM = 4 if PW else 1
    GW = opt.get('g2w', 8)
    opt.setdefault('pf_w1', 1 if GW == 7 else 0)
    hasg2 = lambda d: f's_cmp_lt_u32 {sIDX}, {112 // GW}\ns_cselect_b32 {d}, {sROLE}, 0'
    G2N = opt.get('g2n')
    if G2N:
        assert sum(G2N) == 112 and max(G2N) <= 16
        nlit = sum((n - 1) << (4 * k) for k, n in enumerate(G2N))
        hasg2 = lambda d: f's_lshl_b32 {d}, {sSLOT}, 2\ns_lshr_b32 {d}, {nlit}, {d}\ns_and_b32 {d}, {d}, 15\ns_cmp_le_u32 {sIDX}, {d}\ns_cselect_b32 {d}, {sROLE}, 0'
    t = vTMP
    a(f'{KNAME}:')
    a('s_cmp_ge_u32 s2, 256\ns_cbranch_scc1 L2_end')
    sp = Stamps(opt.get('stamp'), 1, 254)
    sp.jit = opt.get('jit')
    sp.stamp(st)
    RAW, LX, SC, HT = V(108, 16), V(124, 32), V(156, 8), V(196, 16)
    vLg, vLw, vHr, vHs, vSt, vZf, SV = V(212), V(213), V(214), V(215), V(216), V(217), V(218, 2)
    DL = opt.get('dln', 0)
    if DL:
        RAW, LX, SC, HT, SV = V(6, 16), V(76, 32), V(236, 8), V(76, 16), V(244, 2)
        vLg, vLw, vHr, vHs, vSt, vZf = [V(22 + i) for i in range(6)]
    a(f"""s_load_dwordx2 s[68:69], s[0:1], 0
s_load_dwordx2 s[8:9], s[0:1], 24
v_lshrrev_b32 v{t+1}, 5, v0
v_and_b32 v{t+2}, 31, v0
v_lshlrev_b32 v{t+2}, 4, v{t+2}
v_lshl_add_u32 {vLg}, v{t+1}, 11, v{t+2}
v_lshlrev_b32 {vFL}, 7, v0
s_lshl_b32 {sT4}, s2, 14
s_lshl_b32 {sT}, s2, 15
s_mov_b32 s70, 4194304
s_mov_b32 s71, 0x20000
s_mov_b32 s10, 8388608
s_mov_b32 s11, 0x20000
s_lshl_b32 {sO}, s2, 14
s_waitcnt lgkmcnt(0)""")
    rawl = [([], vload(f'buffer_load_dwordx4 {RAW.sub(4*i,4)}, {vLg}, {sX}, {sO} offen offset:{512*i}', RAW.sub(4 * i, 4)), []) for i in range(4)]
    RP = opt.get('rpos', 0)
    if not RP: st.ops(flat(rawl))
    if opt.get('pf_wq', 0): st.op(vload(f'buffer_load_dword {vDUM}, {vFL}, {sWQ}, {sT} offen'))
    a(f"""s_load_dwordx2 s[4:5], s[0:1], 96
s_lshr_b32 {sROLE}, s2, 7
s_cmp_eq_u32 {sROLE}, 0
s_cselect_b32 {sT}, 80, 48
s_cselect_b32 {sT2}, 64, 32
s_cselect_b32 {sT3}, 72, 56
s_load_dwordx2 s[20:21], s[0:1], {sT}
s_load_dwordx2 s[24:25], s[0:1], {sT2}
s_load_dwordx2 s[32:33], s[0:1], {sT3}
s_load_dwordx2 s[12:13], s[0:1], 8
s_load_dwordx2 s[16:17], s[0:1], 16
s_load_dwordx2 s[28:29], s[0:1], 32
s_load_dwordx2 s[72:73], s[0:1], 88
s_load_dwordx2 s[58:59], s[0:1], 48
s_mov_b32 s22, 14680064
s_cselect_b32 s26, s22, 8388608
s_cselect_b32 s22, 4194304, s22
s_movk_i32 s34, 7168
s_cselect_b32 s34, 4096, s34
v_lshrrev_b32 v{t}, 6, v0
v_mul_u32_u24 {vLw}, {LSTR}, v{t+1}
v_readfirstlane_b32 {sWAVE}, v{t}
v_add_u32 {vLw}, {vLw}, v{t+2}
v_and_b32 {vL16}, 63, v0
v_lshlrev_b32 {vPF}, 6, {vL16}
s_mov_b32 {sSTR}, 8192""")
    if opt.get('pf_code', 1):
        a(f's_getpc_b64 s[56:57]\nL2_pc:\ns_lshr_b32 {sT}, s2, 3\ns_lshl_b32 {sT}, {sT}, 2\ns_add_u32 {sT}, {sT}, {sWAVE}\ns_mul_i32 {sT}, {sT}, 704\ns_min_u32 {sT}, {sT}, L2_redo-L2_pc\ns_add_u32 s56, s56, {sT}\ns_addc_u32 s57, s57, 0\nv_lshrrev_b32 {vCO}, 2, {vPF}\nv_min_u32 {vCO}, 0x2b0, {vCO}')
        st.op(pfcode())
    for s, size in ((4, WS_SIZE), (12, 16777216), (16, 16777216), (20, 0), (24, 0), (28, 8388608), (32, 0), (72, 256)):
        if size: a(f's_mov_b32 s{s+2}, {size}')
        a(f's_mov_b32 s{s+3}, 0x20000')
    a(f"""s_bfe_u32 {sIDX}, s2, 0x40003
s_and_b32 {sSLOT}, s2, 7
s_lshr_b32 {sHEAD}, {sIDX}, 3
s_lshl_b32 {sQ64}, {sSLOT}, 1
s_add_u32 {sHEAD}, {sHEAD}, {sQ64}
s_cmp_eq_u32 {sROLE}, 0
s_cselect_b32 {sT}, {A1}, {Y1}
s_cselect_b32 {sT2}, {Y1}, {A1}
s_cselect_b32 {sQ64}, {Y1}, {16 - 2 * A1}
s_cmp_ge_u32 {sHEAD}, {sT}
s_cselect_b32 {sT2}, {sT2}, 0
s_addc_u32 {sGRP}, 1, 0
s_lshl_b32 {sT}, {sT}, 1
s_cmp_ge_u32 {sHEAD}, {sT}
s_cselect_b32 {sQ64}, {sQ64}, 0
s_addc_u32 {sGRP}, {sGRP}, 0
s_mul_i32 {sGRP}, {sGRP}, {sROLE}
s_mul_i32 {sT}, {sROLE}, {A1}
s_add_u32 {sHEAD}, {sHEAD}, {sT}
s_add_u32 {sHEAD}, {sHEAD}, {sT2}
s_add_u32 {sHEAD}, {sHEAD}, {sQ64}
s_and_b32 {sQ64}, {sIDX}, 7
s_lshl_b32 {sQ64}, {sQ64}, 2
s_add_u32 {sQ64}, {sQ64}, {sWAVE}
s_lshl_b32 {sLDS}, {sWAVE}, 12
s_lshl_b32 {sQW}, {sHEAD}, 8
s_lshl_b32 {sQA}, {sQ64}, 17
s_add_u32 {sQA2}, {sQA}, 65536""")
    accq = lambda e, b: QACC.sub((e * 4 + b) * 4, 4)
    acc3 = lambda e, b: accq(e, 2 + b)
    gq = GemmX('Q', 16, 4, accq, A(128, 128), A(0, 32), vWa, 'id', sWQ, vWq, sQW, 8192, QRING, sLDS, sX, None, sQA, lead=3, uni=True, dist=2)
    gq.xsetup(XSLOT, vXd, vXa, sQA2, ONESQ, IDXQ, CS)
    gq.bar_rd = [('x', 0)]
    RQ = opt.get('rq', 0)
    if RQ:
        tabs = [sum(((((k + 1) ^ r if k < 3 else 4 + r) - (k ^ r)) & 0xff) << (8 * k) for k in range(4)) for r in range(4)]
        a(f"""s_lshr_b32 {sT}, s2, 6
s_add_u32 {sT}, {sT}, {sIDX}
s_and_b32 {sT}, {sT}, {RQ}
s_bitcmp1_b32 {sT}, 0
s_mov_b32 {sPF}, {tabs[0]}
s_cselect_b32 {sPF}, {tabs[1]}, {sPF}
s_mov_b32 {sT2}, {tabs[2]}
s_cselect_b32 {sT2}, {tabs[3]}, {sT2}
s_bitcmp1_b32 {sT}, 1
s_cselect_b32 {sPF}, {sT2}, {sPF}
s_lshl_b32 {sT2}, {sT}, 19
s_add_u32 {sQW}, {sQW}, {sT2}
s_lshl_b32 {sT2}, {sT}, 7
s_add_u32 {sQA}, {sQA}, {sT2}
s_add_u32 {sQA2}, {sQA2}, {sT2}""")
        gq.rtab = sPF
    g2 = Gemm('G', 32, 4, accq, A(128, 128), A(0, 32), vWa, 'id', sW1, vWg, sW3, 0, QRING, sLDS, sWS, vL16, sA3, avoff2=vL16b, lead=3, uni=True, winc=sGI, ainc=sGJ, dist=2, asuf=' sc1', NW=GW)
    kwn = dict(avoff2=vA1, asuf=' sc1', winc=sNI, ainc=sNJ, lead=3, uni=True, dist=2, aoff=2, split=True)
    g4 = Gemm('N', 28, 4, accq, A(128, 128), Q.sub(0, 32), vWa, 'blk', sWN, vWq, sGW, 0, KBASE, sLDS, sWS, vA0, sGA, swap=True, **kwn)
    g3y = Gemm('N', NY, 4, accq, A(128, 128), Q.sub(0, 32), vWa, 'blk', sWN, vWq, sGW, 0, KBASE, sLDS, sWS, vA0, sGA, **kwn)
    g3s = Gemm('S', 64 - NSY, 2, acc3, A(0, 64), A(64, 32), vVa, 'blk', sWO, vWg, sW3, 0, VBASE, sLDS, sWS, vL16, sA3, asuf=' sc1', winc=sSI, ainc=sSJ)
    for g_ in (gq, g2, g4, g3y, g3s): g_.zig = opt.get('zig', 1)
    for g_ in (g2, g4, g3y, g3s): g_.fk = opt.get('fk', 0) & 1
    gq.fk = opt.get('fk', 0) & 4
    for g_ in (gq, g2, g4, g3y): g_.skew = opt.get('skew', 1)
    SK = 1 if gq.skew else 0
    for g_ in (g2, g4, g3y): g_.pre2 = SK and opt.get('pre2', 1)
    g4.more_tags = g3y.more_tags = {1: ['st']}
    assert not (SK and (DL or RQ or GW != 8 or PW))
    if 'fsw' in opt:
        for g_ in (g2, g4, g3y, g3s): g_.swap = bool(opt['fsw'])
    g3s.pat = opt.get('pat', 0); g3s.uni = opt.get('uni3', 0)
    a('\n'.join(wvoff_setup(vWq, sSTR, 'id', t)))
    rest = gq.window(0) + gq.window(1) + gq.window(2)[:2]
    if RP: rest[RP:RP] = rawl
    early = opt.get('early', 12)
    a(f'v_bfe_u32 v{t}, v0, 3, 3\nv_and_b32 v{t+1}, 7, v0\nv_lshrrev_b32 v{t+2}, 1, v{t}\nv_xor_b32 v{t+1}, v{t+1}, v{t+2}\nv_lshlrev_b32 v{t+1}, 4, v{t+1}\nv_lshl_add_u32 {vXd.sub(0)}, v{t}, 11, v{t+1}')
    a(f'v_xor_b32 {vXd.sub(1)}, 64, {vXd.sub(0)}\nv_add_u32 {vXd.sub(1)}, {16384-1024}, {vXd.sub(1)}\nv_add_u32 {vXd.sub(2)}, {2*(16384-1024)}, {vXd.sub(0)}\nv_add_u32 {vXd.sub(3)}, {2*(16384-1024)}, {vXd.sub(1)}')
    gq.issue(st, rest[:early]); del rest[:early]
    a(f'v_lshlrev_b32 {vL16}, 4, {vL16}\nv_cmp_eq_u32 vcc, 3, v{t}\nv_add_u32 v{t+1}, {SHADOW}, {vL16}\ns_nop 0\nv_cndmask_b32 {vL16}, {vL16}, v{t+1}, vcc\nv_add_u32 {vL16b}, 4096, {vL16}')
    PD = opt.get('pd', 4)
    if PD:
        a(f"""s_and_b32 {sT}, {sQ64}, 31
s_lshl_b32 {sT}, {sT}, 14
v_bfe_u32 v{t}, v0, 2, 1
v_bfe_u32 v{t+1}, v0, 3, 1
v_lshlrev_b32 v{t}, 7, v{t}
v_lshl_add_u32 v{t}, v{t+1}, 13, v{t}
v_add_u32 v{t}, {sT}, v{t}
v_add_u32 v49, {PD * 524288}, v{t}
v_bfe_u32 v{t+1}, v0, 4, 2
v_min_u32 v{t+1}, {PD - 1}, v{t+1}
v_lshl_add_u32 v50, v{t+1}, 19, v{t}
s_lshl_b32 {sP1}, {sHEAD}, 8
s_add_u32 {sP1}, {sP1}, {(4 if RQ else 3) * 524288}""")
        rest.insert(opt.get('ppos', 0), ([], vload(f'buffer_load_dword {vDUM}, v50, {sWQ}, {sP1} offen'), []))
    a('\n'.join(waddr_setup(vWa, QRING, 'id', t)))
    a(f's_lshl_b32 {sROT}, {sWAVE}, 6')
    for e in range(8): a(f'v_xor_b32 {vWa.sub(e)}, {sROT}, {vWa.sub(e)}')
    a(f"""v_and_b32 v{t}, 15, v0
v_bfe_u32 v{t+1}, v0, 4, 2
v_lshrrev_b32 v{t+2}, 1, v{t}
v_xor_b32 v{t+2}, v{t+2}, v{t+1}
v_lshlrev_b32 v{t+2}, 4, v{t+2}
v_lshl_add_u32 v{t+2}, v{t}, 7, v{t+2}
s_add_u32 {sT}, {sLDS}, {min(XSLOT)}
v_add_u32 {vXa.sub(0)}, {sT}, v{t+2}
v_xor_b32 {vXa.sub(1)}, 64, {vXa.sub(0)}
s_add_u32 {sT}, {sLDS}, {CSB}
v_lshl_add_u32 {vCw}, v{t}, 2, {sT}
{f's_xor_b32 {sT}, {sT}, 0x2000' if SK else ''}
v_lshl_add_u32 {vCr.sub(0)}, v{t+1}, 4, {sT}
v_xor_b32 {vCr.sub(1)}, 0x1000, {vCr.sub(0)}
v_xor_b32 {vCr.sub(2)}, 0x2000, {vCr.sub(0)}
v_xor_b32 {vCr.sub(3)}, 0x3000, {vCr.sub(0)}
v_and_b32 {IDXQ}, 1, v0
v_sub_u32 {IDXQ}, 0, {IDXQ}
v_and_b32 {IDXQ}, 0xaaaaaaaa, {IDXQ}
v_or_b32 {IDXQ}, 0x44444444, {IDXQ}
v_mov_b32 {vZERO}, 0
v_mov_b32 {vONE}, 1
v_bfe_u32 {vHr}, v0, 2, 2
v_mul_u32_u24 {vHr}, {LSTR}, {vHr}
v_lshrrev_b32 v{t+2}, 4, v0
v_lshl_add_u32 {vHr}, v{t+2}, 5, {vHr}
v_and_b32 v{t+2}, 3, v0
v_lshl_add_u32 {vHr}, v{t+2}, 3, {vHr}
v_lshlrev_b32 {vHs}, 10, v{t+1}
v_lshl_add_u32 {vHs}, v{t}, 4, {vHs}
s_and_b32 {sT}, s2, 3
s_lshl_b32 {sT}, {sT}, 8
v_add_u32 {vHs}, {sT}, {vHs}
v_bfe_u32 v{t+2}, {vHs}, 7, 3
v_cmp_eq_u32 vcc, 3, v{t+2}
v_add_u32 v{t+3}, {SHADOW}, {vHs}
s_lshr_b32 {sT2}, s2, 2
v_cndmask_b32 {vHs}, {vHs}, v{t+3}, vcc
s_lshl_b32 {sT2}, {sT2}, 12
s_lshl_b32 {sT}, {sWAVE}, 18
s_add_u32 {sT2}, {sT2}, {sT}
s_add_u32 {sT2}, {sT2}, {HF}
v_and_b32 v{t+2}, 31, v0
v_cmp_eq_u32 vcc, 0, v{t+2}
v_lshrrev_b32 {vSt}, 2, v0
v_mov_b32 v{t+3}, 0x40000000
v_cndmask_b32 {vSt}, v{t+3}, {vSt}, vcc
v_cmp_gt_u32 vcc, 0x80, v0
v_lshlrev_b32 {vZf}, 2, v0
s_lshl_b32 {sT3}, s2, 7
v_cndmask_b32 {vZf}, v{t+3}, {vZf}, vcc
s_lshl_b32 {sT4}, s2, 9
s_add_u32 {sT4}, {sT4}, {FL}
s_bfe_u32 {sSIG}, s2, 0x20004
s_and_b32 {sSIG}, {sSIG}, {opt.get('sigsp', 3)}
s_and_b32 {sU}, {sSIG}, {opt.get('lnsp', 3)}
s_add_u32 {sU}, {sU}, {DL}
s_add_u32 {sSIG}, {sSIG}, {DL + 4 if DL else 3 - SK}
s_bfe_u32 {sFU}, s2, 0x10003
s_lshl_b32 {sFU}, {sFU}, 7
s_mov_b32 {sMODE}, 0
s_cmp_eq_u32 {sWAVE}, 0
s_cselect_b32 {sSIG}, {sSIG}, 0
s_cselect_b32 {sRDY}, 0x80, 0
s_cselect_b32 {sP0}, 0, 0x1000""")
    if opt.get('xq') == 'nopoll': a(f's_mov_b32 {sRDY}, 0\ns_mov_b32 {sP0}, 0x1000')
    if opt.get('xq') == 'nosig': a(f's_mov_b32 {sRDY}, 0\ns_mov_b32 {sP0}, 0x1000\ns_mov_b32 {sSIG}, 0')
    if SK: a('v_and_b32 v74, 1, v0\nv_lshlrev_b32 v74, 7, v74')
    assert STAT == 0
    for i in range(4): a(f'v_mov_b32 {ONESQ.sub(i)}, 0x3f803f80\nv_mov_b64 {CS.sub(2*i,2)}, 0')
    cs = math.log2(math.e) / math.sqrt(128.0)
    zq = [f'v_mov_b64 {QACC.sub(2*i,2)}, 0' for i in range(64)]
    if not DL:
        a('\n'.join(zq[28:44] + zq[56:]) + '\ns_waitcnt lgkmcnt(0)')
        st.op(valu(unpack(LX, RAW)[0], rd=[RAW]))
        sp.stamp(st)
        l1, l2 = layernorm2(LX, RAW, SC, SV, cs)
        ln = unpack(LX, RAW)[1:] + l1
        ln += [vstore(f'buffer_store_dwordx2 {SV}, {vSt}, {sWS}, {sT3} offen sc1'), vstore(f'buffer_store_dword {vZERO}, {vZf}, {sWS}, {sT4} offen sc1')]
        ln += l2
        nin = opt.get('nin', 12)
        step = len(ln) // (nin + 1)
        for k, x in enumerate(ln):
            if isinstance(x, Op): st.op(x)
            else: a(x)
            if k % step == step - 1 and nin and rest: gq.issue(st, [rest.pop(0)]); nin -= 1
        for i in range(4): st.op(Op(f'ds_write_b128 {vLw}, {RAW.sub(4*i,4)} offset:{512*i}', 'ds'))
        zz = zq[8:28]
        gq.issue(st, rest, lambda: a('\n'.join(zz.pop() for _ in range(min(2, len(zz))))))
        a('\n'.join(zz))
        st.op(barrier(['Q0'], lg0=True))
        for i in range(4):
            for tt in range(2): st.op(ds_tr(HT.sub(4 * i + 2 * tt, 2), vHr, 512 * i + 4 * LSTR * tt))
        a('\n'.join(zq[:8]))
        for i in range(4):
            st.op(vstore(f'buffer_store_dwordx4 {HT.sub(4*i,4)}, {vHs}, {sWS}, {sT2} offen sc1', rd=[HT.sub(4 * i, 4)]))
            a(f's_add_u32 {sT2}, {sT2}, {1 << 20}')
            st.ops(gq.xreads(0, i))
        st.ops(gq.reads(0))
        a('\n'.join(zq[44:56]))
        st.ops(gq.reads(1))
        sp.stamp(st)
    else:
        sp.stamp(st)
        gq.issue(st, rest, lambda: a('\n'.join(zq.pop() for _ in range(min(5, len(zq))))))
        a('\n'.join(zq) + '\ns_waitcnt lgkmcnt(0)')
        st.op(barrier(['Q0']))
        for i in range(4): st.ops(gq.xreads(0, i))
        st.ops(gq.reads(0) + gq.reads(1))
        sp.stamp(st)
        l1, l2 = layernorm2(LX, RAW, SC, SV, cs)
        b1 = unpack(LX, RAW) + l1 + [f'buffer_store_dwordx2 {SV}, {vSt}, {sWS}, {sT3} offen sc1', f'buffer_store_dword {vZERO}, {vZf}, {sWS}, {sT4} offen sc1'] + l2
        b1 += [f'ds_write_b128 {vLw}, {RAW.sub(4*i,4)} offset:{512*i}' for i in range(4)] + ['s_waitcnt lgkmcnt(0)']
        b2 = ['s_waitcnt lgkmcnt(7)'] + [ds_tr(HT.sub(4 * i + 2 * tt, 2), vHr, 512 * i + 4 * LSTR * tt).text for i in range(4) for tt in range(2)]
        for i in range(4): b2 += [f's_waitcnt lgkmcnt({6 - 2 * i})', f'buffer_store_dwordx4 {HT.sub(4*i,4)}, {vHs}, {sWS}, {sT2} offen sc1', f's_add_u32 {sT2}, {sT2}, {1 << 20}']
        ret = f's_and_b32 {sT}, {sMODE}, 3\n' + ''.join(f's_cmp_eq_u32 {sT}, {k}\ns_cbranch_scc1 L2_n{k}_r\n' for k in range(3)) + 's_branch L2_n3_r'
        far.append(f'L2_n:\ns_cmp_eq_u32 {sT}, 0\ns_cbranch_scc0 L2_nb\n' + '\n'.join(b1) + '\ns_branch L2_nr\nL2_nb:\n' + '\n'.join(b2) + '\nL2_nr:\n' + ret)
    for k in range(4): far.append(f'L2_sl{k}:\n{signal(sFU, sDBG)}\ns_branch L2_sl{k}_r')
    def qx(s, e):
        if e == 2: return {3: [salu(f's_add_u32 {sMODE}, {sMODE}, 1')], 7: (publish if s >= 2 and not DL else lambda l, _: [salu(x) for x in l])([f's_cmp_eq_u32 {sMODE}, {sSIG}', f's_cbranch_scc1 L2_sl{s % 4}', f'L2_sl{s % 4}_r:'], 'wg')}
        if DL and e == 0: return {3: [salu(f's_sub_u32 {sT}, {sMODE}, {sU}')], 7: [salu(f's_cmp_lt_u32 {sT}, 2'), salu('s_cbranch_scc1 L2_n'), salu(f'L2_n{s % 4}_r:')]}
        if e == (4 if SK and s == 0 else 5) and PD: return {(7 if e == 4 else 1): [vload(f'buffer_load_dword {vDUM}, v49, {sWQ}, {sQW} offen')]}
        if SK and s and s % 4 == 0 and e == 0: return {3: [salu(f's_cmp_eq_u32 {sCNT}, -1'), salu(f's_cselect_b32 {sT}, {sP0}, 0x1000')], 7: [vload(f'buffer_load_dword v75, v74, {sDBG}, {sT} offen sc1', V(75))]}
        return {}
    if opt.get('qdiag'):
        cntl = [0]
        def qx2(s, e):
            r = qx(s, e)
            if e == 2:
                far.append(f'L2_sx{s}:\n{signal(sFU, sDBG)}\ns_branch L2_sx{s}_r')
                r[7] = [r[7][0], salu(f's_cbranch_scc1 L2_sx{s}'), salu(f'L2_sx{s}_r:')]
            return r
        del far[-4:]
        for s_ in range(12):
            gq.stages(st, s_, s_ + 1, None, qx2, None)
            if s_ < 11: sp.stamp(st)
        sp.on2 = True
    else: gq.loop(st, 'L2_q', sCNT, extra=qx)
    a(hasg2(sT) + f'\ns_cmp_lg_u32 {sT}, 0\ns_cbranch_scc1 L2_G')
    sg = st.fork(); spg = sp.n
    def q_last_extra(s_, SR, nm):
        ld = f'buffer_load_dword v75, v74, {sDBG}, {sP0} offen sc1'
        far.append(f'{nm}:\ns_mov_b32 {sCNT}, {-(1 << 20)}\n{nm}1:\n{ld}\ns_add_u32 {sCNT}, {sCNT}, 1\ns_cbranch_scc1 {nm}_x\ns_waitcnt vmcnt(0)\n'
                   f'v_cmp_gt_u32 vcc, {sRDY}, v75\ns_nop 4\ns_cbranch_vccnz {nm}1\n{nm}_x:\ns_waitcnt vmcnt(0)\ns_branch {nm}_r')
        def f(s, e):
            if s == 12 and e == 2: return {3: [valu('v_and_b32 v74, 1, v0'), valu('v_lshlrev_b32 v74, 7, v74')], 7: [vload(ld, V(75))]}
            if s == 13 and e == 5: return {1: [valu(f'v_cmp_gt_u32 vcc, {sRDY}, v75', rd=[V(75)])], 5: [salu(f's_cbranch_vccnz {nm}'), salu(f'{nm}_r:')]}
            if s == 12 + SK and e == 0: return {3: [valu(f'v_bfe_u32 v72, v0, 3, 1'), valu(f'v_and_b32 v73, 7, v0')], 7: [valu('v_lshlrev_b32 v72, 7, v72'), valu('v_lshl_add_u32 v72, v73, 3, v72')]}
            if s == 12 + SK and e == 1: return {7: [salu(f's_lshl_b32 {sP1}, {sQ64}, 10')]}
            if s == 14 and e in (5, 6):
                return {g: [vload(f'buffer_load_dwordx2 {SR.sub(2*n,2)}, v72, {sWS}, {sP1} offen offset:{256*n} sc1', SR.sub(2 * n, 2))] for g, n in ((1, 2 * (e - 5)), (5, 2 * (e - 5) + 1))}
            if s == 15 and e == 3 + 2 * SK:
                return {3 + 2 * SK: [valu(f'v_add_f32 {CS.sub(4*k)}, {CS.sub(4*k)}, {CS.sub(4*k+1)}') for k in range(2)],
                        7: [Op(f'ds_write2_b32 {vCw}, {CS.sub(0)}, {CS.sub(4)} offset0:0 offset1:16', 'ds', wr=[('x', 0)])]}
            if s == 15 and e == 6 + SK: s_.push([ds_128(Qf(2 + (k & 1), k >> 1), vCr.sub(k >> 1), 64 * (k & 1)) for k in range(8)])
            return {}
        return f

    su_kv = f's_lshl_b32 {sKV0}, {sHEAD}, 19\ns_mov_b32 {sK}, {sKV0}\ns_mov_b32 {sV}, {sKV0}\n'
    su_kv += f'v_bfe_u32 v{t}, v0, 4, 2\nv_lshrrev_b32 v{t+1}, 6, v0\nv_lshl_add_u32 v{t+1}, v{t+1}, 4, v{t}\nv_lshlrev_b32 v{t+1}, 8, v{t+1}\nv_and_b32 v{t+2}, 15, v0\n'
    for i in range(4):
        su_kv += f'v_or_b32 v{t+3}, {4*i}, v{t}\nv_xor_b32 v{t+3}, v{t+3}, v{t+2}\nv_lshl_add_u32 {vKd.sub(i)}, v{t+3}, 4, v{t+1}\n'
    for i in range(2):
        su_kv += f'v_or_b32 v{t+3}, {4*i}, v{t}\nv_lshlrev_b32 v{t+3}, 1, v{t+3}\nv_xor_b32 v{t+3}, v{t+3}, v{t+2}\nv_lshl_add_u32 {vVd.sub(i)}, v{t+3}, 4, v{t+1}\n'
    su_kv += f'v_and_b32 v{t+1}, 1, v{t}\nv_lshlrev_b32 v{t+1}, 1, v{t+1}\nv_lshrrev_b32 v{t+3}, 1, v{t}\nv_or_b32 v{t+1}, v{t+1}, v{t+3}\n'
    su_kv += f's_lshl_b32 {sT}, {sWAVE}, 2\nv_xor_b32 v{t+1}, {sT}, v{t+1}\nv_xor_b32 v{t+1}, v{t+1}, v{t+2}\nv_lshlrev_b32 v{t+2}, 8, v{t+2}\n'
    for i in range(4):
        su_kv += f'v_xor_b32 v{t+3}, {4*i}, v{t+1}\nv_lshl_add_u32 {vKa.sub(i)}, v{t+3}, 4, v{t+2}\n'
    su_kv += '\n'.join(waddr_setup(vVa, VBASE, 'blk', t))
    g2head = f"""s_and_b32 {sT3}, {sSLOT}, 1
s_lshl_b32 {sT3}, {sT3}, 1
s_and_b32 {sT}, {sIDX}, 1
s_add_u32 {sT3}, {sT3}, {sT}
s_lshl_b32 {sT}, {sT3}, 8
s_add_u32 {sFU}, {sT}, {FL + 8192}
s_lshr_b32 {sT}, {sSLOT}, 1
s_mul_i32 {sT}, {sT}, {56 // GW}
s_lshr_b32 {sT4}, {sIDX}, 1
s_add_u32 {sT}, {sT}, {sT4}
s_add_u32 {sT4}, {sT4}, {sIDX}
"""
    if G2N:
        pre_ = [sum(G2N[:k]) for k in range(8)]
        g2head = f"""s_mov_b32 {sT}, {sum(p << (8 * k) for k, p in enumerate(pre_[4:]))}
s_cmp_lt_u32 {sSLOT}, 4
s_cselect_b32 {sT}, {sum(p << (8 * k) for k, p in enumerate(pre_[:4]))}, {sT}
s_lshl_b32 {sT4}, {sSLOT}, 3
s_lshr_b32 {sT}, {sT}, {sT4}
s_and_b32 {sT}, {sT}, 0xff
s_add_u32 {sT}, {sT}, {sIDX}
s_cmp_ge_u32 {sT}, 56
s_cselect_b32 {sT3}, 2, 0
s_cselect_b32 {sT4}, 56, 0
s_sub_u32 {sT}, {sT}, {sT4}
s_and_b32 {sT4}, {sT}, 1
s_add_u32 {sT3}, {sT3}, {sT4}
s_lshl_b32 {sFU}, {sT3}, 8
s_add_u32 {sFU}, {sFU}, {FL + 8192}
s_lshr_b32 {sT}, {sT}, 1
s_add_u32 {sT4}, {sT4}, {sT}
"""
    su_g2 = g2head + f"""s_and_b32 {sT4}, {sT4}, {opt.get('rotg', 1)}
s_mul_i32 {sW3}, {sT}, {32 * GW}
s_and_b32 {sR0}, {sT}, {GW & 1}
s_lshl_b32 {sB}, {sR0}, 5
s_add_u32 {sB}, {sB}, {sW3}
s_mul_i32 {sBN}, {sR0}, -224
s_add_u32 {sBN}, {sBN}, {sB}
s_mul_i32 {sU}, {sT}, {GW}
s_add_u32 {sU}, {sU}, {sR0}
s_lshl_b32 {sU}, {sU}, 10
s_mul_i32 {sQA}, {sR0}, {8 - 4 * 2048}
s_add_u32 {sQA}, {sQA}, {3 * 2048}
s_lshl_b32 {sR0}, {sR0}, 1
s_lshl_b32 {sT}, {sT3}, 2
s_add_u32 {sT}, {sT}, {sWAVE}
s_lshl_b32 {sA3}, {sT}, 18
s_add_u32 {sA3}, {sA3}, {HF}
s_mul_i32 {sT}, {sT}, {2*112*2048}
s_add_u32 {sU}, {sU}, {sT}
s_add_u32 {sU}, {sU}, {UF}
s_movk_i32 {sSTR}, 7168
""".replace(sQA + ',', sGA + ',') + rot_setup(sT4, sW3, sA3, sGI, sGJ, 64 * 7168, 8192) + '\n' + '\n'.join(wvoff_setup(vWg, sSTR, 'id', t, sR0 if GW == 7 else None))
    su_g2 += f'\nv_bfe_u32 {vFL}, v0, 4, 2\nv_lshlrev_b32 {vFL}, 3, {vFL}'
    PFSEL = ''
    if opt.get('pf_w', 1) in (2, 3): PFSEL = f's_cmp_eq_u32 {sROLE}, {opt["pf_w"] - 2}\ns_cselect_b32 {sPF0}, {sPF0}, 0x20000000'
    su_n = f"""s_lshl_b32 {sO}, {sQ64}, 19
s_lshl_b32 {sT}, {sHEAD}, 13
s_add_u32 {sO}, {sO}, {sT}
s_add_u32 {sO}, {sO}, {OF}
s_lshl_b32 {sT2}, {sGRP}, 3
s_and_b32 {sT}, {sIDX}, 7
s_add_u32 {sT}, {sT}, {sT2}
s_lshl_b32 {sT}, {sT}, 8
s_add_u32 {sFO}, {sT}, {FL}
s_and_b32 {sST}, {sSLOT}, 3
s_lshl_b32 {sST}, {sST}, 2
s_and_b32 {sT}, {sIDX}, 3
s_add_u32 {sST}, {sST}, {sT}
s_and_b32 {sDT}, {sSLOT}, 4
s_lshr_b32 {sT}, {sIDX}, 2
s_add_u32 {sDT}, {sDT}, {sT}
s_lshl_b32 {sT}, {sST}, 3
s_add_u32 {sT}, {sT}, {sDT}
s_lshl_b32 {sT}, {sT}, 2
s_add_u32 {sT}, {sT}, {sWAVE}
s_mov_b32 {sG}, {sT}
s_lshl_b32 {sT}, {sIDX}, 3
s_add_u32 {sT}, {sT}, {sSLOT}
s_lshl_b32 {sT}, {sT}, 2
s_add_u32 {sT}, {sT}, {sWAVE}
s_mul_i32 {sPF0}, {sT}, 28672
{PFSEL}
s_mov_b32 {sMODE}, 0
s_lshl_b32 {sT2}, {sST}, 2
s_add_u32 {sT2}, {sT2}, {sWAVE}
s_lshl_b32 {sR0}, {sT2}, 16
s_lshl_b32 {sT3}, {sDT}, 8
s_add_u32 {sR0}, {sR0}, {sT3}
s_add_u32 {sR1}, {sR0}, 32768
s_andn2_b32 {sT2}, {sT2}, 4
s_lshl_b32 {sT2}, {sT2}, 18
s_add_u32 {sT2}, {sT2}, {OF}
s_and_b32 {sT}, {sST}, 1
s_mul_i32 {sT4}, {sT}, {NY * 4096}
s_add_u32 {sT2}, {sT2}, {sT4}
s_mul_i32 {sT4}, {sT}, {NY * 64 * 2048}
s_add_u32 {sT3}, {sT3}, {sT4}
s_andn2_b32 {sT}, {sDT}, 1
s_lshl_b32 {sT}, {sT}, 2
s_add_u32 {sT}, {sT}, {sWAVE}
s_mul_i32 {sGA0}, {sT}, {112*2048}
s_add_u32 {sGA0}, {sGA0}, {UF}
s_and_b32 {sT}, {sDT}, 1
s_mul_i32 {sT4}, {sT}, {28 * 4096}
s_add_u32 {sGA0}, {sGA0}, {sT4}
s_mul_i32 {sGW0}, {sT}, {28 * 64 * 4096}
s_lshl_b32 {sT4}, {sST}, 8
s_add_u32 {sGW0}, {sGW0}, {sT4}
s_lshr_b32 {sFW}, {sDT}, 1
s_add_u32 {sROT}, {sFW}, {sST}
s_add_u32 {sFW}, {sFW}, 32
s_lshr_b32 {sTG}, {sST}, 1
s_add_u32 {sT}, {sTG}, {sDT}
s_cmp_eq_u32 {sROLE}, 0
s_cselect_b32 {sGA0}, {sGA0}, {sT2}
s_cselect_b32 {sGW0}, {sGW0}, {sT3}
s_cselect_b32 {sROT}, {sROT}, {sT}
s_cselect_b32 {sBN}, {sT4}, 0x10000
s_cselect_b32 {sFW}, {sFW}, {sTG}
s_cselect_b32 {sTG}, {224 // GW}, {16 * OM}
s_lshl_b32 {sFW}, {sFW}, 8
s_add_u32 {sFW}, {sFW}, {FL}
{hasg2(sSIG)}
s_cmp_eq_u32 {sWAVE}, 0
s_cselect_b32 {sSIG}, {sSIG}, 0
s_mul_i32 {sSIG}, {sSIG}, -7
s_lshr_b32 {sSTR}, 4096, {sROLE}
s_lshl_b32 {sT3}, {sSTR}, 6
s_and_b32 {sROT}, {sROT}, {opt.get('rot', 1)}
"""
    su_n2 = rot_setup(sROT, sGW0, sGA0, sNI, sNJ, sT3, 4096) + '\n' + '\n'.join(wvoff_setup(vWq, sSTR, 'blk', t))
    su_n2 += f'\nv_mov_b32 v{t+1}, {FLAG}'
    pre_kv = kdma(0) + kdma(1) + vdma(0) + vdma(1) + kdma(2)
    kvtail = lambda i: pre_kv[i * 12:(i + 1) * 12]
    def last_before_att(g, s_, pre, more=None):
        n = g.nst
        def ex(s, e):
            if s == n - 4 + SK and e == 0: s_.push(parse(su_kv) + parse(pre) + parse(su_n))
            if s == n - 3 and e == g.NW - 2: assert len(s_.q) <= len(parse(su_n)) + 40, len(s_.q)
            if s == n - 2 and e == 0: s_.push(parse(su_n2))
            if s == n - 1 and e == g.NW - 2 + SK: assert not s_.q, len(s_.q)
            r = more(s, e) if more else {}
            if s == n - 1 and e == g.NW - 2 + SK:
                s_.push([kread(0, 0, tt) for tt in range(4)] + [kread(0, 1, 0), Op(f'ds_write_b32 v{t+1}, {vZERO}', 'ds', wr=[('z', 0)])])
            return r
        g.last(s_, kvtail, ex, last_bar=['K0'])
        s_.flush()
    qa = q_last_extra(st, BIAS.sub(0, 8), 'L2_wa')
    def qs(s, e):
        if s == 13 and e == 1:
            st.push(parse(f's_mov_b32 s8, s58\ns_mov_b32 s9, s59\ns_cmp_eq_u32 {sROLE}, 0\ns_cselect_b32 s10, 14680064, 0\ns_lshl_b32 {sQW}, s2, 2\ns_add_u32 {sQW}, {sQW}, {sWAVE}\ns_lshl_b32 {sQW}, {sQW}, 12'))
        if (s, e) in [tuple(x) for x in opt.get('pfpos', [(15, 7)])] and opt.get('pf_w1', 1): st.push(pfw1())
        return qa(s, e)
    last_before_att(gq, st, '', qs)
    sp.stamp(st)
    q_epilogue(st, BIAS.sub(0, 8))
    sp.stamp(st); sp.stamp(st)
    a('L2_join:')
    st.tags['st'] = st.issued['vm'] + 1
    pre = [f'v_mov_b32 {vIDX}, 0x3f803f80'] + [f'v_accvgpr_write_b32 {ONES.sub(i)}, {vIDX}' for i in range(4)]
    pre += f'v_and_b32 {vIDX}, 1, v0\nv_sub_u32 {vIDX}, 0, {vIDX}\nv_and_b32 {vIDX}, 0xaaaaaaaa, {vIDX}\nv_or_b32 {vIDX}, 0x44444444, {vIDX}'.split('\n')
    pre += [f'v_accvgpr_write_b32 {LS.sub(i)}, 0' for i in range(16) if (i & 3) < 2]
    M = T
    a('s_nop 0')
    FT = 1
    RC, PA = opt.get('rc', [1]), opt.get('pa', 1)
    sRCM, sRCF = sQA, sQA2
    a(f's_mov_b32 {sRCM}, {sum(1 << ((k - 7) & 31) for k in RC)}\ns_mov_b32 {sRCF}, 0')
    sp.stamp(st)
    a('L2_att:')
    if not FT: a(f'v_mov_b64 {P.sub(32,2)}, 0\nv_mov_b64 {P.sub(34,2)}, 0')
    a(f's_mov_b32 {sGW}, {sGW0}\ns_mov_b32 {sGA}, {sGA0}\ns_mov_b32 {sPF}, {sPF0}')
    def sig_end(name, soff, pre=''):
        far.append(f'{name}:\n{pre}{signal(soff)}\ns_mov_b32 {sSIG}, 0\ns_branch {name}_r')
        return f's_cmp_eq_u32 {sCNT}, {sSIG}\ns_cbranch_scc1 {name}\n{name}_r:'
    usig = sig_end('L2_su', sFU)
    far.append(f'L2_wn:\n{spin("L2_wn1", sFW, sTG)}\ns_branch L2_wn_r')
    far.append(f'L2_bad:\nds_write_b32 v{t+1}, {vONE}\ns_waitcnt lgkmcnt(0)\ns_branch L2_bad_r')
    su_s = f's_lshl_b32 {sW3}, {sDT}, 8\ns_add_u32 {sW3}, {sW3}, {NSY*64*2048}\ns_lshl_b32 {sT}, {sST}, 2\ns_add_u32 {sT}, {sT}, {sWAVE}\ns_lshl_b32 {sA3}, {sT}, 18\ns_add_u32 {sA3}, {sA3}, {OF + NSY*4096}\n'
    su_s += f's_add_u32 {sT3}, {sST}, {sDT}\ns_and_b32 {sT3}, {sT3}, {opt.get("rot", 1)}\n' + rot_setup(sT3, sW3, sA3, sSI, sSJ, 64 * 2048, 4096)
    su_s += f'\nv_bfe_u32 v{t+2}, v0, 4, 2\nv_lshrrev_b32 v{t+3}, 6, v0\nv_lshl_add_u32 v{t+2}, v{t+3}, 4, v{t+2}\nv_lshlrev_b32 v{t+2}, 11, v{t+2}'
    for i in range(4): su_s += f'\nv_sub_u32 {vWg.sub(i)}, {vWq.sub(i)}, v{t+2}' + (f'\nv_subrev_u32 {vWg.sub(i)}, {4*i*2048}, {vWg.sub(i)}' if i else '')
    su_a = f's_and_b32 {sT3}, {sDT}, 1\ns_mov_b32 {sT2}, {1 << 20}\ns_cmp_eq_u32 {sROLE}, 0\ns_cselect_b32 {sT2}, {4*112*2048}, {sT2}\ns_cselect_b32 {sT3}, {sT3}, 0\n'
    su_a += f's_mul_i32 {sT3}, {sT3}, {sT2}\ns_sub_u32 {sT2}, {sT2}, {sT3}\nv_add_u32 {vA0}, {sT3}, {vL16}\nv_add_u32 {vA1}, {sT2}, {vL16}'
    FRr = [V(38), V(40), V(41), V(252)]
    FRp = [(V(38, 2), 0), (V(40, 2), 0), (V(40, 2), 1), (V(252, 2), 0)]
    TR = S.sub(0, 4)
    mg = int(opt.get('margin', MARGIN))
    ra = f'L2_ra:\ns_mov_b32 {sRCF}, 1\ns_nop 7\n'
    for b in range(4): ra += f'v_accvgpr_read_b32 {TR.sub(b)}, {LS.sub(4*b)}\nv_accvgpr_read_b32 {FRr[b]}, {LS.sub(4*b+1)}\n'
    for b in range(4): ra += f'v_add_f32 {TR.sub(b)}, {TR.sub(b)}, {FRr[b]}\n'
    for b in range(4): ra += f'v_frexp_exp_i32_f32 {TR.sub(b)}, {TR.sub(b)}\n'
    for b in range(4): ra += f'v_sub_u32 {TR.sub(b)}, {1 - mg}, {TR.sub(b)}\n'
    for b in range(4): ra += f'v_ldexp_f32 {FRr[b]}, 1.0, {TR.sub(b)}\nv_cvt_f32_i32 {TR.sub(b)}, {TR.sub(b)}\n'
    for b in range(4):
        for i in range(4): ra += f'v_add_f32 {NEGM.sub(4*b+i)}, {NEGM.sub(4*b+i)}, {TR.sub(b)}\n'
    rb = f'L2_rb:\ns_mov_b32 {sRCF}, 0\nv_mov_b32 {TR.sub(3)}, 0x7f800000\ns_nop 7\n'
    scale = lambda x, b: f'v_pk_mul_f32 {x}, {x}, {FRp[b][0]} op_sel:[0,{FRp[b][1]}] op_sel_hi:[1,{FRp[b][1]}]\n'
    for b in range(4):
        rb += f'v_accvgpr_read_b32 {TR.sub(0)}, {LS.sub(4*b)}\nv_accvgpr_read_b32 {TR.sub(1)}, {LS.sub(4*b+1)}\n'
        rb += f'v_add_f32 {TR.sub(2)}, {TR.sub(0)}, {TR.sub(1)}\nv_cmp_ge_f32 vcc, 0x47800000, {TR.sub(2)}\ns_nop 1\nv_cndmask_b32 {FRr[b]}, {TR.sub(3)}, {FRr[b]}, vcc\n'
        rb += scale(TR.sub(0, 2), b) + f'v_accvgpr_write_b32 {LS.sub(4*b)}, {TR.sub(0)}\nv_accvgpr_write_b32 {LS.sub(4*b+1)}, {TR.sub(1)}\n'
    for k in range(64): rb += scale(O.sub(2 * k, 2), (k >> 1) & 3)
    if RC: far += [ra + 's_branch L2_ra_r', rb + 's_branch L2_rb_r']
    marks = []
    for j in range(-1, 31):
        if 0 <= j <= 28 and j % 4 == 0: marks.append(st.mark())
        if j == 28: st.push(parse(su_a))
        if j == 30: st.push(flat(g4.window(0)[4:]) + flat(g4.window(1)[4:8]))
        if j < 0 and FT: first_tile(st, opt, pre)
        else: att_iter(st, j, g4, opt)
        assert not st.q
        if RC and 0 <= j < 28 and j % 4 == PA: a(f's_bitcmp1_b32 {sRCM}, {sCNT}\ns_cbranch_scc1 L2_ra\nL2_ra_r:')
        if RC and 0 <= j < 28 and j % 4 == (PA + 1) % 4: a(f's_cmp_lg_u32 {sRCF}, 0\ns_cbranch_scc1 L2_rb\nL2_rb_r:')
        if 0 <= j < 28 and j % 4 == 3: st.ops(publish(usig.split('\n'), 'wg'))
    st.fold(marks, 'L2_loop', sCNT)
    w1_ = flat(g4.window(1)[8:]) + (flat(g4.window(2)[2:10]) if g4.pre2 else [])
    LV = NEGM.sub(0, 8)
    st.push([10] + w1_[:5])
    st.push([valu(f'v_accvgpr_read_b32 {LV.sub(k)}, {LS.sub(4*(k >> 1) + (k & 1))}') for k in range(8)])
    st.push([valu(f'v_add_f32 {LV.sub(2*b)}, {LV.sub(2*b)}, {LV.sub(2*b+1)}') for b in range(4)])
    st.push(parse(f'v_add_f32 v{t+2}, {LV.sub(0)}, {LV.sub(2)}\nv_add_f32 v{t+3}, {LV.sub(4)}, {LV.sub(6)}\nv_add_f32 v{t+2}, v{t+2}, v{t+3}\nv_cmp_nge_f32 vcc, 0x47800000, v{t+2}'))
    st.push([valu(f'v_rcp_f32 {LV.sub(2*b)}, {LV.sub(2*b)}') for b in range(2)])
    st.push([[salu('s_cbranch_vccnz L2_bad'), salu('L2_bad_r:')], barrier(['N0']), Op(f'ds_read_b32 v{t}, v{t+1}', 'ds', wr=V(t).set())])
    st.push([valu(f'v_rcp_f32 {LV.sub(2*b)}, {LV.sub(2*b)}') for b in range(2, 4)])
    st.push(w1_[5:])
    st.push([valu(f'v_subrev_u32 {vWa.sub(e)}, {VBASE - KBASE}, {vVa.sub(e)}') for e in range(4)])
    st.push([valu(f'v_readfirstlane_b32 {sT}, v{t}', rd=[V(t)])])
    st.push([valu(f'v_subrev_u32 {vWa.sub(e)}, {VBASE - KBASE}, {vVa.sub(e)}') for e in range(4, 8)])
    st.push([[salu(f's_cmp_gt_u32 {sT}, {sMODE}'), salu('s_cbranch_scc1 L2_redo')]])
    st.push(parse(f's_add_u32 {sT}, {sO}, 4096\ns_add_u32 {sT2}, {sO}, {128*2048}\ns_add_u32 {sT3}, {sT2}, 4096'))
    st.push(parse(f's_lshr_b32 {sFW}, {sST}, 1\ns_lshl_b32 {sFW}, {sFW}, 8\ns_add_u32 {sFW}, {sFW}, {FL}'))
    BV = NEGM.sub(8, 8)
    bv = [valu(f'v_accvgpr_read_b32 {BV.sub(e)}, {BA.sub(e)}', rd=[BA.sub(e)]) for e in range(8)]
    for r in g4.reads(0) + g4.reads(1): st.push([r, bv.pop(0)])
    att_iter(st, 31, g4, opt)
    st.flush()
    sp.stamp(st)
    for tt in range(4):
        for b in range(4):
            x, y = accq(2 * tt, b), accq(2 * tt + 1, b)
            for r in (x, y):
                for h in (0, 2): a(f'v_pk_mul_f32 {r.sub(h,2)}, {r.sub(h,2)}, {LV.sub(2*b,2)} op_sel_hi:[1,0]')
            for h in range(4): a(f'v_cvt_pk_bf16_f32 {x.sub(h)}, {(x, y)[h >> 1].sub(2*(h & 1))}, {(x, y)[h >> 1].sub(2*(h & 1)+1)}')
            st.op(vstore(f'buffer_store_dwordx4 {x}, {vL16}, {sWS}, {[[sO, sT], [sT2, sT3]][b >> 1][tt >> 1]} offen offset:{(tt & 1) * 2048 + (b & 1) * 1024} sc1'))
        for e in (2 * tt + 1, 2 * tt):
            x = QACC.sub(16 * e, 16)
            for i in range(2): a(f'v_lshlrev_b32 {x.sub(i)}, 16, {BV.sub(e)}')
            for i in range(1, 8): a(f'v_mov_b64 {x.sub(2*i,2)}, {x.sub(0,2) if i < 4 else 0}')
    sp.stamp(st)
    a(f's_cmp_lg_u32 {sROLE}, 0\ns_cbranch_scc1 L2_Y')
    sy = st.fork(); spn = sp.n
    def hooks(g, name, events, sig=None, sigpos=2, code=False):
        pos = {c % 4 for c in events}; assert len(pos) == 1; pos = pos.pop()
        nf = g.nst // 4 - 1
        inl = {c: x for c, x in events.items() if g.folded(c)}
        out = [c for c in events if not g.folded(c)]
        txt = f'{name}:\n'
        for c, x in inl.items(): txt += f's_cmp_lg_u32 {sCNT}, {g.trip(c) - nf}\ns_cbranch_scc1 {name}_{c}\n{x}\n{name}_{c}:\n'
        if inl: far.append(txt + f's_branch {name}_r')
        mask = sum(1 << ((g.trip(c) - nf) & 31) for c in inl)
        def f(s, e):
            fold = g.folded(s)
            want = lambda d: ((s + d) % 4 == pos and (inl or any(g.folded(c - d) for c in out))) if fold else (s + d) in events
            if fold and sig and g.skew and (s % 4, e) == (1, 7):
                return {6: publish(sig.split('\n'), 'wg'), 3: [valu(f'v_readfirstlane_b32 {sT}, {vFL}', rd=[vFL])] if want(1) else []}
            if g.NA == 4 and e == 0 and want(1): return {3: [flag_load(sFW)]}
            if g.NA == 2 and e == 0 and want(2): return {3: [flag_load(sFW)]}
            if e == 7 and want(1): return {3: [valu(f'v_readfirstlane_b32 {sT}, {vFL}', rd=[vFL])]}
            if e == 0 and fold and inl and s % 4 == pos: return {3: [salu(f's_bitcmp1_b32 {mask}, {sCNT}'), salu(f's_cbranch_scc1 {name}'), salu(f'{name}_r:')]}
            if e == 0 and s in out:
                far.append(f'{name}o:\n{events[s]}\ns_branch {name}o_r')
                return {3: [salu(f's_branch {name}o'), salu(f'{name}o_r:')]}
            if fold and sig and not g.skew and (s % 4, e) == sigpos: return {(1 if g.NA == 4 else 3): publish(sig.split('\n'), 'wg')}
            if e == 2 and fold and code and s % 4 == 0 and opt.get('rpf', 1): return {3: [pfcode()]}
            return {}
        return f
    def need(name, target): return f's_cmp_ge_u32 {sT}, {target}\ns_cbranch_scc1 {name}_k\n{spin(name, sFW, target)}\n{name}_k:'
    def pack_store(x, y, so, off, zero=False):
        o = [valu(f'v_cvt_pk_bf16_f32 {x.sub(h)}, {(x, y)[h >> 1].sub(2*(h & 1))}, {(x, y)[h >> 1].sub(2*(h & 1)+1)}') for h in range(4)]
        o.append(vstore(f'buffer_store_dwordx4 {x}, {vL16}, {sWS}, {so} offen offset:{off} sc1'))
        if zero: o += [valu(f'v_mov_b64 {r.sub(h,2)}, 0') for r in (y, x) for h in (0, 2)]
        return o

    opre, opos = (f's_waitcnt vmcnt({10 + opt.get("rpf", 1)})\n', (0, opt.get('pe', 6))) if PW else ('', (1, 6))
    a(f's_mov_b32 {sSIG}, -6' if PW else f's_cmp_eq_u32 {sWAVE}, 0\ns_cselect_b32 {sSIG}, -6, 0')
    h4 = hooks(g4, 'L2_h4', {25: need('L2_c0', 16 * OM)}, sig_end('L2_so', sFO, opre), opos, True)
    g4.loop(st, 'L2_y', sCNT, extra=h4)
    n3 = g3s.nst
    l2e = f2h(-math.log2(math.e))
    su4 = f"""s_mov_b32 s58, {l2e}
s_mov_b32 s59, {l2e}
s_xor_b32 {sT3}, {sG}, 4
s_lshl_b32 {sP0}, {sT3}, 13
s_add_u32 {sP0}, {sP0}, {YB}
s_add_u32 {sP1}, {sP0}, 4096
s_lshl_b32 {sT3}, {sT3}, 7
s_add_u32 {sFO}, {sT3}, {FL + 16384 + 64}
s_lshl_b32 {sT3}, {sG}, 7
s_add_u32 {sFG}, {sT3}, {FL + 16384}
s_add_u32 {sFU}, {sFW}, {3 * 2048}
s_add_u32 {sFW}, {sFG}, 64
s_mov_b32 {sSIG}, {1 - n3 // 4}
s_lshl_b32 {sT3}, {sWAVE}, 14
s_lshl_b32 {sT4}, {sWAVE}, 11
v_and_b32 v{t+1}, 63, v0
v_lshlrev_b32 v{t+1}, 4, v{t+1}
v_add_u32 v{t}, {sT4}, v{t+1}
v_add_u32 v{t+1}, {sT3}, v{t+1}
v_bfe_u32 v{t+2}, v0, 4, 2
v_and_b32 v{t+3}, 15, v0
v_lshlrev_b32 v{t+2}, 2, v{t+2}
v_sub_u32 v{t+2}, v{t+3}, v{t+2}
v_and_b32 v{t+3}, 1, v0
v_lshlrev_b32 v{t+3}, 4, v{t+3}
v_mov_b32 {SEL.sub(0)}, 0x3f80
v_lshlrev_b32 v{t+3}, v{t+3}, {SEL.sub(0)}
v_lshrrev_b32 v{t+2}, 1, v{t+2}
v_cmp_eq_u32 vcc, 0, v{t+2}
v_mov_b32 {SEL.sub(0)}, 0
v_mov_b32 {SEL.sub(1)}, 0
v_cndmask_b32 {SEL.sub(2)}, 0, v{t+3}, vcc
v_cmp_eq_u32 vcc, 1, v{t+2}
v_mov_b32 {SEL.sub(4)}, 0
v_mov_b32 {SEL.sub(5)}, 0
v_cndmask_b32 {SEL.sub(3)}, 0, v{t+3}, vcc"""
    HP = opt.get('hp', 0)
    vHP = V(16)
    if HP:
        su4 += f"""
s_and_b32 {sT3}, {sST}, 3
s_lshl_b32 {sT3}, {sT3}, 1
s_bfe_u32 {sT4}, {sDT}, 0x10001
s_add_u32 {sT3}, {sT3}, {sT4}
s_lshl_b32 {sT3}, {sT3}, 2
s_add_u32 {sT3}, {sT3}, {sWAVE}
s_lshl_b32 {sT3}, {sT3}, 14
s_lshl_b32 {sT4}, {sT4}, 9
s_sub_u32 {sT3}, {sT3}, {sT4}
s_add_u32 {sT4}, {sST}, {sDT}
s_and_b32 {sT4}, {sT4}, {opt.get('rot', 1)}
s_lshl_b32 {sT4}, {sT4}, 17
s_sub_u32 {sT3}, {sT3}, {sT4}
s_add_u32 {sT3}, {sT3}, {opt.get('hd', 4) * 131072 + 256 + (128 if HP == 1 else 0)}
s_bitcmp1_b32 {sDT}, 0
s_cselect_b32 {sT3}, 0x20000000, {sT3}
v_bfe_u32 {vHP}, v0, 3, 3
v_lshlrev_b32 {vHP}, 11, {vHP}
v_bfe_u32 v{t+2}, v0, 2, {HP - 1}
v_lshl_add_u32 {vHP}, v{t+2}, 7, {vHP}
v_add_u32 {vHP}, {sT3}, {vHP}"""
    ysend = lambda e: pack_store(accq(e, 2), accq(e, 3), [sP0, sP1][e >> 2], 1024 * (e & 3), True)
    def g4x(s, e):
        if s == 24 + SK and e == 1: st.push(parse(su_s.replace(sT + ',', sT4 + ',').replace(', ' + sT + '\n', ', ' + sT4 + '\n')))
        if s == 25 and e == 0: assert not st.q
        if s == 25 and e == 1: st.push(parse(su4))
        if s == 25 and e == 6: assert len(st.q) <= len(parse(su4))
        if s == 27 and e == 2: assert not st.q
        if SK: k = {(27, 3): 4, (27, 5): 5, (27, 7): 6, (28, 1): 7, (28, 2): 0, (28, 3): 1}.get((s, e))
        else: k = e - 2 if (s == 27 and e >= 2) else None
        if k is not None: st.push(ysend(k))
        return h4(s, e)
    pre3 = g3s.window(0) + g3s.window(1) + g3s.window(2) + g3s.window(3)[:2]
    if g3s.uni: pre3 = g3s.window(0) + g3s.window(1) + g3s.window(2)[4:] + g3s.window(2)[:3]
    g4.last(st, lambda i: pre3[12 * i:12 * i + 12], g4x, chain=g3s)
    st.ops(g3s.reads(2))
    st.flush()
    sp.stamp(st)
    st.ops(ysend(2) + ysend(3) if SK else ysend(6) + ysend(7))
    sp.stamp(st)
    YR, PR = A(96, 32), A(128, 64)
    ev1 = need('L2_cy', 1) + f'\ns_lshl_b32 {sP0}, {sG}, 13\ns_add_u32 {sP0}, {sP0}, {YB}\ns_add_u32 {sP1}, {sP0}, 4096\ns_mov_b32 {sFW}, {sFU}\n'
    ev1 += '\n'.join(f'buffer_load_dwordx4 {YR.sub(4*e,4)}, {vL16}, {sWS}, {[sP0, sP1][e >> 2]} offen offset:{1024*(e & 3)} sc1' for e in range(8))
    ev2 = [mfma(accq(e, b), SEL.sub(2 - 2 * b, 4), YR.sub(4 * e, 4), accq(e, b)).text for e in range(8) for b in range(2)]
    for e in range(8):
        x = BIAS.sub((e & 1) * 8, 8); y = QACC.sub(16 * e, 8)
        ev2 += [f'v_pk_mul_f32 {x.sub(2*i,2)}, {y.sub(2*i,2)}, {sC}' for i in range(4)]
        ev2 += [f'v_exp_f32 {x.sub(i)}, {x.sub(i)}' for i in range(8)]
        ev2 += [f'v_pk_add_f32 {x.sub(2*i,2)}, {x.sub(2*i,2)}, 1.0 op_sel_hi:[1,0]' for i in range(4)]
        ev2 += [f'v_rcp_f32 {x.sub(i)}, {x.sub(i)}' for i in range(8)]
        ev2 += [f'v_pk_mul_f32 {y.sub(2*i,2)}, {x.sub(2*i,2)}, {y.sub(2*i,2)}' for i in range(4)]
        if e in (0, 4): ev2.append('s_waitcnt lgkmcnt(0)')
        ev2 += [f'ds_write_b128 v{t}, {y.sub(4*b,4)} offset:{8192*e + 1024*b}' for b in range(2)]
    ev2 = '\n'.join(ev2) + '\ns_waitcnt lgkmcnt(0)'
    c2 = 2 * (16 - 2 * A1) - 3
    ev = {9: ev1, 13: ev2}
    LT = opt.get('late', 0); tg2 = (16 - 2 * Y1) * OM
    if LT:
        ev[c2] = (ev[c2] + '\n' if c2 in ev else '') + f's_cmp_lt_u32 {sT}, {tg2}\ns_cselect_b32 {sRDY}, {(c2 + 3) // 4 - n3 // 4}, 0\ns_cselect_b32 {sT}, 0x40000000, 0\ns_mov_b32 {sP0}, {sA3}\ns_add_u32 {sA3}, {sA3}, {sT}'
        rl = '\n'.join(o.text for k in range(3) for o in flat(g3s.window(c2 + 3 + k)[4:]))
        far.append(f'L2_lt:\n{spin("L2_lt1", sFW, tg2, nap=1)}\ns_mov_b32 {sA3}, {sP0}\n{rl}\ns_waitcnt vmcnt(0)\ns_branch L2_lt_r')
        a(f's_mov_b32 {sRDY}, 0')
    else: ev[c2] = (ev[c2] + '\n' if c2 in ev else '') + need('L2_c2', tg2)
    assert c2 >= 13 and c2 < n3 - 4
    h3 = hooks(g3s, 'L2_h3', ev, sig_end('L2_sy1', sFO), (3, 1))
    g3s.loop(st, 'L2_s', sCNT, extra=lambda s, e: {3: [vload(f'buffer_load_dword {vDUM}, {vHP}, {sWO}, {sW3} offen')]} if (HP and s % 4 == 0 and e == 3) else h3(s, e),
             trip_end=(lambda s_: s_.raw(f's_cmp_eq_u32 {sCNT}, {sRDY}\ns_cbranch_scc1 L2_lt\nL2_lt_r:')) if LT else None)
    GFb = lambda k: accq(k >> 1, k & 1)
    pl = lambda so: [vload(f'buffer_load_dwordx4 {PR.sub(4*n,4)}, {vL16}, {sWS}, {so[n >> 2]} offen offset:{1024*(n & 3)} sc1', PR.sub(4 * n, 4)) for n in range(16)]
    PS = [sP0, sP1, sT4, sFU]
    pset = f's_add_u32 {sP1}, {sP0}, 4096\ns_add_u32 {sT4}, {sP0}, 8192\ns_add_u32 {sFU}, {sP0}, 12288'
    XT = 131072
    vXo, vXe = vWq, vWa
    su_x = f'v_bfe_u32 v{t+2}, v0, 4, 2\nv_and_b32 v{t+3}, 15, v0\nv_xor_b32 {vXo.sub(0)}, v{t+2}, v{t+3}\nv_lshlrev_b32 {vXo.sub(0)}, 4, {vXo.sub(0)}\nv_lshl_add_u32 {vXo.sub(0)}, v{t+2}, 11, {vXo.sub(0)}\n'
    for k in range(1, 4): su_x += f'v_xor_b32 {vXo.sub(k)}, {64*k}, {vXo.sub(0)}\nv_add_u32 {vXo.sub(k)}, {k*(8192-1024)}, {vXo.sub(k)}\n'
    su_x += f's_lshl_b32 {sT3}, {sWAVE}, 13\ns_add_u32 {sT3}, {sT3}, {XT}\ns_lshl_b32 {sG}, {sG}, 14\ns_add_u32 {sG}, {sG}, {GB}'
    su_e = f'v_lshrrev_b32 v{t}, 1, v{t+2}\nv_xor_b32 v{t}, v{t}, v{t+3}\nv_lshlrev_b32 v{t}, 4, v{t}\nv_lshl_add_u32 v{t}, v{t+3}, 8, v{t}\nv_and_b32 {vX}, 1, v{t+2}\nv_lshl_add_u32 v{t}, {vX}, 3, v{t}\nv_add_u32 {vXe.sub(0)}, {sT3}, v{t}\n'
    for k in range(1, 8): su_e += f'v_xor_b32 {vXe.sub(k)}, {32*k}, {vXe.sub(0)}\n'
    su_e += f'v_and_b32 {vX}, 63, v0\nv_lshl_add_u32 {vX}, {vX}, 4, {sT3}'
    a(su_x)
    def xwin(i_):
        if i_: return []
        r_ = xw()
        return r_[4:] + r_[:4] if g3s.uni else r_
    def xw():
        return [([salu(f's_add_u32 m0, {sT3}, {4096 * (n >> 2)}')] if n % 4 == 0 else [],
                 vload(f'buffer_load_dwordx4 {vXo.sub(n & 3)}, {sX}, {[sR0, sR1][n >> 2]} offen offset:{1024*(n & 3)} lds', tag=f'x{n}'), []) for n in range(8)]
    FE = opt.get('fe', 8)
    def s3x(s, e):
        if s == n3 - 4 and e == 0:
            v_ = parse(su_e)
            for k in range(16): st.push([ds_128(GFb(k), V(t + 1), 8192 * (k & 1) + 1024 * (k >> 1)), v_.pop(0)])
            un = v_
            for k in range(16):
                b, e_ = k >> 3, k & 7
                x = XF.sub((e_ * 2 + b) * 4, 4)
                st.push([Op(f'ds_read_b64 {x.sub(2,2)}, {vXe.sub(e_)} offset:{4096*b}', 'ds', wr=x.sub(2, 2).set(), waittags=[f'x{4*b+3}'])])
                if k >= 4: st.push([un.pop(0)])
                un += [valu(f'v_lshlrev_b32 {x.sub(0)}, 16, {x.sub(2)}', rd=[x]), valu(f'v_and_b32 {x.sub(1)}, 0xffff0000, {x.sub(2)}'),
                       valu(f'v_lshlrev_b32 {x.sub(2)}, 16, {x.sub(3)}'), valu(f'v_and_b32 {x.sub(3)}, 0xffff0000, {x.sub(3)}')]
            st.push(un)
        if 8 * (s - n3 + 4) + e == FE: return {3: [flag_load(sFG)]}
        if 8 * (s - n3 + 3) + e == FE:
            old = st.q; st.q = []
            st.push([valu(f'v_readfirstlane_b32 {sRDY}, {vFL}', rd=[vFL]), 1])
            st.push(parse(f's_cmp_ge_u32 {sRDY}, 2\ns_cselect_b32 {sP0}, {sG}, 0x40000000\n' + pset))
            st.push(pl(PS))
            st.q += old
        return {}
    g3s.last(st, xwin, s3x)
    sp.stamp(st)
    far.append(f'L2_wg:\n{spin("L2_wg1", sFG, 2, nap=0)}\ns_mov_b32 {sP0}, {sG}\n{pset}\n' + '\n'.join(o.text for o in pl(PS)) + '\ns_branch L2_wg_r')
    KP = opt.get('keep', 32)
    keep = st.q[-KP:]; st.q = st.q[:-KP]
    assert all(g[0].kind == 'valu' for g in keep)
    st.flush(); st.q = keep
    assert st.pend[('a', 128)][1] == st.issued['vm'] - 15 and st.done['vm'] < st.issued['vm'] - 15
    a(f's_cmp_lt_u32 {sRDY}, 2\ns_cbranch_scc1 L2_wg\nL2_wg_r:')
    sp.stamp(st)
    mf = [mfma(acc3(e, b), SEL.sub(2 - 2 * (e & 1), 4), PR.sub((j * 8 + b * 4 + (e >> 1)) * 4, 4), acc3(e, b)) for j in range(2) for b in range(2) for e in range(8)]
    st.gaps(mf, [[] for _ in mf])
    st.flush()
    OD = lambda n: accq(n, 0)
    ost = lambda n: st.op(vstore(f'buffer_store_dwordx4 {OD(n)}, {vXo.sub(n & 3)}, {sOUT}, {[sR0, sR1][n >> 2]} offen offset:{1024*(n & 3)}' + opt.get('osuf', ''), rd=[OD(n)]))
    for b in range(2):
        for e in range(8):
            k = (e * 2 + b) * 4
            for h in (0, 2): st.op(valu(f'v_pk_fma_f32 {XF.sub(k+h,2)}, {acc3(e, b).sub(h,2)}, {accq(e, b).sub(h,2)}, {XF.sub(k+h,2)}', rd=[accq(e, b)]))
            for h in (0, 2): a(f'v_cvt_pk_bf16_f32 {XF.sub(k + h // 2)}, {XF.sub(k+h)}, {XF.sub(k+h+1)}')
            st.op(Op(f'ds_write_b64 {vXe.sub(e)}, {XF.sub(k,2)} offset:{4096*b}', 'ds'))
            if b == 1 and e >= 4: ost(e - 4)
        for n in range(4 * b, 4 * b + 4): st.op(ds_128(OD(n), vX, 1024 * n))
    for n in range(4, 8): ost(n)
    if sp.on: a('s_waitcnt vmcnt(0)')
    sp.stamp(st)
    sp.flush(st, sWS, t)
    a('L2_end:\ns_endpgm')

    a = sy.raw; sp.n = spn
    a('L2_Y:')
    assert (2 * A1 - 3) % 4 != 0
    a(f"""s_cmp_eq_u32 {sWAVE}, {sWAVE if PW else 0}
s_cselect_b32 {sSIG}, {1 - NY // 4}, 0
s_and_b32 {sT3}, {sST}, 1
s_lshl_b32 {sT4}, {sT3}, 11
s_add_u32 {sFW}, {sFW}, {sT4}
s_add_u32 {sFW}, {sFW}, 2048
s_andn2_b32 {sG}, {sG}, 32
s_lshl_b32 {sFG}, {sG}, 7
s_add_u32 {sFG}, {sFG}, {FL + 16384}
s_lshl_b32 {sG}, {sG}, 14
s_lshl_b32 {sT3}, {sT3}, 13
s_add_u32 {sG}, {sG}, {sT3}
s_add_u32 {sG}, {sG}, {GB}
s_add_u32 {sP0}, {sG}, 4096
s_add_u32 {sR0}, {sG}, {32 << 14}
s_add_u32 {sR1}, {sR0}, 4096""")
    hy = hooks(g3y, 'L2_hy', {2 * A1 - 2: need('L2_c1', Y1 * OM)}, sig_end('L2_yo', sFO, opre), opos, True)
    g3y.loop(sy, 'L2_sy', sCNT, extra=hy)
    def pstore(p):
        o = []
        for b in range(4): o += pack_store(accq(2 * p, b), accq(2 * p + 1, b), [sG, sP0, sR0, sR1][b], 1024 * p)
        return o
    def yx(s, e):
        if SK: k = {(NY - 1, 5): 2, (NY, 1): 3, (NY, 3): 0}.get((s, e))
        else: k = e // 2 - 1 if (s == NY - 1 and e in (3, 5, 7)) else None
        if k is not None: sy.push(pstore(k))
        return hy(s, e)
    g3y.last(sy, None, yx)
    sy.flush()
    sp.stamp(sy); sp.stamp(sy); sp.stamp(sy)
    sy.ops(pstore(1 if SK else 3))
    a(f'v_and_b32 v{t}, 1, v0\nv_lshlrev_b32 v{t}, 12, v{t}\ns_waitcnt vmcnt(0)')
    sp.stamp(sy)
    a(f's_mov_b64 exec, 3\nbuffer_atomic_add {vONE}, v{t}, {sWS}, {sFG} offen sc1\ns_mov_b64 exec, -1\ns_waitcnt vmcnt(0)')
    sp.stamp(sy)
    sp.flush(sy, sWS, t)
    a('s_endpgm')

    a = sg.raw; sp.n = spg
    a('L2_G:')
    qm = q_last_extra(sg, V(10, 8), 'L2_wb')
    def gx(s, e):
        if s == 12 + SK and e == 0:
            sg.push(parse(su_g2))
        ux = lambda r: [valu(f'v_xor_b32 {vWa.sub(k)}, {sROT}, {vWa.sub(k)}') for k in r]
        if not SK and s == 15 and e in (2, 6): sg.push(ux(range(2) if e == 2 else range(2, 8)))
        if SK and (s, e) == (16, 0): return {3: ux(range(2))}
        if SK and (s, e) == (16, 2): sg.push(ux(range(2, 8)))
        if s == 13 and e == (7 if SK else 4): assert len(sg.q) <= 2 * SK, len(sg.q)
        if s == 13 and e == 6 + SK:
            sg.push([vload(f'buffer_load_dwordx2 {BIAS.sub(2*n,2)}, {vFL}, {sBB}, {sB if n < 6 else sBN} offen offset:{32*n}', BIAS.sub(2 * n, 2)) for n in range(GW)])
        return qm(s, e)
    gq.last(sg, g2.window, gx, chain=g2)
    sg.flush()
    sp.stamp(sg)
    q_epilogue(sg, V(10, 8), GW)
    sp.stamp(sg)
    g2.loop(sg, 'L2_g', sCNT, extra=lambda s, e: {1: [pfcode()]} if (opt.get('rpf', 1) and s % 4 == 2 and e == 5) else {})
    k0 = 2.0 * math.sqrt(2.0 / math.pi) * math.log2(math.e)
    last_before_att(g2, sg, f's_mov_b32 s10, 0\ns_mov_b32 s58, {f2h(-k0*0.044715)}\ns_mov_b32 s59, {f2h(-k0*0.044715)}')
    sp.stamp(sg)
    C1 = V(t + 2, 2)
    a(f'v_mov_b32 {C1.sub(0)}, {f2h(-k0)}\nv_mov_b32 {C1.sub(1)}, {f2h(-k0)}')
    a(f's_add_u32 {sT}, {sU}, 4096\ns_add_u32 {sT2}, {sU}, {112*2048}\ns_add_u32 {sT3}, {sT2}, 4096')
    def gelu(x, tt, b):
        u = [(accq(2 * tt + (i >> 1), b) if tt < GW // 2 else accq(6, b + (i >> 1))).sub(2 * (i & 1), 2) for i in range(4)]
        for i in range(4): a(f'v_pk_mul_f32 {x.sub(2*i,2)}, {u[i]}, {u[i]}')
        for i in range(4): a(f'v_pk_fma_f32 {x.sub(2*i,2)}, {x.sub(2*i,2)}, {sC}, {C1}')
        for i in range(4): a(f'v_pk_mul_f32 {x.sub(2*i,2)}, {x.sub(2*i,2)}, {u[i]}')
        for i in range(8): a(f'v_exp_f32 {x.sub(i)}, {x.sub(i)}')
        for i in range(4): a(f'v_pk_add_f32 {x.sub(2*i,2)}, {x.sub(2*i,2)}, 1.0 op_sel_hi:[1,0]')
        for i in range(8): a(f'v_rcp_f32 {x.sub(i)}, {x.sub(i)}')
        for i in range(4): a(f'v_pk_mul_f32 {x.sub(2*i,2)}, {x.sub(2*i,2)}, {u[i]}')
        return accq(2 * tt, b)
    act_store(sg, 4, GW // 2, gelu, [[sU, sT], [sT2, sT3]], BIAS)
    a(f's_add_u32 {sT}, {sU}, {sGA}\ns_add_u32 {sT2}, {sT2}, {sGA}')
    for b in ((0, 2) if GW == 7 else ()):
        x = BIAS.sub(4 * b, 8); d = gelu(x, 3, b)
        for i in range(4): a(f'v_cvt_pk_bf16_f32 {d.sub(i)}, {x.sub(2*i)}, {x.sub(2*i+1)}')
        for h in range(2): sg.op(vstore(f'buffer_store_dwordx2 {d.sub(2*h,2)}, {vL16}, {sWS}, {[sT, sT2][b >> 1]} offen offset:{1024*h} sc1'))
    jn = Op('s_branch L2_join', 's', waittags=['K0', 'K1', 'K2', 'V0', 'V1']); jn.lg0 = True
    sg.op(jn)
    for x in far: a(x)

    a('L2_redo:')
    if opt.get('cntredo'): a(f's_mov_b32 {sT}, {56 << 20}\n' + signal(sT))
    a(f's_mov_b32 {sMODE}, 1\ns_mov_b32 {sRCM}, 0\ns_mov_b32 {sK}, {sKV0}\ns_mov_b32 {sCNT}, -32')
    a(f'v_and_b32 {vPF}, 63, v0\nv_lshlrev_b32 {vPF}, 6, {vPF}')
    for i in range(64): a(f'v_accvgpr_read_b32 {Q.sub(i)}, {QA.sub(i)}')
    for b in range(4): a(f'v_mov_b32 {M.sub(b)}, 0xff800000')
    a('L2_mx:\ns_waitcnt vmcnt(0) lgkmcnt(0)\ns_barrier')
    for pre, v, post in kdma(0):
        for o in pre: a(o.text + '\ns_nop 0')
        a(v.text)
        for o in post: a(o.text)
    a('s_waitcnt vmcnt(0)\ns_barrier')
    for c in range(4):
        for tt in range(4): a(kread(0, c, tt).text)
        a('s_waitcnt lgkmcnt(0)')
        for b in range(4):
            for tt in range(4): a(mfma(O.sub(4 * b, 4), Kf(c, tt), Qf(b, tt), O.sub(4 * b, 4) if tt else 0).text)
        a('s_nop 7')
        for b in range(4):
            x = O.sub(4 * b, 4)
            a(f'v_max3_f32 {M.sub(b)}, {M.sub(b)}, {x.sub(0)}, {x.sub(1)}\nv_max3_f32 {M.sub(b)}, {M.sub(b)}, {x.sub(2)}, {x.sub(3)}')
    a(f's_add_u32 {sCNT}, {sCNT}, 1\ns_cbranch_scc0 L2_mx')
    negm_finish(a, M, 0.0, S.sub(0, 4))
    a(f's_mov_b32 {sK}, {sKV0}\ns_mov_b32 {sV}, {sKV0}\ns_barrier')
    for pre, v, post in pre_kv:
        for o in pre: a(o.text + '\ns_nop 0')
        a(v.text)
        for o in post: a(o.text)
    a('s_waitcnt vmcnt(0)\ns_barrier')
    for tt in range(4): a(kread(0, 0, tt).text)
    a(kread(0, 1, 0).text)
    a('s_waitcnt lgkmcnt(0)\ns_branch L2_att')
    return st.lines() + sy.lines() + sg.lines(), kd(KNAME, 512, 256, 102), '; @launch ' + (f'kernel={KNAME} ' if opt.get('aslist') or 'probe' in opt else '') + 'grid=(256,1,1) block=(256,1,1) lds=163840'
```

```python
import sys, json
from fw import *
HEADER = """
; Kernarg: 0 x, 8 k_cache, 16 v_cache, 24 wq, 32 wo, 40 unused, 48 w1, 56 b1, 64 w2, 72 b2, 80 out, 88 debug, 96 ws.
; One persistent launch, 256 workgroups of 4 waves (one per compute unit, all co-resident), bf16 MFMA 16x16x32, f32 accumulation.
"""
def build(opt):
    parts = []
    import k2; parts.append(k2.gen_k2(opt))
    if 'probe' in opt:
        import probe; parts.append(probe.gen_probe(opt))
    out = [p[2] for p in parts]
    out.append(HEADER.strip())
    out.append('.amdgcn_target "amdgcn-amd-amdhsa--gfx950"\n.text')
    for p in parts:
        name = p[0][0][:-1]
        if opt.get('dsuf'): p[0][:] = [l[:-4] + opt['dsuf'] + ' lds' if l.endswith(' lds') else l for l in p[0]]
        if 'asuf' in opt: p[0][:] = [l[:-4] + opt['asuf'] if (l.startswith('buffer_load_dwordx4 a') and l.endswith(' sc1')) else l for l in p[0]]
        if opt.get('perm'):
            on = False; o = []
            for l in p[0]:
                if l == 'L2_att:': on = True; o.append(l); l = 's_mov_b32 s99, 0x07060302'
                if l == 'L2_bad_r:': on = False
                w = l.split()
                if on and w[0] == 'v_cvt_pk_bf16_f32': l = f'v_perm_b32 {w[1]} {w[3]}, {w[2]} s99'
                o.append(l)
            p[0][:] = o
        if opt.get('abl'):
            import re
            loops, pat = opt['abl']
            inl = None; o = []
            for l in p[0]:
                if l[:-1] in loops and l.endswith(':'): inl = l[:-1]
                if inl and l == 's_cbranch_scc0 ' + inl: inl = None
                if l == 's_cbranch_scc1 L2_redo': l = 's_nop 0'
                o.append('s_nop 0' if (inl and re.search(pat, l)) else l)
            p[0][:] = o
        if opt.get('jitbar'):
            seed, mask, where = opt['jitbar']
            o = []; n = 0
            for l in p[0]:
                if l == 's_barrier':
                    n += 1
                    d = ['s_mul_i32 s96, s96, 0x41c64e6d', 's_add_u32 s96, s96, 12345', 's_lshr_b32 s97, s96, 16', f's_and_b32 s97, s97, {mask}', f'L_jb{n}:', 's_sleep 2', 's_sub_u32 s97, s97, 1', f's_cbranch_scc0 L_jb{n}']
                    o += (d + [l]) if where == 0 else ([l] + d)
                else: o.append(l)
                if l == 's_cbranch_scc1 L2_end': o += ['v_readfirstlane_b32 s96, v0', 's_nop 3', 's_lshl_b32 s96, s96, 8', 's_add_u32 s96, s96, s2', f's_mul_i32 s96, s96, {seed * 7919 + 2654435761 & 0x7fffffff | 1}']
            p[0][:] = o
        if opt.get('lead'):
            kinds, loops = opt['lead']
            o = []; L = p[0]; inl = None
            for k, l in enumerate(L):
                if l.endswith(':') and l[:-1] in loops: inl = l[:-1]
                if inl and l == 's_cbranch_scc0 ' + inl: inl = None
                o.append(l)
                if (inl or 'all' in loops) and 'mfma' in l and k + 1 < len(L):
                    n = L[k + 1]
                    c = 'm' if 'mfma' in n else 'e' if n.startswith('v_exp') else 'v' if n.startswith('v_') else 'd' if n.startswith('ds_') else 'b' if n.startswith(('buffer_', 'global_')) else 's'
                    if c in kinds: o.append('s_waitcnt lgkmcnt(15)')
            p[0][:] = o
        if opt.get('e64'):
            o = []; L = p[0]
            for k, l in enumerate(L):
                if l.startswith('v_exp_f32 ') and 'mfma' in L[k - 1] and 'mfma' in L[k + 1]: l = l.replace('v_exp_f32', 'v_exp_f32_e64')
                o.append(l)
            p[0][:] = o
        if opt.get('nobar'):
            inl = None; o = []
            for l in p[0]:
                if l[:-1] in opt['nobar'] and l.endswith(':'): inl = l[:-1]
                if inl and l == 's_cbranch_scc0 ' + inl: inl = None
                o.append('s_nop 0' if (inl and l == 's_barrier') else l)
            p[0][:] = o
        if opt.get('align', 1): p[0][:] = align_runs(p[0])
        errs = hazards(p[0])
        for e in errs: print('HAZARD', name, e, file=sys.stderr)
        out.append(f'.globl {name}\n.p2align 8\n.type {name},@function')
        out += p[0]
    out.append('.section .rodata,"a"')
    for p in parts: out.append('.p2align 6\n' + p[1])
    return '\n'.join(out) + '\n'
if __name__ == '__main__':
    opt = json.loads(sys.argv[2]) if len(sys.argv) > 2 else {}
    open(sys.argv[1], 'w').write(build(opt))
```
